```python
import torch

def _softmax(x, axis=-1):
    return torch.softmax(x, dim=axis)
def _gelu(x):
    return torch.nn.functional.gelu(x, approximate="tanh")
def _silu(x):
    return torch.nn.functional.silu(x)
def _sigmoid(x):
    return torch.sigmoid(x)
def _layernorm(x, axis=-1, eps=1e-5):
    m = x.mean(dim=axis, keepdim=True)
    v = x.var(dim=axis, keepdim=True, unbiased=False)
    return (x - m) / torch.sqrt(v + eps)
def _scatter_add(tgt, idx, src, axis=0):
    return tgt.clone().index_add_(axis, idx, src)
def _segment_sum(src, seg, n):
    out = torch.zeros((n,) + src.shape[1:], dtype=src.dtype)
    return out.index_add_(0, seg, src)
def _pad(x, pw):
    flat = tuple(v for pair in reversed(pw) for v in pair)
    return torch.nn.functional.pad(x, flat)

kernel_name = 'interleave_layers__sliding_block_cached__mixer_token_mlp__decode'

def setup_inputs():

    _w = (lambda a: (lambda t: t.to(torch.bfloat16) if t.is_floating_point() else t)(torch.as_tensor(a)))
    def _A_setup():
        B, Sq, D = 2, 1, 576
        Hq, Hkv, Sk, Dh = 32, 16, 8192, 128
        assert Hq % Hkv == 0, (Hq, Hkv)
        return {
            "x": _w((lambda *s: torch.randn(*s, dtype=torch.bfloat16) * 0.1)(B, Sq, D)),
            "k_cache": _w((lambda *s: torch.randn(*s, dtype=torch.bfloat16) * 0.8)(B, Hkv, Sk, Dh)),
            "v_cache": _w((lambda *s: torch.randn(*s, dtype=torch.bfloat16) * 3.2)(B, Hkv, Sk, Dh)),
            "wq": _w((lambda *s: torch.randn(*s, dtype=torch.bfloat16) * 0.8)(D, Hq * Dh) * (D ** -0.5)),
            "wo": _w((lambda *s: torch.randn(*s, dtype=torch.bfloat16) * 3.2)(Hq * Dh, D) * ((Hq * Dh) ** -0.5)),
        }
    _A_in = _A_setup()

    def _B_setup():
        B, S, D, F = 2, 1, 576, 4608
        return {
            "x": _w((lambda *s: torch.randn(*s, dtype=torch.bfloat16) * 0.1)(B, S, D)),
            "w1": _w((lambda *s: torch.randn(*s, dtype=torch.bfloat16) * 3.2)(S, F) * (S ** -0.5)),
            "b1": _w((lambda *s: torch.randn(*s, dtype=torch.bfloat16) * 3.2)(F) * 0.02),
            "w2": _w((lambda *s: torch.randn(*s, dtype=torch.bfloat16) * 0.8)(F, S) * (F ** -0.5)),
            "b2": _w((lambda *s: torch.randn(*s, dtype=torch.bfloat16) * 0.8)(S) * 0.02),
        }
    _B_in = _B_setup()

    return {
        "A_x": _A_in["x"],
        "A_k_cache": _A_in["k_cache"],
        "A_v_cache": _A_in["v_cache"],
        "A_wq": _A_in["wq"],
        "A_wo": _A_in["wo"],
        "B_x": _B_in["x"],
        "B_w1": _B_in["w1"],
        "B_b1": _B_in["b1"],
        "B_w2": _B_in["w2"],
        "B_b2": _B_in["b2"],
    }

def reference(A_x, A_k_cache, A_v_cache, A_wq, A_wo, B_x, B_w1, B_b1, B_w2, B_b2):
    def _A_ref(x, k_cache, v_cache, wq, wo):
        B, Sq, D = x.shape
        Hq, Dh = 32, 128
        Hkv, Sk = k_cache.shape[1], k_cache.shape[2]
        W = min(4096, max(256, Sk // 4))
        rep = Hq // Hkv
        q = (lambda x, *d: x.permute(*d))((x @ wq).reshape(B, Sq, Hq, Dh), 0, 2, 1, 3)
        k = (lambda x, n, axis: torch.repeat_interleave(x, n, dim=axis))(k_cache[:, :, Sk - W:, :], rep, axis=1)
        v = (lambda x, n, axis: torch.repeat_interleave(x, n, dim=axis))(v_cache[:, :, Sk - W:, :], rep, axis=1)
        scores = torch.einsum("bhqd,bhkd->bhqk", q, k) * (Dh ** -0.5)
        p = _softmax(scores, axis=-1)
        o = torch.einsum("bhqk,bhkd->bhqd", p, v)
        return (lambda x, *d: x.permute(*d))(o, 0, 2, 1, 3).reshape(B, Sq, Hq * Dh) @ wo

    def _B_ref(x, w1, b1, w2, b2):
        B, S, D = x.shape
        h = _layernorm(x, axis=-1)
        u = torch.einsum("bsd,sf->bdf", h, w1) + b1
        u = _gelu(u)
        y = torch.einsum("bdf,fs->bds", u, w2) + b2
        return (lambda x, *d: x.permute(*d))(y, 0, 2, 1)

    x = A_x
    x = x + _A_ref(_layernorm(x, axis=-1), A_k_cache, A_v_cache, A_wq, A_wo)
    x = x + _B_ref(_layernorm(x, axis=-1), B_w1, B_b1, B_w2, B_b2)
    x = x + _A_ref(_layernorm(x, axis=-1), A_k_cache, A_v_cache, A_wq, A_wo)
    x = x + _B_ref(_layernorm(x, axis=-1), B_w1, B_b1, B_w2, B_b2)
    return x
```

```python
NAME = 'interleave_layers__sliding_block_cached__mixer_token_mlp__decode'

class Asm:
    def __init__(self):
        self.lines = []
        self.nlabel = 0
    def __call__(self, s=''):
        for l in s.split('\n'):
            l = l.strip()
            if l:
                self.lines.append(l if l.endswith(':') else '    ' + l)
    def label(self, base):
        self.nlabel += 1
        return f'L_{base}_{self.nlabel}'
    def text(self):
        return '\n'.join(self.lines) + '\n'

def v(n, cnt=1):
    return f'v{n}' if cnt == 1 else f'v[{n}:{n+cnt-1}]'
def a(n, cnt=1):
    return f'a{n}' if cnt == 1 else f'a[{n}:{n+cnt-1}]'
def s(n, cnt=1):
    return f's{n}' if cnt == 1 else f's[{n}:{n+cnt-1}]'

def wrap(body, header_comments, grid, block, lds, nvgpr, accum, nsgpr=102, name=NAME):
    out = []
    out += header_comments
    out.append(f'; @launch grid=({grid},1,1) block=({block},1,1) lds={lds}')
    out.append('.amdgcn_target "amdgcn-amd-amdhsa--gfx950"')
    out.append('.text')
    out.append(f'.globl {name}_kernel')
    out.append('.p2align 8')
    out.append(f'.type {name}_kernel,@function')
    out.append(f'{name}_kernel:')
    out.append(body.rstrip('\n'))
    out.append('.section .rodata,"a"')
    out.append('.p2align 6')
    out.append(f'.amdhsa_kernel {name}_kernel')
    out.append(f'  .amdhsa_next_free_vgpr {nvgpr}')
    out.append(f'  .amdhsa_next_free_sgpr {nsgpr}')
    out.append(f'  .amdhsa_accum_offset {accum}')
    out.append('  .amdhsa_group_segment_fixed_size 0')
    out.append('  .amdhsa_kernarg_size 104')
    out.append('  .amdhsa_user_sgpr_count 2')
    out.append('  .amdhsa_user_sgpr_kernarg_segment_ptr 1')
    out.append('  .amdhsa_system_sgpr_workgroup_id_x 1')
    out.append('  .amdhsa_float_denorm_mode_32 3')
    out.append('.end_amdhsa_kernel')
    return '\n'.join(out) + '\n'
```

```python
import sys, math, struct
from asmlib import *

def f2u(x):
    return struct.unpack('<I', struct.pack('<f', x))[0]

DEF = dict(
    stamps=0,
    throttle=8,
    fast=0,
    tmo=1 << 22,
    prefetch=1,
    cprio=3,
)

LS   = 0x80000
QA   = 0x0
OB   = 0x20000
LSE  = 0x40000
PC   = 0x41000
PCS  = 1152
XD   = 0x50000
WS_BYTES = 0x100000
STAMP = 0x300000
OOB  = 0x40000000
KB, VB = 0, 65536
SM = 155648
WQB = SM - 36864
X32, XH, XL, ONES, QB, PB, ML, RED, FLAGS = 0, 2304, 3456, 4608, 5120, 6144, 7168, 7232, 7680
OL = QB
F_A, F_WQ, F_Q, F_K, F_KR, F_P, F_V, F_WO = range(8)
LDS_BYTES = 163840

sW = 3
rK, rV, rWQ, rWO, rWS = 8, 12, 16, 20, 24
pX, pW1, pB1, pW2, pB2, pOUT, pDBG, pWS = 28, 30, 32, 34, 36, 38, 40, 42
sX, sB, sHL, sSP, sHKV, sC, sU, sE0, sNE, sLAY, sFAST, sTMO = range(44, 56)
sQAst, sQAld, sOBst, sLSEst, sOBld, sLSEld, sPCst, sPCld, sPCld2, sXDb = range(56, 66)
sH = 66
sKC = 72
sMHI = 74
sT0, sT1, sT2, sT3 = 76, 77, 78, 79
sB2, sXCC = 80, 81
sSTP = 82
vTID, vL4, vT4, vXA, vQF, vPW, vOBS, vMLR, vFL, vXE = range(10)
vRAW = 10
T = 26
NV = 92
aK, aV, aWQ, aWQH = 0, 64, 128, 160


def gen(**kw):
    P = dict(DEF); P.update(kw)
    A = Asm()
    nop = lambda n: A(f's_nop {n-1}') if n > 0 else None
    stamp_ctr = [0]
    def stamp(i):
        if P['stamps']:
            A(f's_memrealtime {s(sSTP+2*i,2)}')
    def tmo_check():
        A(f's_sub_u32 {s(sTMO)}, {s(sTMO)}, 1\ns_cbranch_scc1 L_end')
    def signal(k):
        A(f'v_mov_b32 {v(T+64)}, 1\nds_write_b32 {v(vFL)}, {v(T+64)} offset:{16*k}')
    def wait_flag(k, sleep=1):
        l = A.label('wf')
        t = T + 60
        A(f'v_mov_b32 {v(T+65)}, {SM+FLAGS}')
        A(f'{l}:')
        A(f'ds_read_b128 {v(t,4)}, {v(T+65)} offset:{16*k}\ns_waitcnt lgkmcnt(0)')
        A(f'v_and_b32 {v(t)}, {v(t)}, {v(t+1)}\nv_and_b32 {v(t+2)}, {v(t+2)}, {v(t+3)}\nv_and_b32 {v(t)}, {v(t)}, {v(t+2)}')
        A(f'v_cmp_ne_u32 vcc, 0, {v(t)}\ns_cbranch_vccnz {l}_d')
        tmo_check()
        if sleep: A(f's_sleep {sleep}')
        A(f's_branch {l}\n{l}_d:')
    def dpp(op, d, a_, b_, ctl, rm='0xf'):
        A(f'{op}_dpp {v(d)}, {v(a_)}, {v(b_)} {ctl} row_mask:{rm} bank_mask:0xf')
    def allsum2(r0, r1, t0, t1):
        nop(2)
        for k in (8, 4, 2, 1):
            dpp('v_add_f32', r0, r0, r0, f'row_ror:{k}')
            dpp('v_add_f32', r1, r1, r1, f'row_ror:{k}')
            nop(1)
        for sw in ('v_permlane16_swap_b32', 'v_permlane32_swap_b32'):
            A(f'v_mov_b32 {v(t0)}, {v(r0)}\nv_mov_b32 {v(t1)}, {v(r1)}')
            nop(1)
            A(f'{sw} {v(r0)}, {v(t0)}\n{sw} {v(r1)}, {v(t1)}')
            A(f'v_add_f32 {v(r0)}, {v(r0)}, {v(t0)}\nv_add_f32 {v(r1)}, {v(r1)}, {v(t1)}')
    def stats_issue(t):
        A(f'v_lshl_add_u32 {v(t+10)}, {v(vL4)}, 2, {s(sT3)}\nv_add_u32 {v(t+11)}, {s(sT3)}, {v(vL4)}')
        A(f'ds_read_b128 {v(t,4)}, {v(t+10)} offset:{X32}\nds_read_b128 {v(t+4,4)}, {v(t+10)} offset:{X32+1024}')
        A(f'ds_read_b32 {v(t+8)}, {v(t+11)} offset:{X32+2048}')
        A(f'v_mov_b32 {v(t+10)}, {s(sT3)}\nds_read_b32 {v(t+9)}, {v(t+10)} offset:{X32}')
    def stats_calc(t):
        for i in range(9):
            A(f'v_sub_f32 {v(t+i)}, {v(t+i)}, {v(t+9)}')
        A(f'v_pk_mul_f32 {v(t+10,2)}, {v(t,2)}, {v(t,2)}')
        for i in (2, 4, 6):
            A(f'v_pk_fma_f32 {v(t+10,2)}, {v(t+i,2)}, {v(t+i,2)}, {v(t+10,2)}')
            A(f'v_pk_add_f32 {v(t,2)}, {v(t,2)}, {v(t+i,2)}')
        A(f'v_fmac_f32 {v(t+10)}, {v(t+8)}, {v(t+8)}\nv_add_f32 {v(t)}, {v(t)}, {v(t+8)}')
        A(f'v_add_f32 {v(t+10)}, {v(t+10)}, {v(t+11)}\nv_add_f32 {v(t)}, {v(t)}, {v(t+1)}')
        allsum2(t, t+10, t+2, t+3)
        inv = hex(f2u(1.0/576))
        A(f'v_mul_f32 {v(t)}, {inv}, {v(t)}\nv_mul_f32 {v(t+10)}, {inv}, {v(t+10)}')
        A(f'v_fma_f32 {v(t+1)}, -{v(t)}, {v(t)}, {v(t+10)}\nv_add_f32 {v(t)}, {v(t)}, {v(t+9)}')
        A(f'v_max_f32 {v(t+1)}, 0, {v(t+1)}')
    EPS = hex(f2u(1e-5))
    def check_sentinel(regs, tmp, lfail):
        r = list(regs)
        cur = r.pop(0)
        while r:
            if len(r) >= 2:
                A(f'v_max3_u32 {v(tmp)}, {v(cur)}, {v(r[0])}, {v(r[1])}'); r = r[2:]
            else:
                A(f'v_max_u32 {v(tmp)}, {v(cur)}, {v(r[0])}'); r = r[1:]
            cur = tmp
        A(f'v_cmp_eq_u32 vcc, -1, {v(cur)}\ns_cbranch_vccnz {lfail}')
    def local_store(fn):
        if not P['fast']:
            fn(' sc1'); return
        l = A.label('ls')
        A(f's_cmp_eq_u32 {s(sFAST)}, 0\ns_cbranch_scc1 {l}_s')
        fn('')
        A(f's_branch {l}_d\n{l}_s:')
        fn(' sc1')
        A('s_waitcnt vmcnt(0)')
        A(f'{l}_d:')
    def local_pace():
        if not P['fast']:
            A('s_waitcnt vmcnt(0)')
    def raw_loads():
        for k, p in enumerate((pW1, pB1, pW2)):
            for i in range(4):
                A(f'global_load_dword {v(vRAW+5*k+i)}, {v(vT4)}, {s(p,2)} offset:{2048*i if i < 2 else 2048*(i-2)}'
                  if i < 2 else f'global_load_dword {v(vRAW+5*k+i)}, {v(T+62)}, {s(p,2)} offset:{2048*(i-2)}')
            A(f'global_load_ushort {v(vRAW+5*k+4)}, {v(T+63)}, {s(p,2)}')
    def raw_addr():
        A(f'v_add_u32 {v(T+62)}, 4096, {v(vT4)}\nv_lshlrev_b32 {v(T+63)}, 1, {v(vTID)}\nv_add_u32 {v(T+63)}, 8192, {v(T+63)}')
    cW1, cB1, cW2, cW8, cW28 = T, T+8, T+16, T+24, T+26
    def expand_coefs():
        for k, c in enumerate((cW1, cB1, cW2)):
            for i in range(4):
                A(f'v_lshlrev_b32 {v(c+2*i)}, 16, {v(vRAW+5*k+i)}\nv_and_b32 {v(c+2*i+1)}, 0xffff0000, {v(vRAW+5*k+i)}')
        A(f'v_lshlrev_b32 {v(cW8)}, 16, {v(vRAW+4)}\nv_lshlrev_b32 {v(cW8+1)}, 16, {v(vRAW+9)}\nv_lshlrev_b32 {v(cW28)}, 16, {v(vRAW+14)}')

    A('s_cmp_ge_u32 s2, 256\ns_cbranch_scc1 L_end')
    stamp(0)
    A('s_load_dwordx16 s[56:71], s[0:1], 0\ns_load_dwordx8 s[72:79], s[0:1], 64\ns_load_dwordx2 s[42:43], s[0:1], 96')
    A(f'v_lshrrev_b32 {v(T)}, 6, v0\nv_and_b32 {v(T+1)}, 63, v0')
    A(f'v_readfirstlane_b32 {s(sW)}, {v(T)}')
    A(f'v_lshlrev_b32 {v(vL4)}, 2, {v(T+1)}\nv_lshlrev_b32 {v(vT4)}, 2, v0')
    A(f's_getreg_b32 {s(sXCC)}, hwreg(HW_REG_XCC_ID, 0, 4)')
    A(f's_and_b32 {s(sX)}, s2, 7\ns_lshr_b32 s4, s2, 3')
    A(f's_lshr_b32 {s(sB)}, s4, 4\ns_bfe_u32 {s(sHL)}, s4, 0x10003\ns_and_b32 {s(sSP)}, s4, 7\ns_and_b32 {s(sC)}, s4, 15')
    A(f's_lshl_b32 {s(sHKV)}, {s(sX)}, 1\ns_add_u32 {s(sHKV)}, {s(sHKV)}, {s(sHL)}')
    A(f's_lshl_b32 {s(sU)}, {s(sX)}, 4\ns_add_u32 {s(sU)}, {s(sU)}, {s(sC)}')
    A(f's_mul_i32 s4, {s(sU)}, 5\ns_lshl_b32 s5, {s(sU)}, 2\ns_add_u32 s5, s5, 64')
    A(f's_cmp_lt_u32 {s(sU)}, 64\ns_cselect_b32 {s(sE0)}, s4, s5\ns_cselect_b32 {s(sNE)}, 5, 4')
    A(f's_mov_b32 {s(sLAY)}, 0\ns_mov_b32 {s(sFAST)}, 0\ns_mov_b32 {s(sTMO)}, {P["tmo"]}')
    A(f'v_and_b32 {v(T+2)}, 15, {v(T+1)}\nv_lshrrev_b32 {v(T+3)}, 4, {v(T+1)}')
    A(f's_and_b32 s4, {s(sW)}, 3\ns_lshl_b32 s4, s4, 2\ns_add_u32 s4, s4, {SM+FLAGS}\nv_mov_b32 {v(vFL)}, s4')
    A(f's_cmp_lg_u32 {s(sW)}, 0\ns_cbranch_scc1 L_noinit')
    A(f'v_mov_b32 {v(T+4)}, 0\nv_add_u32 {v(T+5)}, {SM}, {v(vL4)}\nds_write_b32 {v(T+5)}, {v(T+4)} offset:{FLAGS}')
    A(f'v_mov_b32 {v(T+4)}, 0x3f803f80\nds_write_b32 {v(T+5)}, {v(T+4)} offset:{ONES}\nds_write_b32 {v(T+5)}, {v(T+4)} offset:{ONES+256}')
    A('L_noinit:')
    A(f's_lshr_b32 s4, {s(sSP)}, 1\ns_mul_i32 s5, s4, 288')
    A(f's_add_u32 s6, s5, {SM+XH}\ns_add_u32 s7, s5, {SM+XL}')
    A(f'v_mov_b32 {v(vXA)}, {SM+ONES}\nv_mov_b32 {v(T+4)}, s6\nv_mov_b32 {v(T+5)}, s7')
    A(f'v_cmp_eq_u32 vcc, 0, {v(T+2)}')
    nop(2)
    A(f'v_cndmask_b32 {v(vXA)}, {v(vXA)}, {v(T+4)}, vcc\nv_cmp_eq_u32 vcc, 1, {v(T+2)}')
    nop(2)
    A(f'v_cndmask_b32 {v(vXA)}, {v(vXA)}, {v(T+5)}, vcc\nv_lshl_add_u32 {v(vXA)}, {v(T+3)}, 4, {v(vXA)}')
    A(f'v_bfe_u32 {v(T+4)}, {v(T+2)}, 2, 1\nv_lshlrev_b32 {v(T+4)}, 9, {v(T+4)}')
    A(f's_cmp_lt_u32 {s(sW)}, 4\ns_cselect_b32 s6, -1, 0\nv_and_b32 {v(T+4)}, s6, {v(T+4)}')
    A(f'v_lshl_add_u32 {v(vQF)}, {v(T+3)}, 4, {v(T+4)}\nv_add_u32 {v(vQF)}, {SM}, {v(vQF)}')
    A(f'v_and_b32 {v(T+6)}, 1, {v(T+3)}\nv_lshrrev_b32 {v(T+7)}, 1, {v(T+3)}\nv_lshl_add_u32 {v(T+7)}, {v(T+7)}, 4, {v(T+2)}\nv_lshlrev_b32 {v(T+7)}, 1, {v(T+7)}')
    A(f's_lshl_b32 s6, {s(sW)}, 7\ns_add_u32 s6, s6, {SM+PB}')
    A(f'v_lshl_add_u32 {v(vPW)}, {v(T+6)}, 9, {v(T+7)}\nv_add_u32 {v(vPW)}, s6, {v(vPW)}')
    A(f'v_lshl_add_u32 {v(vOBS)}, {v(T+6)}, 11, {v(T+7)}')
    A(f'v_lshlrev_b32 {v(vMLR)}, 5, {v(T+6)}\nv_add_u32 {v(vMLR)}, {SM+ML}, {v(vMLR)}')
    A(f'v_mov_b32 {v(vXE)}, 0')
    A('s_waitcnt lgkmcnt(0)\ns_barrier')
    A(f's_mov_b64 {s(pX,2)}, s[56:57]\ns_mov_b64 {s(pW1,2)}, s[68:69]\ns_mov_b64 {s(pB1,2)}, s[70:71]')
    A(f's_mov_b64 {s(pW2,2)}, s[72:73]\ns_mov_b64 {s(pB2,2)}, s[74:75]\ns_mov_b64 {s(pOUT,2)}, s[76:77]\ns_mov_b64 {s(pDBG,2)}, s[78:79]')
    A(f's_lshl_b32 s5, {s(sB)}, 4\ns_add_u32 s5, s5, {s(sHKV)}')
    A(f's_lshl_b32 s6, s5, 21\ns_lshl_b32 s7, {s(sSP)}, 16\ns_add_u32 s6, s6, s7\ns_add_u32 s6, s6, 0x180000')
    A(f's_add_u32 {s(rK)}, s58, s6\ns_addc_u32 {s(rK+1)}, s59, 0\ns_mov_b32 {s(rK+2)}, 0x10000\ns_mov_b32 {s(rK+3)}, 0x20000')
    A(f's_add_u32 {s(rV)}, s60, s6\ns_addc_u32 {s(rV+1)}, s61, 0\ns_mov_b32 {s(rV+2)}, 0x10000\ns_mov_b32 {s(rV+3)}, 0x20000')
    A(f's_mul_i32 s6, s4, {144*8192}\ns_lshl_b32 s7, {s(sHKV)}, 9\ns_add_u32 s6, s6, s7\ns_and_b32 s7, {s(sSP)}, 1\ns_lshl_b32 s7, s7, 8\ns_add_u32 s6, s6, s7')
    A(f's_add_u32 {s(rWQ)}, s62, s6\ns_addc_u32 {s(rWQ+1)}, s63, 0\ns_sub_u32 {s(rWQ+2)}, 4718592, s6\ns_mov_b32 {s(rWQ+3)}, 0x20000')
    A(f's_mul_i32 s6, {s(sX)}, {512*1152}\ns_mul_i32 s7, {s(sC)}, 72\ns_and_b32 s7, s7, 0xfffffff0\ns_add_u32 s6, s6, s7')
    A(f's_add_u32 {s(rWO)}, s64, s6\ns_addc_u32 {s(rWO+1)}, s65, 0\ns_sub_u32 {s(rWO+2)}, 4718592, s6\ns_mov_b32 {s(rWO+3)}, 0x20000')
    A(f's_mov_b32 {s(rWS)}, s42\ns_mov_b32 {s(rWS+1)}, s43\ns_mov_b32 {s(rWS+2)}, {WS_BYTES}\ns_mov_b32 {s(rWS+3)}, 0x20000')
    A(f's_lshl_b32 {s(sQAld)}, s5, 12')
    A(f's_lshl_b32 s6, s4, 10\ns_and_b32 s7, {s(sSP)}, 1\ns_lshl_b32 s7, s7, 9\ns_add_u32 s6, s6, s7\ns_add_u32 {s(sT0)}, {s(sQAld)}, s6')
    A(f's_and_b32 s7, {s(sW)}, 3\ns_lshl_b32 s6, s7, 7\ns_add_u32 {s(sQAst)}, {s(sT0)}, s6')
    A(f's_lshl_b32 s5, {s(sB)}, 3\ns_add_u32 s5, s5, {s(sX)}')
    A(f's_lshl_b32 s6, s5, 13\ns_add_u32 s6, s6, {OB}\ns_lshl_b32 {s(sOBld)}, s7, 11\ns_add_u32 {s(sOBld)}, {s(sOBld)}, s6')
    A(f's_lshl_b32 {s(sT1)}, {s(sHL)}, 12\ns_add_u32 s6, s6, {s(sT1)}\ns_lshl_b32 {s(sT1)}, {s(sSP)}, 8\ns_add_u32 {s(sT1)}, {s(sT1)}, s6')
    A(f's_lshl_b32 s6, s7, 6\ns_add_u32 {s(sOBst)}, {s(sT1)}, s6')
    A(f's_lshl_b32 s6, s5, 7\ns_add_u32 s6, s6, {LSE}\ns_lshl_b32 {s(sLSEld)}, s7, 5\ns_add_u32 {s(sLSEld)}, {s(sLSEld)}, s6')
    A(f's_lshl_b32 {s(sLSEst)}, {s(sHL)}, 6\ns_add_u32 s6, s6, {s(sLSEst)}\ns_lshl_b32 {s(sLSEst)}, {s(sSP)}, 2\ns_add_u32 {s(sLSEst)}, {s(sLSEst)}, s6')
    A(f's_mul_i32 s6, s5, {PCS}\ns_add_u32 s6, s6, {PC}\ns_mul_i32 {s(sT2)}, {s(sC)}, 72\ns_add_u32 {s(sT2)}, {s(sT2)}, s6')
    A(f's_lshl_b32 s6, s7, 5\ns_add_u32 {s(sPCst)}, {s(sT2)}, s6')
    A(f's_mul_i32 {s(sPCld)}, {s(sB)}, {8*PCS}\ns_add_u32 {s(sPCld)}, {s(sPCld)}, {PC}\ns_add_u32 {s(sPCld2)}, {s(sPCld)}, {4*PCS}')
    A(f's_lshl_b32 {s(sXDb)}, {s(sB)}, 12\ns_add_u32 {s(sXDb)}, {s(sXDb)}, {XD}')
    k1 = -2.0 * math.sqrt(2.0/math.pi) * math.log2(math.e); k2 = k1 * 0.044715
    A(f's_mov_b32 {s(sKC)}, {hex(f2u(k2))}\ns_mov_b32 {s(sKC+1)}, {hex(f2u(k1))}')
    A(f's_mov_b32 {s(sMHI)}, 0\ns_mov_b32 {s(sMHI+1)}, -1\ns_mov_b32 {s(sT3)}, {SM}')
    A(f's_load_dword {s(sB2)}, {s(pB2,2)}, 0')
    A(f's_bfe_u32 s6, {s(sW)}, 0x10001\ns_lshl_b32 s6, s6, 2\nv_or_b32 {v(T+4)}, s6, {v(T+3)}\nv_lshlrev_b32 {v(T+4)}, 1, {v(T+4)}')
    A(f'v_xor_b32 {v(T+4)}, {v(T+4)}, {v(T+2)}\nv_lshlrev_b32 {v(T+4)}, 4, {v(T+4)}')
    A(f's_cmp_ge_u32 {s(sW)}, 4\ns_cbranch_scc1 L_loader')

    if P['cprio']: A(f's_setprio {P["cprio"]}')
    for i in range(4): A(f'v_mov_b32 {v(T+8+i)}, -1')
    A(f'v_lshrrev_b32 {v(T+12)}, 5, {v(T+1)}\nv_mul_u32_u24 {v(T+12)}, {LS}, {v(T+12)}')
    A(f's_cmp_eq_u32 {s(sW)}, 0\ns_cbranch_scc1 L_c0\ns_cmp_eq_u32 {s(sW)}, 1\ns_cbranch_scc1 L_c1\ns_cmp_eq_u32 {s(sW)}, 2\ns_cbranch_scc1 L_c2')
    A(f'v_lshrrev_b32 {v(T+13)}, 1, {v(T+1)}\nv_mul_u32_u24 {v(T+13)}, {LS}, {v(T+13)}\nv_and_b32 {v(T+14)}, 1, {v(T+1)}')
    A(f'v_lshl_add_u32 {v(T+13)}, {v(T+14)}, 5, {v(T+13)}\nv_add_u32 {v(T+13)}, {s(sLSEst)}, {v(T+13)}')
    A(f's_lshl_b32 s6, {s(sU)}, 5\ns_add_u32 s6, s6, {s(sXDb)}\ns_sub_u32 s6, s6, 16\nv_add_u32 {v(T+14)}, s6, {v(vL4)}')
    A(f'v_cmp_gt_u32 vcc, 4, {v(T+1)}')
    nop(2)
    A(f'v_cndmask_b32 {v(T+13)}, {v(T+14)}, {v(T+13)}, vcc\nv_mov_b32 {v(T+14)}, {OOB}\nv_cmp_gt_u32 vcc, 12, {v(T+1)}')
    nop(2)
    A(f'v_cndmask_b32 {v(T+13)}, {v(T+14)}, {v(T+13)}, vcc')
    A(f'buffer_store_dword {v(T+8)}, {v(T+13)}, {s(rWS,4)}, 0 offen sc1\ns_branch L_cdone')
    A('L_c0:')
    A(f'v_and_b32 {v(T+13)}, 31, {v(T+1)}\nv_lshl_add_u32 {v(T+13)}, {v(T+13)}, 4, {v(T+12)}')
    A(f'buffer_store_dwordx4 {v(T+8,4)}, {v(T+13)}, {s(rWS,4)}, {s(sT0)} offen sc1\ns_branch L_cdone')
    A('L_c1:')
    A(f'v_lshl_add_u32 {v(T+13)}, {v(T+6)}, 11, {v(T+12)}\nv_lshl_add_u32 {v(T+13)}, {v(T+2)}, 4, {v(T+13)}')
    A(f'buffer_store_dwordx4 {v(T+8,4)}, {v(T+13)}, {s(rWS,4)}, {s(sT1)} offen sc1\ns_branch L_cdone')
    A('L_c2:')
    A(f'v_and_b32 {v(T+14)}, 31, {v(T+1)}\nv_lshl_add_u32 {v(T+13)}, {v(T+14)}, 2, {v(T+12)}\nv_mov_b32 {v(T+15)}, {OOB}\nv_cmp_gt_u32 vcc, 18, {v(T+14)}')
    nop(2)
    A(f'v_cndmask_b32 {v(T+13)}, {v(T+15)}, {v(T+13)}, vcc')
    A(f'buffer_store_dword {v(T+8)}, {v(T+13)}, {s(rWS,4)}, {s(sT2)} offen sc1')
    A('L_cdone:')
    A(f's_mul_i32 s6, {s(sB)}, 1152\nv_add_u32 {v(T+16)}, s6, {v(vT4)}\nv_add_u32 {v(T+17)}, s6, {v(vL4)}')
    A(f'v_and_b32 {v(T+18)}, 31, {v(T+1)}\nv_lshl_add_u32 {v(T+17)}, {v(T+18)}, 2, s6')
    A(f'global_load_dword {v(T+20)}, {v(T+16)}, {s(pX,2)}\nglobal_load_dword {v(T+21)}, {v(T+17)}, {s(pX,2)} offset:1024')
    A(f'v_lshl_add_u32 {v(T+5)}, {v(T+3)}, 13, {v(T+4)}')
    A(f's_lshl_b32 s6, {s(sW)}, 10\ns_add_u32 s6, s6, {WQB}\ns_lshl_b32 s7, {s(sW)}, 15')
    for i in range(9):
        A(f's_mov_b32 m0, s6\ns_add_u32 s6, s6, 4096')
        A(f'buffer_load_dwordx4 {v(T+5)}, {s(rWQ,4)}, s7 offen nt lds\ns_add_u32 s7, s7, {4*32768}')
    npf = 0
    if P['prefetch']:
        A(f's_getpc_b64 s[4:5]\nL_pc:\nv_lshlrev_b32 {v(T+19)}, 6, v0\nv_min_u32 {v(T+19)}, L_end-L_pc, {v(T+19)}\nglobal_load_dword {v(vRAW)}, {v(T+19)}, s[4:5]')
        npf = 1
    A(f's_waitcnt vmcnt({9+npf})')
    A(f'v_mov_b32 {v(T+28)}, 0')
    for (src, areg, extra) in ((T+20, vT4, 0), (T+21, None, 1)):
        if extra:
            A(f'v_lshlrev_b32 {v(T+18)}, 2, {v(T+18)}\nv_add_u32 {v(T+18)}, 1024, {v(T+18)}')
            areg = T+18
        A(f'v_lshlrev_b32 {v(T+24)}, 16, {v(src)}\nv_and_b32 {v(T+25)}, 0xffff0000, {v(src)}')
        A(f'v_lshl_add_u32 {v(T+26)}, {v(areg)}, 1, {s(sT3)}\nv_add_u32 {v(T+27)}, {s(sT3)}, {v(areg)}')
        A(f'ds_write_b64 {v(T+26)}, {v(T+24,2)} offset:{X32}\nds_write_b32 {v(T+27)}, {v(src)} offset:{XH}\nds_write_b32 {v(T+27)}, {v(T+28)} offset:{XL}')
    A(f's_waitcnt vmcnt({npf}) lgkmcnt(0)')
    signal(F_A)
    wait_flag(F_A, sleep=0)
    stamp(1)
    A(f's_cmp_lg_u32 {s(sW)}, 0\ns_cbranch_scc1 L_noarr')
    A(f's_add_u32 s6, {s(sXCC)}, 1\nv_mov_b32 {v(T+8)}, s6\nv_mov_b32 {v(T+9)}, s2\ns_mov_b64 exec, 1')
    A(f'global_store_byte {v(T+9)}, {v(T+8)}, {s(pDBG,2)} sc1\ns_mov_b64 exec, -1')
    A('L_noarr:')
    def tr_addr(dst, tile_sreg, rowexpr_g_shift, gbit_shift, base):
        A(f'v_bfe_u32 {v(T+40)}, {v(vL4)}, 4, 2\nv_bfe_u32 {v(T+41)}, {v(vL4)}, 2, 2\nv_lshrrev_b32 {v(T+42)}, 6, {v(vL4)}')
        A(f'v_bfe_u32 {v(T+43)}, {v(T+42)}, {gbit_shift}, 1\nv_lshl_or_b32 {v(T+43)}, {v(T+43)}, 2, {v(T+40)}')
        A(f'v_xor_b32 {v(T+43)}, {s(tile_sreg)}, {v(T+43)}\nv_lshlrev_b32 {v(T+43)}, 5, {v(T+43)}\nv_lshl_add_u32 {v(T+43)}, {v(T+41)}, 3, {v(T+43)}')
        A(f'v_lshl_add_u32 {v(T+42)}, {v(T+42)}, {rowexpr_g_shift}, {v(T+40)}\nv_lshl_add_u32 {v(dst)}, {v(T+42)}, 8, {v(T+43)}')
        A(f'v_add_u32 {v(dst)}, {base}, {v(dst)}')
    for tt in range(2):
        A(f's_lshl_b32 s6, {s(sW)}, 1\ns_add_u32 s6, s6, {tt}')
        tr_addr(T+44, 6, 3, 0, WQB)
        tr_addr(T+45, 6, 2, 1, WQB + 128*256)
        for ks in range(4):
            for hh in range(2):
                A(f'ds_read_b64_tr_b16 {a(aWQ+16*tt+4*ks+2*hh,2)}, {v(T+44)} offset:{ks*8192+hh*1024}')
        A(f'ds_read_b64_tr_b16 {a(aWQH+2*tt,2)}, {v(T+45)}')
    A('s_waitcnt lgkmcnt(0)')
    signal(F_WQ)

    A('L_qstage:')
    xf = T
    st = T + 20
    D0, D1 = T+32, T+36
    A(f'v_lshrrev_b32 {v(T+18)}, 6, {v(vL4)}\nv_lshlrev_b32 {v(T+18)}, 3, {v(T+18)}\nv_sub_u32 {v(T+18)}, {v(vXA)}, {v(T+18)}')
    for ks in range(4):
        A(f'ds_read_b128 {v(xf+4*ks,4)}, {v(vXA)} offset:{64*ks}')
    A(f'ds_read_b64 {v(xf+16,2)}, {v(T+18)} offset:256')
    stats_issue(st)
    A('s_waitcnt lgkmcnt(0)')
    for ks in range(4):
        for tt, D in enumerate((D0, D1)):
            A(f'v_mfma_f32_16x16x32_bf16 {v(D,4)}, {v(xf+4*ks,4)}, {a(aWQ+16*tt+4*ks,4)}, {v(D,4) if ks else 0}')
    for tt, D in enumerate((D0, D1)):
        A(f'v_mfma_f32_16x16x16_bf16 {v(D,4)}, {v(xf+16,2)}, {a(aWQH+2*tt,2)}, {v(D,4)}')
    stats_calc(st)
    qs = (128 ** -0.5) * math.log2(math.e)
    A(f'v_add_f32 {v(st+1)}, {EPS}, {v(st+1)}\nv_rsq_f32 {v(st+1)}, {v(st+1)}')
    for D in (D0, D1):
        A(f'v_add_f32 {v(D)}, {v(D)}, {v(D+1)}\nv_fma_f32 {v(D)}, -{v(st)}, {v(D+2)}, {v(D)}')
    A(f'v_mul_f32 {v(st+1)}, {hex(f2u(qs))}, {v(st+1)}')
    A(f'v_mul_f32 {v(D0)}, {v(D0)}, {v(st+1)}\nv_mul_f32 {v(D1)}, {v(D1)}, {v(st+1)}')
    A('s_mov_b64 exec, 0xffff')
    def q_st(m):
        A(f'buffer_store_dword {v(D0)}, {v(vL4)}, {s(rWS,4)}, {s(sQAst)} offen{m}')
        A(f'buffer_store_dword {v(D1)}, {v(vL4)}, {s(rWS,4)}, {s(sQAst)} offen offset:64{m}')
    local_store(q_st)
    A('s_mov_b64 exec, -1')
    A(f's_cmp_lg_u32 {s(sLAY)}, 0\ns_cbranch_scc1 L_nodbg')
    A('L_dbg:')
    A(f'global_load_dword {v(T)}, {v(vL4)}, {s(pDBG,2)} sc1\ns_waitcnt vmcnt(0)')
    A(f'v_subrev_u32 {v(T+1)}, 0x01010101, {v(T)}\nv_not_b32 {v(T+2)}, {v(T)}\nv_and_b32 {v(T+1)}, {v(T+1)}, {v(T+2)}\nv_and_b32 {v(T+1)}, 0x80808080, {v(T+1)}')
    A(f'v_cmp_ne_u32 vcc, 0, {v(T+1)}\ns_cbranch_vccz L_dbgok')
    tmo_check()
    A('s_sleep 4\ns_branch L_dbg')
    A('L_dbgok:')
    if P['fast']:
        A(f's_and_b32 s6, {s(sX)}, 3\ns_lshl_b32 s6, s6, 3\nv_lshrrev_b32 {v(T+1)}, s6, {v(T)}\nv_and_b32 {v(T+1)}, 0xff, {v(T+1)}')
        A(f's_add_u32 s6, {s(sXCC)}, 1\nv_cmp_ne_u32 vcc, s6, {v(T+1)}')
        A(f's_mov_b32 s6, 0x55555555\ns_lshr_b32 s7, {s(sX)}, 2\ns_lshl_b32 s6, s6, s7\ns_mov_b32 s7, s6')
        A(f's_and_b64 vcc, vcc, s[6:7]\ns_cselect_b32 {s(sFAST)}, 0, 1')
    A('L_nodbg:')
    stamp(2)
    local_pace()
    A('L_ga:')
    for kq in range(4):
        A(f'buffer_load_dword {v(T+kq)}, {v(vT4)}, {s(rWS,4)}, {s(sQAld)} offen offset:{1024*kq} sc1')
    A(f'v_lshrrev_b32 {v(T+6)}, 7, v0\nv_lshlrev_b32 {v(T+6)}, 8, {v(T+6)}\nv_lshl_add_u32 {v(T+6)}, v0, 1, {v(T+6)}\nv_add_u32 {v(T+6)}, {SM+QB}, {v(T+6)}')
    A('s_waitcnt vmcnt(0)')
    check_sentinel([T, T+1, T+2, T+3], T+4, 'L_ga_f')
    A(f'v_add_f32 {v(T)}, {v(T)}, {v(T+1)}\nv_add_f32 {v(T+2)}, {v(T+2)}, {v(T+3)}\nv_add_f32 {v(T)}, {v(T)}, {v(T+2)}')
    A(f'v_cvt_pk_bf16_f32 {v(T)}, {v(T)}, {v(T)}\nds_write_b16 {v(T+6)}, {v(T)}\ns_waitcnt lgkmcnt(0)')
    stamp(3)
    A(f's_cmp_lg_u32 {s(sLAY)}, 0\ns_cbranch_scc1 L_qbar')
    signal(F_Q)
    wait_flag(F_K)
    A(f'v_bfe_u32 {v(T)}, {v(vL4)}, 2, 4\nv_lshrrev_b32 {v(T+1)}, 6, {v(vL4)}\ns_lshl_b32 s6, {s(sW)}, 14')
    A(f'v_lshl_add_u32 {v(T+2)}, {v(T)}, 8, s6')
    for ks in range(4):
        A(f'v_add_u32 {v(T+3)}, {4*ks}, {v(T+1)}\nv_xor_b32 {v(T+3)}, {v(T+3)}, {v(T)}\nv_lshl_add_u32 {v(T+4+ks)}, {v(T+3)}, 4, {v(T+2)}')
        for tt in range(4):
            A(f'ds_read_b128 {a(aK+16*tt+4*ks,4)}, {v(T+4+ks)} offset:{KB+4096*tt}')
    A('s_waitcnt lgkmcnt(0)')
    signal(F_KR)
    wait_flag(F_Q, sleep=0)
    A('s_branch L_qk')
    A('L_ga_f:')
    tmo_check()
    A('s_branch L_ga')
    A('L_qbar:\ns_barrier')
    A('L_qk:')
    qf, DS = T, T+16
    for ks in range(4):
        A(f'ds_read_b128 {v(qf+4*ks,4)}, {v(vQF)} offset:{QB+64*ks}')
    for ks in range(4):
        A(f's_waitcnt lgkmcnt({3-ks})')
        for tt in range(4):
            A(f'v_mfma_f32_16x16x32_bf16 {v(DS+4*tt,4)}, {v(qf+4*ks,4)}, {a(aK+16*tt+4*ks,4)}, {v(DS+4*tt,4) if ks else 0}')
    sa, sb, mx, t0 = T+32, T+33, T+34, T+35
    nop(6)
    A(f'v_cndmask_b32 {v(sa)}, {v(DS)}, {v(DS+4)}, {s(sMHI,2)}')
    nop(2)
    A(f'v_cndmask_b32 {v(sb)}, {v(DS+8)}, {v(DS+12)}, {s(sMHI,2)}')
    A(f'v_max_f32 {v(mx)}, {v(sa)}, {v(sb)}')
    for k in (8, 4, 2, 1):
        nop(2); dpp('v_max_f32', mx, mx, mx, f'row_ror:{k}')
    A(f'v_mov_b32 {v(t0)}, {v(mx)}')
    nop(2)
    A(f'v_permlane32_swap_b32 {v(mx)}, {v(t0)}\nv_max_f32 {v(mx)}, {v(mx)}, {v(t0)}')
    A(f'v_sub_f32 {v(sa)}, {v(sa)}, {v(mx)}\nv_sub_f32 {v(sb)}, {v(sb)}, {v(mx)}\nv_exp_f32 {v(sa)}, {v(sa)}\nv_exp_f32 {v(sb)}, {v(sb)}')
    nop(1)
    A(f'v_cvt_pk_bf16_f32 {v(sa)}, {v(sa)}, {v(sb)}')
    A(f'ds_write_b16 {v(vPW)}, {v(sa)}\nds_write_b16_d16_hi {v(vPW)}, {v(sa)} offset:64')
    A(f'v_lshlrev_b32 {v(sb)}, 16, {v(sa)}\nv_and_b32 {v(t0)}, 0xffff0000, {v(sa)}\nv_add_f32 {v(t0)}, {v(t0)}, {v(sb)}')
    for k in (8, 4, 2, 1):
        nop(2); dpp('v_add_f32', t0, t0, t0, f'row_ror:{k}')
    A(f'v_mov_b32 {v(sb)}, {v(t0)}\ns_lshl_b32 s6, {s(sW)}, 3\nv_add_u32 {v(sa)}, s6, {v(vMLR)}')
    nop(1)
    A(f'v_permlane32_swap_b32 {v(t0)}, {v(sb)}\nv_add_f32 {v(t0)}, {v(t0)}, {v(sb)}')
    A(f'ds_write_b64 {v(sa)}, {v(mx,2)}\ns_waitcnt lgkmcnt(0)')
    stamp(4)
    A(f's_cmp_lg_u32 {s(sLAY)}, 0\ns_cbranch_scc1 L_pbar')
    signal(F_P)
    raw_addr(); raw_loads()
    for tt in range(2):
        A(f's_lshl_b32 s6, {s(sW)}, 1\ns_add_u32 s6, s6, {tt}')
        tr_addr(T+44+tt, 6, 3, 0, VB)
    wait_flag(F_V)
    for ks in range(8):
        for tt in range(2):
            for hh in range(2):
                A(f'ds_read_b64_tr_b16 {a(aV+32*tt+4*ks+2*hh,2)}, {v(T+44+tt)} offset:{ks*8192+hh*1024}')
    wait_flag(F_P, sleep=0)
    A('s_branch L_pv')
    A('L_pbar:\ns_barrier')
    A('L_pv:')
    pf, DO, ml = T, T+24, T+56
    A(f'ds_read_b128 {v(ml,4)}, {v(vMLR)}\nds_read_b128 {v(ml+4,4)}, {v(vMLR)} offset:16')
    for ks in range(6):
        A(f'ds_read_b128 {v(pf+4*ks,4)}, {v(vQF)} offset:{PB+64*ks}')
    for ks in range(8):
        r = pf + 4*(ks % 6)
        A(f's_waitcnt lgkmcnt({5 if ks < 3 else 7-ks})')
        for tt in range(2):
            D = DO + 16*tt + 4*(ks >> 1)
            A(f'v_mfma_f32_16x16x32_bf16 {v(D,4)}, {v(r,4)}, {a(aV+32*tt+4*ks,4)}, {v(D,4) if ks & 1 else 0}')
        if ks < 2:
            A(f'ds_read_b128 {v(r,4)}, {v(vQF)} offset:{PB+64*(ks+6)}')
    M_, L_ = T+64, T+65
    A(f'v_max3_f32 {v(M_)}, {v(ml)}, {v(ml+2)}, {v(ml+4)}\nv_max_f32 {v(M_)}, {v(M_)}, {v(ml+6)}')
    for k in range(4): A(f'v_sub_f32 {v(ml+2*k)}, {v(ml+2*k)}, {v(M_)}')
    for k in range(4): A(f'v_exp_f32 {v(ml+2*k)}, {v(ml+2*k)}')
    A(f'v_mul_f32 {v(L_)}, {v(ml)}, {v(ml+1)}')
    for k in range(1, 4): A(f'v_fmac_f32 {v(L_)}, {v(ml+2*k)}, {v(ml+2*k+1)}')
    A(f'v_rcp_f32 {v(ml+1)}, {v(L_)}\nv_log_f32 {v(L_)}, {v(L_)}')
    for k in range(4): A(f'v_cndmask_b32 {v(DO+4*k)}, {v(DO+4*k)}, {v(DO+16+4*k)}, {s(sMHI,2)}')
    A(f'v_mul_f32 {v(DO)}, {v(DO)}, {v(ml)}')
    for k in range(1, 4): A(f'v_fmac_f32 {v(DO)}, {v(DO+4*k)}, {v(ml+2*k)}')
    A(f'v_mul_f32 {v(DO)}, {v(DO)}, {v(ml+1)}\nv_add_f32 {v(L_)}, {v(L_)}, {v(M_)}')
    nop(1)
    A(f'v_mov_b32_dpp {v(DO+1)}, {v(DO)} quad_perm:[1,0,3,2] row_mask:0xf bank_mask:0xf')
    A(f'v_lshrrev_b32 {v(DO+2)}, 1, {v(vL4)}')
    A(f'v_cvt_pk_bf16_f32 {v(DO)}, {v(DO)}, {v(DO+1)}')
    def o_st(m):
        A('s_mov_b32 exec_lo, 0x55555555\ns_mov_b32 exec_hi, 0x55555555')
        A(f'buffer_store_dword {v(DO)}, {v(vOBS)}, {s(rWS,4)}, {s(sOBst)} offen{m}')
        l = A.label('nolse')
        A(f's_cmp_lg_u32 {s(sW)}, 0\ns_cbranch_scc1 {l}\ns_mov_b64 exec, 0x10001')
        A(f'buffer_store_dword {v(L_)}, {v(DO+2)}, {s(rWS,4)}, {s(sLSEst)} offen{m}')
        A(f'{l}:\ns_mov_b64 exec, -1')
    local_store(o_st)
    local_pace()
    stamp(5)
    A('L_gb:')
    for k in range(8):
        A(f'buffer_load_dword {v(T+k)}, {v(vL4)}, {s(rWS,4)}, {s(sOBld)} offen offset:{256*k} sc1')
    A(f'v_and_b32 {v(T+9)}, 28, {v(vL4)}')
    A(f'buffer_load_dword {v(T+8)}, {v(T+9)}, {s(rWS,4)}, {s(sLSEld)} offen sc1')
    A(f'v_add_u32 {v(T+13)}, {s(sT3)}, {v(vT4)}')
    A('s_waitcnt vmcnt(0)')
    check_sentinel(range(T, T+9), T+10, 'L_gb_f')
    mm, ff = T+10, T+8
    dpp('v_max_f32', mm, ff, ff, 'row_ror:4')
    for k in (2, 1):
        nop(2); dpp('v_max_f32', mm, mm, mm, f'row_ror:{k}')
    A(f'v_sub_f32 {v(ff)}, {v(ff)}, {v(mm)}\nv_exp_f32 {v(ff)}, {v(ff)}')
    for k in range(8):
        A(f'v_lshlrev_b32 {v(T+16+k)}, 16, {v(T+k)}\nv_and_b32 {v(T+k)}, 0xffff0000, {v(T+k)}')
        if k == 0: dpp('v_add_f32', mm, ff, ff, 'row_ror:4')
        if k == 1: dpp('v_add_f32', mm, mm, mm, 'row_ror:2')
        if k == 2: dpp('v_add_f32', mm, mm, mm, 'row_ror:1')
        if k == 3: A(f'v_rcp_f32 {v(mm)}, {v(mm)}')
        if k == 4: A(f'v_mul_f32 {v(ff)}, {v(ff)}, {v(mm)}')
    lo, hi = T+11, T+12
    for k in range(8):
        op = 'v_mul_f32' if k == 0 else 'v_fmac_f32'
        dpp(op, lo, ff, T+16+k, f'row_newbcast:{k}')
        dpp(op, hi, ff, T+k, f'row_newbcast:{k}')
    A(f'v_cvt_pk_bf16_f32 {v(lo)}, {v(lo)}, {v(hi)}\nds_write_b32 {v(T+13)}, {v(lo)} offset:{OL}')
    A('s_waitcnt lgkmcnt(0)\ns_barrier')
    stamp(6)
    expand_coefs()
    A('s_branch L_cbar')
    A('L_gb_f:')
    tmo_check()
    A('s_branch L_gb')

    A('L_loader:')
    A(f's_sub_u32 s4, {s(sW)}, 4')
    A(f's_lshl_b32 s6, s4, 2\nv_add_u32 {v(T+8)}, s6, {v(T+3)}\nv_xor_b32 {v(T+8)}, {v(T+8)}, {v(T+2)}\nv_lshlrev_b32 {v(T+8)}, 4, {v(T+8)}')
    A(f'v_lshl_add_u32 {v(T+8)}, {v(T+3)}, 8, {v(T+8)}\nv_lshl_add_u32 {v(T+9)}, {v(T+3)}, 8, {v(T+4)}')
    TH = P['throttle']
    A('s_lshl_b32 s6, s4, 10\ns_mov_b32 s7, s6')
    for i in range(16):
        A(f's_mov_b32 m0, s6\ns_add_u32 s6, s6, 4096')
        A(f'buffer_load_dwordx4 {v(T+8)}, {s(rK,4)}, s7 offen nt lds\ns_add_u32 s7, s7, 4096')
        if i >= TH: A(f's_waitcnt vmcnt({TH})')
        if i == 3:
            for k in range(5):
                A(f'v_add_u32 {v(T+15)}, {64*k}, {v(T+1)}\nv_mul_u32_u24 {v(T+16)}, 13108, {v(T+15)}\nv_lshrrev_b32 {v(T+16)}, 16, {v(T+16)}')
                A(f'v_mul_u32_u24 {v(T+17)}, 5, {v(T+16)}\nv_sub_u32 {v(T+15)}, {v(T+15)}, {v(T+17)}\nv_mul_u32_u24 {v(T+16)}, 1152, {v(T+16)}')
                A(f'v_lshl_add_u32 {v(T+10+k)}, {v(T+15)}, 4, {v(T+16)}')
    A('s_lshl_b32 s7, s4, 10')
    for i in range(16):
        if i == 13: wait_flag(F_WQ)
        A(f's_mov_b32 m0, s6\ns_add_u32 s6, s6, 4096')
        A(f'buffer_load_dwordx4 {v(T+9)}, {s(rV,4)}, s7 offen nt lds\ns_add_u32 s7, s7, 4096')
        A(f's_waitcnt vmcnt({TH})')
        if i == TH-1: signal(F_K)
    wait_flag(F_KR)
    A(f's_mul_i32 s6, s4, 10240\ns_mul_i32 s7, s4, {128*1152}')
    for i in range(10):
        A(f's_mov_b32 m0, s6\ns_add_u32 s6, s6, 1024')
        A(f'buffer_load_dwordx4 {v(T+10+i%5)}, {s(rWO,4)}, s7 offen nt lds')
        if i == 4: A(f's_add_u32 s7, s7, {64*1152}')
        if i < TH:
            A(f's_waitcnt vmcnt({TH})')
        if i == TH-1: signal(F_V)
    if TH > 10:
        A('s_waitcnt vmcnt(10)'); signal(F_V)
    stamp(5)
    raw_addr(); raw_loads()
    A(f'v_bfe_u32 {v(T+40)}, {v(vL4)}, 4, 2\nv_bfe_u32 {v(T+41)}, {v(vL4)}, 2, 2\nv_lshl_add_u32 {v(T+40)}, {v(T+3)}, 3, {v(T+40)}')
    A(f'v_mul_u32_u24 {v(T+40)}, 80, {v(T+40)}\nv_lshl_add_u32 {v(T+40)}, {v(T+41)}, 3, {v(T+40)}')
    A(f's_and_b32 s6, {s(sC)}, 1\ns_lshl_b32 s6, s6, 3\ns_lshl_b32 s7, s4, 5\ns_add_u32 s6, s6, s7\nv_add_u32 {v(T+40)}, s6, {v(T+40)}')
    A('s_waitcnt vmcnt(15)')
    signal(F_WO)
    wait_flag(F_WO, sleep=0)
    for ks in range(16):
        for hh in range(2):
            A(f'ds_read_b64_tr_b16 {a(aK+4*ks+2*hh,2)}, {v(T+40)} offset:{KB+2560*ks+320*hh}')
    A('s_waitcnt vmcnt(0) lgkmcnt(0)')
    stamp(6)
    A('L_wo:\ns_barrier')
    A(f's_cmp_eq_u32 {s(sW)}, 7\ns_cbranch_scc1 L_wo_skip')
    for ks in range(16):
        A(f'ds_read_b128 {a(aV+4*ks,4)}, {v(vQF)} offset:{OL+64*ks}')
    DW = T + 40
    for ks in range(16):
        A(f's_waitcnt lgkmcnt({15-ks})')
        A(f'v_mfma_f32_16x16x32_bf16 {v(DW,4)}, {a(aV+4*ks,4)}, {a(aK+4*ks,4)}, {v(DW,4) if ks else 0}')
    A(f'v_lshrrev_b32 {v(DW+5)}, 1, {v(vL4)}')
    A(f's_cmp_eq_u32 {s(sW)}, 6\ns_cselect_b32 s6, 0x5, 0x5555')
    nop(6)
    A(f'v_mov_b32_dpp {v(DW+4)}, {v(DW)} quad_perm:[1,0,3,2] row_mask:0xf bank_mask:0xf')
    nop(1)
    A(f'v_cvt_pk_bf16_f32 {v(DW)}, {v(DW)}, {v(DW+4)}\ns_mov_b32 exec_lo, s6\ns_mov_b32 exec_hi, 0')
    A(f'buffer_store_dword {v(DW)}, {v(DW+5)}, {s(rWS,4)}, {s(sPCst)} offen sc1\ns_mov_b64 exec, -1')
    A('L_wo_skip:')
    expand_coefs()
    A('s_waitcnt vmcnt(0)')

    A('L_cbar:\ns_barrier')
    g0 = T + 30
    A(f's_cmp_gt_u32 {s(sW)}, 4\ns_cbranch_scc1 L_gc_done')
    A(f's_cmp_eq_u32 {s(sW)}, 4\ns_cselect_b32 exec_hi, 0, -1')
    A(f'v_lshl_add_u32 {v(g0+20)}, {v(vT4)}, 1, {s(sT3)}')
    A('L_gc:')
    for k in range(8):
        A(f'buffer_load_dword {v(g0+k)}, {v(vT4)}, {s(rWS,4)}, {s(sPCld if k < 4 else sPCld2)} offen offset:{PCS*(k&3)} sc1')
    A(f'ds_read_b64 {v(g0+18,2)}, {v(g0+20)} offset:{X32}')
    A('s_waitcnt vmcnt(0) lgkmcnt(0)')
    check_sentinel(range(g0, g0+8), g0+8, 'L_gc_f')
    for k in range(8):
        A(f'v_lshlrev_b32 {v(g0+8)}, 16, {v(g0+k)}\nv_and_b32 {v(g0+9)}, 0xffff0000, {v(g0+k)}')
        A(f'v_pk_add_f32 {v(g0+18,2)}, {v(g0+18,2)}, {v(g0+8,2)}')
    A(f'ds_write_b64 {v(g0+20)}, {v(g0+18,2)} offset:{X32}\ns_waitcnt lgkmcnt(0)\ns_mov_b64 exec, -1')
    A('L_gc_done:\ns_barrier')
    stamp(7)
    st = T + 30
    stats_issue(st)
    A(f's_lshl_b32 s6, {s(sE0)}, 2\ns_add_u32 s6, s6, {SM+X32}\nv_and_b32 {v(st+12)}, 28, {v(vL4)}\nv_add_u32 {v(st+12)}, s6, {v(st+12)}')
    A(f'ds_read_b32 {v(vXE)}, {v(st+12)}\ns_waitcnt lgkmcnt(0)')
    stats_calc(st)
    A(f'v_add_f32 {v(st+2)}, {EPS}, {v(st+1)}\nv_rsq_f32 {v(st+2)}, {v(st+2)}\nv_sub_f32 {v(st)}, {v(vXE)}, {v(st)}')
    A(f'v_mul_f32 {v(st+1)}, {v(st+1)}, {v(st+2)}\nv_mul_f32 {v(st)}, {v(st)}, {v(st+2)}')
    A(f'v_fmaak_f32 {v(st+1)}, {v(st+1)}, {v(st+2)}, {EPS}\nv_rsq_f32 {v(st+1)}, {v(st+1)}')
    nop(1)
    A(f'v_mul_f32 {v(st)}, {v(st)}, {v(st+1)}')
    nop(1)
    for e in range(5): A(f'v_readlane_b32 {s(sH+e)}, {v(st)}, {e}')
    A(f's_mov_b32 {s(sH+5)}, 0')
    nop(1)
    U, TT, ACC, R8 = T+28, T+36, T+44, T+54
    KK = s(sKC, 2)
    def gelu_batch(n):
        for i in range(n): A(f'v_pk_mul_f32 {v(TT+2*i,2)}, {v(U+2*i,2)}, {v(U+2*i,2)}')
        for i in range(n): A(f'v_pk_fma_f32 {v(TT+2*i,2)}, {v(TT+2*i,2)}, {KK}, {KK} op_sel:[0,0,1] op_sel_hi:[1,0,1]')
        for i in range(n): A(f'v_pk_mul_f32 {v(TT+2*i,2)}, {v(TT+2*i,2)}, {v(U+2*i,2)}')
        for i in range(2*n): A(f'v_exp_f32 {v(TT+i)}, {v(TT+i)}')
        for i in range(n): A(f'v_pk_add_f32 {v(TT+2*i,2)}, {v(TT+2*i,2)}, 1.0 op_sel_hi:[1,0]')
        for i in range(2*n): A(f'v_rcp_f32 {v(TT+i)}, {v(TT+i)}')
        for i in range(n): A(f'v_pk_mul_f32 {v(U+2*i,2)}, {v(U+2*i,2)}, {v(TT+2*i,2)}')
    def elem(e):
        hs = s(sH + (e & ~1), 2); o = e & 1
        for i in range(4):
            A(f'v_pk_fma_f32 {v(U+2*i,2)}, {hs}, {v(cW1+2*i,2)}, {v(cB1+2*i,2)} op_sel:[{o},0,0] op_sel_hi:[{o},1,1]')
        gelu_batch(4)
        A(f'v_pk_mul_f32 {v(ACC+2*e,2)}, {v(U,2)}, {v(cW2,2)}')
        for i in range(1, 4):
            A(f'v_pk_fma_f32 {v(ACC+2*e,2)}, {v(U+2*i,2)}, {v(cW2+2*i,2)}, {v(ACC+2*e,2)}')
    for i in range(3):
        A(f'v_pk_fma_f32 {v(U+2*i,2)}, {s(sH+2*i,2)}, {v(cW8,2)}, {v(cW8,2)} op_sel:[0,0,1] op_sel_hi:[1,0,1]')
    gelu_batch(3)
    for i in range(3):
        A(f'v_pk_mul_f32 {v(R8+2*i,2)}, {v(U+2*i,2)}, {v(cW28,2)} op_sel_hi:[1,0]')
    for e in range(4): elem(e)
    A(f'v_mov_b32 {v(ACC+8)}, 0\nv_mov_b32 {v(ACC+9)}, 0')
    A(f's_cmp_eq_u32 {s(sNE)}, 4\ns_cbranch_scc1 L_no5')
    elem(4)
    A('L_no5:')
    for e in range(5): A(f'v_add_f32 {v(R8+e)}, {v(R8+e)}, {v(ACC+2*e)}')
    for e in range(5): A(f'v_add_f32 {v(R8+e)}, {v(R8+e)}, {v(ACC+2*e+1)}')
    A(f'v_mov_b32 {v(R8+5)}, {v(R8+4)}')
    A(f'v_lshrrev_b32 {v(U)}, 6, {v(vL4)}\nv_and_b32 {v(U+1)}, 1, {v(U)}\nv_lshrrev_b32 {v(U)}, 1, {v(U)}\nv_lshl_add_u32 {v(U)}, {v(U+1)}, 1, {v(U)}')
    A(f's_lshl_b32 s6, {s(sW)}, 2\ns_add_u32 s6, s6, {SM+RED}\nv_lshl_add_u32 {v(U)}, {v(U)}, 5, s6\nv_mov_b32 {v(U+1)}, s6')
    for i in range(3): A(f'v_permlane32_swap_b32 {v(R8+2*i)}, {v(R8+2*i+1)}')
    for i in range(3): A(f'v_add_f32 {v(R8+2*i)}, {v(R8+2*i)}, {v(R8+2*i+1)}')
    A(f'v_mov_b32 {v(R8+5)}, {v(R8+4)}')
    nop(2)
    A(f'v_permlane16_swap_b32 {v(R8)}, {v(R8+2)}\nv_permlane16_swap_b32 {v(R8+4)}, {v(R8+5)}')
    A(f'v_add_f32 {v(R8)}, {v(R8)}, {v(R8+2)}\nv_add_f32 {v(R8+4)}, {v(R8+4)}, {v(R8+5)}')
    nop(1)
    for k in (8, 4, 2, 1):
        dpp('v_add_f32', R8, R8, R8, f'row_ror:{k}')
        dpp('v_add_f32', R8+4, R8+4, R8+4, f'row_ror:{k}')
        nop(1)
    A(f'ds_write_b32 {v(U)}, {v(R8)}\nds_write_b32 {v(U+1)}, {v(R8+4)} offset:128')
    A('s_waitcnt lgkmcnt(0)\ns_barrier')
    stamp(8)
    A(f's_cmp_lg_u32 {s(sW)}, 0\ns_cbranch_scc1 L_nofin')
    A(f'v_and_b32 {v(U)}, 28, {v(vL4)}\nv_lshl_add_u32 {v(U+1)}, {v(U)}, 3, {s(sT3)}')
    A(f'ds_read_b128 {v(TT,4)}, {v(U+1)} offset:{RED}\nds_read_b128 {v(TT+4,4)}, {v(U+1)} offset:{RED+16}')
    A(f's_lshl_b32 s6, {s(sB2)}, 16\nv_add_f32 {v(U+2)}, s6, {v(vXE)}')
    A(f's_lshl_b32 s6, 1, {s(sNE)}\ns_sub_u32 s6, s6, 1\ns_waitcnt lgkmcnt(0)')
    A(f'v_pk_add_f32 {v(TT,2)}, {v(TT,2)}, {v(TT+2,2)}\nv_pk_add_f32 {v(TT+4,2)}, {v(TT+4,2)}, {v(TT+6,2)}\nv_pk_add_f32 {v(TT,2)}, {v(TT,2)}, {v(TT+4,2)}')
    A(f'v_add_f32 {v(TT)}, {v(TT)}, {v(TT+1)}\nv_add_f32 {v(TT)}, {v(TT)}, {v(U+2)}')
    A('s_mov_b32 exec_lo, s6\ns_mov_b32 exec_hi, 0')
    A(f's_cmp_lg_u32 {s(sLAY)}, 0\ns_cbranch_scc1 L_out')
    A(f's_lshl_b32 s6, {s(sU)}, 5\ns_add_u32 s6, s6, {s(sXDb)}')
    A(f'buffer_store_dword {v(TT)}, {v(vL4)}, {s(rWS,4)}, s6 offen sc1\ns_mov_b64 exec, -1')
    A('L_nofin:')
    A(f's_cmp_lg_u32 {s(sLAY)}, 0\ns_cbranch_scc1 L_fin')
    for k in range(2):
        e_, q_, r_ = g0+10, g0+11, g0+12
        A(f'v_lshl_add_u32 {v(e_)}, v0, 1, {k}\nv_mul_u32_u24 {v(q_)}, 13108, {v(e_)}\nv_lshrrev_b32 {v(q_)}, 16, {v(q_)}')
        A(f'v_mul_u32_u24 {v(r_)}, 12, {v(q_)}\nv_lshl_add_u32 {v(q_)}, {v(e_)}, 2, {v(r_)}')
        A(f'v_subrev_u32 {v(r_)}, 64, {v(e_)}\nv_and_b32 {v(g0+13)}, 3, {v(r_)}\nv_lshrrev_b32 {v(r_)}, 2, {v(r_)}')
        A(f'v_lshlrev_b32 {v(r_)}, 5, {v(r_)}\nv_lshl_add_u32 {v(r_)}, {v(g0+13)}, 2, {v(r_)}\nv_cmp_gt_u32 vcc, 320, {v(e_)}')
        nop(2)
        A(f'v_cndmask_b32 {v(g0+14+k)}, {v(r_)}, {v(q_)}, vcc')
    A(f'v_lshl_add_u32 {v(g0+20)}, {v(vT4)}, 1, {s(sT3)}\nv_add_u32 {v(g0+21)}, {s(sT3)}, {v(vT4)}')
    A('s_waitcnt vmcnt(0)\ns_barrier')
    A(f's_cmp_gt_u32 {s(sW)}, 4\ns_cbranch_scc1 L_gd_done')
    A(f's_cmp_eq_u32 {s(sW)}, 4\ns_cselect_b32 exec_hi, 0, -1')
    A('L_gd:')
    for k in range(2):
        A(f'buffer_load_dword {v(g0+k)}, {v(g0+14+k)}, {s(rWS,4)}, {s(sXDb)} offen sc1')
    A('s_waitcnt vmcnt(0)')
    check_sentinel([g0, g0+1], g0+2, 'L_gd_f')
    A(f'v_cvt_pk_bf16_f32 {v(g0+2)}, {v(g0)}, {v(g0+1)}\nds_write_b64 {v(g0+20)}, {v(g0,2)} offset:{X32}')
    A(f'v_lshlrev_b32 {v(g0+4)}, 16, {v(g0+2)}\nv_and_b32 {v(g0+5)}, 0xffff0000, {v(g0+2)}\nds_write_b32 {v(g0+21)}, {v(g0+2)} offset:{XH}')
    A(f'v_sub_f32 {v(g0+4)}, {v(g0)}, {v(g0+4)}\nv_sub_f32 {v(g0+5)}, {v(g0+1)}, {v(g0+5)}\nv_cvt_pk_bf16_f32 {v(g0+4)}, {v(g0+4)}, {v(g0+5)}')
    A(f'ds_write_b32 {v(g0+21)}, {v(g0+4)} offset:{XL}\ns_waitcnt lgkmcnt(0)\ns_mov_b64 exec, -1')
    A('L_gd_done:')
    for r in (sQAst, sQAld, sOBst, sLSEst, sOBld, sLSEld, sPCst, sPCld, sPCld2):
        A(f's_add_u32 {s(r)}, {s(r)}, {LS}')
    A(f's_mov_b32 {s(sLAY)}, 1\ns_barrier')
    if P['stamps']:
        A('s_waitcnt lgkmcnt(0)')
        emit_stamps(A, 0)
        stamp(0)
    A(f's_cmp_lt_u32 {s(sW)}, 4\ns_cbranch_scc1 L_qstage')
    A('s_barrier\ns_barrier\ns_branch L_wo')
    A('L_gc_f:')
    tmo_check()
    A('s_branch L_gc')
    A('L_gd_f:')
    tmo_check()
    A('s_branch L_gd')
    A('L_out:')
    A(f's_mul_i32 s6, {s(sB)}, 576\ns_add_u32 s6, s6, {s(sE0)}\ns_lshl_b32 s6, s6, 1')
    A(f'v_lshrrev_b32 {v(U)}, 1, {v(vL4)}\nv_add_u32 {v(U)}, s6, {v(U)}\nv_cvt_pk_bf16_f32 {v(TT)}, {v(TT)}, {v(TT)}')
    A(f'global_store_short {v(U)}, {v(TT)}, {s(pOUT,2)}')
    A('L_fin:')
    if P['stamps']:
        A('s_mov_b64 exec, -1\ns_waitcnt vmcnt(0)')
        stamp(9)
        A('s_waitcnt lgkmcnt(0)')
        emit_stamps(A, 1)
    A('L_end:\ns_endpgm')
    hdr = open('cdna_kernels/' + NAME + '.s.ref').read().split('; Override launch')[0].rstrip('\n').split('\n')
    return wrap(A.text(), hdr, 256, 512, LDS_BYTES, 256, NV)


def emit_stamps(A, layer):
    A(f's_lshl_b32 s6, s2, 3\ns_add_u32 s6, s6, {s(sW)}\ns_lshl_b32 s6, s6, 7\ns_add_u32 s6, s6, {STAMP + 64*layer}')
    A(f'v_mov_b32 {v(T+60)}, s6')
    for i in range(10):
        A(f'v_mov_b32 {v(T+61)}, {s(sSTP+2*i)}\nglobal_store_dword {v(T+60)}, {v(T+61)}, {s(pWS,2)} offset:{4*i}')


if __name__ == '__main__':
    out = sys.argv[1]
    kw = {}
    for x in sys.argv[2:]:
        k, val = x.split('='); kw[k] = int(val, 0)
    open(out, 'w').write(gen(**kw))
```

```python
import sys, math, struct
from asmlib import *

def f2u(x):
    return struct.unpack('<I', struct.pack('<f', x))[0]

DEF = dict(
    stamps=0,
    throttle=8,
    fast=0,
    tmo=1 << 22,
    prefetch=1,
    cprio=3,
    wopol='nt',
    npa=6,
    xp=0,
)

LS   = 0x100000
QA   = 0x0
OB   = 0x20000
LSE  = 0x40000
PC   = 0x41000
PCS  = 1152
XD   = 0x50000
ARR  = 0x60000
EPO  = 0x68000
QAB  = 0x80000
WS_BYTES = 0x200000
STAMP = 0x300000
OOB  = 0x40000000
KB, VB = 0, 65536
SM = 155648
WQB = SM - 36864
X32, XH, XL, ONES, QB, PB, ML, RED, FLAGS = 0, 2304, 3456, 4608, 5120, 6144, 7168, 7232, 7680
OL = QB
F_A, F_WQ, F_Q, F_K, F_KR, F_P, F_V, F_WO, F_WL, F_S = range(10)
LDS_BYTES = 163840

sW = 3
rK, rV, rWQ, rWO, rWS = 8, 12, 16, 20, 24
pX, pW1, pB1, pW2, pB2, pOUT, pWS = 28, 30, 32, 34, 36, 38, 42
sX, sB, sHL, sSP, sHKV, sC, sU, sE0, sNE, sLAY, sFAST, sTMO = range(44, 56)
sQAst, sQAld, sOBst, sLSEst, sOBld, sLSEld, sPCst, sPCld, sPCld2, sXDb = range(56, 66)
sH = 66
sKC = 72
sMHI = 74
sT0, sT1, sT2, sT3 = 76, 77, 78, 79
sB2, sXCC = 80, 81
sTAG, sTG12 = 41, 40
sSTP = 82
vTID, vL4, vT4, vXA, vQF, vPW, vOBS, vMLR, vFL, vXE = range(10)
vRAW = 10
T = 26
NV = 92
aK, aV, aWQ, aWQH = 0, 64, 128, 160


def gen(**kw):
    P = dict(DEF); P.update(kw)
    A = Asm()
    nop = lambda n: A(f's_nop {n-1}') if n > 0 else None
    stamp_ctr = [0]
    def stamp(i):
        if P['stamps']:
            A(f's_memrealtime {s(sSTP+2*i,2)}')
    def tmo_check():
        A(f's_sub_u32 {s(sTMO)}, {s(sTMO)}, 1\ns_cbranch_scc1 L_end')
    def signal(k):
        A(f'v_mov_b32 {v(T+64)}, 1\nds_write_b32 {v(vFL)}, {v(T+64)} offset:{16*k}')
    def wait_flag(k, sleep=1):
        l = A.label('wf')
        t = T + 60
        A(f'v_mov_b32 {v(T+65)}, {SM+FLAGS}')
        A(f'{l}:')
        A(f'ds_read_b128 {v(t,4)}, {v(T+65)} offset:{16*k}\ns_waitcnt lgkmcnt(0)')
        A(f'v_and_b32 {v(t)}, {v(t)}, {v(t+1)}\nv_and_b32 {v(t+2)}, {v(t+2)}, {v(t+3)}\nv_and_b32 {v(t)}, {v(t)}, {v(t+2)}')
        A(f'v_cmp_ne_u32 vcc, 0, {v(t)}\ns_cbranch_vccnz {l}_d')
        tmo_check()
        if sleep: A(f's_sleep {sleep}')
        A(f's_branch {l}\n{l}_d:')
    def dpp(op, d, a_, b_, ctl, rm='0xf'):
        A(f'{op}_dpp {v(d)}, {v(a_)}, {v(b_)} {ctl} row_mask:{rm} bank_mask:0xf')
    def allsum2(r0, r1, t0, t1):
        nop(2)
        for k in (8, 4, 2, 1):
            dpp('v_add_f32', r0, r0, r0, f'row_ror:{k}')
            dpp('v_add_f32', r1, r1, r1, f'row_ror:{k}')
            nop(1)
        for sw in ('v_permlane16_swap_b32', 'v_permlane32_swap_b32'):
            A(f'v_mov_b32 {v(t0)}, {v(r0)}\nv_mov_b32 {v(t1)}, {v(r1)}')
            nop(1)
            A(f'{sw} {v(r0)}, {v(t0)}\n{sw} {v(r1)}, {v(t1)}')
            A(f'v_add_f32 {v(r0)}, {v(r0)}, {v(t0)}\nv_add_f32 {v(r1)}, {v(r1)}, {v(t1)}')
    def stats_issue(t):
        A(f'v_lshl_add_u32 {v(t+10)}, {v(vL4)}, 2, {s(sT3)}\nv_add_u32 {v(t+11)}, {s(sT3)}, {v(vL4)}')
        A(f'ds_read_b128 {v(t,4)}, {v(t+10)} offset:{X32}\nds_read_b128 {v(t+4,4)}, {v(t+10)} offset:{X32+1024}')
        A(f'ds_read_b32 {v(t+8)}, {v(t+11)} offset:{X32+2048}')
        A(f'v_mov_b32 {v(t+10)}, {s(sT3)}\nds_read_b32 {v(t+9)}, {v(t+10)} offset:{X32}')
    def stats_calc(t):
        for i in range(9):
            A(f'v_sub_f32 {v(t+i)}, {v(t+i)}, {v(t+9)}')
        A(f'v_pk_mul_f32 {v(t+10,2)}, {v(t,2)}, {v(t,2)}')
        for i in (2, 4, 6):
            A(f'v_pk_fma_f32 {v(t+10,2)}, {v(t+i,2)}, {v(t+i,2)}, {v(t+10,2)}')
            A(f'v_pk_add_f32 {v(t,2)}, {v(t,2)}, {v(t+i,2)}')
        A(f'v_fmac_f32 {v(t+10)}, {v(t+8)}, {v(t+8)}\nv_add_f32 {v(t)}, {v(t)}, {v(t+8)}')
        A(f'v_add_f32 {v(t+10)}, {v(t+10)}, {v(t+11)}\nv_add_f32 {v(t)}, {v(t)}, {v(t+1)}')
        allsum2(t, t+10, t+2, t+3)
        inv = hex(f2u(1.0/576))
        A(f'v_mul_f32 {v(t)}, {inv}, {v(t)}\nv_mul_f32 {v(t+10)}, {inv}, {v(t+10)}')
        A(f'v_fma_f32 {v(t+1)}, -{v(t)}, {v(t)}, {v(t+10)}\nv_add_f32 {v(t)}, {v(t)}, {v(t+9)}')
        A(f'v_max_f32 {v(t+1)}, 0, {v(t+1)}')
    EPS = hex(f2u(1e-5))
    def check_sentinel(regs, tmp, lfail):
        r = list(regs)
        cur = r.pop(0)
        while r:
            if len(r) >= 2:
                A(f'v_max3_u32 {v(tmp)}, {v(cur)}, {v(r[0])}, {v(r[1])}'); r = r[2:]
            else:
                A(f'v_max_u32 {v(tmp)}, {v(cur)}, {v(r[0])}'); r = r[1:]
            cur = tmp
        A(f'v_cmp_eq_u32 vcc, -1, {v(cur)}\ns_cbranch_vccnz {lfail}')
    def local_store(fn, pace=True):
        if not P['fast']:
            fn(' sc1'); return
        l = A.label('ls')
        A(f's_cmp_eq_u32 {s(sFAST)}, 0\ns_cbranch_scc1 {l}_s')
        fn('')
        A(f's_branch {l}_d\n{l}_s:')
        fn(' sc1')
        if pace: A('s_waitcnt vmcnt(0)')
        A(f'{l}_d:')
    def local_pace():
        if not P['fast']:
            A('s_waitcnt vmcnt(0)')
    def raw_loads():
        if P['xp'] & 16: return
        for k, p in enumerate((pW1, pB1, pW2)):
            for i in range(4):
                A(f'global_load_dword {v(vRAW+5*k+i)}, {v(vT4)}, {s(p,2)} offset:{2048*i if i < 2 else 2048*(i-2)}'
                  if i < 2 else f'global_load_dword {v(vRAW+5*k+i)}, {v(T+62)}, {s(p,2)} offset:{2048*(i-2)}')
            A(f'global_load_ushort {v(vRAW+5*k+4)}, {v(T+63)}, {s(p,2)}')
    def raw_addr():
        A(f'v_add_u32 {v(T+62)}, 4096, {v(vT4)}\nv_lshlrev_b32 {v(T+63)}, 1, {v(vTID)}\nv_add_u32 {v(T+63)}, 8192, {v(T+63)}')
    def raw_l0():
        l = A.label('raw')
        A(f's_cmp_lg_u32 {s(sLAY)}, 0\ns_cbranch_scc1 {l}')
        raw_addr(); raw_loads()
        A(f's_waitcnt vmcnt(0)\n{l}:')
    cW1, cB1, cW2, cW8, cW28 = T, T+8, T+16, T+24, T+26
    def expand_coefs():
        for k, c in enumerate((cW1, cB1, cW2)):
            for i in range(4):
                A(f'v_lshlrev_b32 {v(c+2*i)}, 16, {v(vRAW+5*k+i)}\nv_and_b32 {v(c+2*i+1)}, 0xffff0000, {v(vRAW+5*k+i)}')
        A(f'v_lshlrev_b32 {v(cW8)}, 16, {v(vRAW+4)}\nv_lshlrev_b32 {v(cW8+1)}, 16, {v(vRAW+9)}\nv_lshlrev_b32 {v(cW28)}, 16, {v(vRAW+14)}')

    A('s_cmp_ge_u32 s2, 256\ns_cbranch_scc1 L_end')
    stamp(0)
    A('s_load_dwordx16 s[56:71], s[0:1], 0\ns_load_dwordx8 s[72:79], s[0:1], 64\ns_load_dwordx2 s[42:43], s[0:1], 96')
    A(f'v_lshrrev_b32 {v(T)}, 6, v0\nv_and_b32 {v(T+1)}, 63, v0')
    A(f'v_readfirstlane_b32 {s(sW)}, {v(T)}')
    A(f'v_lshlrev_b32 {v(vL4)}, 2, {v(T+1)}\nv_lshlrev_b32 {v(vT4)}, 2, v0')
    A(f's_getreg_b32 {s(sXCC)}, hwreg(HW_REG_XCC_ID, 0, 4)')
    A(f's_and_b32 {s(sX)}, s2, 7\ns_lshr_b32 s4, s2, 3')
    A(f's_lshr_b32 {s(sB)}, s4, 4\ns_bfe_u32 {s(sHL)}, s4, 0x10003\ns_and_b32 {s(sSP)}, s4, 7\ns_and_b32 {s(sC)}, s4, 15')
    A(f's_lshl_b32 {s(sHKV)}, {s(sX)}, 1\ns_add_u32 {s(sHKV)}, {s(sHKV)}, {s(sHL)}')
    A(f's_lshl_b32 {s(sU)}, {s(sX)}, 4\ns_add_u32 {s(sU)}, {s(sU)}, {s(sC)}')
    A(f's_mul_i32 s4, {s(sU)}, 5\ns_lshl_b32 s5, {s(sU)}, 2\ns_add_u32 s5, s5, 64')
    A(f's_cmp_lt_u32 {s(sU)}, 64\ns_cselect_b32 {s(sE0)}, s4, s5\ns_cselect_b32 {s(sNE)}, 5, 4')
    A(f's_mov_b32 {s(sLAY)}, 0\ns_mov_b32 {s(sFAST)}, 0\ns_mov_b32 {s(sTMO)}, {P["tmo"]}')
    A(f'v_and_b32 {v(T+2)}, 15, {v(T+1)}\nv_lshrrev_b32 {v(T+3)}, 4, {v(T+1)}')
    A(f's_and_b32 s4, {s(sW)}, 3\ns_lshl_b32 s4, s4, 2\ns_add_u32 s4, s4, {SM+FLAGS}\nv_mov_b32 {v(vFL)}, s4')
    A(f's_cmp_lg_u32 {s(sW)}, 0\ns_cbranch_scc1 L_noinit')
    A(f'v_mov_b32 {v(T+4)}, 0\nv_add_u32 {v(T+5)}, {SM}, {v(vL4)}\nds_write_b32 {v(T+5)}, {v(T+4)} offset:{FLAGS}')
    A(f'v_mov_b32 {v(T+4)}, 0x3f803f80\nds_write_b32 {v(T+5)}, {v(T+4)} offset:{ONES}\nds_write_b32 {v(T+5)}, {v(T+4)} offset:{ONES+256}')
    A('L_noinit:')
    A(f's_lshr_b32 s4, {s(sSP)}, 1\ns_mul_i32 s5, s4, 288')
    A(f's_add_u32 s6, s5, {SM+XH}\ns_add_u32 s7, s5, {SM+XL}')
    A(f'v_mov_b32 {v(vXA)}, {SM+ONES}\nv_mov_b32 {v(T+4)}, s6\nv_mov_b32 {v(T+5)}, s7')
    A(f'v_cmp_eq_u32 vcc, 0, {v(T+2)}')
    nop(2)
    A(f'v_cndmask_b32 {v(vXA)}, {v(vXA)}, {v(T+4)}, vcc\nv_cmp_eq_u32 vcc, 1, {v(T+2)}')
    nop(2)
    A(f'v_cndmask_b32 {v(vXA)}, {v(vXA)}, {v(T+5)}, vcc\nv_lshl_add_u32 {v(vXA)}, {v(T+3)}, 4, {v(vXA)}')
    A(f'v_bfe_u32 {v(T+4)}, {v(T+2)}, 2, 1\nv_lshlrev_b32 {v(T+4)}, 9, {v(T+4)}')
    A(f's_cmp_lt_u32 {s(sW)}, 4\ns_cselect_b32 s6, -1, 0\nv_and_b32 {v(T+4)}, s6, {v(T+4)}')
    A(f'v_lshl_add_u32 {v(vQF)}, {v(T+3)}, 4, {v(T+4)}\nv_add_u32 {v(vQF)}, {SM}, {v(vQF)}')
    A(f'v_and_b32 {v(T+6)}, 1, {v(T+3)}\nv_lshrrev_b32 {v(T+7)}, 1, {v(T+3)}\nv_lshl_add_u32 {v(T+7)}, {v(T+7)}, 4, {v(T+2)}\nv_lshlrev_b32 {v(T+7)}, 1, {v(T+7)}')
    A(f's_lshl_b32 s6, {s(sW)}, 7\ns_add_u32 s6, s6, {SM+PB}')
    A(f'v_lshl_add_u32 {v(vPW)}, {v(T+6)}, 9, {v(T+7)}\nv_add_u32 {v(vPW)}, s6, {v(vPW)}')
    A(f'v_lshl_add_u32 {v(vOBS)}, {v(T+6)}, 11, {v(T+7)}')
    A(f'v_lshlrev_b32 {v(vMLR)}, 5, {v(T+6)}\nv_add_u32 {v(vMLR)}, {SM+ML}, {v(vMLR)}')
    A(f'v_mov_b32 {v(vXE)}, 0')
    A('s_waitcnt lgkmcnt(0)\ns_barrier')
    A(f's_mov_b64 {s(pX,2)}, s[56:57]\ns_mov_b64 {s(pW1,2)}, s[68:69]\ns_mov_b64 {s(pB1,2)}, s[70:71]')
    A(f's_mov_b64 {s(pW2,2)}, s[72:73]\ns_mov_b64 {s(pB2,2)}, s[74:75]\ns_mov_b64 {s(pOUT,2)}, s[76:77]')
    A(f's_lshl_b32 s5, {s(sB)}, 4\ns_add_u32 s5, s5, {s(sHKV)}')
    A(f's_lshl_b32 s6, s5, 21\ns_lshl_b32 s7, {s(sSP)}, 16\ns_add_u32 s6, s6, s7\ns_add_u32 s6, s6, 0x180000')
    A(f's_add_u32 {s(rK)}, s58, s6\ns_addc_u32 {s(rK+1)}, s59, 0\ns_mov_b32 {s(rK+2)}, 0x10000\ns_mov_b32 {s(rK+3)}, 0x20000')
    A(f's_add_u32 {s(rV)}, s60, s6\ns_addc_u32 {s(rV+1)}, s61, 0\ns_mov_b32 {s(rV+2)}, 0x10000\ns_mov_b32 {s(rV+3)}, 0x20000')
    A(f's_mul_i32 s6, s4, {144*8192}\ns_lshl_b32 s7, {s(sHKV)}, 9\ns_add_u32 s6, s6, s7\ns_and_b32 s7, {s(sSP)}, 1\ns_lshl_b32 s7, s7, 8\ns_add_u32 s6, s6, s7')
    A(f's_add_u32 {s(rWQ)}, s62, s6\ns_addc_u32 {s(rWQ+1)}, s63, 0\ns_sub_u32 {s(rWQ+2)}, 4718592, s6\ns_mov_b32 {s(rWQ+3)}, 0x20000')
    A(f's_mul_i32 s6, {s(sX)}, {512*1152}\ns_mul_i32 s7, {s(sC)}, 72\ns_and_b32 s7, s7, 0xfffffff0\ns_add_u32 s6, s6, s7')
    A(f's_add_u32 {s(rWO)}, s64, s6\ns_addc_u32 {s(rWO+1)}, s65, 0\ns_sub_u32 {s(rWO+2)}, 4718592, s6\ns_mov_b32 {s(rWO+3)}, 0x20000')
    A(f's_mov_b32 {s(rWS)}, s42\ns_mov_b32 {s(rWS+1)}, s43\ns_mov_b32 {s(rWS+2)}, {WS_BYTES}\ns_mov_b32 {s(rWS+3)}, 0x20000')
    A(f's_lshl_b32 {s(sQAld)}, s5, 12')
    A(f's_lshl_b32 s6, s4, 10\ns_and_b32 s7, {s(sSP)}, 1\ns_lshl_b32 s7, s7, 9\ns_add_u32 s6, s6, s7\ns_add_u32 {s(sT0)}, {s(sQAld)}, s6')
    A(f's_and_b32 s7, {s(sW)}, 3\ns_lshl_b32 s6, s7, 7\ns_add_u32 {s(sQAst)}, {s(sT0)}, s6')
    A(f's_lshl_b32 s5, {s(sB)}, 3\ns_add_u32 s5, s5, {s(sX)}')
    A(f's_lshl_b32 s6, s5, 13\ns_add_u32 s6, s6, {OB}\ns_lshl_b32 {s(sOBld)}, s7, 11\ns_add_u32 {s(sOBld)}, {s(sOBld)}, s6')
    A(f's_lshl_b32 {s(sT1)}, {s(sHL)}, 12\ns_add_u32 s6, s6, {s(sT1)}\ns_lshl_b32 {s(sT1)}, {s(sSP)}, 8\ns_add_u32 {s(sT1)}, {s(sT1)}, s6')
    A(f's_lshl_b32 s6, s7, 6\ns_add_u32 {s(sOBst)}, {s(sT1)}, s6')
    A(f's_lshl_b32 s6, s5, 7\ns_add_u32 s6, s6, {LSE}\ns_lshl_b32 {s(sLSEld)}, s7, 5\ns_add_u32 {s(sLSEld)}, {s(sLSEld)}, s6')
    A(f's_lshl_b32 {s(sLSEst)}, {s(sHL)}, 6\ns_add_u32 s6, s6, {s(sLSEst)}\ns_lshl_b32 {s(sLSEst)}, {s(sSP)}, 2\ns_add_u32 {s(sLSEst)}, {s(sLSEst)}, s6')
    A(f's_mul_i32 s6, s5, {PCS}\ns_add_u32 s6, s6, {PC}\ns_mul_i32 {s(sT2)}, {s(sC)}, 72\ns_add_u32 {s(sT2)}, {s(sT2)}, s6')
    A(f's_lshl_b32 s6, s7, 5\ns_add_u32 {s(sPCst)}, {s(sT2)}, s6')
    A(f's_mul_i32 {s(sPCld)}, {s(sB)}, {8*PCS}\ns_add_u32 {s(sPCld)}, {s(sPCld)}, {PC}\ns_add_u32 {s(sPCld2)}, {s(sPCld)}, {4*PCS}')
    A(f's_lshl_b32 {s(sXDb)}, {s(sB)}, 12\ns_add_u32 {s(sXDb)}, {s(sXDb)}, {XD}')
    k1 = -2.0 * math.sqrt(2.0/math.pi) * math.log2(math.e); k2 = k1 * 0.044715
    A(f's_mov_b32 {s(sKC)}, {hex(f2u(k2))}\ns_mov_b32 {s(sKC+1)}, {hex(f2u(k1))}')
    A(f's_mov_b32 {s(sMHI)}, 0\ns_mov_b32 {s(sMHI+1)}, -1\ns_mov_b32 {s(sT3)}, {SM}')
    A(f's_load_dword {s(sB2)}, {s(pB2,2)}, 0')
    A(f's_bfe_u32 s6, {s(sW)}, 0x10001\ns_lshl_b32 s6, s6, 2\nv_or_b32 {v(T+4)}, s6, {v(T+3)}\nv_lshlrev_b32 {v(T+4)}, 1, {v(T+4)}')
    A(f'v_xor_b32 {v(T+4)}, {v(T+4)}, {v(T+2)}\nv_lshlrev_b32 {v(T+4)}, 4, {v(T+4)}')
    if P['xp'] & 32: A(f'v_lshlrev_b32 {v(T+4)}, 4, {v(T+2)}')
    A(f's_cmp_ge_u32 {s(sW)}, 4\ns_cbranch_scc1 L_loader')
    if P['xp'] & 64:
        A('s_waitcnt lgkmcnt(0)'); emit_stamps(A, 0); A('s_endpgm')

    if P['cprio']: A(f's_setprio {P["cprio"]}')
    A(f's_mul_i32 s6, {s(sB)}, 1152\nv_add_u32 {v(T+16)}, s6, {v(vT4)}')
    A(f'v_and_b32 {v(T+18)}, 31, {v(T+1)}\nv_lshl_add_u32 {v(T+17)}, {v(T+18)}, 2, s6')
    A(f'global_load_dword {v(T+20)}, {v(T+16)}, {s(pX,2)}\nglobal_load_dword {v(T+21)}, {v(T+17)}, {s(pX,2)} offset:1024')
    A(f'v_mov_b32 {v(T+19)}, {EPO}\nbuffer_load_dword {v(T+22)}, {v(T+19)}, {s(rWS,4)}, 0 offen sc1')
    A(f's_cmp_eq_u32 {s(sW)}, 3\ns_cbranch_scc1 L_clr')
    if P['prefetch']:
        A(f's_lshr_b32 s7, s2, 3\ns_mul_i32 s6, s7, 288\nv_lshl_add_u32 {v(T+19)}, {v(T+1)}, 6, s6\nv_min_u32 {v(T+19)}, 9212, {v(T+19)}')
        A(f's_cmp_eq_u32 {s(sW)}, 1\ns_cselect_b32 s4, {s(pB1)}, {s(pW1)}\ns_cselect_b32 s5, {s(pB1+1)}, {s(pW1+1)}')
        A(f's_cmp_eq_u32 {s(sW)}, 2\ns_cselect_b32 s4, {s(pW2)}, s4\ns_cselect_b32 s5, {s(pW2+1)}, s5')
        A(f's_mov_b64 exec, 0x3f\nglobal_load_dword {v(vRAW)}, {v(T+19)}, s[4:5]')
        A(f's_getpc_b64 s[4:5]\nL_pc:\ns_mul_i32 s7, s7, 3\ns_add_u32 s7, s7, {s(sW)}\ns_lshl_b32 s7, s7, 8')
        A(f's_mov_b64 exec, 0xf\nv_lshl_add_u32 {v(T+19)}, {v(T+1)}, 6, s7\nv_min_u32 {v(T+19)}, L_end-L_pc, {v(T+19)}')
        A(f'global_load_dword {v(vRAW+1)}, {v(T+19)}, s[4:5]\ns_mov_b64 exec, -1\ns_waitcnt vmcnt(2)')
    else:
        A('s_waitcnt vmcnt(0)')
    A('s_branch L_cdone')
    A('L_clr:')
    nclr = 0
    if not P['xp'] & 2:
        nclr = 3
        for i in range(4): A(f'v_mov_b32 {v(T+8+i)}, -1')
        A(f'v_lshrrev_b32 {v(T+12)}, 5, {v(T+1)}\nv_mul_u32_u24 {v(T+12)}, {LS}, {v(T+12)}')
        A(f'v_lshl_add_u32 {v(T+13)}, {v(T+6)}, 11, {v(T+12)}\nv_lshl_add_u32 {v(T+13)}, {v(T+2)}, 4, {v(T+13)}')
        A(f'buffer_store_dwordx4 {v(T+8,4)}, {v(T+13)}, {s(rWS,4)}, {s(sT1)} offen sc1')
        A(f'v_and_b32 {v(T+14)}, 31, {v(T+1)}\nv_lshl_add_u32 {v(T+13)}, {v(T+14)}, 2, {v(T+12)}\nv_mov_b32 {v(T+15)}, {OOB}\nv_cmp_gt_u32 vcc, 18, {v(T+14)}')
        nop(2)
        A(f'v_cndmask_b32 {v(T+13)}, {v(T+15)}, {v(T+13)}, vcc')
        A(f'buffer_store_dword {v(T+8)}, {v(T+13)}, {s(rWS,4)}, {s(sT2)} offen sc1')
        A(f'v_lshrrev_b32 {v(T+13)}, 1, {v(T+1)}\nv_mul_u32_u24 {v(T+13)}, {LS}, {v(T+13)}\nv_and_b32 {v(T+14)}, 1, {v(T+1)}')
        A(f'v_lshl_add_u32 {v(T+13)}, {v(T+14)}, 5, {v(T+13)}\nv_add_u32 {v(T+13)}, {s(sLSEst)}, {v(T+13)}')
        A(f's_lshl_b32 s6, {s(sU)}, 5\ns_add_u32 s6, s6, {s(sXDb)}\ns_sub_u32 s6, s6, 16\nv_add_u32 {v(T+14)}, s6, {v(vL4)}')
        A(f'v_cmp_gt_u32 vcc, 4, {v(T+1)}')
        nop(2)
        A(f'v_cndmask_b32 {v(T+13)}, {v(T+14)}, {v(T+13)}, vcc\nv_cmp_gt_u32 vcc, 12, {v(T+1)}')
        nop(2)
        A(f'v_cndmask_b32 {v(T+13)}, {v(T+15)}, {v(T+13)}, vcc')
        A(f'buffer_store_dword {v(T+8)}, {v(T+13)}, {s(rWS,4)}, 0 offen sc1')
    A(f's_waitcnt vmcnt({nclr})')
    A('L_cdone:')
    A(f'v_mov_b32 {v(T+28)}, 0')
    for (src, areg, extra) in ((T+20, vT4, 0), (T+21, None, 1)):
        if extra:
            A(f'v_lshlrev_b32 {v(T+18)}, 2, {v(T+18)}\nv_add_u32 {v(T+18)}, 1024, {v(T+18)}')
            areg = T+18
        A(f'v_lshlrev_b32 {v(T+24)}, 16, {v(src)}\nv_and_b32 {v(T+25)}, 0xffff0000, {v(src)}')
        A(f'v_lshl_add_u32 {v(T+26)}, {v(areg)}, 1, {s(sT3)}\nv_add_u32 {v(T+27)}, {s(sT3)}, {v(areg)}')
        A(f'ds_write_b64 {v(T+26)}, {v(T+24,2)} offset:{X32}\nds_write_b32 {v(T+27)}, {v(src)} offset:{XH}\nds_write_b32 {v(T+27)}, {v(T+28)} offset:{XL}')
    A(f'v_readfirstlane_b32 {s(sTAG)}, {v(T+22)}')
    A(f's_waitcnt lgkmcnt(0)')
    signal(F_A)
    A(f's_mul_i32 {s(sTAG)}, {s(sTAG)}, 0x9e3779b1\ns_add_u32 {s(sTAG)}, {s(sTAG)}, 0x7f4a7c15\ns_and_b32 {s(sTAG)}, {s(sTAG)}, 0x1fffffff\ns_and_b32 {s(sTG12)}, {s(sTAG)}, 0xfff')
    wait_flag(F_A, sleep=0)
    stamp(1)
    wait_flag(F_WL)
    def tr_addr(dst, tile_sreg, rowexpr_g_shift, gbit_shift, base):
        A(f'v_bfe_u32 {v(T+40)}, {v(vL4)}, 4, 2\nv_bfe_u32 {v(T+41)}, {v(vL4)}, 2, 2\nv_lshrrev_b32 {v(T+42)}, 6, {v(vL4)}')
        A(f'v_bfe_u32 {v(T+43)}, {v(T+42)}, {gbit_shift}, 1\nv_lshl_or_b32 {v(T+43)}, {v(T+43)}, 2, {v(T+40)}')
        A(f'v_xor_b32 {v(T+43)}, {s(tile_sreg)}, {v(T+43)}\nv_lshlrev_b32 {v(T+43)}, 5, {v(T+43)}\nv_lshl_add_u32 {v(T+43)}, {v(T+41)}, 3, {v(T+43)}')
        A(f'v_lshl_add_u32 {v(T+42)}, {v(T+42)}, {rowexpr_g_shift}, {v(T+40)}\nv_lshl_add_u32 {v(dst)}, {v(T+42)}, 8, {v(T+43)}')
        A(f'v_add_u32 {v(dst)}, {base}, {v(dst)}')
    for tt in range(2):
        A(f's_lshl_b32 s6, {s(sW)}, 1\ns_add_u32 s6, s6, {tt}')
        tr_addr(T+44, 6, 3, 0, WQB)
        tr_addr(T+45, 6, 2, 1, WQB + 128*256)
        for ks in range(4):
            for hh in range(2):
                A(f'ds_read_b64_tr_b16 {a(aWQ+16*tt+4*ks+2*hh,2)}, {v(T+44)} offset:{ks*8192+hh*1024}')
        A(f'ds_read_b64_tr_b16 {a(aWQH+2*tt,2)}, {v(T+45)}')
    A('s_waitcnt lgkmcnt(0)')
    signal(F_WQ)
    A(f's_cmp_lg_u32 {s(sW)}, 3\ns_cbranch_scc1 L_qstage')
    A(f's_lshl_b32 s6, {s(sXCC)}, 29\ns_or_b32 s6, s6, {s(sTAG)}\nv_mov_b32 {v(T+8)}, s6')
    A(f's_lshl_b32 s6, {s(sX)}, 7\ns_lshr_b32 s7, s2, 3\ns_lshl_b32 s7, s7, 2\ns_add_u32 s6, s6, s7\ns_add_u32 s6, s6, {ARR}\nv_mov_b32 {v(T+9)}, s6')
    A(f's_waitcnt vmcnt(0)\ns_mov_b64 exec, 1\nbuffer_store_dword {v(T+8)}, {v(T+9)}, {s(rWS,4)}, 0 offen sc1\ns_mov_b64 exec, -1')

    A('L_qstage:')
    xf = T
    st = T + 20
    D0, D1 = T+32, T+36
    A(f'v_lshrrev_b32 {v(T+18)}, 6, {v(vL4)}\nv_lshlrev_b32 {v(T+18)}, 3, {v(T+18)}\nv_sub_u32 {v(T+18)}, {v(vXA)}, {v(T+18)}')
    for ks in range(4):
        A(f'ds_read_b128 {v(xf+4*ks,4)}, {v(vXA)} offset:{64*ks}')
    A(f'ds_read_b64 {v(xf+16,2)}, {v(T+18)} offset:256')
    stats_issue(st)
    A('s_waitcnt lgkmcnt(0)')
    for ks in range(4):
        for tt, D in enumerate((D0, D1)):
            A(f'v_mfma_f32_16x16x32_bf16 {v(D,4)}, {v(xf+4*ks,4)}, {a(aWQ+16*tt+4*ks,4)}, {v(D,4) if ks else 0}')
    for tt, D in enumerate((D0, D1)):
        A(f'v_mfma_f32_16x16x16_bf16 {v(D,4)}, {v(xf+16,2)}, {a(aWQH+2*tt,2)}, {v(D,4)}')
    stats_calc(st)
    qs = (128 ** -0.5) * math.log2(math.e)
    A(f'v_add_f32 {v(st+1)}, {EPS}, {v(st+1)}\nv_rsq_f32 {v(st+1)}, {v(st+1)}')
    for D in (D0, D1):
        A(f'v_add_f32 {v(D)}, {v(D)}, {v(D+1)}\nv_fma_f32 {v(D)}, -{v(st)}, {v(D+2)}, {v(D)}')
    A(f'v_mul_f32 {v(st+1)}, {hex(f2u(qs))}, {v(st+1)}')
    A(f'v_mul_f32 {v(D0)}, {v(D0)}, {v(st+1)}\nv_mul_f32 {v(D1)}, {v(D1)}, {v(st+1)}')
    for D in (D0, D1): A(f'v_and_b32 {v(D)}, 0xfffff000, {v(D)}')
    for D in (D0, D1): A(f'v_or_b32 {v(D)}, {s(sTG12)}, {v(D)}')
    A('s_mov_b64 exec, 0xffff')
    sKD, sPOL, sQC = 4, 5, sT0
    if not P['xp'] & 8:
        A(f'buffer_store_dword {v(D0)}, {v(vL4)}, {s(rWS,4)}, {s(sQAst)} offen')
        A(f'buffer_store_dword {v(D1)}, {v(vL4)}, {s(rWS,4)}, {s(sQAst)} offen offset:64')
        A(f's_cmp_lg_u32 {s(sFAST)}, 0\ns_cbranch_scc1 L_q1copy\ns_add_u32 s6, {s(sQAst)}, {QAB}')
        A(f'buffer_store_dword {v(D0)}, {v(vL4)}, {s(rWS,4)}, s6 offen sc1')
        A(f'buffer_store_dword {v(D1)}, {v(vL4)}, {s(rWS,4)}, s6 offen offset:64 sc1')
        A('L_q1copy:')
    A('s_mov_b64 exec, -1')
    stamp(2)
    A(f's_mov_b32 {s(sQC)}, {s(sQAld)}\ns_mov_b32 {s(sKD)}, {s(sLAY)}\ns_mov_b32 {s(sPOL)}, {P["npa"]}')
    A(f's_cmp_eq_u32 {s(sLAY)}, 0\ns_cbranch_scc1 L_ga\ns_mov_b32 {s(sPOL)}, -1')
    A(f's_cmp_lg_u32 {s(sFAST)}, 0\ns_cbranch_scc1 L_ga\ns_add_u32 {s(sQC)}, {s(sQC)}, {QAB}\ns_waitcnt vmcnt(0)')
    A('L_ga:')
    if not P['xp'] & 4:
        for kq in range(4):
            A(f'buffer_load_dword {v(T+kq)}, {v(vT4)}, {s(rWS,4)}, {s(sQC)} offen offset:{1024*kq} sc1')
    def k_reads():
        kt = T + 8
        A(f'v_bfe_u32 {v(kt)}, {v(vL4)}, 2, 4\nv_lshrrev_b32 {v(kt+1)}, 6, {v(vL4)}\ns_lshl_b32 s6, {s(sW)}, 14')
        A(f'v_lshl_add_u32 {v(kt+2)}, {v(kt)}, 8, s6')
        for ks in range(4):
            A(f'v_add_u32 {v(kt+3)}, {4*ks}, {v(kt+1)}\nv_xor_b32 {v(kt+3)}, {v(kt+3)}, {v(kt)}\nv_lshl_add_u32 {v(kt+4+ks)}, {v(kt+3)}, 4, {v(kt+2)}')
            for tt in range(4):
                A(f'ds_read_b128 {a(aK+16*tt+4*ks,4)}, {v(kt+4+ks)} offset:{KB+4096*tt}')
        A('s_waitcnt lgkmcnt(0)')
        signal(F_KR)
    A(f'v_lshrrev_b32 {v(T+6)}, 7, v0\nv_lshlrev_b32 {v(T+6)}, 8, {v(T+6)}\nv_lshl_add_u32 {v(T+6)}, v0, 1, {v(T+6)}\nv_add_u32 {v(T+6)}, {SM+QB}, {v(T+6)}')
    A('s_waitcnt vmcnt(0)')
    for k in range(4): A(f'v_xor_b32 {v(T+k)}, {s(sTG12)}, {v(T+k)}')
    A(f'v_or3_b32 {v(T+4)}, {v(T)}, {v(T+1)}, {v(T+2)}\nv_or_b32 {v(T+4)}, {v(T+4)}, {v(T+3)}\nv_and_b32 {v(T+4)}, 0xfff, {v(T+4)}')
    if not P['xp'] & 4: A(f'v_cmp_ne_u32 vcc, 0, {v(T+4)}\ns_cbranch_vccnz L_ga_f')
    A(f'v_add_f32 {v(T)}, {v(T)}, {v(T+1)}\nv_add_f32 {v(T+2)}, {v(T+2)}, {v(T+3)}\nv_add_f32 {v(T)}, {v(T)}, {v(T+2)}')
    A(f'v_cvt_pk_bf16_f32 {v(T)}, {v(T)}, {v(T)}\nds_write_b16 {v(T+6)}, {v(T)}\ns_waitcnt lgkmcnt(0)')
    stamp(3)
    A(f's_cmp_lg_u32 {s(sLAY)}, 0\ns_cbranch_scc1 L_qbar')
    signal(F_Q)
    A(f's_cmp_lg_u32 {s(sKD)}, 0\ns_cbranch_scc1 L_kdone')
    wait_flag(F_K)
    A(f's_mov_b32 {s(sKD)}, 2')
    A('L_kread:')
    k_reads()
    A(f's_cmp_eq_u32 {s(sKD)}, 1\ns_cbranch_scc1 L_ga')
    A('L_kdone:')
    wait_flag(F_Q, sleep=0)
    A('s_branch L_qk')
    A('L_ga_f:')
    tmo_check()
    A(f's_sub_u32 {s(sPOL)}, {s(sPOL)}, 1\ns_cmp_lg_u32 {s(sPOL)}, 0\ns_cbranch_scc1 L_ga_f2\ns_add_u32 {s(sQC)}, {s(sQC)}, {QAB}')
    A(f'L_ga_f2:\ns_cmp_lg_u32 {s(sKD)}, 0\ns_cbranch_scc1 L_ga')
    t = T + 60
    A(f'v_mov_b32 {v(T+65)}, {SM+FLAGS}\nds_read_b128 {v(t,4)}, {v(T+65)} offset:{16*F_K}\ns_waitcnt lgkmcnt(0)')
    A(f'v_and_b32 {v(t)}, {v(t)}, {v(t+1)}\nv_and_b32 {v(t+2)}, {v(t+2)}, {v(t+3)}\nv_and_b32 {v(t)}, {v(t)}, {v(t+2)}')
    A(f'v_cmp_ne_u32 vcc, 0, {v(t)}\ns_cbranch_vccz L_ga\ns_mov_b32 {s(sKD)}, 1\ns_branch L_kread')
    A('L_qbar:\ns_barrier')
    A('L_qk:')
    qf, DS = T, T+16
    for ks in range(4):
        A(f'ds_read_b128 {v(qf+4*ks,4)}, {v(vQF)} offset:{QB+64*ks}')
    for ks in range(4):
        A(f's_waitcnt lgkmcnt({3-ks})')
        for tt in range(4):
            A(f'v_mfma_f32_16x16x32_bf16 {v(DS+4*tt,4)}, {v(qf+4*ks,4)}, {a(aK+16*tt+4*ks,4)}, {v(DS+4*tt,4) if ks else 0}')
    sa, sb, mx, t0 = T+32, T+33, T+34, T+35
    nop(6)
    A(f'v_cndmask_b32 {v(sa)}, {v(DS)}, {v(DS+4)}, {s(sMHI,2)}')
    nop(2)
    A(f'v_cndmask_b32 {v(sb)}, {v(DS+8)}, {v(DS+12)}, {s(sMHI,2)}')
    A(f'v_max_f32 {v(mx)}, {v(sa)}, {v(sb)}')
    for k in (8, 4, 2, 1):
        nop(2); dpp('v_max_f32', mx, mx, mx, f'row_ror:{k}')
    A(f'v_mov_b32 {v(t0)}, {v(mx)}')
    nop(2)
    A(f'v_permlane32_swap_b32 {v(mx)}, {v(t0)}\nv_max_f32 {v(mx)}, {v(mx)}, {v(t0)}')
    A(f'v_sub_f32 {v(sa)}, {v(sa)}, {v(mx)}\nv_sub_f32 {v(sb)}, {v(sb)}, {v(mx)}\nv_exp_f32 {v(sa)}, {v(sa)}\nv_exp_f32 {v(sb)}, {v(sb)}')
    nop(1)
    A(f'v_cvt_pk_bf16_f32 {v(sa)}, {v(sa)}, {v(sb)}')
    A(f'ds_write_b16 {v(vPW)}, {v(sa)}\nds_write_b16_d16_hi {v(vPW)}, {v(sa)} offset:64')
    A(f'v_lshlrev_b32 {v(sb)}, 16, {v(sa)}\nv_and_b32 {v(t0)}, 0xffff0000, {v(sa)}\nv_add_f32 {v(t0)}, {v(t0)}, {v(sb)}')
    for k in (8, 4, 2, 1):
        nop(2); dpp('v_add_f32', t0, t0, t0, f'row_ror:{k}')
    A(f'v_mov_b32 {v(sb)}, {v(t0)}\ns_lshl_b32 s6, {s(sW)}, 3\nv_add_u32 {v(sa)}, s6, {v(vMLR)}')
    nop(1)
    A(f'v_permlane32_swap_b32 {v(t0)}, {v(sb)}\nv_add_f32 {v(t0)}, {v(t0)}, {v(sb)}')
    A(f'ds_write_b64 {v(sa)}, {v(mx,2)}\ns_waitcnt lgkmcnt(0)')
    stamp(4)
    A(f's_cmp_lg_u32 {s(sLAY)}, 0\ns_cbranch_scc1 L_pbar')
    signal(F_P)
    gc = vRAW + 2
    def gchk_issue():
        A(f'buffer_load_dwordx4 {v(gc,4)}, {v(gc+4)}, {s(rWS,4)}, 0 offen sc1')
    A(f'v_lshlrev_b32 {v(gc+4)}, 2, {v(vL4)}\nv_add_u32 {v(gc+4)}, {ARR}, {v(gc+4)}')
    gchk_issue()
    for tt in range(2):
        A(f's_lshl_b32 s6, {s(sW)}, 1\ns_add_u32 s6, s6, {tt}')
        tr_addr(T+44+tt, 6, 3, 0, VB)
    wait_flag(F_V)
    for ks in range(8):
        for tt in range(2):
            for hh in range(2):
                A(f'ds_read_b64_tr_b16 {a(aV+32*tt+4*ks+2*hh,2)}, {v(T+44+tt)} offset:{ks*8192+hh*1024}')
    wait_flag(F_P, sleep=0)
    A('s_branch L_pv')
    A('L_pbar:\ns_barrier')
    A('L_pv:')
    pf, DO, ml = T, T+24, T+56
    A(f'ds_read_b128 {v(ml,4)}, {v(vMLR)}\nds_read_b128 {v(ml+4,4)}, {v(vMLR)} offset:16')
    for ks in range(6):
        A(f'ds_read_b128 {v(pf+4*ks,4)}, {v(vQF)} offset:{PB+64*ks}')
    for ks in range(8):
        r = pf + 4*(ks % 6)
        A(f's_waitcnt lgkmcnt({5 if ks < 3 else 7-ks})')
        for tt in range(2):
            D = DO + 16*tt + 4*(ks >> 1)
            A(f'v_mfma_f32_16x16x32_bf16 {v(D,4)}, {v(r,4)}, {a(aV+32*tt+4*ks,4)}, {v(D,4) if ks & 1 else 0}')
        if ks < 2:
            A(f'ds_read_b128 {v(r,4)}, {v(vQF)} offset:{PB+64*(ks+6)}')
    M_, L_ = T+64, T+65
    A(f'v_max3_f32 {v(M_)}, {v(ml)}, {v(ml+2)}, {v(ml+4)}\nv_max_f32 {v(M_)}, {v(M_)}, {v(ml+6)}')
    for k in range(4): A(f'v_sub_f32 {v(ml+2*k)}, {v(ml+2*k)}, {v(M_)}')
    for k in range(4): A(f'v_exp_f32 {v(ml+2*k)}, {v(ml+2*k)}')
    A(f'v_mul_f32 {v(L_)}, {v(ml)}, {v(ml+1)}')
    for k in range(1, 4): A(f'v_fmac_f32 {v(L_)}, {v(ml+2*k)}, {v(ml+2*k+1)}')
    A(f'v_rcp_f32 {v(ml+1)}, {v(L_)}\nv_log_f32 {v(L_)}, {v(L_)}')
    for k in range(4): A(f'v_cndmask_b32 {v(DO+4*k)}, {v(DO+4*k)}, {v(DO+16+4*k)}, {s(sMHI,2)}')
    A(f'v_mul_f32 {v(DO)}, {v(DO)}, {v(ml)}')
    for k in range(1, 4): A(f'v_fmac_f32 {v(DO)}, {v(DO+4*k)}, {v(ml+2*k)}')
    A(f'v_mul_f32 {v(DO)}, {v(DO)}, {v(ml+1)}\nv_add_f32 {v(L_)}, {v(L_)}, {v(M_)}')
    nop(1)
    A(f'v_mov_b32_dpp {v(DO+1)}, {v(DO)} quad_perm:[1,0,3,2] row_mask:0xf bank_mask:0xf')
    A(f'v_lshrrev_b32 {v(DO+2)}, 1, {v(vL4)}')
    A(f'v_cvt_pk_bf16_f32 {v(DO)}, {v(DO)}, {v(DO+1)}')
    A(f's_cmp_lg_u32 {s(sLAY)}, 0\ns_cbranch_scc1 L_gchkok')
    A('L_gchk:\ns_waitcnt vmcnt(0)')
    for k in range(4): A(f'v_xor_b32 {v(gc+k)}, {s(sTAG)}, {v(gc+k)}')
    A(f'v_or3_b32 {v(gc+5)}, {v(gc)}, {v(gc+1)}, {v(gc+2)}\nv_or_b32 {v(gc+5)}, {v(gc+5)}, {v(gc+3)}\nv_and_b32 {v(gc+6)}, 0x1fffffff, {v(gc+5)}')
    A(f'v_cmp_ne_u32 vcc, 0, {v(gc+6)}\ns_cbranch_vccnz L_gchk_f')
    if P['fast']:
        A(f's_lshl_b32 s6, {s(sXCC)}, 29')
        for k in range(4): A(f'v_xor_b32 {v(gc+k)}, s6, {v(gc+k)}')
        A(f'v_or3_b32 {v(gc+5)}, {v(gc)}, {v(gc+1)}, {v(gc+2)}\nv_or_b32 {v(gc+5)}, {v(gc+5)}, {v(gc+3)}')
        A(f'v_cmp_ne_u32 vcc, 0, {v(gc+5)}\ns_lshl_b32 s6, {s(sX)}, 3\ns_lshr_b64 vcc, vcc, s6')
        A(f's_and_b32 s6, vcc_lo, 0xff\ns_cselect_b32 {s(sFAST)}, 0, 1')
    stamp(9)
    A('L_gchkok:')
    def o_st(m):
        A('s_mov_b32 exec_lo, 0x55555555\ns_mov_b32 exec_hi, 0x55555555')
        A(f'buffer_store_dword {v(DO)}, {v(vOBS)}, {s(rWS,4)}, {s(sOBst)} offen{m}')
        l = A.label('nolse')
        A(f's_cmp_lg_u32 {s(sW)}, 0\ns_cbranch_scc1 {l}\ns_mov_b64 exec, 0x10001')
        A(f'buffer_store_dword {v(L_)}, {v(DO+2)}, {s(rWS,4)}, {s(sLSEst)} offen{m}')
        A(f'{l}:\ns_mov_b64 exec, -1')
    if P['xp'] & 1:
        stamp(5); A('s_waitcnt lgkmcnt(0)'); emit_stamps(A, 0); A('s_endpgm')
    local_store(o_st)
    local_pace()
    stamp(5)
    A('L_gb:')
    for k in range(8):
        A(f'buffer_load_dword {v(T+k)}, {v(vL4)}, {s(rWS,4)}, {s(sOBld)} offen offset:{256*k} sc1')
    A(f'v_and_b32 {v(T+9)}, 28, {v(vL4)}')
    A(f'buffer_load_dword {v(T+8)}, {v(T+9)}, {s(rWS,4)}, {s(sLSEld)} offen sc1')
    A(f'v_add_u32 {v(T+13)}, {s(sT3)}, {v(vT4)}')
    A('s_waitcnt vmcnt(0)')
    check_sentinel(range(T, T+9), T+10, 'L_gb_f')
    mm, ff = T+10, T+8
    dpp('v_max_f32', mm, ff, ff, 'row_ror:4')
    for k in (2, 1):
        nop(2); dpp('v_max_f32', mm, mm, mm, f'row_ror:{k}')
    A(f'v_sub_f32 {v(ff)}, {v(ff)}, {v(mm)}\nv_exp_f32 {v(ff)}, {v(ff)}')
    for k in range(8):
        A(f'v_lshlrev_b32 {v(T+16+k)}, 16, {v(T+k)}\nv_and_b32 {v(T+k)}, 0xffff0000, {v(T+k)}')
        if k == 0: dpp('v_add_f32', mm, ff, ff, 'row_ror:4')
        if k == 1: dpp('v_add_f32', mm, mm, mm, 'row_ror:2')
        if k == 2: dpp('v_add_f32', mm, mm, mm, 'row_ror:1')
        if k == 3: A(f'v_rcp_f32 {v(mm)}, {v(mm)}')
        if k == 4: A(f'v_mul_f32 {v(ff)}, {v(ff)}, {v(mm)}')
    lo, hi = T+11, T+12
    for k in range(8):
        op = 'v_mul_f32' if k == 0 else 'v_fmac_f32'
        dpp(op, lo, ff, T+16+k, f'row_newbcast:{k}')
        dpp(op, hi, ff, T+k, f'row_newbcast:{k}')
    A(f'v_cvt_pk_bf16_f32 {v(lo)}, {v(lo)}, {v(hi)}\nds_write_b32 {v(T+13)}, {v(lo)} offset:{OL}')
    A('s_waitcnt lgkmcnt(0)\ns_barrier')
    stamp(6)
    A(f's_or_b32 s6, s2, {s(sW)}\ns_or_b32 s6, s6, {s(sLAY)}\ns_cmp_lg_u32 s6, 0\ns_cbranch_scc1 L_nobump')
    A(f'v_mov_b32 {v(T)}, {s(sTAG)}\nv_mov_b32 {v(T+1)}, {EPO}\ns_mov_b64 exec, 1')
    A(f'buffer_store_dword {v(T)}, {v(T+1)}, {s(rWS,4)}, 0 offen sc1\ns_mov_b64 exec, -1\ns_nop 0')
    A('L_nobump:')
    raw_l0()
    expand_coefs()
    A('s_branch L_cbar')
    A('L_gchk_f:')
    tmo_check()
    gchk_issue()
    A('s_branch L_gchk')
    A('L_gb_f:')
    tmo_check()
    A('s_branch L_gb')

    A('L_loader:')
    A(f's_sub_u32 s4, {s(sW)}, 4')
    A(f's_lshl_b32 s6, s4, 2\nv_add_u32 {v(T+8)}, s6, {v(T+3)}\nv_xor_b32 {v(T+8)}, {v(T+8)}, {v(T+2)}\nv_lshlrev_b32 {v(T+8)}, 4, {v(T+8)}')
    if P['xp'] & 32: A(f'v_lshlrev_b32 {v(T+8)}, 4, {v(T+2)}')
    A(f'v_lshl_add_u32 {v(T+8)}, {v(T+3)}, 8, {v(T+8)}\nv_lshl_add_u32 {v(T+9)}, {v(T+3)}, 8, {v(T+4)}')
    TH = P['throttle']
    A(f'v_lshl_add_u32 {v(T+5)}, {v(T+3)}, 13, {v(T+4)}')
    A(f's_lshl_b32 s6, s4, 10\ns_add_u32 s6, s6, {WQB}\ns_lshl_b32 s7, s4, 15')
    for i in range(9):
        A(f's_mov_b32 m0, s6\ns_add_u32 s6, s6, 4096')
        A(f'buffer_load_dwordx4 {v(T+5)}, {s(rWQ,4)}, s7 offen nt lds\ns_add_u32 s7, s7, {4*32768}')
    A('s_lshl_b32 s6, s4, 10\ns_mov_b32 s7, s6')
    for i in range(16):
        A(f's_mov_b32 m0, s6\ns_add_u32 s6, s6, 4096')
        A(f'buffer_load_dwordx4 {v(T+8)}, {s(rK,4)}, s7 offen nt lds\ns_add_u32 s7, s7, 4096')
        A(f's_waitcnt vmcnt({TH})')
        if i == TH-1: signal(F_WL); stamp(1)
        if i == 3:
            for k in range(5):
                A(f'v_add_u32 {v(T+15)}, {64*k}, {v(T+1)}\nv_mul_u32_u24 {v(T+16)}, 13108, {v(T+15)}\nv_lshrrev_b32 {v(T+16)}, 16, {v(T+16)}')
                A(f'v_mul_u32_u24 {v(T+17)}, 5, {v(T+16)}\nv_sub_u32 {v(T+15)}, {v(T+15)}, {v(T+17)}\nv_mul_u32_u24 {v(T+16)}, 1152, {v(T+16)}')
                A(f'v_lshl_add_u32 {v(T+10+k)}, {v(T+15)}, 4, {v(T+16)}')
    A('s_lshl_b32 s7, s4, 10')
    for i in range(16):
        if i == 13 and not P['xp'] & 64: wait_flag(F_WQ)
        A(f's_mov_b32 m0, s6\ns_add_u32 s6, s6, 4096')
        A(f'buffer_load_dwordx4 {v(T+9)}, {s(rV,4)}, s7 offen nt lds\ns_add_u32 s7, s7, 4096')
        A(f's_waitcnt vmcnt({TH})')
        if i == TH-1: signal(F_K); stamp(2)
    stamp(3)
    SP = 131072
    A(f's_mul_i32 s6, s4, 5120\ns_add_u32 s6, s6, {SP}\ns_mul_i32 s7, s4, {128*1152}')
    for i in range(10):
        A(f's_mov_b32 m0, s6\ns_add_u32 s6, s6, 1024')
        A(f'buffer_load_dwordx4 {v(T+10+i%5)}, {s(rWO,4)}, s7 offen {P["wopol"]} lds')
        if i < 4: A(f's_waitcnt vmcnt({TH})')
        if i == 4:
            A(f's_waitcnt vmcnt(5)'); signal(F_V); stamp(4)
            A(f's_add_u32 s7, s7, {64*1152}\ns_mul_i32 s6, s4, 5120')
            if not P['xp'] & 64: wait_flag(F_KR)
    stamp(5)
    A(f'v_bfe_u32 {v(T+40)}, {v(vL4)}, 4, 2\nv_bfe_u32 {v(T+41)}, {v(vL4)}, 2, 2\nv_lshl_add_u32 {v(T+40)}, {v(T+3)}, 3, {v(T+40)}')
    A(f'v_mul_u32_u24 {v(T+40)}, 80, {v(T+40)}\nv_lshl_add_u32 {v(T+40)}, {v(T+41)}, 3, {v(T+40)}')
    A(f's_and_b32 s6, {s(sC)}, 1\ns_lshl_b32 s6, s6, 3\ns_lshl_b32 s7, s4, 5\ns_add_u32 s6, s6, s7\nv_add_u32 {v(T+40)}, s6, {v(T+40)}')
    A(f'v_add_u32 {v(T+41)}, {SP}, {v(T+40)}')
    A('s_waitcnt vmcnt(0)')
    signal(F_WO)
    wait_flag(F_WO, sleep=0)
    for ks in range(16):
        for hh in range(2):
            A(f'ds_read_b64_tr_b16 {a(aK+4*ks+2*hh,2)}, {v(T+40 if ks & 2 else T+41)} offset:{5120*(ks>>2)+2560*(ks&1)+320*hh}')
    A('s_waitcnt vmcnt(0) lgkmcnt(0)')
    stamp(6)
    if P['xp'] & 1:
        A('s_waitcnt lgkmcnt(0)'); emit_stamps(A, 0); A('s_endpgm')
    A('L_wo:\ns_barrier')
    A(f's_cmp_eq_u32 {s(sW)}, 7\ns_cbranch_scc1 L_wo_skip')
    for ks in range(16):
        A(f'ds_read_b128 {a(aV+4*ks,4)}, {v(vQF)} offset:{OL+64*ks}')
    DW = T + 40
    for ks in range(16):
        A(f's_waitcnt lgkmcnt({15-ks})')
        A(f'v_mfma_f32_16x16x32_bf16 {v(DW,4)}, {a(aV+4*ks,4)}, {a(aK+4*ks,4)}, {v(DW,4) if ks else 0}')
    A(f'v_lshrrev_b32 {v(DW+5)}, 1, {v(vL4)}')
    A(f's_cmp_eq_u32 {s(sW)}, 6\ns_cselect_b32 s6, 0x5, 0x5555')
    nop(6)
    A(f'v_mov_b32_dpp {v(DW+4)}, {v(DW)} quad_perm:[1,0,3,2] row_mask:0xf bank_mask:0xf')
    nop(1)
    A(f'v_cvt_pk_bf16_f32 {v(DW)}, {v(DW)}, {v(DW+4)}\ns_mov_b32 exec_lo, s6\ns_mov_b32 exec_hi, 0')
    A(f'buffer_store_dword {v(DW)}, {v(DW+5)}, {s(rWS,4)}, {s(sPCst)} offen sc1\ns_mov_b64 exec, -1')
    A('L_wo_skip:')
    raw_l0()
    expand_coefs()
    A('s_waitcnt vmcnt(0)')

    A('L_cbar:\ns_barrier')
    g0 = T + 30
    A(f's_cmp_gt_u32 {s(sW)}, 4\ns_cbranch_scc1 L_gc_done')
    A(f's_cmp_eq_u32 {s(sW)}, 4\ns_cselect_b32 exec_hi, 0, -1')
    A(f'v_lshl_add_u32 {v(g0+20)}, {v(vT4)}, 1, {s(sT3)}')
    A('L_gc:')
    for k in range(8):
        A(f'buffer_load_dword {v(g0+k)}, {v(vT4)}, {s(rWS,4)}, {s(sPCld if k < 4 else sPCld2)} offen offset:{PCS*(k&3)} sc1')
    A(f'ds_read_b64 {v(g0+18,2)}, {v(g0+20)} offset:{X32}')
    A('s_waitcnt vmcnt(0) lgkmcnt(0)')
    check_sentinel(range(g0, g0+8), g0+8, 'L_gc_f')
    for k in range(8):
        A(f'v_lshlrev_b32 {v(g0+8)}, 16, {v(g0+k)}\nv_and_b32 {v(g0+9)}, 0xffff0000, {v(g0+k)}')
        A(f'v_pk_add_f32 {v(g0+18,2)}, {v(g0+18,2)}, {v(g0+8,2)}')
    A(f'ds_write_b64 {v(g0+20)}, {v(g0+18,2)} offset:{X32}\ns_waitcnt lgkmcnt(0)\ns_mov_b64 exec, -1')
    A('L_gc_done:\ns_barrier')
    stamp(7)
    st = T + 30
    stats_issue(st)
    A(f's_lshl_b32 s6, {s(sE0)}, 2\ns_add_u32 s6, s6, {SM+X32}\nv_and_b32 {v(st+12)}, 28, {v(vL4)}\nv_add_u32 {v(st+12)}, s6, {v(st+12)}')
    A(f'ds_read_b32 {v(vXE)}, {v(st+12)}\ns_waitcnt lgkmcnt(0)')
    stats_calc(st)
    A(f'v_add_f32 {v(st+2)}, {EPS}, {v(st+1)}\nv_rsq_f32 {v(st+2)}, {v(st+2)}\nv_sub_f32 {v(st)}, {v(vXE)}, {v(st)}')
    A(f'v_mul_f32 {v(st+1)}, {v(st+1)}, {v(st+2)}\nv_mul_f32 {v(st)}, {v(st)}, {v(st+2)}')
    A(f'v_fmaak_f32 {v(st+1)}, {v(st+1)}, {v(st+2)}, {EPS}\nv_rsq_f32 {v(st+1)}, {v(st+1)}')
    nop(1)
    A(f'v_mul_f32 {v(st)}, {v(st)}, {v(st+1)}')
    nop(1)
    for e in range(5): A(f'v_readlane_b32 {s(sH+e)}, {v(st)}, {e}')
    A(f's_mov_b32 {s(sH+5)}, 0')
    nop(1)
    U, TT, ACC, R8 = T+28, T+36, T+44, T+54
    KK = s(sKC, 2)
    def gelu_batch(n):
        for i in range(n): A(f'v_pk_mul_f32 {v(TT+2*i,2)}, {v(U+2*i,2)}, {v(U+2*i,2)}')
        for i in range(n): A(f'v_pk_fma_f32 {v(TT+2*i,2)}, {v(TT+2*i,2)}, {KK}, {KK} op_sel:[0,0,1] op_sel_hi:[1,0,1]')
        for i in range(n): A(f'v_pk_mul_f32 {v(TT+2*i,2)}, {v(TT+2*i,2)}, {v(U+2*i,2)}')
        for i in range(2*n): A(f'v_exp_f32 {v(TT+i)}, {v(TT+i)}')
        for i in range(n): A(f'v_pk_add_f32 {v(TT+2*i,2)}, {v(TT+2*i,2)}, 1.0 op_sel_hi:[1,0]')
        for i in range(2*n): A(f'v_rcp_f32 {v(TT+i)}, {v(TT+i)}')
        for i in range(n): A(f'v_pk_mul_f32 {v(U+2*i,2)}, {v(U+2*i,2)}, {v(TT+2*i,2)}')
    def elem(e):
        hs = s(sH + (e & ~1), 2); o = e & 1
        for i in range(4):
            A(f'v_pk_fma_f32 {v(U+2*i,2)}, {hs}, {v(cW1+2*i,2)}, {v(cB1+2*i,2)} op_sel:[{o},0,0] op_sel_hi:[{o},1,1]')
        gelu_batch(4)
        A(f'v_pk_mul_f32 {v(ACC+2*e,2)}, {v(U,2)}, {v(cW2,2)}')
        for i in range(1, 4):
            A(f'v_pk_fma_f32 {v(ACC+2*e,2)}, {v(U+2*i,2)}, {v(cW2+2*i,2)}, {v(ACC+2*e,2)}')
    for i in range(3):
        A(f'v_pk_fma_f32 {v(U+2*i,2)}, {s(sH+2*i,2)}, {v(cW8,2)}, {v(cW8,2)} op_sel:[0,0,1] op_sel_hi:[1,0,1]')
    gelu_batch(3)
    for i in range(3):
        A(f'v_pk_mul_f32 {v(R8+2*i,2)}, {v(U+2*i,2)}, {v(cW28,2)} op_sel_hi:[1,0]')
    for e in range(4): elem(e)
    A(f'v_mov_b32 {v(ACC+8)}, 0\nv_mov_b32 {v(ACC+9)}, 0')
    A(f's_cmp_eq_u32 {s(sNE)}, 4\ns_cbranch_scc1 L_no5')
    elem(4)
    A('L_no5:')
    for e in range(5): A(f'v_add_f32 {v(R8+e)}, {v(R8+e)}, {v(ACC+2*e)}')
    for e in range(5): A(f'v_add_f32 {v(R8+e)}, {v(R8+e)}, {v(ACC+2*e+1)}')
    A(f'v_mov_b32 {v(R8+5)}, {v(R8+4)}')
    A(f'v_lshrrev_b32 {v(U)}, 6, {v(vL4)}\nv_and_b32 {v(U+1)}, 1, {v(U)}\nv_lshrrev_b32 {v(U)}, 1, {v(U)}\nv_lshl_add_u32 {v(U)}, {v(U+1)}, 1, {v(U)}')
    A(f's_lshl_b32 s6, {s(sW)}, 2\ns_add_u32 s6, s6, {SM+RED}\nv_lshl_add_u32 {v(U)}, {v(U)}, 5, s6\nv_mov_b32 {v(U+1)}, s6')
    for i in range(3): A(f'v_permlane32_swap_b32 {v(R8+2*i)}, {v(R8+2*i+1)}')
    for i in range(3): A(f'v_add_f32 {v(R8+2*i)}, {v(R8+2*i)}, {v(R8+2*i+1)}')
    A(f'v_mov_b32 {v(R8+5)}, {v(R8+4)}')
    nop(2)
    A(f'v_permlane16_swap_b32 {v(R8)}, {v(R8+2)}\nv_permlane16_swap_b32 {v(R8+4)}, {v(R8+5)}')
    A(f'v_add_f32 {v(R8)}, {v(R8)}, {v(R8+2)}\nv_add_f32 {v(R8+4)}, {v(R8+4)}, {v(R8+5)}')
    nop(1)
    for k in (8, 4, 2, 1):
        dpp('v_add_f32', R8, R8, R8, f'row_ror:{k}')
        dpp('v_add_f32', R8+4, R8+4, R8+4, f'row_ror:{k}')
        nop(1)
    A(f'ds_write_b32 {v(U)}, {v(R8)}\nds_write_b32 {v(U+1)}, {v(R8+4)} offset:128')
    A('s_waitcnt lgkmcnt(0)\ns_barrier')
    stamp(8)
    A(f's_cmp_lg_u32 {s(sW)}, 0\ns_cbranch_scc1 L_nofin')
    A(f'v_and_b32 {v(U)}, 28, {v(vL4)}\nv_lshl_add_u32 {v(U+1)}, {v(U)}, 3, {s(sT3)}')
    A(f'ds_read_b128 {v(TT,4)}, {v(U+1)} offset:{RED}\nds_read_b128 {v(TT+4,4)}, {v(U+1)} offset:{RED+16}')
    A(f's_lshl_b32 s6, {s(sB2)}, 16\nv_add_f32 {v(U+2)}, s6, {v(vXE)}')
    A(f's_lshl_b32 s6, 1, {s(sNE)}\ns_sub_u32 s6, s6, 1\ns_waitcnt lgkmcnt(0)')
    A(f'v_pk_add_f32 {v(TT,2)}, {v(TT,2)}, {v(TT+2,2)}\nv_pk_add_f32 {v(TT+4,2)}, {v(TT+4,2)}, {v(TT+6,2)}\nv_pk_add_f32 {v(TT,2)}, {v(TT,2)}, {v(TT+4,2)}')
    A(f'v_add_f32 {v(TT)}, {v(TT)}, {v(TT+1)}\nv_add_f32 {v(TT)}, {v(TT)}, {v(U+2)}')
    A('s_mov_b32 exec_lo, s6\ns_mov_b32 exec_hi, 0')
    A(f's_cmp_lg_u32 {s(sLAY)}, 0\ns_cbranch_scc1 L_out')
    A(f's_lshl_b32 s6, {s(sU)}, 5\ns_add_u32 s6, s6, {s(sXDb)}')
    A(f'buffer_store_dword {v(TT)}, {v(vL4)}, {s(rWS,4)}, s6 offen sc1\ns_mov_b64 exec, -1')
    A('L_nofin:')
    A(f's_cmp_lg_u32 {s(sLAY)}, 0\ns_cbranch_scc1 L_fin')
    for k in range(2):
        e_, q_, r_ = g0+10, g0+11, g0+12
        A(f'v_lshl_add_u32 {v(e_)}, v0, 1, {k}\nv_mul_u32_u24 {v(q_)}, 13108, {v(e_)}\nv_lshrrev_b32 {v(q_)}, 16, {v(q_)}')
        A(f'v_mul_u32_u24 {v(r_)}, 12, {v(q_)}\nv_lshl_add_u32 {v(q_)}, {v(e_)}, 2, {v(r_)}')
        A(f'v_subrev_u32 {v(r_)}, 64, {v(e_)}\nv_and_b32 {v(g0+13)}, 3, {v(r_)}\nv_lshrrev_b32 {v(r_)}, 2, {v(r_)}')
        A(f'v_lshlrev_b32 {v(r_)}, 5, {v(r_)}\nv_lshl_add_u32 {v(r_)}, {v(g0+13)}, 2, {v(r_)}\nv_cmp_gt_u32 vcc, 320, {v(e_)}')
        nop(2)
        A(f'v_cndmask_b32 {v(g0+14+k)}, {v(r_)}, {v(q_)}, vcc')
    A(f'v_lshl_add_u32 {v(g0+20)}, {v(vT4)}, 1, {s(sT3)}\nv_add_u32 {v(g0+21)}, {s(sT3)}, {v(vT4)}')
    A('s_waitcnt vmcnt(0)\ns_barrier')
    A(f's_cmp_gt_u32 {s(sW)}, 4\ns_cbranch_scc1 L_gd_done')
    A(f's_cmp_eq_u32 {s(sW)}, 4\ns_cselect_b32 exec_hi, 0, -1')
    A('L_gd:')
    for k in range(2):
        A(f'buffer_load_dword {v(g0+k)}, {v(g0+14+k)}, {s(rWS,4)}, {s(sXDb)} offen sc1')
    A('s_waitcnt vmcnt(0)')
    check_sentinel([g0, g0+1], g0+2, 'L_gd_f')
    A(f'v_cvt_pk_bf16_f32 {v(g0+2)}, {v(g0)}, {v(g0+1)}\nds_write_b64 {v(g0+20)}, {v(g0,2)} offset:{X32}')
    A(f'v_lshlrev_b32 {v(g0+4)}, 16, {v(g0+2)}\nv_and_b32 {v(g0+5)}, 0xffff0000, {v(g0+2)}\nds_write_b32 {v(g0+21)}, {v(g0+2)} offset:{XH}')
    A(f'v_sub_f32 {v(g0+4)}, {v(g0)}, {v(g0+4)}\nv_sub_f32 {v(g0+5)}, {v(g0+1)}, {v(g0+5)}\nv_cvt_pk_bf16_f32 {v(g0+4)}, {v(g0+4)}, {v(g0+5)}')
    A(f'ds_write_b32 {v(g0+21)}, {v(g0+4)} offset:{XL}\ns_waitcnt lgkmcnt(0)\ns_mov_b64 exec, -1')
    A('L_gd_done:')
    for r in (sQAst, sQAld, sOBst, sLSEst, sOBld, sLSEld, sPCst, sPCld, sPCld2):
        A(f's_add_u32 {s(r)}, {s(r)}, {LS}')
    A(f's_mov_b32 {s(sLAY)}, 1\ns_barrier')
    if P['stamps']:
        A('s_waitcnt lgkmcnt(0)')
        emit_stamps(A, 0)
        stamp(0)
    A(f's_cmp_lt_u32 {s(sW)}, 4\ns_cbranch_scc1 L_qstage')
    A('s_barrier\ns_barrier\ns_branch L_wo')
    A('L_gc_f:')
    tmo_check()
    A('s_branch L_gc')
    A('L_gd_f:')
    tmo_check()
    A('s_branch L_gd')
    A('L_out:')
    A(f's_mul_i32 s6, {s(sB)}, 576\ns_add_u32 s6, s6, {s(sE0)}\ns_lshl_b32 s6, s6, 1')
    A(f'v_lshrrev_b32 {v(U)}, 1, {v(vL4)}\nv_add_u32 {v(U)}, s6, {v(U)}\nv_cvt_pk_bf16_f32 {v(TT)}, {v(TT)}, {v(TT)}')
    A(f'global_store_short {v(U)}, {v(TT)}, {s(pOUT,2)}')
    A('L_fin:')
    if P['stamps']:
        A('s_mov_b64 exec, -1\ns_waitcnt vmcnt(0)')
        stamp(9)
        A('s_waitcnt lgkmcnt(0)')
        emit_stamps(A, 1)
    A('L_end:\ns_endpgm')
    hdr = open('cdna_kernels/' + NAME + '.s.ref').read().split('; Override launch')[0].rstrip('\n').split('\n')
    return wrap(A.text(), hdr, 256, 512, LDS_BYTES, 256, NV)


def emit_stamps(A, layer):
    A(f's_lshl_b32 s6, s2, 3\ns_add_u32 s6, s6, {s(sW)}\ns_lshl_b32 s6, s6, 7\ns_add_u32 s6, s6, {STAMP + 64*layer}')
    A(f'v_mov_b32 {v(T+60)}, s6')
    for i in range(10):
        A(f'v_mov_b32 {v(T+61)}, {s(sSTP+2*i)}\nglobal_store_dword {v(T+60)}, {v(T+61)}, {s(pWS,2)} offset:{4*i}')


if __name__ == '__main__':
    out = sys.argv[1]
    kw = {}
    for x in sys.argv[2:]:
        k, val = x.split('='); kw[k] = val.replace('_', ' ') if k == 'wopol' else int(val, 0)
    open(out, 'w').write(gen(**kw))
```

```python
import sys, math, struct
from asmlib import *

def f2u(x):
    return struct.unpack('<I', struct.pack('<f', x))[0]

DEF = dict(
    stamps=0,
    throttle=8,
    fast=0,
    tmo=1 << 22,
    prefetch=1,
    cprio=3,
    wopol='nt',
    npa=6,
    xp=0,
)

LS   = 0x100000
QA   = 0x0
OB   = 0x20000
LSE  = 0x40000
PC   = 0x41000
PCS  = 1152
XD   = 0x50000
ARR  = 0x60000
EPO  = 0x68000
QAB  = 0x80000
WS_BYTES = 0x200000
STAMP = 0x300000
OOB  = 0x40000000
KB, VB = 0, 65536
SM = 155648
WQB = SM - 36864
X32, XH, XL, ONES, QB, PB, ML, RED, FLAGS = 0, 2304, 3456, 4608, 5120, 6144, 7168, 7232, 7680
OL = QB
F_A, F_WQ, F_Q, F_K, F_KR, F_P, F_V, F_WO, F_WL, F_S = range(10)
LDS_BYTES = 163840

sW = 3
rK, rV, rWQ, rWO, rWS = 8, 12, 16, 20, 24
pX, pW1, pB1, pW2, pB2, pOUT, pWS = 28, 30, 32, 34, 36, 38, 42
sX, sB, sHL, sSP, sHKV, sC, sU, sE0, sNE, sLAY, sFAST, sTMO = range(44, 56)
sQAst, sQAld, sOBst, sLSEst, sOBld, sLSEld, sPCst, sPCld, sPCld2, sXDb = range(56, 66)
sH = 66
sKC = 72
sMHI = 74
sT0, sT1, sT2, sT3 = 76, 77, 78, 79
sB2, sXCC = 80, 81
sTAG, sTG12 = 41, 40
sSTP = 82
vTID, vL4, vT4, vXA, vQF, vPW, vOBS, vMLR, vFL, vXE = range(10)
vRAW = 10
T = 26
NV = 92
aK, aV, aWQ, aWQH = 0, 64, 128, 160


def gen(**kw):
    P = dict(DEF); P.update(kw)
    A = Asm()
    nop = lambda n: A(f's_nop {n-1}') if n > 0 else None
    stamp_ctr = [0]
    def stamp(i, final=False):
        if P['stamps'] == 1 or (P['stamps'] == 2 and (i == 0 or final)):
            A(f's_memrealtime {s(sSTP+2*i,2)}')
        elif P['stamps'] == 2 and i != 9:
            l = A.label('st')
            A(f's_cmp_lg_u32 {s(sLAY)}, 0\ns_cbranch_scc1 {l}\ns_memrealtime {s(sSTP+2*i,2)}\n{l}:')
    def tmo_check():
        A(f's_sub_u32 {s(sTMO)}, {s(sTMO)}, 1\ns_cbranch_scc1 L_end')
    def signal(k):
        A(f'v_mov_b32 {v(T+64)}, 1\nds_write_b32 {v(vFL)}, {v(T+64)} offset:{16*k}')
    def wait_flag(k, sleep=1):
        l = A.label('wf')
        t = T + 60
        A(f'v_mov_b32 {v(T+65)}, {SM+FLAGS}')
        A(f'{l}:')
        A(f'ds_read_b128 {v(t,4)}, {v(T+65)} offset:{16*k}\ns_waitcnt lgkmcnt(0)')
        A(f'v_and_b32 {v(t)}, {v(t)}, {v(t+1)}\nv_and_b32 {v(t+2)}, {v(t+2)}, {v(t+3)}\nv_and_b32 {v(t)}, {v(t)}, {v(t+2)}')
        A(f'v_cmp_ne_u32 vcc, 0, {v(t)}\ns_cbranch_vccnz {l}_d')
        tmo_check()
        if sleep: A(f's_sleep {sleep}')
        A(f's_branch {l}\n{l}_d:')
    def dpp(op, d, a_, b_, ctl, rm='0xf'):
        A(f'{op}_dpp {v(d)}, {v(a_)}, {v(b_)} {ctl} row_mask:{rm} bank_mask:0xf')
    def allsum2(r0, r1, t0, t1):
        nop(2)
        for k in (8, 4, 2, 1):
            dpp('v_add_f32', r0, r0, r0, f'row_ror:{k}')
            dpp('v_add_f32', r1, r1, r1, f'row_ror:{k}')
            nop(1)
        for sw in ('v_permlane16_swap_b32', 'v_permlane32_swap_b32'):
            A(f'v_mov_b32 {v(t0)}, {v(r0)}\nv_mov_b32 {v(t1)}, {v(r1)}')
            nop(1)
            A(f'{sw} {v(r0)}, {v(t0)}\n{sw} {v(r1)}, {v(t1)}')
            A(f'v_add_f32 {v(r0)}, {v(r0)}, {v(t0)}\nv_add_f32 {v(r1)}, {v(r1)}, {v(t1)}')
    def stats_issue(t):
        A(f'v_lshl_add_u32 {v(t+10)}, {v(vL4)}, 2, {s(sT3)}\nv_add_u32 {v(t+11)}, {s(sT3)}, {v(vL4)}')
        A(f'ds_read_b128 {v(t,4)}, {v(t+10)} offset:{X32}\nds_read_b128 {v(t+4,4)}, {v(t+10)} offset:{X32+1024}')
        A(f'ds_read_b32 {v(t+8)}, {v(t+11)} offset:{X32+2048}')
        A(f'v_mov_b32 {v(t+10)}, {s(sT3)}\nds_read_b32 {v(t+9)}, {v(t+10)} offset:{X32}')
    def stats_calc(t):
        for i in range(9):
            A(f'v_sub_f32 {v(t+i)}, {v(t+i)}, {v(t+9)}')
        A(f'v_pk_mul_f32 {v(t+10,2)}, {v(t,2)}, {v(t,2)}')
        for i in (2, 4, 6):
            A(f'v_pk_fma_f32 {v(t+10,2)}, {v(t+i,2)}, {v(t+i,2)}, {v(t+10,2)}')
            A(f'v_pk_add_f32 {v(t,2)}, {v(t,2)}, {v(t+i,2)}')
        A(f'v_fmac_f32 {v(t+10)}, {v(t+8)}, {v(t+8)}\nv_add_f32 {v(t)}, {v(t)}, {v(t+8)}')
        A(f'v_add_f32 {v(t+10)}, {v(t+10)}, {v(t+11)}\nv_add_f32 {v(t)}, {v(t)}, {v(t+1)}')
        allsum2(t, t+10, t+2, t+3)
        inv = hex(f2u(1.0/576))
        A(f'v_mul_f32 {v(t)}, {inv}, {v(t)}\nv_mul_f32 {v(t+10)}, {inv}, {v(t+10)}')
        A(f'v_fma_f32 {v(t+1)}, -{v(t)}, {v(t)}, {v(t+10)}\nv_add_f32 {v(t)}, {v(t)}, {v(t+9)}')
        A(f'v_max_f32 {v(t+1)}, 0, {v(t+1)}')
    EPS = hex(f2u(1e-5))
    def check_sentinel(regs, tmp, lfail):
        r = list(regs)
        cur = r.pop(0)
        while r:
            if len(r) >= 2:
                A(f'v_max3_u32 {v(tmp)}, {v(cur)}, {v(r[0])}, {v(r[1])}'); r = r[2:]
            else:
                A(f'v_max_u32 {v(tmp)}, {v(cur)}, {v(r[0])}'); r = r[1:]
            cur = tmp
        A(f'v_cmp_eq_u32 vcc, -1, {v(cur)}\ns_cbranch_vccnz {lfail}')
    def local_store(fn, pace=True):
        if not P['fast']:
            fn(' sc1'); return
        l = A.label('ls')
        A(f's_cmp_eq_u32 {s(sFAST)}, 0\ns_cbranch_scc1 {l}_s')
        fn('')
        A(f's_branch {l}_d\n{l}_s:')
        fn(' sc1')
        if pace: A('s_waitcnt vmcnt(0)')
        A(f'{l}_d:')
    def local_pace():
        if not P['fast']:
            A('s_waitcnt vmcnt(0)')
    def raw_loads():
        if P['xp'] & 16: return
        for k, p in enumerate((pW1, pB1, pW2)):
            for i in range(4):
                A(f'global_load_dword {v(vRAW+5*k+i)}, {v(vT4)}, {s(p,2)} offset:{2048*i if i < 2 else 2048*(i-2)}'
                  if i < 2 else f'global_load_dword {v(vRAW+5*k+i)}, {v(T+62)}, {s(p,2)} offset:{2048*(i-2)}')
            A(f'global_load_ushort {v(vRAW+5*k+4)}, {v(T+63)}, {s(p,2)}')
    def raw_addr():
        A(f'v_add_u32 {v(T+62)}, 4096, {v(vT4)}\nv_lshlrev_b32 {v(T+63)}, 1, {v(vTID)}\nv_add_u32 {v(T+63)}, 8192, {v(T+63)}')
    def raw_l0():
        l = A.label('raw')
        A(f's_cmp_lg_u32 {s(sLAY)}, 0\ns_cbranch_scc1 {l}')
        raw_addr(); raw_loads()
        A(f's_waitcnt vmcnt(0)\n{l}:')
    cW1, cB1, cW2, cW8, cW28 = T, T+8, T+16, T+24, T+26
    def expand_coefs():
        for k, c in enumerate((cW1, cB1, cW2)):
            for i in range(4):
                A(f'v_lshlrev_b32 {v(c+2*i)}, 16, {v(vRAW+5*k+i)}\nv_and_b32 {v(c+2*i+1)}, 0xffff0000, {v(vRAW+5*k+i)}')
        A(f'v_lshlrev_b32 {v(cW8)}, 16, {v(vRAW+4)}\nv_lshlrev_b32 {v(cW8+1)}, 16, {v(vRAW+9)}\nv_lshlrev_b32 {v(cW28)}, 16, {v(vRAW+14)}')

    A('s_cmp_ge_u32 s2, 256\ns_cbranch_scc1 L_end')
    stamp(0)
    A('s_load_dwordx16 s[56:71], s[0:1], 0\ns_load_dwordx8 s[72:79], s[0:1], 64\ns_load_dwordx2 s[42:43], s[0:1], 96')
    A(f'v_lshrrev_b32 {v(T)}, 6, v0\nv_and_b32 {v(T+1)}, 63, v0')
    A(f'v_readfirstlane_b32 {s(sW)}, {v(T)}')
    A(f'v_lshlrev_b32 {v(vL4)}, 2, {v(T+1)}\nv_lshlrev_b32 {v(vT4)}, 2, v0')
    A(f's_getreg_b32 {s(sXCC)}, hwreg(HW_REG_XCC_ID, 0, 4)')
    A(f's_and_b32 {s(sX)}, s2, 7\ns_lshr_b32 s4, s2, 3')
    A(f's_lshr_b32 {s(sB)}, s4, 4\ns_bfe_u32 {s(sHL)}, s4, 0x10003\ns_and_b32 {s(sSP)}, s4, 7\ns_and_b32 {s(sC)}, s4, 15')
    A(f's_lshl_b32 {s(sHKV)}, {s(sX)}, 1\ns_add_u32 {s(sHKV)}, {s(sHKV)}, {s(sHL)}')
    A(f's_lshl_b32 {s(sU)}, {s(sX)}, 4\ns_add_u32 {s(sU)}, {s(sU)}, {s(sC)}')
    A(f's_mul_i32 s4, {s(sU)}, 5\ns_lshl_b32 s5, {s(sU)}, 2\ns_add_u32 s5, s5, 64')
    A(f's_cmp_lt_u32 {s(sU)}, 64\ns_cselect_b32 {s(sE0)}, s4, s5\ns_cselect_b32 {s(sNE)}, 5, 4')
    A(f's_mov_b32 {s(sLAY)}, 0\ns_mov_b32 {s(sFAST)}, 0\ns_mov_b32 {s(sTMO)}, {P["tmo"]}')
    A(f'v_and_b32 {v(T+2)}, 15, {v(T+1)}\nv_lshrrev_b32 {v(T+3)}, 4, {v(T+1)}')
    A(f's_and_b32 s4, {s(sW)}, 3\ns_lshl_b32 s4, s4, 2\ns_add_u32 s4, s4, {SM+FLAGS}\nv_mov_b32 {v(vFL)}, s4')
    A(f's_cmp_lg_u32 {s(sW)}, 0\ns_cbranch_scc1 L_noinit')
    A(f'v_mov_b32 {v(T+4)}, 0\nv_add_u32 {v(T+5)}, {SM}, {v(vL4)}\nds_write_b32 {v(T+5)}, {v(T+4)} offset:{FLAGS}')
    A(f'v_mov_b32 {v(T+4)}, 0x3f803f80\nds_write_b32 {v(T+5)}, {v(T+4)} offset:{ONES}\nds_write_b32 {v(T+5)}, {v(T+4)} offset:{ONES+256}')
    A('L_noinit:')
    A(f's_lshr_b32 s4, {s(sSP)}, 1\ns_mul_i32 s5, s4, 288')
    A(f's_add_u32 s6, s5, {SM+XH}\ns_add_u32 s7, s5, {SM+XL}')
    A(f'v_mov_b32 {v(vXA)}, {SM+ONES}\nv_mov_b32 {v(T+4)}, s6\nv_mov_b32 {v(T+5)}, s7')
    A(f'v_cmp_eq_u32 vcc, 0, {v(T+2)}')
    nop(2)
    A(f'v_cndmask_b32 {v(vXA)}, {v(vXA)}, {v(T+4)}, vcc\nv_cmp_eq_u32 vcc, 1, {v(T+2)}')
    nop(2)
    A(f'v_cndmask_b32 {v(vXA)}, {v(vXA)}, {v(T+5)}, vcc\nv_lshl_add_u32 {v(vXA)}, {v(T+3)}, 4, {v(vXA)}')
    A(f'v_bfe_u32 {v(T+4)}, {v(T+2)}, 2, 1\nv_lshlrev_b32 {v(T+4)}, 9, {v(T+4)}')
    A(f's_cmp_lt_u32 {s(sW)}, 4\ns_cselect_b32 s6, -1, 0\nv_and_b32 {v(T+4)}, s6, {v(T+4)}')
    A(f'v_lshl_add_u32 {v(vQF)}, {v(T+3)}, 4, {v(T+4)}\nv_add_u32 {v(vQF)}, {SM}, {v(vQF)}')
    A(f'v_and_b32 {v(T+6)}, 1, {v(T+3)}\nv_lshrrev_b32 {v(T+7)}, 1, {v(T+3)}\nv_lshl_add_u32 {v(T+7)}, {v(T+7)}, 4, {v(T+2)}\nv_lshlrev_b32 {v(T+7)}, 1, {v(T+7)}')
    A(f's_lshl_b32 s6, {s(sW)}, 7\ns_add_u32 s6, s6, {SM+PB}')
    A(f'v_lshl_add_u32 {v(vPW)}, {v(T+6)}, 9, {v(T+7)}\nv_add_u32 {v(vPW)}, s6, {v(vPW)}')
    A(f'v_lshl_add_u32 {v(vOBS)}, {v(T+6)}, 11, {v(T+7)}')
    A(f'v_lshlrev_b32 {v(vMLR)}, 5, {v(T+6)}\nv_add_u32 {v(vMLR)}, {SM+ML}, {v(vMLR)}')
    A(f'v_mov_b32 {v(vXE)}, 0')
    A('s_waitcnt lgkmcnt(0)\ns_barrier')
    A(f's_mov_b64 {s(pX,2)}, s[56:57]\ns_mov_b64 {s(pW1,2)}, s[68:69]\ns_mov_b64 {s(pB1,2)}, s[70:71]')
    A(f's_mov_b64 {s(pW2,2)}, s[72:73]\ns_mov_b64 {s(pB2,2)}, s[74:75]\ns_mov_b64 {s(pOUT,2)}, s[76:77]')
    A(f's_lshl_b32 s5, {s(sB)}, 4\ns_add_u32 s5, s5, {s(sHKV)}')
    A(f's_lshl_b32 s6, s5, 21\ns_lshl_b32 s7, {s(sSP)}, 16\ns_add_u32 s6, s6, s7\ns_add_u32 s6, s6, 0x180000')
    A(f's_add_u32 {s(rK)}, s58, s6\ns_addc_u32 {s(rK+1)}, s59, 0\ns_mov_b32 {s(rK+2)}, 0x10000\ns_mov_b32 {s(rK+3)}, 0x20000')
    A(f's_add_u32 {s(rV)}, s60, s6\ns_addc_u32 {s(rV+1)}, s61, 0\ns_mov_b32 {s(rV+2)}, 0x10000\ns_mov_b32 {s(rV+3)}, 0x20000')
    A(f's_mul_i32 s6, s4, {144*8192}\ns_lshl_b32 s7, {s(sHKV)}, 9\ns_add_u32 s6, s6, s7\ns_and_b32 s7, {s(sSP)}, 1\ns_lshl_b32 s7, s7, 8\ns_add_u32 s6, s6, s7')
    A(f's_add_u32 {s(rWQ)}, s62, s6\ns_addc_u32 {s(rWQ+1)}, s63, 0\ns_sub_u32 {s(rWQ+2)}, 4718592, s6\ns_mov_b32 {s(rWQ+3)}, 0x20000')
    A(f's_mul_i32 s6, {s(sX)}, {512*1152}\ns_mul_i32 s7, {s(sC)}, 72\ns_and_b32 s7, s7, 0xfffffff0\ns_add_u32 s6, s6, s7')
    A(f's_add_u32 {s(rWO)}, s64, s6\ns_addc_u32 {s(rWO+1)}, s65, 0\ns_sub_u32 {s(rWO+2)}, 4718592, s6\ns_mov_b32 {s(rWO+3)}, 0x20000')
    A(f's_mov_b32 {s(rWS)}, s42\ns_mov_b32 {s(rWS+1)}, s43\ns_mov_b32 {s(rWS+2)}, {WS_BYTES}\ns_mov_b32 {s(rWS+3)}, 0x20000')
    A(f's_lshl_b32 {s(sQAld)}, s5, 12')
    A(f's_lshl_b32 s6, s4, 10\ns_and_b32 s7, {s(sSP)}, 1\ns_lshl_b32 s7, s7, 9\ns_add_u32 s6, s6, s7\ns_add_u32 {s(sT0)}, {s(sQAld)}, s6')
    A(f's_and_b32 s7, {s(sW)}, 3\ns_lshl_b32 s6, s7, 7\ns_add_u32 {s(sQAst)}, {s(sT0)}, s6')
    A(f's_lshl_b32 s5, {s(sB)}, 3\ns_add_u32 s5, s5, {s(sX)}')
    A(f's_lshl_b32 s6, s5, 13\ns_add_u32 s6, s6, {OB}\ns_lshl_b32 {s(sOBld)}, s7, 11\ns_add_u32 {s(sOBld)}, {s(sOBld)}, s6')
    A(f's_lshl_b32 {s(sT1)}, {s(sHL)}, 12\ns_add_u32 s6, s6, {s(sT1)}\ns_lshl_b32 {s(sT1)}, {s(sSP)}, 8\ns_add_u32 {s(sT1)}, {s(sT1)}, s6')
    A(f's_lshl_b32 s6, s7, 6\ns_add_u32 {s(sOBst)}, {s(sT1)}, s6')
    A(f's_lshl_b32 s6, s5, 7\ns_add_u32 s6, s6, {LSE}\ns_lshl_b32 {s(sLSEld)}, s7, 5\ns_add_u32 {s(sLSEld)}, {s(sLSEld)}, s6')
    A(f's_lshl_b32 {s(sLSEst)}, {s(sHL)}, 6\ns_add_u32 s6, s6, {s(sLSEst)}\ns_lshl_b32 {s(sLSEst)}, {s(sSP)}, 2\ns_add_u32 {s(sLSEst)}, {s(sLSEst)}, s6')
    A(f's_mul_i32 s6, s5, {PCS}\ns_add_u32 s6, s6, {PC}\ns_mul_i32 {s(sT2)}, {s(sC)}, 72\ns_add_u32 {s(sT2)}, {s(sT2)}, s6')
    A(f's_lshl_b32 s6, s7, 5\ns_add_u32 {s(sPCst)}, {s(sT2)}, s6')
    A(f's_mul_i32 {s(sPCld)}, {s(sB)}, {8*PCS}\ns_add_u32 {s(sPCld)}, {s(sPCld)}, {PC}\ns_add_u32 {s(sPCld2)}, {s(sPCld)}, {4*PCS}')
    A(f's_lshl_b32 {s(sXDb)}, {s(sB)}, 12\ns_add_u32 {s(sXDb)}, {s(sXDb)}, {XD}')
    k1 = -2.0 * math.sqrt(2.0/math.pi) * math.log2(math.e); k2 = k1 * 0.044715
    A(f's_mov_b32 {s(sKC)}, {hex(f2u(k2))}\ns_mov_b32 {s(sKC+1)}, {hex(f2u(k1))}')
    A(f's_mov_b32 {s(sMHI)}, 0\ns_mov_b32 {s(sMHI+1)}, -1\ns_mov_b32 {s(sT3)}, {SM}')
    A(f's_load_dword {s(sB2)}, {s(pB2,2)}, 0')
    A(f's_bfe_u32 s6, {s(sW)}, 0x10001\ns_lshl_b32 s6, s6, 2\nv_or_b32 {v(T+4)}, s6, {v(T+3)}\nv_lshlrev_b32 {v(T+4)}, 1, {v(T+4)}')
    A(f'v_xor_b32 {v(T+4)}, {v(T+4)}, {v(T+2)}\nv_lshlrev_b32 {v(T+4)}, 4, {v(T+4)}')
    if P['xp'] & 32: A(f'v_lshlrev_b32 {v(T+4)}, 4, {v(T+2)}')
    A(f's_cmp_ge_u32 {s(sW)}, 4\ns_cbranch_scc1 L_loader')
    if P['xp'] & 64:
        A('s_waitcnt lgkmcnt(0)'); emit_stamps(A, 0); A('s_endpgm')

    if P['cprio']: A(f's_setprio {P["cprio"]}')
    A(f's_mul_i32 s6, {s(sB)}, 1152\nv_add_u32 {v(T+16)}, s6, {v(vT4)}')
    A(f'v_and_b32 {v(T+18)}, 31, {v(T+1)}\nv_lshl_add_u32 {v(T+17)}, {v(T+18)}, 2, s6')
    A(f'global_load_dword {v(T+20)}, {v(T+16)}, {s(pX,2)}\nglobal_load_dword {v(T+21)}, {v(T+17)}, {s(pX,2)} offset:1024')
    A(f'v_mov_b32 {v(T+19)}, {EPO}\nbuffer_load_dword {v(T+22)}, {v(T+19)}, {s(rWS,4)}, 0 offen sc1')
    A(f's_cmp_eq_u32 {s(sW)}, 3\ns_cbranch_scc1 L_clr')
    if P['prefetch']:
        A(f's_lshr_b32 s7, s2, 3\ns_mul_i32 s6, s7, 288\nv_lshl_add_u32 {v(T+19)}, {v(T+1)}, 6, s6\nv_min_u32 {v(T+19)}, 9212, {v(T+19)}')
        A(f's_cmp_eq_u32 {s(sW)}, 1\ns_cselect_b32 s4, {s(pB1)}, {s(pW1)}\ns_cselect_b32 s5, {s(pB1+1)}, {s(pW1+1)}')
        A(f's_cmp_eq_u32 {s(sW)}, 2\ns_cselect_b32 s4, {s(pW2)}, s4\ns_cselect_b32 s5, {s(pW2+1)}, s5')
        A(f's_mov_b64 exec, 0x3f\nglobal_load_dword {v(vRAW)}, {v(T+19)}, s[4:5]')
        A(f's_getpc_b64 s[4:5]\nL_pc:\ns_mul_i32 s7, s7, 3\ns_add_u32 s7, s7, {s(sW)}\ns_lshl_b32 s7, s7, 8')
        A(f's_mov_b64 exec, 0xf\nv_lshl_add_u32 {v(T+19)}, {v(T+1)}, 6, s7\nv_min_u32 {v(T+19)}, L_end-L_pc, {v(T+19)}')
        A(f'global_load_dword {v(vRAW+1)}, {v(T+19)}, s[4:5]\ns_mov_b64 exec, -1\ns_waitcnt vmcnt(2)')
    else:
        A('s_waitcnt vmcnt(0)')
    A('s_branch L_cdone')
    A('L_clr:')
    nclr = 0
    if not P['xp'] & 2:
        nclr = 3
        for i in range(4): A(f'v_mov_b32 {v(T+8+i)}, -1')
        A(f'v_lshrrev_b32 {v(T+12)}, 5, {v(T+1)}\nv_mul_u32_u24 {v(T+12)}, {LS}, {v(T+12)}')
        A(f'v_lshl_add_u32 {v(T+13)}, {v(T+6)}, 11, {v(T+12)}\nv_lshl_add_u32 {v(T+13)}, {v(T+2)}, 4, {v(T+13)}')
        A(f'buffer_store_dwordx4 {v(T+8,4)}, {v(T+13)}, {s(rWS,4)}, {s(sT1)} offen sc1')
        A(f'v_and_b32 {v(T+14)}, 31, {v(T+1)}\nv_lshl_add_u32 {v(T+13)}, {v(T+14)}, 2, {v(T+12)}\nv_mov_b32 {v(T+15)}, {OOB}\nv_cmp_gt_u32 vcc, 18, {v(T+14)}')
        nop(2)
        A(f'v_cndmask_b32 {v(T+13)}, {v(T+15)}, {v(T+13)}, vcc')
        A(f'buffer_store_dword {v(T+8)}, {v(T+13)}, {s(rWS,4)}, {s(sT2)} offen sc1')
        A(f'v_lshrrev_b32 {v(T+13)}, 1, {v(T+1)}\nv_mul_u32_u24 {v(T+13)}, {LS}, {v(T+13)}\nv_and_b32 {v(T+14)}, 1, {v(T+1)}')
        A(f'v_lshl_add_u32 {v(T+13)}, {v(T+14)}, 5, {v(T+13)}\nv_add_u32 {v(T+13)}, {s(sLSEst)}, {v(T+13)}')
        A(f's_lshl_b32 s6, {s(sU)}, 5\ns_add_u32 s6, s6, {s(sXDb)}\ns_sub_u32 s6, s6, 16\nv_add_u32 {v(T+14)}, s6, {v(vL4)}')
        A(f'v_cmp_gt_u32 vcc, 4, {v(T+1)}')
        nop(2)
        A(f'v_cndmask_b32 {v(T+13)}, {v(T+14)}, {v(T+13)}, vcc\nv_cmp_gt_u32 vcc, 12, {v(T+1)}')
        nop(2)
        A(f'v_cndmask_b32 {v(T+13)}, {v(T+15)}, {v(T+13)}, vcc')
        A(f'buffer_store_dword {v(T+8)}, {v(T+13)}, {s(rWS,4)}, 0 offen sc1')
    A(f's_waitcnt vmcnt({nclr})')
    A('L_cdone:')
    A(f'v_mov_b32 {v(T+28)}, 0')
    for (src, areg, extra) in ((T+20, vT4, 0), (T+21, None, 1)):
        if extra:
            A(f'v_lshlrev_b32 {v(T+18)}, 2, {v(T+18)}\nv_add_u32 {v(T+18)}, 1024, {v(T+18)}')
            areg = T+18
        A(f'v_lshlrev_b32 {v(T+24)}, 16, {v(src)}\nv_and_b32 {v(T+25)}, 0xffff0000, {v(src)}')
        A(f'v_lshl_add_u32 {v(T+26)}, {v(areg)}, 1, {s(sT3)}\nv_add_u32 {v(T+27)}, {s(sT3)}, {v(areg)}')
        A(f'ds_write_b64 {v(T+26)}, {v(T+24,2)} offset:{X32}\nds_write_b32 {v(T+27)}, {v(src)} offset:{XH}\nds_write_b32 {v(T+27)}, {v(T+28)} offset:{XL}')
    A(f'v_readfirstlane_b32 {s(sTAG)}, {v(T+22)}')
    A(f's_waitcnt lgkmcnt(0)')
    signal(F_A)
    A(f's_mul_i32 {s(sTAG)}, {s(sTAG)}, 0x9e3779b1\ns_add_u32 {s(sTAG)}, {s(sTAG)}, 0x7f4a7c15\ns_and_b32 {s(sTAG)}, {s(sTAG)}, 0x1fffffff\ns_and_b32 {s(sTG12)}, {s(sTAG)}, 0xfff')
    wait_flag(F_A, sleep=0)
    stamp(1)
    wait_flag(F_WL)
    def tr_addr(dst, tile_sreg, rowexpr_g_shift, gbit_shift, base):
        A(f'v_bfe_u32 {v(T+40)}, {v(vL4)}, 4, 2\nv_bfe_u32 {v(T+41)}, {v(vL4)}, 2, 2\nv_lshrrev_b32 {v(T+42)}, 6, {v(vL4)}')
        A(f'v_bfe_u32 {v(T+43)}, {v(T+42)}, {gbit_shift}, 1\nv_lshl_or_b32 {v(T+43)}, {v(T+43)}, 2, {v(T+40)}')
        A(f'v_xor_b32 {v(T+43)}, {s(tile_sreg)}, {v(T+43)}\nv_lshlrev_b32 {v(T+43)}, 5, {v(T+43)}\nv_lshl_add_u32 {v(T+43)}, {v(T+41)}, 3, {v(T+43)}')
        A(f'v_lshl_add_u32 {v(T+42)}, {v(T+42)}, {rowexpr_g_shift}, {v(T+40)}\nv_lshl_add_u32 {v(dst)}, {v(T+42)}, 8, {v(T+43)}')
        A(f'v_add_u32 {v(dst)}, {base}, {v(dst)}')
    for tt in range(2):
        A(f's_lshl_b32 s6, {s(sW)}, 1\ns_add_u32 s6, s6, {tt}')
        tr_addr(T+44, 6, 3, 0, WQB)
        tr_addr(T+45, 6, 2, 1, WQB + 128*256)
        for ks in range(4):
            for hh in range(2):
                A(f'ds_read_b64_tr_b16 {a(aWQ+16*tt+4*ks+2*hh,2)}, {v(T+44)} offset:{ks*8192+hh*1024}')
        A(f'ds_read_b64_tr_b16 {a(aWQH+2*tt,2)}, {v(T+45)}')
    A('s_waitcnt lgkmcnt(0)')
    signal(F_WQ)
    A(f's_cmp_lg_u32 {s(sW)}, 3\ns_cbranch_scc1 L_qstage')
    A(f's_lshl_b32 s6, {s(sXCC)}, 29\ns_or_b32 s6, s6, {s(sTAG)}\nv_mov_b32 {v(T+8)}, s6')
    A(f's_lshl_b32 s6, {s(sX)}, 7\ns_lshr_b32 s7, s2, 3\ns_lshl_b32 s7, s7, 2\ns_add_u32 s6, s6, s7\ns_add_u32 s6, s6, {ARR}\nv_mov_b32 {v(T+9)}, s6')
    A(f's_waitcnt vmcnt(0)\ns_mov_b64 exec, 1\nbuffer_store_dword {v(T+8)}, {v(T+9)}, {s(rWS,4)}, 0 offen sc1\ns_mov_b64 exec, -1')

    A('L_qstage:')
    xf = T
    st = T + 20
    D0, D1 = T+32, T+36
    A(f'v_lshrrev_b32 {v(T+18)}, 6, {v(vL4)}\nv_lshlrev_b32 {v(T+18)}, 3, {v(T+18)}\nv_sub_u32 {v(T+18)}, {v(vXA)}, {v(T+18)}')
    for ks in range(4):
        A(f'ds_read_b128 {v(xf+4*ks,4)}, {v(vXA)} offset:{64*ks}')
    A(f'ds_read_b64 {v(xf+16,2)}, {v(T+18)} offset:256')
    stats_issue(st)
    A('s_waitcnt lgkmcnt(0)')
    for ks in range(4):
        for tt, D in enumerate((D0, D1)):
            A(f'v_mfma_f32_16x16x32_bf16 {v(D,4)}, {v(xf+4*ks,4)}, {a(aWQ+16*tt+4*ks,4)}, {v(D,4) if ks else 0}')
    for tt, D in enumerate((D0, D1)):
        A(f'v_mfma_f32_16x16x16_bf16 {v(D,4)}, {v(xf+16,2)}, {a(aWQH+2*tt,2)}, {v(D,4)}')
    stats_calc(st)
    qs = (128 ** -0.5) * math.log2(math.e)
    A(f'v_add_f32 {v(st+1)}, {EPS}, {v(st+1)}\nv_rsq_f32 {v(st+1)}, {v(st+1)}')
    for D in (D0, D1):
        A(f'v_add_f32 {v(D)}, {v(D)}, {v(D+1)}\nv_fma_f32 {v(D)}, -{v(st)}, {v(D+2)}, {v(D)}')
    A(f'v_mul_f32 {v(st+1)}, {hex(f2u(qs))}, {v(st+1)}')
    A(f'v_mul_f32 {v(D0)}, {v(D0)}, {v(st+1)}\nv_mul_f32 {v(D1)}, {v(D1)}, {v(st+1)}')
    for D in (D0, D1): A(f'v_and_b32 {v(D)}, 0xfffff000, {v(D)}')
    for D in (D0, D1): A(f'v_or_b32 {v(D)}, {s(sTG12)}, {v(D)}')
    A('s_mov_b64 exec, 0xffff')
    sKD, sPOL, sQC = 4, 5, sT0
    if not P['xp'] & 8:
        A(f'buffer_store_dword {v(D0)}, {v(vL4)}, {s(rWS,4)}, {s(sQAst)} offen')
        A(f'buffer_store_dword {v(D1)}, {v(vL4)}, {s(rWS,4)}, {s(sQAst)} offen offset:64')
        A(f's_cmp_lg_u32 {s(sFAST)}, 0\ns_cbranch_scc1 L_q1copy\ns_add_u32 s6, {s(sQAst)}, {QAB}')
        A(f'buffer_store_dword {v(D0)}, {v(vL4)}, {s(rWS,4)}, s6 offen sc1')
        A(f'buffer_store_dword {v(D1)}, {v(vL4)}, {s(rWS,4)}, s6 offen offset:64 sc1')
        A('L_q1copy:')
    A('s_mov_b64 exec, -1')
    stamp(2)
    A(f's_mov_b32 {s(sQC)}, {s(sQAld)}\ns_mov_b32 {s(sKD)}, {s(sLAY)}\ns_mov_b32 {s(sPOL)}, {P["npa"]}')
    A(f's_cmp_eq_u32 {s(sLAY)}, 0\ns_cbranch_scc1 L_ga\ns_mov_b32 {s(sPOL)}, -1')
    A(f's_cmp_lg_u32 {s(sFAST)}, 0\ns_cbranch_scc1 L_ga\ns_add_u32 {s(sQC)}, {s(sQC)}, {QAB}\ns_waitcnt vmcnt(0)')
    A('L_ga:')
    if not P['xp'] & 4:
        for kq in range(4):
            A(f'buffer_load_dword {v(T+kq)}, {v(vT4)}, {s(rWS,4)}, {s(sQC)} offen offset:{1024*kq} sc1')
    def k_reads():
        kt = T + 8
        A(f'v_bfe_u32 {v(kt)}, {v(vL4)}, 2, 4\nv_lshrrev_b32 {v(kt+1)}, 6, {v(vL4)}\ns_lshl_b32 s6, {s(sW)}, 14')
        A(f'v_lshl_add_u32 {v(kt+2)}, {v(kt)}, 8, s6')
        for ks in range(4):
            A(f'v_add_u32 {v(kt+3)}, {4*ks}, {v(kt+1)}\nv_xor_b32 {v(kt+3)}, {v(kt+3)}, {v(kt)}\nv_lshl_add_u32 {v(kt+4+ks)}, {v(kt+3)}, 4, {v(kt+2)}')
            for tt in range(4):
                A(f'ds_read_b128 {a(aK+16*tt+4*ks,4)}, {v(kt+4+ks)} offset:{KB+4096*tt}')
        A('s_waitcnt lgkmcnt(0)')
        signal(F_KR)
    A(f'v_lshrrev_b32 {v(T+6)}, 7, v0\nv_lshlrev_b32 {v(T+6)}, 8, {v(T+6)}\nv_lshl_add_u32 {v(T+6)}, v0, 1, {v(T+6)}\nv_add_u32 {v(T+6)}, {SM+QB}, {v(T+6)}')
    A('s_waitcnt vmcnt(0)')
    for k in range(4): A(f'v_xor_b32 {v(T+k)}, {s(sTG12)}, {v(T+k)}')
    A(f'v_or3_b32 {v(T+4)}, {v(T)}, {v(T+1)}, {v(T+2)}\nv_or_b32 {v(T+4)}, {v(T+4)}, {v(T+3)}\nv_and_b32 {v(T+4)}, 0xfff, {v(T+4)}')
    if not P['xp'] & 4: A(f'v_cmp_ne_u32 vcc, 0, {v(T+4)}\ns_cbranch_vccnz L_ga_f')
    A(f'v_add_f32 {v(T)}, {v(T)}, {v(T+1)}\nv_add_f32 {v(T+2)}, {v(T+2)}, {v(T+3)}\nv_add_f32 {v(T)}, {v(T)}, {v(T+2)}')
    A(f'v_cvt_pk_bf16_f32 {v(T)}, {v(T)}, {v(T)}\nds_write_b16 {v(T+6)}, {v(T)}\ns_waitcnt lgkmcnt(0)')
    stamp(3)
    A(f's_cmp_lg_u32 {s(sLAY)}, 0\ns_cbranch_scc1 L_qbar')
    signal(F_Q)
    A(f's_cmp_lg_u32 {s(sKD)}, 0\ns_cbranch_scc1 L_kdone')
    wait_flag(F_K)
    A(f's_mov_b32 {s(sKD)}, 2')
    A('L_kread:')
    k_reads()
    A(f's_cmp_eq_u32 {s(sKD)}, 1\ns_cbranch_scc1 L_ga')
    A('L_kdone:')
    wait_flag(F_Q, sleep=0)
    A('s_branch L_qk')
    A('L_ga_f:')
    tmo_check()
    A(f's_sub_u32 {s(sPOL)}, {s(sPOL)}, 1\ns_cmp_lg_u32 {s(sPOL)}, 0\ns_cbranch_scc1 L_ga_f2\ns_add_u32 {s(sQC)}, {s(sQC)}, {QAB}')
    A(f'L_ga_f2:\ns_cmp_lg_u32 {s(sKD)}, 0\ns_cbranch_scc1 L_ga')
    t = T + 60
    A(f'v_mov_b32 {v(T+65)}, {SM+FLAGS}\nds_read_b128 {v(t,4)}, {v(T+65)} offset:{16*F_K}\ns_waitcnt lgkmcnt(0)')
    A(f'v_and_b32 {v(t)}, {v(t)}, {v(t+1)}\nv_and_b32 {v(t+2)}, {v(t+2)}, {v(t+3)}\nv_and_b32 {v(t)}, {v(t)}, {v(t+2)}')
    A(f'v_cmp_ne_u32 vcc, 0, {v(t)}\ns_cbranch_vccz L_ga\ns_mov_b32 {s(sKD)}, 1\ns_branch L_kread')
    A('L_qbar:\ns_barrier')
    A('L_qk:')
    qf, DS = T, T+16
    for ks in range(4):
        A(f'ds_read_b128 {v(qf+4*ks,4)}, {v(vQF)} offset:{QB+64*ks}')
    for ks in range(4):
        A(f's_waitcnt lgkmcnt({3-ks})')
        for tt in range(4):
            A(f'v_mfma_f32_16x16x32_bf16 {v(DS+4*tt,4)}, {v(qf+4*ks,4)}, {a(aK+16*tt+4*ks,4)}, {v(DS+4*tt,4) if ks else 0}')
    sa, sb, mx, t0 = T+32, T+33, T+34, T+35
    nop(6)
    A(f'v_cndmask_b32 {v(sa)}, {v(DS)}, {v(DS+4)}, {s(sMHI,2)}')
    nop(2)
    A(f'v_cndmask_b32 {v(sb)}, {v(DS+8)}, {v(DS+12)}, {s(sMHI,2)}')
    A(f'v_max_f32 {v(mx)}, {v(sa)}, {v(sb)}')
    for k in (8, 4, 2, 1):
        nop(2); dpp('v_max_f32', mx, mx, mx, f'row_ror:{k}')
    A(f'v_mov_b32 {v(t0)}, {v(mx)}')
    nop(2)
    A(f'v_permlane32_swap_b32 {v(mx)}, {v(t0)}\nv_max_f32 {v(mx)}, {v(mx)}, {v(t0)}')
    A(f'v_sub_f32 {v(sa)}, {v(sa)}, {v(mx)}\nv_sub_f32 {v(sb)}, {v(sb)}, {v(mx)}\nv_exp_f32 {v(sa)}, {v(sa)}\nv_exp_f32 {v(sb)}, {v(sb)}')
    nop(1)
    A(f'v_cvt_pk_bf16_f32 {v(sa)}, {v(sa)}, {v(sb)}')
    A(f'ds_write_b16 {v(vPW)}, {v(sa)}\nds_write_b16_d16_hi {v(vPW)}, {v(sa)} offset:64')
    A(f'v_lshlrev_b32 {v(sb)}, 16, {v(sa)}\nv_and_b32 {v(t0)}, 0xffff0000, {v(sa)}\nv_add_f32 {v(t0)}, {v(t0)}, {v(sb)}')
    for k in (8, 4, 2, 1):
        nop(2); dpp('v_add_f32', t0, t0, t0, f'row_ror:{k}')
    A(f'v_mov_b32 {v(sb)}, {v(t0)}\ns_lshl_b32 s6, {s(sW)}, 3\nv_add_u32 {v(sa)}, s6, {v(vMLR)}')
    nop(1)
    A(f'v_permlane32_swap_b32 {v(t0)}, {v(sb)}\nv_add_f32 {v(t0)}, {v(t0)}, {v(sb)}')
    A(f'ds_write_b64 {v(sa)}, {v(mx,2)}\ns_waitcnt lgkmcnt(0)')
    stamp(4)
    A(f's_cmp_lg_u32 {s(sLAY)}, 0\ns_cbranch_scc1 L_pbar')
    signal(F_P)
    gc = vRAW + 2
    def gchk_issue():
        A(f'buffer_load_dwordx4 {v(gc,4)}, {v(gc+4)}, {s(rWS,4)}, 0 offen sc1')
    A(f'v_lshlrev_b32 {v(gc+4)}, 2, {v(vL4)}\nv_add_u32 {v(gc+4)}, {ARR}, {v(gc+4)}')
    gchk_issue()
    for tt in range(2):
        A(f's_lshl_b32 s6, {s(sW)}, 1\ns_add_u32 s6, s6, {tt}')
        tr_addr(T+44+tt, 6, 3, 0, VB)
    wait_flag(F_V)
    for ks in range(8):
        for tt in range(2):
            for hh in range(2):
                A(f'ds_read_b64_tr_b16 {a(aV+32*tt+4*ks+2*hh,2)}, {v(T+44+tt)} offset:{ks*8192+hh*1024}')
    wait_flag(F_P, sleep=0)
    A('s_branch L_pv')
    A('L_pbar:\ns_barrier')
    A('L_pv:')
    pf, DO, ml = T, T+24, T+56
    A(f'ds_read_b128 {v(ml,4)}, {v(vMLR)}\nds_read_b128 {v(ml+4,4)}, {v(vMLR)} offset:16')
    for ks in range(6):
        A(f'ds_read_b128 {v(pf+4*ks,4)}, {v(vQF)} offset:{PB+64*ks}')
    for ks in range(8):
        r = pf + 4*(ks % 6)
        A(f's_waitcnt lgkmcnt({5 if ks < 3 else 7-ks})')
        for tt in range(2):
            D = DO + 16*tt + 4*(ks >> 1)
            A(f'v_mfma_f32_16x16x32_bf16 {v(D,4)}, {v(r,4)}, {a(aV+32*tt+4*ks,4)}, {v(D,4) if ks & 1 else 0}')
        if ks < 2:
            A(f'ds_read_b128 {v(r,4)}, {v(vQF)} offset:{PB+64*(ks+6)}')
    M_, L_ = T+64, T+65
    A(f'v_max3_f32 {v(M_)}, {v(ml)}, {v(ml+2)}, {v(ml+4)}\nv_max_f32 {v(M_)}, {v(M_)}, {v(ml+6)}')
    for k in range(4): A(f'v_sub_f32 {v(ml+2*k)}, {v(ml+2*k)}, {v(M_)}')
    for k in range(4): A(f'v_exp_f32 {v(ml+2*k)}, {v(ml+2*k)}')
    A(f'v_mul_f32 {v(L_)}, {v(ml)}, {v(ml+1)}')
    for k in range(1, 4): A(f'v_fmac_f32 {v(L_)}, {v(ml+2*k)}, {v(ml+2*k+1)}')
    A(f'v_rcp_f32 {v(ml+1)}, {v(L_)}\nv_log_f32 {v(L_)}, {v(L_)}')
    for k in range(4): A(f'v_cndmask_b32 {v(DO+4*k)}, {v(DO+4*k)}, {v(DO+16+4*k)}, {s(sMHI,2)}')
    A(f'v_mul_f32 {v(DO)}, {v(DO)}, {v(ml)}')
    for k in range(1, 4): A(f'v_fmac_f32 {v(DO)}, {v(DO+4*k)}, {v(ml+2*k)}')
    A(f'v_mul_f32 {v(DO)}, {v(DO)}, {v(ml+1)}\nv_add_f32 {v(L_)}, {v(L_)}, {v(M_)}')
    nop(1)
    A(f'v_mov_b32_dpp {v(DO+1)}, {v(DO)} quad_perm:[1,0,3,2] row_mask:0xf bank_mask:0xf')
    A(f'v_lshrrev_b32 {v(DO+2)}, 1, {v(vL4)}')
    A(f'v_cvt_pk_bf16_f32 {v(DO)}, {v(DO)}, {v(DO+1)}')
    A(f's_cmp_lg_u32 {s(sLAY)}, 0\ns_cbranch_scc1 L_gchkok')
    A('L_gchk:\ns_waitcnt vmcnt(0)')
    for k in range(4): A(f'v_xor_b32 {v(gc+k)}, {s(sTAG)}, {v(gc+k)}')
    A(f'v_or3_b32 {v(gc+5)}, {v(gc)}, {v(gc+1)}, {v(gc+2)}\nv_or_b32 {v(gc+5)}, {v(gc+5)}, {v(gc+3)}\nv_and_b32 {v(gc+6)}, 0x1fffffff, {v(gc+5)}')
    A(f'v_cmp_ne_u32 vcc, 0, {v(gc+6)}\ns_cbranch_vccnz L_gchk_f')
    if P['fast']:
        A(f's_lshl_b32 s6, {s(sXCC)}, 29')
        for k in range(4): A(f'v_xor_b32 {v(gc+k)}, s6, {v(gc+k)}')
        A(f'v_or3_b32 {v(gc+5)}, {v(gc)}, {v(gc+1)}, {v(gc+2)}\nv_or_b32 {v(gc+5)}, {v(gc+5)}, {v(gc+3)}')
        A(f'v_cmp_ne_u32 vcc, 0, {v(gc+5)}\ns_lshl_b32 s6, {s(sX)}, 3\ns_lshr_b64 vcc, vcc, s6')
        A(f's_and_b32 s6, vcc_lo, 0xff\ns_cselect_b32 {s(sFAST)}, 0, 1')
    stamp(9)
    A('L_gchkok:')
    def o_st(m):
        A('s_mov_b32 exec_lo, 0x55555555\ns_mov_b32 exec_hi, 0x55555555')
        A(f'buffer_store_dword {v(DO)}, {v(vOBS)}, {s(rWS,4)}, {s(sOBst)} offen{m}')
        l = A.label('nolse')
        A(f's_cmp_lg_u32 {s(sW)}, 0\ns_cbranch_scc1 {l}\ns_mov_b64 exec, 0x10001')
        A(f'buffer_store_dword {v(L_)}, {v(DO+2)}, {s(rWS,4)}, {s(sLSEst)} offen{m}')
        A(f'{l}:\ns_mov_b64 exec, -1')
    if P['xp'] & 1:
        stamp(5); A('s_waitcnt lgkmcnt(0)'); emit_stamps(A, 0); A('s_endpgm')
    local_store(o_st)
    local_pace()
    stamp(5)
    A('L_gb:')
    for k in range(8):
        A(f'buffer_load_dword {v(T+k)}, {v(vL4)}, {s(rWS,4)}, {s(sOBld)} offen offset:{256*k} sc1')
    A(f'v_and_b32 {v(T+9)}, 28, {v(vL4)}')
    A(f'buffer_load_dword {v(T+8)}, {v(T+9)}, {s(rWS,4)}, {s(sLSEld)} offen sc1')
    A(f'v_add_u32 {v(T+13)}, {s(sT3)}, {v(vT4)}')
    A('s_waitcnt vmcnt(0)')
    check_sentinel(range(T, T+9), T+10, 'L_gb_f')
    mm, ff = T+10, T+8
    dpp('v_max_f32', mm, ff, ff, 'row_ror:4')
    for k in (2, 1):
        nop(2); dpp('v_max_f32', mm, mm, mm, f'row_ror:{k}')
    A(f'v_sub_f32 {v(ff)}, {v(ff)}, {v(mm)}\nv_exp_f32 {v(ff)}, {v(ff)}')
    for k in range(8):
        A(f'v_lshlrev_b32 {v(T+16+k)}, 16, {v(T+k)}\nv_and_b32 {v(T+k)}, 0xffff0000, {v(T+k)}')
        if k == 0: dpp('v_add_f32', mm, ff, ff, 'row_ror:4')
        if k == 1: dpp('v_add_f32', mm, mm, mm, 'row_ror:2')
        if k == 2: dpp('v_add_f32', mm, mm, mm, 'row_ror:1')
        if k == 3: A(f'v_rcp_f32 {v(mm)}, {v(mm)}')
        if k == 4: A(f'v_mul_f32 {v(ff)}, {v(ff)}, {v(mm)}')
    lo, hi = T+11, T+12
    for k in range(8):
        op = 'v_mul_f32' if k == 0 else 'v_fmac_f32'
        dpp(op, lo, ff, T+16+k, f'row_newbcast:{k}')
        dpp(op, hi, ff, T+k, f'row_newbcast:{k}')
    A(f'v_cvt_pk_bf16_f32 {v(lo)}, {v(lo)}, {v(hi)}\nds_write_b32 {v(T+13)}, {v(lo)} offset:{OL}')
    A('s_waitcnt lgkmcnt(0)\ns_barrier')
    stamp(6)
    A(f's_or_b32 s6, s2, {s(sW)}\ns_or_b32 s6, s6, {s(sLAY)}\ns_cmp_lg_u32 s6, 0\ns_cbranch_scc1 L_nobump')
    A(f'v_mov_b32 {v(T)}, {s(sTAG)}\nv_mov_b32 {v(T+1)}, {EPO}\ns_mov_b64 exec, 1')
    A(f'buffer_store_dword {v(T)}, {v(T+1)}, {s(rWS,4)}, 0 offen sc1\ns_mov_b64 exec, -1\ns_nop 0')
    A('L_nobump:')
    raw_l0()
    expand_coefs()
    A('s_branch L_cbar')
    A('L_gchk_f:')
    tmo_check()
    gchk_issue()
    A('s_branch L_gchk')
    A('L_gb_f:')
    tmo_check()
    A('s_branch L_gb')

    A('L_loader:')
    A(f's_sub_u32 s4, {s(sW)}, 4')
    A(f's_lshl_b32 s6, s4, 2\nv_add_u32 {v(T+8)}, s6, {v(T+3)}\nv_xor_b32 {v(T+8)}, {v(T+8)}, {v(T+2)}\nv_lshlrev_b32 {v(T+8)}, 4, {v(T+8)}')
    if P['xp'] & 32: A(f'v_lshlrev_b32 {v(T+8)}, 4, {v(T+2)}')
    A(f'v_lshl_add_u32 {v(T+8)}, {v(T+3)}, 8, {v(T+8)}\nv_lshl_add_u32 {v(T+9)}, {v(T+3)}, 8, {v(T+4)}')
    TH = P['throttle']
    A(f'v_lshl_add_u32 {v(T+5)}, {v(T+3)}, 13, {v(T+4)}')
    A(f's_lshl_b32 s6, s4, 10\ns_add_u32 s6, s6, {WQB}\ns_lshl_b32 s7, s4, 15')
    for i in range(9):
        A(f's_mov_b32 m0, s6\ns_add_u32 s6, s6, 4096')
        A(f'buffer_load_dwordx4 {v(T+5)}, {s(rWQ,4)}, s7 offen nt lds\ns_add_u32 s7, s7, {4*32768}')
    A('s_lshl_b32 s6, s4, 10\ns_mov_b32 s7, s6')
    for i in range(16):
        A(f's_mov_b32 m0, s6\ns_add_u32 s6, s6, 4096')
        A(f'buffer_load_dwordx4 {v(T+8)}, {s(rK,4)}, s7 offen nt lds\ns_add_u32 s7, s7, 4096')
        A(f's_waitcnt vmcnt({TH})')
        if i == TH-1: signal(F_WL); stamp(1)
        if i == 3:
            for k in range(5):
                A(f'v_add_u32 {v(T+15)}, {64*k}, {v(T+1)}\nv_mul_u32_u24 {v(T+16)}, 13108, {v(T+15)}\nv_lshrrev_b32 {v(T+16)}, 16, {v(T+16)}')
                A(f'v_mul_u32_u24 {v(T+17)}, 5, {v(T+16)}\nv_sub_u32 {v(T+15)}, {v(T+15)}, {v(T+17)}\nv_mul_u32_u24 {v(T+16)}, 1152, {v(T+16)}')
                A(f'v_lshl_add_u32 {v(T+10+k)}, {v(T+15)}, 4, {v(T+16)}')
    A('s_lshl_b32 s7, s4, 10')
    for i in range(16):
        if i == 13 and not P['xp'] & 64: wait_flag(F_WQ)
        A(f's_mov_b32 m0, s6\ns_add_u32 s6, s6, 4096')
        A(f'buffer_load_dwordx4 {v(T+9)}, {s(rV,4)}, s7 offen nt lds\ns_add_u32 s7, s7, 4096')
        A(f's_waitcnt vmcnt({TH})')
        if i == TH-1: signal(F_K); stamp(2)
    stamp(3)
    SP = 131072
    A(f's_mul_i32 s6, s4, 5120\ns_add_u32 s6, s6, {SP}\ns_mul_i32 s7, s4, {128*1152}')
    for i in range(10):
        A(f's_mov_b32 m0, s6\ns_add_u32 s6, s6, 1024')
        A(f'buffer_load_dwordx4 {v(T+10+i%5)}, {s(rWO,4)}, s7 offen {P["wopol"]} lds')
        if i < 4: A(f's_waitcnt vmcnt({TH})')
        if i == 4:
            A(f's_waitcnt vmcnt(5)'); signal(F_V); stamp(4)
            A(f's_add_u32 s7, s7, {64*1152}\ns_mul_i32 s6, s4, 5120')
            if not P['xp'] & 64: wait_flag(F_KR)
    stamp(5)
    A(f'v_bfe_u32 {v(T+40)}, {v(vL4)}, 4, 2\nv_bfe_u32 {v(T+41)}, {v(vL4)}, 2, 2\nv_lshl_add_u32 {v(T+40)}, {v(T+3)}, 3, {v(T+40)}')
    A(f'v_mul_u32_u24 {v(T+40)}, 80, {v(T+40)}\nv_lshl_add_u32 {v(T+40)}, {v(T+41)}, 3, {v(T+40)}')
    A(f's_and_b32 s6, {s(sC)}, 1\ns_lshl_b32 s6, s6, 3\ns_lshl_b32 s7, s4, 5\ns_add_u32 s6, s6, s7\nv_add_u32 {v(T+40)}, s6, {v(T+40)}')
    A(f'v_add_u32 {v(T+41)}, {SP}, {v(T+40)}')
    A('s_waitcnt vmcnt(0)')
    signal(F_WO)
    wait_flag(F_WO, sleep=0)
    for ks in range(16):
        for hh in range(2):
            A(f'ds_read_b64_tr_b16 {a(aK+4*ks+2*hh,2)}, {v(T+40 if ks & 2 else T+41)} offset:{5120*(ks>>2)+2560*(ks&1)+320*hh}')
    A('s_waitcnt vmcnt(0) lgkmcnt(0)')
    stamp(6)
    if P['xp'] & 1:
        A('s_waitcnt lgkmcnt(0)'); emit_stamps(A, 0); A('s_endpgm')
    A('L_wo:\ns_barrier')
    A(f's_cmp_eq_u32 {s(sW)}, 7\ns_cbranch_scc1 L_wo_skip')
    for ks in range(16):
        A(f'ds_read_b128 {a(aV+4*ks,4)}, {v(vQF)} offset:{OL+64*ks}')
    DW = T + 40
    for ks in range(16):
        A(f's_waitcnt lgkmcnt({15-ks})')
        A(f'v_mfma_f32_16x16x32_bf16 {v(DW,4)}, {a(aV+4*ks,4)}, {a(aK+4*ks,4)}, {v(DW,4) if ks else 0}')
    A(f'v_lshrrev_b32 {v(DW+5)}, 1, {v(vL4)}')
    A(f's_cmp_eq_u32 {s(sW)}, 6\ns_cselect_b32 s6, 0x5, 0x5555')
    nop(6)
    A(f'v_mov_b32_dpp {v(DW+4)}, {v(DW)} quad_perm:[1,0,3,2] row_mask:0xf bank_mask:0xf')
    nop(1)
    A(f'v_cvt_pk_bf16_f32 {v(DW)}, {v(DW)}, {v(DW+4)}\ns_mov_b32 exec_lo, s6\ns_mov_b32 exec_hi, 0')
    A(f'buffer_store_dword {v(DW)}, {v(DW+5)}, {s(rWS,4)}, {s(sPCst)} offen sc1\ns_mov_b64 exec, -1')
    A('L_wo_skip:')
    raw_l0()
    expand_coefs()
    A('s_waitcnt vmcnt(0)')

    A('L_cbar:\ns_barrier')
    g0 = T + 30
    A(f's_cmp_gt_u32 {s(sW)}, 4\ns_cbranch_scc1 L_gc_done')
    A(f's_cmp_eq_u32 {s(sW)}, 4\ns_cselect_b32 exec_hi, 0, -1')
    A(f'v_lshl_add_u32 {v(g0+20)}, {v(vT4)}, 1, {s(sT3)}')
    A('L_gc:')
    for k in range(8):
        A(f'buffer_load_dword {v(g0+k)}, {v(vT4)}, {s(rWS,4)}, {s(sPCld if k < 4 else sPCld2)} offen offset:{PCS*(k&3)} sc1')
    A(f'ds_read_b64 {v(g0+18,2)}, {v(g0+20)} offset:{X32}')
    A('s_waitcnt vmcnt(0) lgkmcnt(0)')
    check_sentinel(range(g0, g0+8), g0+8, 'L_gc_f')
    for k in range(8):
        A(f'v_lshlrev_b32 {v(g0+8)}, 16, {v(g0+k)}\nv_and_b32 {v(g0+9)}, 0xffff0000, {v(g0+k)}')
        A(f'v_pk_add_f32 {v(g0+18,2)}, {v(g0+18,2)}, {v(g0+8,2)}')
    A(f'ds_write_b64 {v(g0+20)}, {v(g0+18,2)} offset:{X32}\ns_waitcnt lgkmcnt(0)\ns_mov_b64 exec, -1')
    A('L_gc_done:\ns_barrier')
    stamp(7)
    st = T + 30
    stats_issue(st)
    A(f's_lshl_b32 s6, {s(sE0)}, 2\ns_add_u32 s6, s6, {SM+X32}\nv_and_b32 {v(st+12)}, 28, {v(vL4)}\nv_add_u32 {v(st+12)}, s6, {v(st+12)}')
    A(f'ds_read_b32 {v(vXE)}, {v(st+12)}\ns_waitcnt lgkmcnt(0)')
    stats_calc(st)
    A(f'v_add_f32 {v(st+2)}, {EPS}, {v(st+1)}\nv_rsq_f32 {v(st+2)}, {v(st+2)}\nv_sub_f32 {v(st)}, {v(vXE)}, {v(st)}')
    A(f'v_mul_f32 {v(st+1)}, {v(st+1)}, {v(st+2)}\nv_mul_f32 {v(st)}, {v(st)}, {v(st+2)}')
    A(f'v_fmaak_f32 {v(st+1)}, {v(st+1)}, {v(st+2)}, {EPS}\nv_rsq_f32 {v(st+1)}, {v(st+1)}')
    nop(1)
    A(f'v_mul_f32 {v(st)}, {v(st)}, {v(st+1)}')
    nop(1)
    for e in range(5): A(f'v_readlane_b32 {s(sH+e)}, {v(st)}, {e}')
    A(f's_mov_b32 {s(sH+5)}, 0')
    nop(1)
    U, TT, ACC, R8 = T+28, T+36, T+44, T+54
    KK = s(sKC, 2)
    def gelu_batch(n):
        for i in range(n): A(f'v_pk_mul_f32 {v(TT+2*i,2)}, {v(U+2*i,2)}, {v(U+2*i,2)}')
        for i in range(n): A(f'v_pk_fma_f32 {v(TT+2*i,2)}, {v(TT+2*i,2)}, {KK}, {KK} op_sel:[0,0,1] op_sel_hi:[1,0,1]')
        for i in range(n): A(f'v_pk_mul_f32 {v(TT+2*i,2)}, {v(TT+2*i,2)}, {v(U+2*i,2)}')
        for i in range(2*n): A(f'v_exp_f32 {v(TT+i)}, {v(TT+i)}')
        for i in range(n): A(f'v_pk_add_f32 {v(TT+2*i,2)}, {v(TT+2*i,2)}, 1.0 op_sel_hi:[1,0]')
        for i in range(2*n): A(f'v_rcp_f32 {v(TT+i)}, {v(TT+i)}')
        for i in range(n): A(f'v_pk_mul_f32 {v(U+2*i,2)}, {v(U+2*i,2)}, {v(TT+2*i,2)}')
    def elem(e):
        hs = s(sH + (e & ~1), 2); o = e & 1
        for i in range(4):
            A(f'v_pk_fma_f32 {v(U+2*i,2)}, {hs}, {v(cW1+2*i,2)}, {v(cB1+2*i,2)} op_sel:[{o},0,0] op_sel_hi:[{o},1,1]')
        gelu_batch(4)
        A(f'v_pk_mul_f32 {v(ACC+2*e,2)}, {v(U,2)}, {v(cW2,2)}')
        for i in range(1, 4):
            A(f'v_pk_fma_f32 {v(ACC+2*e,2)}, {v(U+2*i,2)}, {v(cW2+2*i,2)}, {v(ACC+2*e,2)}')
    for i in range(3):
        A(f'v_pk_fma_f32 {v(U+2*i,2)}, {s(sH+2*i,2)}, {v(cW8,2)}, {v(cW8,2)} op_sel:[0,0,1] op_sel_hi:[1,0,1]')
    gelu_batch(3)
    for i in range(3):
        A(f'v_pk_mul_f32 {v(R8+2*i,2)}, {v(U+2*i,2)}, {v(cW28,2)} op_sel_hi:[1,0]')
    for e in range(4): elem(e)
    A(f'v_mov_b32 {v(ACC+8)}, 0\nv_mov_b32 {v(ACC+9)}, 0')
    A(f's_cmp_eq_u32 {s(sNE)}, 4\ns_cbranch_scc1 L_no5')
    elem(4)
    A('L_no5:')
    for e in range(5): A(f'v_add_f32 {v(R8+e)}, {v(R8+e)}, {v(ACC+2*e)}')
    for e in range(5): A(f'v_add_f32 {v(R8+e)}, {v(R8+e)}, {v(ACC+2*e+1)}')
    A(f'v_mov_b32 {v(R8+5)}, {v(R8+4)}')
    A(f'v_lshrrev_b32 {v(U)}, 6, {v(vL4)}\nv_and_b32 {v(U+1)}, 1, {v(U)}\nv_lshrrev_b32 {v(U)}, 1, {v(U)}\nv_lshl_add_u32 {v(U)}, {v(U+1)}, 1, {v(U)}')
    A(f's_lshl_b32 s6, {s(sW)}, 2\ns_add_u32 s6, s6, {SM+RED}\nv_lshl_add_u32 {v(U)}, {v(U)}, 5, s6\nv_mov_b32 {v(U+1)}, s6')
    for i in range(3): A(f'v_permlane32_swap_b32 {v(R8+2*i)}, {v(R8+2*i+1)}')
    for i in range(3): A(f'v_add_f32 {v(R8+2*i)}, {v(R8+2*i)}, {v(R8+2*i+1)}')
    A(f'v_mov_b32 {v(R8+5)}, {v(R8+4)}')
    nop(2)
    A(f'v_permlane16_swap_b32 {v(R8)}, {v(R8+2)}\nv_permlane16_swap_b32 {v(R8+4)}, {v(R8+5)}')
    A(f'v_add_f32 {v(R8)}, {v(R8)}, {v(R8+2)}\nv_add_f32 {v(R8+4)}, {v(R8+4)}, {v(R8+5)}')
    nop(1)
    for k in (8, 4, 2, 1):
        dpp('v_add_f32', R8, R8, R8, f'row_ror:{k}')
        dpp('v_add_f32', R8+4, R8+4, R8+4, f'row_ror:{k}')
        nop(1)
    A(f'ds_write_b32 {v(U)}, {v(R8)}\nds_write_b32 {v(U+1)}, {v(R8+4)} offset:128')
    A('s_waitcnt lgkmcnt(0)\ns_barrier')
    stamp(8)
    A(f's_cmp_lg_u32 {s(sW)}, 0\ns_cbranch_scc1 L_nofin')
    A(f'v_and_b32 {v(U)}, 28, {v(vL4)}\nv_lshl_add_u32 {v(U+1)}, {v(U)}, 3, {s(sT3)}')
    A(f'ds_read_b128 {v(TT,4)}, {v(U+1)} offset:{RED}\nds_read_b128 {v(TT+4,4)}, {v(U+1)} offset:{RED+16}')
    A(f's_lshl_b32 s6, {s(sB2)}, 16\nv_add_f32 {v(U+2)}, s6, {v(vXE)}')
    A(f's_lshl_b32 s6, 1, {s(sNE)}\ns_sub_u32 s6, s6, 1\ns_waitcnt lgkmcnt(0)')
    A(f'v_pk_add_f32 {v(TT,2)}, {v(TT,2)}, {v(TT+2,2)}\nv_pk_add_f32 {v(TT+4,2)}, {v(TT+4,2)}, {v(TT+6,2)}\nv_pk_add_f32 {v(TT,2)}, {v(TT,2)}, {v(TT+4,2)}')
    A(f'v_add_f32 {v(TT)}, {v(TT)}, {v(TT+1)}\nv_add_f32 {v(TT)}, {v(TT)}, {v(U+2)}')
    A('s_mov_b32 exec_lo, s6\ns_mov_b32 exec_hi, 0')
    A(f's_cmp_lg_u32 {s(sLAY)}, 0\ns_cbranch_scc1 L_out')
    A(f's_lshl_b32 s6, {s(sU)}, 5\ns_add_u32 s6, s6, {s(sXDb)}')
    A(f'buffer_store_dword {v(TT)}, {v(vL4)}, {s(rWS,4)}, s6 offen sc1\ns_mov_b64 exec, -1')
    A('L_nofin:')
    A(f's_cmp_lg_u32 {s(sLAY)}, 0\ns_cbranch_scc1 L_fin')
    for k in range(2):
        e_, q_, r_ = g0+10, g0+11, g0+12
        A(f'v_lshl_add_u32 {v(e_)}, v0, 1, {k}\nv_mul_u32_u24 {v(q_)}, 13108, {v(e_)}\nv_lshrrev_b32 {v(q_)}, 16, {v(q_)}')
        A(f'v_mul_u32_u24 {v(r_)}, 12, {v(q_)}\nv_lshl_add_u32 {v(q_)}, {v(e_)}, 2, {v(r_)}')
        A(f'v_subrev_u32 {v(r_)}, 64, {v(e_)}\nv_and_b32 {v(g0+13)}, 3, {v(r_)}\nv_lshrrev_b32 {v(r_)}, 2, {v(r_)}')
        A(f'v_lshlrev_b32 {v(r_)}, 5, {v(r_)}\nv_lshl_add_u32 {v(r_)}, {v(g0+13)}, 2, {v(r_)}\nv_cmp_gt_u32 vcc, 320, {v(e_)}')
        nop(2)
        A(f'v_cndmask_b32 {v(g0+14+k)}, {v(r_)}, {v(q_)}, vcc')
    A(f'v_lshl_add_u32 {v(g0+20)}, {v(vT4)}, 1, {s(sT3)}\nv_add_u32 {v(g0+21)}, {s(sT3)}, {v(vT4)}')
    A('s_waitcnt vmcnt(0)\ns_barrier')
    A(f's_cmp_gt_u32 {s(sW)}, 4\ns_cbranch_scc1 L_gd_done')
    A(f's_cmp_eq_u32 {s(sW)}, 4\ns_cselect_b32 exec_hi, 0, -1')
    A('L_gd:')
    for k in range(2):
        A(f'buffer_load_dword {v(g0+k)}, {v(g0+14+k)}, {s(rWS,4)}, {s(sXDb)} offen sc1')
    A('s_waitcnt vmcnt(0)')
    check_sentinel([g0, g0+1], g0+2, 'L_gd_f')
    A(f'v_cvt_pk_bf16_f32 {v(g0+2)}, {v(g0)}, {v(g0+1)}\nds_write_b64 {v(g0+20)}, {v(g0,2)} offset:{X32}')
    A(f'v_lshlrev_b32 {v(g0+4)}, 16, {v(g0+2)}\nv_and_b32 {v(g0+5)}, 0xffff0000, {v(g0+2)}\nds_write_b32 {v(g0+21)}, {v(g0+2)} offset:{XH}')
    A(f'v_sub_f32 {v(g0+4)}, {v(g0)}, {v(g0+4)}\nv_sub_f32 {v(g0+5)}, {v(g0+1)}, {v(g0+5)}\nv_cvt_pk_bf16_f32 {v(g0+4)}, {v(g0+4)}, {v(g0+5)}')
    A(f'ds_write_b32 {v(g0+21)}, {v(g0+4)} offset:{XL}\ns_waitcnt lgkmcnt(0)\ns_mov_b64 exec, -1')
    A('L_gd_done:')
    for r in (sQAst, sQAld, sOBst, sLSEst, sOBld, sLSEld, sPCst, sPCld, sPCld2):
        A(f's_add_u32 {s(r)}, {s(r)}, {LS}')
    A(f's_mov_b32 {s(sLAY)}, 1\ns_barrier')
    if P['stamps'] == 1:
        A('s_waitcnt lgkmcnt(0)')
        emit_stamps(A, 0)
        stamp(0)
    A(f's_cmp_lt_u32 {s(sW)}, 4\ns_cbranch_scc1 L_qstage')
    A('s_barrier\ns_barrier\ns_branch L_wo')
    A('L_gc_f:')
    tmo_check()
    A('s_branch L_gc')
    A('L_gd_f:')
    tmo_check()
    A('s_branch L_gd')
    A('L_out:')
    A(f's_mul_i32 s6, {s(sB)}, 576\ns_add_u32 s6, s6, {s(sE0)}\ns_lshl_b32 s6, s6, 1')
    A(f'v_lshrrev_b32 {v(U)}, 1, {v(vL4)}\nv_add_u32 {v(U)}, s6, {v(U)}\nv_cvt_pk_bf16_f32 {v(TT)}, {v(TT)}, {v(TT)}')
    A(f'global_store_short {v(U)}, {v(TT)}, {s(pOUT,2)}')
    A('L_fin:')
    if P['stamps']:
        A('s_mov_b64 exec, -1\ns_waitcnt vmcnt(0)')
        stamp(9, True)
        A('s_waitcnt lgkmcnt(0)')
        if P['stamps'] == 1:
            emit_stamps(A, 1)
        else:
            A(f's_load_dwordx2 s[6:7], s[0:1], 88\ns_not_b32 {s(sSTP)}, {s(sSTP)}\nv_mov_b32 {v(T)}, 0\ns_mov_b64 exec, 1\ns_waitcnt lgkmcnt(0)')
            A(f's_cmp_eq_u32 {s(sW)}, 4\ns_cbranch_scc1 L_stL\ns_cmp_lg_u32 {s(sW)}, 0\ns_cbranch_scc1 L_end')
            for i in range(10):
                A(f'v_mov_b32 {v(T+1)}, {s(sSTP+2*i)}\nglobal_atomic_umax {v(T)}, {v(T+1)}, s[6:7] offset:{4*i}')
            A('s_endpgm\nL_stL:')
            for i in range(1, 7):
                A(f'v_mov_b32 {v(T+1)}, {s(sSTP+2*i)}\nglobal_atomic_umax {v(T)}, {v(T+1)}, s[6:7] offset:{36+4*i}')
    A('L_end:\ns_endpgm')
    hdr = open('cdna_kernels/' + NAME + '.s.ref').read().split('; Override launch')[0].rstrip('\n').split('\n')
    return wrap(A.text(), hdr, 256, 512, LDS_BYTES, 256, NV)


def emit_stamps(A, layer):
    A(f's_lshl_b32 s6, s2, 3\ns_add_u32 s6, s6, {s(sW)}\ns_lshl_b32 s6, s6, 7\ns_add_u32 s6, s6, {STAMP + 64*layer}')
    A(f'v_mov_b32 {v(T+60)}, s6')
    for i in range(10):
        A(f'v_mov_b32 {v(T+61)}, {s(sSTP+2*i)}\nglobal_store_dword {v(T+60)}, {v(T+61)}, {s(pWS,2)} offset:{4*i}')


if __name__ == '__main__':
    out = sys.argv[1]
    kw = {}
    for x in sys.argv[2:]:
        k, val = x.split('='); kw[k] = val.replace('_', ' ') if k == 'wopol' else int(val, 0)
    open(out, 'w').write(gen(**kw))
```

```python
import sys, math, struct
from asmlib import *

def f2u(x):
    return struct.unpack('<I', struct.pack('<f', x))[0]

DEF = dict(stamps=0, throttle=8, fast=1, tmo=1 << 22, prefetch=1, cprio=3, npa=6, touch=1, xp=0, mnop=0, mprio=1, ms=0)

LQ   = 0x20000
QA   = 0x0
QAB  = 0x40000
ARR  = 0x80000
EPO  = 0x81000
AR0  = 0x100000
LA   = 0x45000
OB   = AR0
PC   = AR0 + 0x20000
LSE  = AR0 + 0x44000
XD   = AR0 + 2*LA
XDS  = 2560
PCS  = 1152
WS_BYTES = 0x200000
STAMP = 0x300000
assert XD + 16*XDS <= AR0 + 256*2560
KB, VB, SP = 0, 65536, 131072
SM = 155648
WQB = SM - 36864
X32, XH, XL, ONES, QB, PB, ML, RED, ST, ZERO, FLAGS = 0, 2304, 3456, 4608, 5120, 6144, 7168, 7232, 7488, 7552, 7680
TAGW = FLAGS + 240
DUMMY = ST + 48
OL = QB
F_A, F_WQ, F_Q, F_K, F_KR, F_P, F_V, F_WO, F_WL = range(9)
LDS_BYTES = 163840
sW = 3
rK, rV, rWQ, rWO, rWS = 8, 12, 16, 20, 24
pX, pW1, pB1, pW2, pB2 = 28, 30, 32, 34, 36
sSEL, sCNT, sTG12, sTAG = 38, 39, 40, 41
pWS = 42
sX, sB, sHL, sSP, sHKV, sC, sU, sE0, sNE, sLAY, sFAST, sTMO = range(44, 56)
sQAst, sQAld, sOBst, sLSEst, sOBld, sLSEld, sPCst, sPCld, sPCld2, sXDld = range(56, 66)
sXDst, sB2 = 66, 67
sMHI, sMT, sMU = 68, 70, 72
sSM, sXCC = 74, 75
sKD, sPOL, sQC = 76, 77, 78
sSTP = 82
vTID, vL4, vT4, vR3, vQF, vR5, vMLR, vFL, vEA, vSTW = range(10)
vXA = vPW = vR3
vPCS = vOBS = vR5
CB = 10
T = 82
aK, aV = 0, 64
aWO, aWQ, aWQH, aSP = 0, 64, 96, 100

K1 = -2.0 * math.sqrt(2.0/math.pi) * math.log2(math.e)
K2 = K1 * 0.044715


def lane_masks():
    mt = mu = 0
    for l in range(64):
        i = l & 31
        if ((l >> 2) & 1) != (l >> 5):
            continue
        r = 4*(i >> 3) + (i & 3)
        if r <= 4: mt |= 1 << l
        if 6 <= r <= 10: mu |= 1 << l
    return mt, mu


def gen(**kw):
    P = dict(DEF); P.update(kw)
    A = Asm()
    nop = lambda n: A(f's_nop {n-1}') if n > 0 else None
    def stamp(i, final=False):
        if P['stamps'] == 1 or (P['stamps'] == 2 and (i == 0 or final)):
            A(f's_memrealtime {s(sSTP+2*i,2)}')
        elif P['stamps'] == 2 and i != 9:
            l = A.label('st')
            A(f's_cmp_lg_u32 {s(sLAY)}, 0\ns_cbranch_scc1 {l}\ns_memrealtime {s(sSTP+2*i,2)}\n{l}:')
    def cstamp(i):
        if P['stamps']:
            l = A.label('cs')
            A(f's_cmp_gt_u32 {s(sW)}, 3\ns_cbranch_scc1 {l}'); stamp(i); A(f'{l}:')
    def tmo_check(cnt=None):
        if cnt is not None and P['stamps'] == 1:
            A(f's_add_u32 {s(sCNT)}, {s(sCNT)}, {1 << (8*cnt)}')
        A(f's_sub_u32 {s(sTMO)}, {s(sTMO)}, 1\ns_cbranch_scc1 L_end')
    FT = T + 40
    def signal(k):
        A(f'v_mov_b32 {v(FT+4)}, 1\nds_write_b32 {v(vFL)}, {v(FT+4)} offset:{16*k}')
    def flag_test(k):
        A(f'ds_read_b128 {v(FT,4)}, {v(FT+5)} offset:{16*k}\ns_waitcnt lgkmcnt(0)')
        A(f'v_and_b32 {v(FT)}, {v(FT)}, {v(FT+1)}\nv_and_b32 {v(FT+2)}, {v(FT+2)}, {v(FT+3)}\nv_and_b32 {v(FT)}, {v(FT)}, {v(FT+2)}')
        A(f'v_cmp_ne_u32 vcc, 0, {v(FT)}')
    def wait_flag(k, sleep=1):
        l = A.label('wf')
        A(f'v_mov_b32 {v(FT+5)}, {SM+FLAGS}\n{l}:')
        flag_test(k)
        A(f's_cbranch_vccnz {l}_d')
        tmo_check()
        if sleep: A(f's_sleep {sleep}')
        A(f's_branch {l}\n{l}_d:')
    def dpp(op, d, a_, b_, ctl, rm='0xf'):
        A(f'{op}_dpp {v(d)}, {v(a_)}, {v(b_)} {ctl} row_mask:{rm} bank_mask:0xf')
    def check_sentinel(regs, tmp, lfail):
        r = list(regs); cur = r.pop(0)
        while r:
            if len(r) >= 2:
                A(f'v_max3_u32 {v(tmp)}, {v(cur)}, {v(r[0])}, {v(r[1])}'); r = r[2:]
            else:
                A(f'v_max_u32 {v(tmp)}, {v(cur)}, {v(r[0])}'); r = r[1:]
            cur = tmp
        A(f'v_cmp_eq_u32 vcc, -1, {v(cur)}\ns_cbranch_vccnz {lfail}')
    def partial_stats(x, t, addr):
        A(f'v_add_f32 {v(t)}, {v(x)}, {v(x+1)}\nv_mul_f32 {v(t+1)}, {v(x)}, {v(x)}\nv_fmac_f32 {v(t+1)}, {v(x+1)}, {v(x+1)}')
        nop(2)
        A(f'v_permlane32_swap_b32 {v(t)}, {v(t+1)}\nv_add_f32 {v(t)}, {v(t)}, {v(t+1)}')
        for k in (8, 4, 2, 1):
            nop(2); dpp('v_add_f32', t, t, t, f'row_ror:{k}')
        nop(2); dpp('v_add_f32', t, t, t, 'row_bcast:15', '0xa')
        A(f'ds_write_b32 {v(addr)}, {v(t)}')
    EPS = hex(f2u(1e-5)); INV = hex(f2u(1.0/576))
    def stats_issue(t):
        A(f'v_mov_b32 {v(t+12)}, {s(sSM)}')
        for k in range(3): A(f'ds_read_b128 {v(t+4*k,4)}, {v(t+12)} offset:{ST+16*k}')
    def stats_calc(t, twice=False):
        A(f'v_pk_add_f32 {v(t,2)}, {v(t,2)}, {v(t+2,2)}\nv_pk_add_f32 {v(t+4,2)}, {v(t+4,2)}, {v(t+6,2)}')
        A(f'v_pk_add_f32 {v(t,2)}, {v(t,2)}, {v(t+8,2)}\nv_pk_add_f32 {v(t,2)}, {v(t,2)}, {v(t+4,2)}')
        A(f'v_mul_f32 {v(t)}, {INV}, {v(t)}\nv_mul_f32 {v(t+1)}, {INV}, {v(t+1)}')
        A(f'v_fma_f32 {v(t+1)}, -{v(t)}, {v(t)}, {v(t+1)}\nv_max_f32 {v(t+1)}, 0, {v(t+1)}')
        if twice:
            A(f'v_mul_f32 {v(t+1)}, {hex(f2u(1+1e-5))}, {v(t+1)}\nv_add_f32 {v(t+2)}, {hex(f2u(1e-10))}, {v(t+1)}\nv_rsq_f32 {v(t+2)}, {v(t+2)}')
        else:
            A(f'v_add_f32 {v(t+2)}, {EPS}, {v(t+1)}\nv_rsq_f32 {v(t+2)}, {v(t+2)}')
    def tr_addr(dst, tile_sreg, gshift, gbit, base, t):
        A(f'v_bfe_u32 {v(t)}, {v(vL4)}, 4, 2\nv_bfe_u32 {v(t+1)}, {v(vL4)}, 2, 2\nv_lshrrev_b32 {v(t+2)}, 6, {v(vL4)}')
        A(f'v_bfe_u32 {v(t+3)}, {v(t+2)}, {gbit}, 1\nv_lshl_or_b32 {v(t+3)}, {v(t+3)}, 2, {v(t)}')
        A(f'v_xor_b32 {v(t+3)}, {s(tile_sreg)}, {v(t+3)}\nv_lshlrev_b32 {v(t+3)}, 5, {v(t+3)}\nv_lshl_add_u32 {v(t+3)}, {v(t+1)}, 3, {v(t+3)}')
        A(f'v_lshl_add_u32 {v(t+2)}, {v(t+2)}, {gshift}, {v(t)}\nv_lshl_add_u32 {v(dst)}, {v(t+2)}, 8, {v(t+3)}')
        A(f'v_add_u32 {v(dst)}, {base}, {v(dst)}')
    RAW = T + 20
    def raw_loads():
        r = []
        r.append(f'v_add_u32 {v(T+36)}, 4096, {v(vT4)}\nv_lshlrev_b32 {v(T+37)}, 1, {v(vTID)}\nv_add_u32 {v(T+37)}, 8192, {v(T+37)}')
        A(r[0])
        for k, p in enumerate((pW1, pB1, pW2)):
            for i in range(4):
                A(f'global_load_dword {v(RAW+5*k+i)}, {v(vT4 if i < 2 else T+36)}, {s(p,2)} offset:{2048*(i & 1)}')
            A(f'global_load_ushort {v(RAW+5*k+4)}, {v(T+37)}, {s(p,2)}')
    def coef_build():
        L = []
        w, b, w2, t0, t1, t2, t3, t4 = (T + i for i in range(8))
        for f in range(9):
            c = CB + 8*f
            srcs = [RAW + 5*k + (f >> 1) for k in range(3)]
            for d, sr in zip((w, b, w2), srcs):
                L.append(f'v_and_b32 {v(d)}, 0xffff0000, {v(sr)}' if f & 1 else f'v_lshlrev_b32 {v(d)}, 16, {v(sr)}')
            def split(x, dst):
                L.append(f'v_and_b32 {v(t4)}, 0xffff0000, {v(x)}')
                L.append(f'v_sub_f32 {v(dst)}, {v(x)}, {v(t4)}')
                L.append(f'v_cvt_pk_bf16_f32 {v(dst)}, {v(t4)}, {v(dst)}')
            L.append(f'v_mul_f32 {v(t0)}, {v(w)}, {v(w)}')
            L.append(f'v_mul_f32 {v(t0)}, {hex(f2u(K2))}, {v(t0)}')
            L.append(f'v_mul_f32 {v(t1)}, {v(t0)}, {v(w)}')
            L.append(f'v_mul_f32 {v(t2)}, {v(t0)}, {v(b)}')
            L.append(f'v_mul_f32 {v(t2)}, 0x40400000, {v(t2)}')
            split(t1, c); split(t2, c+1)
            L.append(f'v_perm_b32 {v(c+2)}, {v(t2)}, {v(t1)}, {s(sSEL)}')
            L.append(f'v_mul_f32 {v(t0)}, {v(b)}, {v(b)}')
            L.append(f'v_mul_f32 {v(t0)}, {hex(f2u(K2))}, {v(t0)}')
            L.append(f'v_add_f32 {v(t1)}, {hex(f2u(K1))}, {v(t0)}')
            L.append(f'v_mul_f32 {v(t2)}, {v(t1)}, {v(b)}')
            L.append(f'v_fmac_f32 {v(t1)}, 2.0, {v(t0)}')
            L.append(f'v_mul_f32 {v(t1)}, {v(t1)}, {v(w)}')
            split(t1, c+3); split(t2, c+4)
            L.append(f'v_mul_f32 {v(t1)}, {v(w)}, {v(w2)}')
            L.append(f'v_mul_f32 {v(t2)}, {v(b)}, {v(w2)}')
            split(t1, c+5); split(t2, c+6)
            L.append(f'v_mov_b32 {v(c+7)}, 0')
        return L

    A('s_cmp_ge_u32 s2, 256\ns_cbranch_scc1 L_end')
    stamp(0)
    A('s_load_dwordx16 s[56:71], s[0:1], 0\ns_load_dwordx4 s[72:75], s[0:1], 64\ns_load_dwordx2 s[42:43], s[0:1], 96')
    vl, vj, vg = T+1, T+2, T+3
    A(f'v_lshrrev_b32 {v(T)}, 6, v0\nv_and_b32 {v(vl)}, 63, v0')
    A(f'v_readfirstlane_b32 {s(sW)}, {v(T)}')
    A(f'v_lshlrev_b32 {v(vL4)}, 2, {v(vl)}\nv_lshlrev_b32 {v(vT4)}, 2, v0')
    A(f'v_and_b32 {v(vj)}, 15, {v(vl)}\nv_lshrrev_b32 {v(vg)}, 4, {v(vl)}')
    A(f's_and_b32 {s(sX)}, s2, 7\ns_lshr_b32 s4, s2, 3')
    A(f's_lshr_b32 {s(sB)}, s4, 4\ns_bfe_u32 {s(sHL)}, s4, 0x10003\ns_and_b32 {s(sSP)}, s4, 7\ns_and_b32 {s(sC)}, s4, 15')
    A(f's_lshl_b32 {s(sHKV)}, {s(sX)}, 1\ns_add_u32 {s(sHKV)}, {s(sHKV)}, {s(sHL)}')
    A(f's_cmp_lg_u32 {s(sW)}, 0\ns_cbranch_scc1 L_noinit')
    A(f'v_mov_b32 {v(T+4)}, 0\nv_add_u32 {v(T+5)}, {SM}, {v(vL4)}\nds_write_b32 {v(T+5)}, {v(T+4)} offset:{FLAGS}\nds_write_b32 {v(T+5)}, {v(T+4)} offset:{FLAGS-256}')
    A(f'v_mov_b32 {v(T+4)}, 0x3f803f80\nds_write_b32 {v(T+5)}, {v(T+4)} offset:{ONES}\nds_write_b32 {v(T+5)}, {v(T+4)} offset:{ONES+256}')
    A('L_noinit:')
    A(f's_bfe_u32 s6, {s(sW)}, 0x10001\ns_lshl_b32 s6, s6, 2\nv_or_b32 {v(T+4)}, s6, {v(vg)}\nv_lshlrev_b32 {v(T+4)}, 1, {v(T+4)}')
    A(f'v_xor_b32 {v(T+4)}, {v(T+4)}, {v(vj)}\nv_lshlrev_b32 {v(T+4)}, 4, {v(T+4)}')
    vWQo, vKo, vVo = T+8, T+9, T+10
    A(f'v_lshl_add_u32 {v(vWQo)}, {v(vg)}, 13, {v(T+4)}\nv_lshl_add_u32 {v(vVo)}, {v(vg)}, 8, {v(T+4)}')
    A(f's_and_b32 s7, {s(sW)}, 3\ns_lshl_b32 s6, s7, 2\nv_add_u32 {v(vKo)}, s6, {v(vg)}\nv_xor_b32 {v(vKo)}, {v(vKo)}, {v(vj)}\nv_lshlrev_b32 {v(vKo)}, 4, {v(vKo)}')
    A(f'v_lshl_add_u32 {v(vKo)}, {v(vg)}, 8, {v(vKo)}')
    A(f's_add_u32 s6, s6, {SM+FLAGS}\nv_mov_b32 {v(vFL)}, s6')
    A(f's_lshr_b32 s4, {s(sSP)}, 1')
    A(f's_mul_i32 s6, s4, {144*8192}\ns_lshl_b32 s5, {s(sHKV)}, 9\ns_add_u32 s6, s6, s5\ns_and_b32 s5, {s(sSP)}, 1\ns_lshl_b32 s5, s5, 8\ns_add_u32 s6, s6, s5')
    A(f's_sub_u32 {s(rWQ+2)}, 4718592, s6\ns_mov_b32 {s(rWQ+3)}, 0x20000')
    A(f's_lshl_b32 s5, {s(sB)}, 4\ns_add_u32 s5, s5, {s(sHKV)}')
    A(f's_lshl_b32 {s(rK+2)}, s5, 21\ns_lshl_b32 {s(rK+3)}, {s(sSP)}, 16\ns_add_u32 {s(rK+2)}, {s(rK+2)}, {s(rK+3)}\ns_add_u32 {s(rV+2)}, {s(rK+2)}, 0x180000')
    A(f's_mov_b32 {s(rK+3)}, 0x20000\ns_mov_b32 {s(rV+3)}, 0x20000\ns_mov_b32 {s(rK+2)}, 0x10000')
    A('s_waitcnt lgkmcnt(0)\ns_barrier')
    A(f's_add_u32 {s(rWQ)}, s62, s6\ns_addc_u32 {s(rWQ+1)}, s63, 0')
    A(f's_add_u32 {s(rK)}, s58, {s(rV+2)}\ns_addc_u32 {s(rK+1)}, s59, 0')
    A(f's_add_u32 {s(rV)}, s60, {s(rV+2)}\ns_addc_u32 {s(rV+1)}, s61, 0\ns_mov_b32 {s(rV+2)}, 0x10000')
    A(f's_cmp_lt_u32 {s(sW)}, 4\ns_cbranch_scc1 L_nowq')
    A(f's_lshl_b32 s6, s7, 10\ns_add_u32 s6, s6, {WQB}\ns_lshl_b32 {s(sKD)}, s7, 15')
    for i in range(9):
        A(f's_mov_b32 m0, s6\ns_add_u32 s6, s6, 4096')
        A(f'buffer_load_dwordx4 {v(vWQo)}, {s(rWQ,4)}, {s(sKD)} offen nt lds\ns_add_u32 {s(sKD)}, {s(sKD)}, {4*32768}')
    A('L_nowq:')
    A(f's_mov_b64 {s(pX,2)}, s[56:57]\ns_mov_b64 {s(pW1,2)}, s[68:69]\ns_mov_b64 {s(pB1,2)}, s[70:71]')
    A(f's_mov_b64 {s(pW2,2)}, s[72:73]\ns_mov_b64 {s(pB2,2)}, s[74:75]')
    A(f's_mul_i32 s6, {s(sX)}, {512*1152}\ns_mul_i32 {s(sKD)}, {s(sC)}, 72\ns_and_b32 {s(sKD)}, {s(sKD)}, 0xfffffff0\ns_add_u32 s6, s6, {s(sKD)}')
    A(f's_add_u32 {s(rWO)}, s64, s6\ns_addc_u32 {s(rWO+1)}, s65, 0\ns_sub_u32 {s(rWO+2)}, 4718592, s6\ns_mov_b32 {s(rWO+3)}, 0x20000')
    A(f's_mov_b32 {s(rWS)}, s42\ns_mov_b32 {s(rWS+1)}, s43\ns_mov_b32 {s(rWS+2)}, {WS_BYTES}\ns_mov_b32 {s(rWS+3)}, 0x20000')
    A(f's_load_dword {s(sB2)}, {s(pB2,2)}, 0')
    A(f's_getreg_b32 {s(sXCC)}, hwreg(HW_REG_XCC_ID, 0, 4)')
    A(f's_lshl_b32 {s(sU)}, {s(sX)}, 4\ns_add_u32 {s(sU)}, {s(sU)}, {s(sC)}')
    A(f's_mul_i32 s6, {s(sU)}, 5\ns_lshl_b32 {s(sKD)}, {s(sU)}, 2\ns_add_u32 {s(sKD)}, {s(sKD)}, 64')
    A(f's_cmp_lt_u32 {s(sU)}, 64\ns_cselect_b32 {s(sE0)}, s6, {s(sKD)}\ns_cselect_b32 {s(sNE)}, 5, 4')
    A(f's_mov_b32 {s(sLAY)}, 0\ns_mov_b32 {s(sFAST)}, 0\ns_mov_b32 {s(sTMO)}, {P["tmo"]}\ns_mov_b32 {s(sCNT)}, 0\ns_mov_b32 {s(sSM)}, {SM}')
    A(f's_lshl_b32 {s(sQAld)}, s5, 12')
    A(f's_lshl_b32 s6, s4, 10\ns_add_u32 {s(sQAst)}, {s(sQAld)}, s6\ns_and_b32 s6, {s(sSP)}, 1\ns_lshl_b32 s6, s6, 9\ns_add_u32 {s(sQAst)}, {s(sQAst)}, s6')
    A(f's_lshl_b32 s6, s7, 7\ns_add_u32 {s(sQAst)}, {s(sQAst)}, s6')
    A(f's_lshl_b32 s5, {s(sB)}, 3\ns_add_u32 s5, s5, {s(sX)}')
    A(f's_lshl_b32 s6, s5, 13\ns_add_u32 s6, s6, {OB}\ns_lshl_b32 {s(sOBld)}, s7, 11\ns_add_u32 {s(sOBld)}, {s(sOBld)}, s6')
    A(f's_lshl_b32 {s(sOBst)}, {s(sC)}, 8\ns_add_u32 s6, s6, {s(sOBst)}\ns_lshl_b32 {s(sOBst)}, {s(sHL)}, 11\ns_add_u32 s6, s6, {s(sOBst)}')
    A(f's_lshl_b32 {s(sOBst)}, s7, 6\ns_add_u32 {s(sOBst)}, {s(sOBst)}, s6')
    A(f's_lshl_b32 s6, s5, 7\ns_add_u32 s6, s6, {LSE}\ns_lshl_b32 {s(sLSEld)}, s7, 5\ns_add_u32 {s(sLSEld)}, {s(sLSEld)}, s6')
    A(f's_lshl_b32 {s(sLSEst)}, {s(sHL)}, 6\ns_add_u32 s6, s6, {s(sLSEst)}\ns_lshl_b32 {s(sLSEst)}, {s(sSP)}, 2\ns_add_u32 {s(sLSEst)}, {s(sLSEst)}, s6')
    A(f's_mul_i32 {s(sPCld)}, s5, {8*PCS}\ns_add_u32 {s(sPCld)}, {s(sPCld)}, {PC}\ns_add_u32 {s(sPCld2)}, {s(sPCld)}, {4*PCS}')
    A(f's_mul_i32 s6, {s(sB)}, {64*PCS}\ns_mul_i32 {s(sPCst)}, {s(sX)}, {PCS}\ns_add_u32 s6, s6, {s(sPCst)}\ns_mul_i32 {s(sPCst)}, {s(sC)}, 72\ns_add_u32 s6, s6, {s(sPCst)}')
    A(f's_lshl_b32 {s(sPCst)}, s7, 5\ns_add_u32 {s(sPCst)}, {s(sPCst)}, s6\ns_add_u32 {s(sPCst)}, {s(sPCst)}, {PC}')
    A(f's_mul_i32 {s(sXDld)}, s5, {XDS}\ns_add_u32 {s(sXDld)}, {s(sXDld)}, {XD}')
    A(f's_mul_i32 s6, {s(sB)}, {8*XDS}\ns_lshl_b32 {s(sXDst)}, {s(sE0)}, 2\ns_add_u32 {s(sXDst)}, {s(sXDst)}, s6\ns_add_u32 {s(sXDst)}, {s(sXDst)}, {XD}')
    mt, mu = lane_masks()
    A(f's_mov_b32 {s(sMHI)}, 0\ns_mov_b32 {s(sMHI+1)}, -1\ns_mov_b32 {s(sSEL)}, 0x07060302')
    A(f's_mov_b32 {s(sMT)}, {hex(mt & 0xffffffff)}\ns_mov_b32 {s(sMT+1)}, {hex(mt >> 32)}\ns_mov_b32 {s(sMU)}, {hex(mu & 0xffffffff)}\ns_mov_b32 {s(sMU+1)}, {hex(mu >> 32)}')
    A(f'v_bfe_u32 {v(T+4)}, {v(vl)}, 3, 2\nv_and_b32 {v(T+5)}, 3, {v(vl)}\nv_lshl_add_u32 {v(T+4)}, {v(T+4)}, 2, {v(T+5)}')
    A(f'v_subrev_u32 {v(T+5)}, 6, {v(T+4)}\nv_min_u32 {v(T+4)}, {v(T+4)}, {v(T+5)}\nv_min_u32 {v(T+4)}, 4, {v(T+4)}')
    A(f's_lshl_b32 s6, {s(sE0)}, 2\ns_add_u32 s6, s6, {SM+X32}\nv_lshl_add_u32 {v(vEA)}, {v(T+4)}, 2, s6')
    A(f's_lshl_b32 s6, {s(sW)}, 3\ns_add_u32 s6, s6, {SM+ST}\nv_lshrrev_b32 {v(T+4)}, 1, {v(vg)}\nv_lshl_add_u32 {v(T+4)}, {v(T+4)}, 2, s6')
    A(f'v_mov_b32 {v(T+5)}, {SM+DUMMY}\nv_and_b32 {v(T+6)}, 1, {v(vg)}\nv_cmp_eq_u32 vcc, 1, {v(T+6)}')
    A(f'v_lshrrev_b32 {v(T+7)}, 1, {v(vg)}\nv_lshl_add_u32 {v(T+7)}, {v(T+7)}, 4, {v(vj)}\nv_lshlrev_b32 {v(T+7)}, 1, {v(T+7)}')
    A(f'v_cndmask_b32 {v(vSTW)}, {v(T+5)}, {v(T+4)}, vcc')
    A(f'v_lshlrev_b32 {v(vMLR)}, 5, {v(T+6)}\nv_add_u32 {v(vMLR)}, {SM+ML}, {v(vMLR)}')
    A(f's_cmp_ge_u32 {s(sW)}, 4\ns_cbranch_scc1 L_loader')

    if P['cprio']: A(f's_setprio {P["cprio"]}')
    A(f's_mul_i32 s6, {s(sB)}, 1152\nv_add_u32 {v(T+16)}, s6, {v(vT4)}')
    A(f'v_and_b32 {v(T+18)}, 31, {v(vl)}\nv_lshl_add_u32 {v(T+17)}, {v(T+18)}, 2, s6\nv_mov_b32 {v(T+19)}, {EPO}')
    A(f'global_load_dword {v(T+12)}, {v(T+16)}, {s(pX,2)}\nglobal_load_dword {v(T+13)}, {v(T+17)}, {s(pX,2)} offset:1024')
    A(f'buffer_load_dword {v(T+14)}, {v(T+19)}, {s(rWS,4)}, 0 offen sc1')
    raw_loads()
    A(f'v_bfe_u32 {v(T+4)}, {v(vj)}, 2, 1\nv_lshlrev_b32 {v(T+4)}, 9, {v(T+4)}')
    A(f'v_lshl_add_u32 {v(vQF)}, {v(vg)}, 4, {v(T+4)}\nv_add_u32 {v(vQF)}, {SM}, {v(vQF)}')
    A(f's_lshl_b32 s6, {s(sW)}, 7\ns_add_u32 s6, s6, {SM+PB}')
    A(f'v_lshl_add_u32 {v(vPW)}, {v(T+6)}, 9, {v(T+7)}\nv_add_u32 {v(vPW)}, s6, {v(vPW)}')
    A(f'v_lshl_add_u32 {v(vOBS)}, {v(T+6)}, 11, {v(T+7)}')
    A(f's_cmp_eq_u32 {s(sW)}, 3\ns_cbranch_scc1 L_clr')
    if P['prefetch']:
        A(f's_getpc_b64 s[4:5]\nL_pc:\ns_lshr_b32 s7, s2, 3\ns_mul_i32 s7, s7, 3\ns_add_u32 s7, s7, {s(sW)}\ns_lshl_b32 s7, s7, 8')
        A(f's_mov_b64 exec, 0xf\nv_lshl_add_u32 {v(T+19)}, {v(vl)}, 6, s7\nv_min_u32 {v(T+19)}, L_end-L_pc, {v(T+19)}')
        A(f'global_load_dword {v(T+39)}, {v(T+19)}, s[4:5]\ns_mov_b64 exec, -1\ns_waitcnt vmcnt(16)')
    else:
        A('s_waitcnt vmcnt(15)')
    A('s_branch L_cdone')
    A('L_clr:')
    for i in range(4): A(f'v_mov_b32 {v(T+8+i)}, -1')
    A(f's_mul_i32 s6, s2, 2560\ns_add_u32 s6, s6, {AR0}\nv_lshlrev_b32 {v(T+19)}, 2, {v(vL4)}')
    A(f'buffer_store_dwordx4 {v(T+8,4)}, {v(T+19)}, {s(rWS,4)}, s6 offen sc1\nbuffer_store_dwordx4 {v(T+8,4)}, {v(T+19)}, {s(rWS,4)}, s6 offen offset:1024 sc1')
    A(f's_mov_b32 exec_hi, 0\nbuffer_store_dwordx4 {v(T+8,4)}, {v(T+19)}, {s(rWS,4)}, s6 offen offset:2048 sc1\ns_mov_b32 exec_hi, -1')
    A('s_waitcnt vmcnt(18)')
    A('L_cdone:')
    A(f'v_readfirstlane_b32 {s(sTAG)}, {v(T+14)}')
    xa = T + 4
    def x_pair(src, areg):
        A(f'v_lshlrev_b32 {v(xa)}, 16, {v(src)}\nv_and_b32 {v(xa+1)}, 0xffff0000, {v(src)}\nv_mov_b32 {v(xa+2)}, 0')
        A(f'v_lshl_add_u32 {v(xa+3)}, {v(areg)}, 1, {s(sSM)}\nv_add_u32 {v(xa+4)}, {s(sSM)}, {v(areg)}')
        A(f'ds_write_b64 {v(xa+3)}, {v(xa,2)} offset:{X32}\nds_write_b32 {v(xa+4)}, {v(src)} offset:{XH}\nds_write_b32 {v(xa+4)}, {v(xa+2)} offset:{XL}')
    x_pair(T+12, vT4)
    partial_stats(xa, xa+6, vSTW)
    A(f's_mul_i32 {s(sTAG)}, {s(sTAG)}, 0x9e3779b1\ns_add_u32 {s(sTAG)}, {s(sTAG)}, 0x7f4a7c15\ns_and_b32 {s(sTAG)}, {s(sTAG)}, 0x1fffffff\ns_and_b32 {s(sTG12)}, {s(sTAG)}, 0xfff')
    A(f's_cmp_lg_u32 {s(sW)}, 0\ns_cbranch_scc1 L_noextra')
    A(f'v_lshlrev_b32 {v(T+18)}, 2, {v(T+18)}\nv_add_u32 {v(T+18)}, 1024, {v(T+18)}')
    x_pair(T+13, T+18)
    A(f'v_cndmask_b32 {v(xa)}, {v(xa)}, {v(xa+2)}, {s(sMHI,2)}\nv_cndmask_b32 {v(xa+1)}, {v(xa+1)}, {v(xa+2)}, {s(sMHI,2)}')
    A(f'v_add_u32 {v(T+18)}, 32, {v(vSTW)}\nv_min_u32 {v(T+18)}, {SM+DUMMY}, {v(T+18)}')
    partial_stats(xa, xa+6, T+18)
    A(f'v_mov_b32 {v(xa)}, {s(sTG12)}\nv_mov_b32 {v(xa+1)}, {SM+TAGW}\nds_write_b32 {v(xa+1)}, {v(xa)}')
    A('L_noextra:')
    A('s_waitcnt lgkmcnt(0)')
    signal(F_A)
    A('s_waitcnt vmcnt(0)')
    A(f's_cmp_lg_u32 {s(sW)}, 3\ns_cbranch_scc1 L_noarr')
    wait_flag(F_A, sleep=0)
    A(f's_lshl_b32 s6, {s(sXCC)}, 29\ns_or_b32 s6, s6, {s(sTAG)}\nv_mov_b32 {v(T+8)}, s6')
    A(f's_lshl_b32 s6, {s(sX)}, 7\ns_lshr_b32 s7, s2, 3\ns_lshl_b32 s7, s7, 2\ns_add_u32 s6, s6, s7\ns_add_u32 s6, s6, {ARR}\nv_mov_b32 {v(T+9)}, s6')
    A(f's_mov_b64 exec, 1\nbuffer_store_dword {v(T+8)}, {v(T+9)}, {s(rWS,4)}, 0 offen sc1\ns_mov_b64 exec, -1')
    A('L_noarr:')
    for ins in coef_build(): A(ins)
    stamp(1)

    A('L_attn:')
    A(f's_mov_b32 {s(sQC)}, {s(sQAld)}\ns_mov_b32 {s(sKD)}, {s(sLAY)}\ns_mov_b32 {s(sPOL)}, {P["npa"]}')
    A(f's_cmp_eq_u32 {s(sLAY)}, 0\ns_cbranch_scc1 L_ga0\ns_mov_b32 {s(sPOL)}, -1')
    A(f's_cmp_lg_u32 {s(sFAST)}, 0\ns_cbranch_scc1 L_ga0\ns_add_u32 {s(sQC)}, {s(sQC)}, {QAB}')
    A('L_ga0:')
    pa = T + 36
    A(f'v_bfe_u32 {v(T+6)}, {v(vL4)}, 2, 2\nv_lshrrev_b32 {v(T+7)}, 6, {v(vL4)}\nv_lshlrev_b32 {v(T+7)}, 4, {v(T+7)}\nv_add_u32 {v(T+7)}, {SM+ZERO}, {v(T+7)}')
    for k in range(4):
        A(f'v_cmp_eq_u32 vcc, {k}, {v(T+6)}\nv_add_u32 {v(T+5)}, {PB+128*k}, {v(vQF)}')
        nop(1)
        A(f'v_cndmask_b32 {v(pa+k)}, {v(T+7)}, {v(T+5)}, vcc')
    A(f'v_lshrrev_b32 {v(T+6)}, 7, v0\nv_lshlrev_b32 {v(T+6)}, 8, {v(T+6)}\nv_lshl_add_u32 {v(T+6)}, v0, 1, {v(T+6)}\nv_add_u32 {v(T+6)}, {SM+QB}, {v(T+6)}')
    A('L_ga:')
    for kq in range(4):
        A(f'buffer_load_dword {v(T+kq)}, {v(vT4)}, {s(rWS,4)}, {s(sQC)} offen offset:{1024*kq} sc1')
    A('s_waitcnt vmcnt(0)')
    for k in range(4): A(f'v_xor_b32 {v(T+k)}, {s(sTG12)}, {v(T+k)}')
    A(f'v_or3_b32 {v(T+4)}, {v(T)}, {v(T+1)}, {v(T+2)}\nv_or_b32 {v(T+4)}, {v(T+4)}, {v(T+3)}\nv_and_b32 {v(T+4)}, 0xfff, {v(T+4)}')
    A(f'v_add_f32 {v(T)}, {v(T)}, {v(T+1)}\nv_add_f32 {v(T+2)}, {v(T+2)}, {v(T+3)}')
    A(f'v_cmp_ne_u32 vcc, 0, {v(T+4)}\nv_add_f32 {v(T)}, {v(T)}, {v(T+2)}\ns_cbranch_vccnz L_ga_f')
    A(f'v_cvt_pk_bf16_f32 {v(T)}, {v(T)}, {v(T)}\nds_write_b16 {v(T+6)}, {v(T)}\ns_waitcnt lgkmcnt(0)')
    stamp(3)
    A(f's_cmp_lg_u32 {s(sLAY)}, 0\ns_cbranch_scc1 L_qbar')
    signal(F_Q)
    A(f's_cmp_lg_u32 {s(sKD)}, 0\ns_cbranch_scc1 L_kdone')
    wait_flag(F_K)
    A(f's_mov_b32 {s(sKD)}, 2')
    A('L_kread:')
    kt = T + 8
    A(f'v_bfe_u32 {v(kt)}, {v(vL4)}, 2, 4\nv_lshrrev_b32 {v(kt+1)}, 6, {v(vL4)}\ns_lshl_b32 s6, {s(sW)}, 14')
    A(f'v_lshl_add_u32 {v(kt+2)}, {v(kt)}, 8, s6')
    for ks in range(4):
        A(f'v_add_u32 {v(kt+3)}, {4*ks}, {v(kt+1)}\nv_xor_b32 {v(kt+3)}, {v(kt+3)}, {v(kt)}\nv_lshl_add_u32 {v(kt+4+ks)}, {v(kt+3)}, 4, {v(kt+2)}')
        for tt in range(4):
            A(f'ds_read_b128 {a(aK+16*tt+4*ks,4)}, {v(kt+4+ks)} offset:{KB+4096*tt}')
    A('s_waitcnt lgkmcnt(0)')
    signal(F_KR)
    A(f's_cmp_eq_u32 {s(sKD)}, 1\ns_cbranch_scc1 L_ga')
    A('L_kdone:')
    wait_flag(F_Q, sleep=0)
    A('s_branch L_qk')
    A('L_ga_f:')
    tmo_check(0)
    A(f's_sub_u32 {s(sPOL)}, {s(sPOL)}, 1\ns_cmp_lg_u32 {s(sPOL)}, 0\ns_cbranch_scc1 L_ga_f2\ns_add_u32 {s(sQC)}, {s(sQC)}, {QAB}')
    A(f'L_ga_f2:\ns_cmp_lg_u32 {s(sKD)}, 0\ns_cbranch_scc1 L_ga')
    A(f'v_mov_b32 {v(FT+5)}, {SM+FLAGS}')
    flag_test(F_K)
    A(f's_cbranch_vccz L_ga\ns_mov_b32 {s(sKD)}, 1\ns_branch L_kread')
    A('L_qbar:\ns_barrier')
    A('L_qk:')
    qf, DS = T, T+16
    for ks in range(4):
        A(f'ds_read_b128 {v(qf+4*ks,4)}, {v(vQF)} offset:{QB+64*ks}')
    for ks in range(4):
        A(f's_waitcnt lgkmcnt({3-ks})')
        for tt in range(4):
            A(f'v_mfma_f32_16x16x32_bf16 {v(DS+4*tt,4)}, {v(qf+4*ks,4)}, {a(aK+16*tt+4*ks,4)}, {v(DS+4*tt,4) if ks else 0}')
    sa, sb, mx, t0 = T+32, T+33, T+34, T+35
    A(f's_lshl_b32 s6, {s(sW)}, 3\nv_add_u32 {v(T)}, s6, {v(vMLR)}')
    nop(4)
    A(f'v_cndmask_b32 {v(sa)}, {v(DS)}, {v(DS+4)}, {s(sMHI,2)}')
    nop(2)
    A(f'v_cndmask_b32 {v(sb)}, {v(DS+8)}, {v(DS+12)}, {s(sMHI,2)}')
    A(f'v_max_f32 {v(mx)}, {v(sa)}, {v(sb)}')
    for k in (8, 4, 2, 1):
        nop(2); dpp('v_max_f32', mx, mx, mx, f'row_ror:{k}')
    A(f'v_mov_b32 {v(t0)}, {v(mx)}')
    nop(2)
    A(f'v_permlane32_swap_b32 {v(mx)}, {v(t0)}\nv_max_f32 {v(mx)}, {v(mx)}, {v(t0)}')
    A(f'v_sub_f32 {v(sa)}, {v(sa)}, {v(mx)}\nv_sub_f32 {v(sb)}, {v(sb)}, {v(mx)}\nv_exp_f32 {v(sa)}, {v(sa)}\nv_exp_f32 {v(sb)}, {v(sb)}')
    nop(1)
    A(f'v_cvt_pk_bf16_f32 {v(sa)}, {v(sa)}, {v(sb)}')
    A(f'v_lshlrev_b32 {v(sb)}, 16, {v(sa)}\nv_and_b32 {v(t0)}, 0xffff0000, {v(sa)}\nv_add_f32 {v(t0)}, {v(t0)}, {v(sb)}')
    A(f'ds_write_b16 {v(vPW)}, {v(sa)}\nds_write_b16_d16_hi {v(vPW)}, {v(sa)} offset:64')
    for k in (8, 4, 2, 1):
        dpp('v_add_f32', t0, t0, t0, f'row_ror:{k}')
        if k > 1: nop(2)
    A(f'v_mov_b32 {v(sb)}, {v(t0)}')
    nop(2)
    A(f'v_permlane32_swap_b32 {v(t0)}, {v(sb)}\nv_add_f32 {v(t0)}, {v(t0)}, {v(sb)}')
    A(f'ds_write_b64 {v(T)}, {v(mx,2)}\ns_waitcnt lgkmcnt(0)')
    stamp(4)
    A(f's_cmp_lg_u32 {s(sLAY)}, 0\ns_cbranch_scc1 L_pbar')
    signal(F_P)
    gc = T + 8
    A(f'v_lshlrev_b32 {v(gc+4)}, 2, {v(vL4)}\nv_add_u32 {v(gc+4)}, {ARR}, {v(gc+4)}')
    A(f'L_gchk:\nbuffer_load_dwordx4 {v(gc,4)}, {v(gc+4)}, {s(rWS,4)}, 0 offen sc1')
    for tt in range(2):
        A(f's_lshl_b32 s6, {s(sW)}, 1\ns_add_u32 s6, s6, {tt}')
        tr_addr(T+4+tt, 6, 3, 0, VB, T)
    wait_flag(F_V)
    for ks in range(8):
        for tt in range(2):
            for hh in range(2):
                A(f'ds_read_b64_tr_b16 {a(aV+32*tt+4*ks+2*hh,2)}, {v(T+4+tt)} offset:{ks*8192+hh*1024}')
    A('s_waitcnt vmcnt(0)')
    for k in range(4): A(f'v_xor_b32 {v(gc+k)}, {s(sTAG)}, {v(gc+k)}')
    A(f'v_or3_b32 {v(gc+5)}, {v(gc)}, {v(gc+1)}, {v(gc+2)}\nv_or_b32 {v(gc+5)}, {v(gc+5)}, {v(gc+3)}\nv_and_b32 {v(gc+6)}, 0x1fffffff, {v(gc+5)}')
    A(f'v_cmp_ne_u32 vcc, 0, {v(gc+6)}\ns_cbranch_vccnz L_gchk_f')
    if P['fast']:
        A(f's_lshl_b32 s6, {s(sXCC)}, 29')
        for k in range(4): A(f'v_xor_b32 {v(gc+k)}, s6, {v(gc+k)}')
        A(f'v_or3_b32 {v(gc+5)}, {v(gc)}, {v(gc+1)}, {v(gc+2)}\nv_or_b32 {v(gc+5)}, {v(gc+5)}, {v(gc+3)}')
        A(f'v_cmp_ne_u32 vcc, 0, {v(gc+5)}\ns_lshl_b32 s6, {s(sX)}, 3\ns_lshr_b64 vcc, vcc, s6')
        A(f's_and_b32 s6, vcc_lo, 0xff\ns_cselect_b32 {s(sFAST)}, 0, 1')
        A(f'v_mov_b32 {v(gc)}, {s(sFAST)}\nv_mov_b32 {v(gc+1)}, {SM+TAGW+4}\nds_write_b32 {v(gc+1)}, {v(gc)}')
    wait_flag(F_P, sleep=0)
    A('s_branch L_pv')
    A('L_gchk_f:')
    tmo_check()
    A('s_branch L_gchk')
    A('L_pbar:\ns_barrier')
    A('L_pv:')
    pf, DO, ml = T, T+20, T+28
    NB = 5
    A(f'ds_read_b128 {v(ml,4)}, {v(vMLR)}\nds_read_b128 {v(ml+4,4)}, {v(vMLR)} offset:16')
    for ks in range(NB):
        A(f'ds_read_b128 {v(pf+4*ks,4)}, {v(pa+(ks >> 1))} offset:{64*(ks & 1)}')
    for ks in range(8):
        r = pf + 4*(ks % NB)
        A(f's_waitcnt lgkmcnt({min(NB-1, 7-ks)})')
        for tt in range(2):
            D = DO + 4*tt
            A(f'v_mfma_f32_16x16x32_bf16 {v(D,4)}, {v(r,4)}, {a(aV+32*tt+4*ks,4)}, {v(D,4) if ks else 0}')
        if ks + NB < 8:
            A(f'ds_read_b128 {v(r,4)}, {v(pa+((ks+NB) >> 1))} offset:{64*((ks+NB) & 1)}')
    M_, L_ = T+40, T+41
    A(f'v_max3_f32 {v(M_)}, {v(ml)}, {v(ml+2)}, {v(ml+4)}\nv_max_f32 {v(M_)}, {v(M_)}, {v(ml+6)}')
    for k in range(4): A(f'v_sub_f32 {v(ml+2*k)}, {v(ml+2*k)}, {v(M_)}')
    for k in range(4): A(f'v_exp_f32 {v(ml+2*k)}, {v(ml+2*k)}')
    A(f'v_mul_f32 {v(L_)}, {v(ml)}, {v(ml+1)}')
    for k in range(1, 4): A(f'v_fmac_f32 {v(L_)}, {v(ml+2*k)}, {v(ml+2*k+1)}')
    A(f'v_rcp_f32 {v(ml+1)}, {v(L_)}\nv_log_f32 {v(L_)}, {v(L_)}')
    for k in range(4): A(f'v_cndmask_b32 {v(DO+k)}, {v(DO+k)}, {v(DO+4+k)}, {s(sMHI,2)}')
    A(f'v_mul_f32 {v(DO)}, {v(DO)}, {v(ml)}')
    for k in range(1, 4): A(f'v_fmac_f32 {v(DO)}, {v(DO+k)}, {v(ml+2*k)}')
    A(f'v_mul_f32 {v(DO)}, {v(DO)}, {v(ml+1)}\nv_add_f32 {v(L_)}, {v(L_)}, {v(M_)}\nv_lshrrev_b32 {v(DO+2)}, 1, {v(vL4)}')
    A(f'v_mov_b32_dpp {v(DO+1)}, {v(DO)} quad_perm:[1,0,3,2] row_mask:0xf bank_mask:0xf')
    A(f's_mov_b32 exec_lo, 0x55555555\ns_mov_b32 exec_hi, 0x55555555')
    A(f'v_cvt_pk_bf16_f32 {v(DO)}, {v(DO)}, {v(DO+1)}')
    def o_st(m):
        A(f'buffer_store_dword {v(DO)}, {v(vOBS)}, {s(rWS,4)}, {s(sOBst)} offen{m}')
        l = A.label('nolse')
        A(f's_cmp_lg_u32 {s(sW)}, 0\ns_cbranch_scc1 {l}\ns_mov_b64 exec, 0x10001')
        A(f'buffer_store_dword {v(L_)}, {v(DO+2)}, {s(rWS,4)}, {s(sLSEst)} offen{m}')
        A(f'{l}:\ns_mov_b64 exec, -1')
    A(f's_cmp_eq_u32 {s(sFAST)}, 0\ns_cbranch_scc1 L_o_slow')
    o_st('')
    A('L_o_done:')
    stamp(5)
    A(f'v_and_b32 {v(T+9)}, 28, {v(vL4)}\nv_add_u32 {v(T+13)}, {s(sSM)}, {v(vT4)}')
    A('L_gb:')
    for k in range(8):
        A(f'buffer_load_dword {v(T+k)}, {v(vL4)}, {s(rWS,4)}, {s(sOBld)} offen offset:{256*k} sc1')
    A(f'buffer_load_dword {v(T+8)}, {v(T+9)}, {s(rWS,4)}, {s(sLSEld)} offen sc1')
    A('s_waitcnt vmcnt(0)')
    mm, ff = T+10, T+8
    check_sentinel(range(T, T+9), T+11, 'L_gb_f')
    dpp('v_max_f32', mm, ff, ff, 'row_ror:4')
    unp = [f'v_lshlrev_b32 {v(T+16+k)}, 16, {v(T+k)}\nv_and_b32 {v(T+k)}, 0xffff0000, {v(T+k)}' for k in range(8)]
    A(unp[0]); dpp('v_max_f32', mm, mm, mm, 'row_ror:2')
    A(unp[1]); dpp('v_max_f32', mm, mm, mm, 'row_ror:1')
    A(f'v_sub_f32 {v(ff)}, {v(ff)}, {v(mm)}\nv_exp_f32 {v(ff)}, {v(ff)}')
    A(unp[2]); dpp('v_add_f32', mm, ff, ff, 'row_ror:4')
    A(unp[3]); dpp('v_add_f32', mm, mm, mm, 'row_ror:2')
    A(unp[4]); dpp('v_add_f32', mm, mm, mm, 'row_ror:1')
    A(f'v_rcp_f32 {v(mm)}, {v(mm)}')
    A(unp[5])
    A(f'v_mul_f32 {v(ff)}, {v(ff)}, {v(mm)}')
    A(unp[6]); A(unp[7])
    lo, hi = T+11, T+12
    for k in range(8):
        op = 'v_mul_f32' if k == 0 else 'v_fmac_f32'
        dpp(op, lo, ff, T+16+k, f'row_newbcast:{k}')
        dpp(op, hi, ff, T+k, f'row_newbcast:{k}')
    A(f'v_cvt_pk_bf16_f32 {v(lo)}, {v(lo)}, {v(hi)}\nds_write_b32 {v(T+13)}, {v(lo)} offset:{OL}')
    A('s_waitcnt lgkmcnt(0)\ns_barrier')
    stamp(6)
    A(f's_or_b32 s6, s2, {s(sW)}\ns_or_b32 s6, s6, {s(sLAY)}\ns_cmp_lg_u32 s6, 0\ns_cbranch_scc1 L_cbar')
    A(f'v_mov_b32 {v(T)}, {s(sTAG)}\nv_mov_b32 {v(T+1)}, {EPO}\ns_mov_b64 exec, 1')
    A(f'buffer_store_dword {v(T)}, {v(T+1)}, {s(rWS,4)}, 0 offen sc1\ns_mov_b64 exec, -1\ns_branch L_cbar')
    A('L_o_slow:')
    o_st(' sc1')
    A('s_waitcnt vmcnt(0)\ns_branch L_o_done')
    A('L_gb_f:')
    tmo_check(1)
    A('s_branch L_gb')

    def q_stage():
        xf, st, D0, D1 = T, T+20, T+32, T+36
        A(f'v_lshrrev_b32 {v(T+18)}, 6, {v(vL4)}\nv_lshlrev_b32 {v(T+18)}, 3, {v(T+18)}\nv_sub_u32 {v(T+18)}, {v(vXA)}, {v(T+18)}')
        for ks in range(4):
            A(f'ds_read_b128 {v(xf+4*ks,4)}, {v(vXA)} offset:{64*ks}')
        A(f'ds_read_b64 {v(xf+16,2)}, {v(T+18)} offset:256')
        A(f'v_mov_b32 {v(T+19)}, {s(sSM)}')
        for k in range(3): A(f'ds_read_b128 {v(st+4*k,4)}, {v(T+19)} offset:{ST+16*k}')
        for ks in range(4):
            A(f's_waitcnt lgkmcnt({7-ks})')
            for tt, D in enumerate((D0, D1)):
                A(f'v_mfma_f32_16x16x32_bf16 {v(D,4)}, {v(xf+4*ks,4)}, {a(aWQ+16*tt+4*ks,4)}, {v(D,4) if ks else 0}')
        A('s_waitcnt lgkmcnt(3)')
        for tt, D in enumerate((D0, D1)):
            A(f'v_mfma_f32_16x16x16_bf16 {v(D,4)}, {v(xf+16,2)}, {a(aWQH+2*tt,2)}, {v(D,4)}')
        A('s_waitcnt lgkmcnt(0)')
        stats_calc(st)
        qs = (128 ** -0.5) * math.log2(math.e)
        for D in (D0, D1):
            A(f'v_add_f32 {v(D)}, {v(D)}, {v(D+1)}\nv_fma_f32 {v(D)}, -{v(st)}, {v(D+2)}, {v(D)}')
        A(f'v_mul_f32 {v(st+2)}, {hex(f2u(qs))}, {v(st+2)}\ns_mov_b64 exec, 0xffff')
        for D in (D0, D1): A(f'v_mul_f32 {v(D)}, {v(D)}, {v(st+2)}')
        for D in (D0, D1): A(f'v_and_b32 {v(D)}, 0xfffff000, {v(D)}')
        for D in (D0, D1): A(f'v_or_b32 {v(D)}, {s(sTG12)}, {v(D)}')
        A(f'buffer_store_dword {v(D0)}, {v(vL4)}, {s(rWS,4)}, {s(sQAst)} offen')
        A(f'buffer_store_dword {v(D1)}, {v(vL4)}, {s(rWS,4)}, {s(sQAst)} offen offset:64')
        l = A.label('q1')
        A(f's_cmp_lg_u32 {s(sFAST)}, 0\ns_cbranch_scc1 {l}\ns_add_u32 {s(sQC)}, {s(sQAst)}, {QAB}')
        A(f'buffer_store_dword {v(D0)}, {v(vL4)}, {s(rWS,4)}, {s(sQC)} offen sc1')
        A(f'buffer_store_dword {v(D1)}, {v(vL4)}, {s(rWS,4)}, {s(sQC)} offen offset:64 sc1')
        A(f'{l}:\ns_mov_b64 exec, -1')

    A('L_loader:')
    TH = P['throttle']
    vKo2, vVo2 = CB+70, CB+71
    A(f'v_mov_b32 {v(vKo2)}, {v(vKo)}\nv_mov_b32 {v(vVo2)}, {v(vVo)}')
    A(f's_and_b32 s4, {s(sW)}, 3\ns_lshl_b32 s6, s4, 10\ns_mov_b32 s7, s6')
    def dma(vr, srd, step_m0, step_off):
        A(f's_mov_b32 m0, s6\ns_add_u32 s6, s6, {step_m0}')
        A(f'buffer_load_dwordx4 {v(vr)}, {s(srd,4)}, s7 offen nt lds')
        if step_off: A(f's_add_u32 s7, s7, {step_off}')
    for i in range(TH):
        dma(vKo2, rK, 4096, 4096)
        if i == 0:
            A(f's_lshr_b32 s5, {s(sSP)}, 1\ns_mul_i32 s5, s5, 288\ns_add_u32 s5, s5, {SM+XH}')
            A(f'v_mov_b32 {v(vXA)}, {SM+ONES}\nv_mov_b32 {v(T+4)}, s5\nv_add_u32 {v(T+5)}, {XL-XH}, {v(T+4)}\nv_cmp_eq_u32 vcc, 0, {v(vj)}')
            A(f'v_lshlrev_b32 {v(vQF)}, 4, {v(vg)}\nv_add_u32 {v(vQF)}, {SM}, {v(vQF)}')
            A(f'v_cndmask_b32 {v(vXA)}, {v(vXA)}, {v(T+4)}, vcc\nv_cmp_eq_u32 vcc, 1, {v(vj)}')
            A(f'v_and_b32 {v(T+4)}, 1, {v(vj)}\nv_lshl_add_u32 {v(T+4)}, {v(vg)}, 1, {v(T+4)}\nv_mul_u32_u24 {v(T+4)}, {8*PCS}, {v(T+4)}')
            A(f'v_cndmask_b32 {v(vXA)}, {v(vXA)}, {v(T+5)}, vcc\nv_lshl_add_u32 {v(vXA)}, {v(vg)}, 4, {v(vXA)}')
            A(f'v_lshrrev_b32 {v(T+5)}, 1, {v(vj)}\nv_lshl_add_u32 {v(vPCS)}, {v(T+5)}, 2, {v(T+4)}')
        if i == 1:
            for tt in range(2):
                A(f's_lshl_b32 s5, s4, 1\ns_add_u32 s5, s5, {tt}')
                tr_addr(T+12+2*tt, 5, 3, 0, WQB, T+4)
                tr_addr(T+13+2*tt, 5, 2, 1, WQB + 128*256, T+4)
    A(f's_waitcnt vmcnt({TH})')
    signal(F_WL)
    stamp(1)
    wait_flag(F_WL, sleep=0)
    for tt in range(2):
        for ks in range(4):
            for hh in range(2):
                A(f'ds_read_b64_tr_b16 {a(aWQ+16*tt+4*ks+2*hh,2)}, {v(T+12+2*tt)} offset:{ks*8192+hh*1024}')
        A(f'ds_read_b64_tr_b16 {a(aWQH+2*tt,2)}, {v(T+13+2*tt)}')
    nk = TH
    for i in range(2):
        dma(vKo2, rK, 4096, 4096); nk += 1
    wait_flag(F_A, sleep=0)
    signal(F_WQ)
    A(f'v_mov_b32 {v(T)}, {SM+TAGW}\nds_read_b32 {v(T)}, {v(T)}\ns_waitcnt lgkmcnt(0)\nv_readfirstlane_b32 {s(sTG12)}, {v(T)}')
    q_stage()
    stamp(9)
    seq = ['K']*nk + ['q']*4
    def issue(name): seq.append(name)
    def landed(name):
        last = max(i for i, n in enumerate(seq) if n == name)
        return len(seq) - 1 - last
    def thr(): A(f's_waitcnt vmcnt({TH})')
    while nk < 16:
        dma(vKo2, rK, 4096, 4096); nk += 1; issue('K'); thr()
    raw_loads()
    for _ in range(15): issue('R')
    A('s_lshl_b32 s7, s4, 10')
    build = coef_build()
    wo_pat = []
    vl2 = T + 16
    wo_pat.append(f'v_lshrrev_b32 {v(vl2)}, 2, {v(vL4)}')
    vWO = T + 8
    for k in range(5):
        wo_pat.append(f'v_add_u32 {v(T+13)}, {64*k}, {v(vl2)}\nv_mul_u32_u24 {v(T+14)}, 13108, {v(T+13)}\nv_lshrrev_b32 {v(T+14)}, 16, {v(T+14)}')
        wo_pat.append(f'v_mul_u32_u24 {v(T+15)}, 5, {v(T+14)}\nv_sub_u32 {v(T+13)}, {v(T+13)}, {v(T+15)}\nv_mul_u32_u24 {v(T+14)}, 1152, {v(T+14)}')
        wo_pat.append(f'v_lshl_add_u32 {v(vWO+k)}, {v(T+13)}, 4, {v(T+14)}')
    ksig = False
    nslots = 16 + 5 - TH
    per = -(-len(build) // nslots)
    for i in range(16):
        if i == 13: wait_flag(F_WQ)
        dma(vVo2, rV, 4096, 4096); issue('V')
        if i == 0:
            for ins in wo_pat: A(ins)
        if not ksig and landed('K') - 15 >= min(TH, 4):
            A(f's_waitcnt vmcnt({landed("K")})'); signal(F_K); stamp(2); ksig = True
        if i >= TH - 1:
            thr()
        if i >= TH:
            for ins in build[:per]: A(ins)
            build = build[per:]
    stamp(3)
    A(f's_mul_i32 s6, s4, 5120\ns_add_u32 s6, s6, {SP}\ns_mul_i32 s7, s4, {128*1152}')
    for i in range(10):
        dma(vWO + i % 5, rWO, 1024, 0); issue('W')
        if i < 4: thr()
        if i == 4:
            A('s_waitcnt vmcnt(5)'); signal(F_V); stamp(4)
            A(f's_add_u32 s7, s7, {64*1152}\ns_mul_i32 s6, s4, 5120')
            wait_flag(F_KR)
        if i < 4 or i == 9:
            n = per if i < 4 else len(build)
            for ins in build[:n]: A(ins)
            build = build[n:]
    stamp(5)
    A(f'v_bfe_u32 {v(T)}, {v(vL4)}, 4, 2\nv_bfe_u32 {v(T+1)}, {v(vL4)}, 2, 2\nv_lshrrev_b32 {v(T+2)}, 6, {v(vL4)}\nv_lshl_add_u32 {v(T)}, {v(T+2)}, 3, {v(T)}')
    A(f'v_mul_u32_u24 {v(T)}, 80, {v(T)}\nv_lshl_add_u32 {v(T)}, {v(T+1)}, 3, {v(T)}')
    A(f's_and_b32 s6, {s(sC)}, 1\ns_lshl_b32 s6, s6, 3\ns_lshl_b32 s7, s4, 5\ns_add_u32 s6, s6, s7\nv_add_u32 {v(T)}, s6, {v(T)}')
    A(f'v_add_u32 {v(T+1)}, {SP}, {v(T)}\ns_waitcnt vmcnt(0)')
    signal(F_WO)
    wait_flag(F_WO, sleep=0)
    for ks in range(16):
        for hh in range(2):
            A(f'ds_read_b64_tr_b16 {a(aWO+4*ks+2*hh,2)}, {v(T if ks & 2 else T+1)} offset:{5120*(ks >> 2)+2560*(ks & 1)+320*hh}')
    A('s_waitcnt lgkmcnt(0)')
    stamp(6)
    A('L_wo:\ns_barrier')
    A(f's_cmp_eq_u32 {s(sW)}, 7\ns_cbranch_scc1 L_cbar')
    of = lambda ks: v(T+4*ks, 4) if ks < 9 else a(aSP+4*(ks-9), 4)
    for ks in range(16):
        A(f'ds_read_b128 {of(ks)}, {v(vQF)} offset:{OL+64*ks}')
    DW = T + 36
    for ks in range(16):
        A(f's_waitcnt lgkmcnt({15-ks})')
        A(f'v_mfma_f32_16x16x32_bf16 {v(DW,4)}, {of(ks)}, {a(aWO+4*ks,4)}, {v(DW,4) if ks else 0}')
    A(f's_cmp_eq_u32 {s(sW)}, 6\ns_cselect_b32 s6, 0x000f000f, -1')
    nop(6)
    A(f'v_mov_b32_dpp {v(DW+4)}, {v(DW)} quad_perm:[0,0,2,2] row_mask:0xf bank_mask:0xf')
    A(f'v_mov_b32_dpp {v(DW+5)}, {v(DW)} quad_perm:[1,1,3,3] row_mask:0xf bank_mask:0xf')
    A(f's_mov_b32 exec_lo, s6\ns_mov_b32 exec_hi, s6')
    A(f'v_cvt_pk_bf16_f32 {v(DW)}, {v(DW+4)}, {v(DW+5)}')
    A(f'buffer_store_dword {v(DW)}, {v(vPCS)}, {s(rWS,4)}, {s(sPCst)} offen sc1\ns_mov_b64 exec, -1')
    stamp(7)
    A('s_waitcnt vmcnt(0)')
    stamp(8)

    A('L_cbar:')
    g0 = T
    xs_, xad, xad2 = T+18, T+20, T+21
    A(f'v_lshl_add_u32 {v(xad)}, {v(vT4)}, 1, {s(sSM)}\nv_mov_b32 {v(xs_)}, 0\nv_mov_b32 {v(xs_+1)}, 0')
    A('s_barrier')
    if P['stamps'] == 1: cstamp(1)
    A(f's_cmp_gt_u32 {s(sW)}, 4\ns_cbranch_scc1 L_gc_done')
    A(f's_cmp_eq_u32 {s(sW)}, 4\ns_cselect_b32 exec_hi, 0, -1')
    A('L_gc:')
    for k in range(8):
        A(f'buffer_load_dword {v(g0+k)}, {v(vT4)}, {s(rWS,4)}, {s(sPCld if k < 4 else sPCld2)} offen offset:{PCS*(k & 3)} sc1')
    A(f'ds_read_b64 {v(xs_,2)}, {v(xad)} offset:{X32}')
    A('s_waitcnt vmcnt(0) lgkmcnt(0)')
    check_sentinel(range(g0, g0+8), g0+8, 'L_gc_f')
    for k in range(8):
        r = g0 + 8 + 2*(k & 1)
        A(f'v_lshlrev_b32 {v(r)}, 16, {v(g0+k)}\nv_and_b32 {v(r+1)}, 0xffff0000, {v(g0+k)}')
        if k == 1:
            A(f'v_pk_add_f32 {v(g0+12,2)}, {v(g0+8,2)}, {v(g0+10,2)}')
        elif k > 1:
            acc = xs_ if k & 1 else g0+12
            A(f'v_pk_add_f32 {v(acc,2)}, {v(acc,2)}, {v(r,2)}')
    A(f'v_pk_add_f32 {v(xs_,2)}, {v(xs_,2)}, {v(g0+12,2)}')
    A(f'ds_write_b64 {v(xad)}, {v(xs_,2)} offset:{X32}\ns_mov_b64 exec, -1')
    partial_stats(xs_, g0, vSTW)
    A('s_waitcnt lgkmcnt(0)')
    A('L_gc_done:')
    A1, A2, ACC = T+32, T+36, T+40
    A(f'v_mov_b32 {v(A2+3)}, 0\nv_mov_b32 {v(A2+1)}, 0x3f803f80')
    A(f'v_cndmask_b32 {v(A2)}, {v(A2+3)}, {v(A2+1)}, {s(sMT,2)}\nv_cndmask_b32 {v(A2+2)}, {v(A2+3)}, {v(A2+1)}, {s(sMU,2)}')
    A('s_barrier')
    cstamp(7)
    if P['ms']: stamp(3)
    st = T
    stats_issue(st)
    A(f'ds_read_b32 {v(st+13)}, {v(vEA)}')
    if P['touch']:
        A(f's_cmp_lg_u32 {s(sLAY)}, 0\ns_cbranch_scc1 L_notouch\ns_cmp_gt_u32 {s(sW)}, 3\ns_cbranch_scc1 L_notouch')
        A(f'v_lshlrev_b32 {v(st+14)}, 4, {v(vL4)}\ns_add_u32 s6, {s(sQAld)}, {LQ}\ns_add_u32 s7, {s(sOBld)}, {LA}')
        A(f'v_and_b32 {v(st+15)}, 0x7c0, {v(st+14)}')
        A(f'buffer_load_dword {v(ACC+5)}, {v(st+14)}, {s(rWS,4)}, s6 offen sc1\nbuffer_load_dword {v(ACC+5)}, {v(st+15)}, {s(rWS,4)}, s7 offen sc1')
        A(f's_add_u32 s7, {s(sLSEld)}, {LA}\nv_mov_b32 {v(st+15)}, 0\nbuffer_load_dword {v(ACC+5)}, {v(st+15)}, {s(rWS,4)}, s7 offen sc1')
        A('L_notouch:')
    A('s_waitcnt lgkmcnt(0)')
    stats_calc(st, twice=True)
    h = st + 13
    A(f'v_sub_f32 {v(h)}, {v(h)}, {v(st)}\nv_mul_f32 {v(h)}, {v(h)}, {v(st+2)}')
    A(f'v_cvt_pk_bf16_f32 {v(h)}, {v(h)}, {v(h)}')
    A(f'v_cndmask_b32 {v(A1+3)}, {v(A2+3)}, {v(h)}, {s(sMT,2)}\nv_cndmask_b32 {v(A2+1)}, {v(A2+3)}, {v(h)}, {s(sMU,2)}')
    A(f'v_and_b32 {v(st)}, 0xffff0000, {v(A1+3)}\nv_mul_f32 {v(st+1)}, {v(st)}, {v(st)}\nv_mul_f32 {v(st+2)}, {v(st+1)}, {v(st)}')
    A(f'v_and_b32 {v(st+3)}, 0xffff0000, {v(st+1)}\nv_perm_b32 {v(A1+1)}, {v(st+1)}, {v(st+1)}, {s(sSEL)}\nv_and_b32 {v(st+4)}, 0xffff0000, {v(st+2)}')
    A(f'v_sub_f32 {v(st+3)}, {v(st+1)}, {v(st+3)}\nv_sub_f32 {v(st+4)}, {v(st+2)}, {v(st+4)}\nv_perm_b32 {v(A1)}, {v(st+2)}, {v(st+2)}, {s(sSEL)}')
    A(f'v_cvt_pk_bf16_f32 {v(A1+2)}, {v(st+4)}, {v(st+3)}')
    nop(2)
    def mm2(f):
        D = T + 16*(f & 1)
        A(f'v_mfma_f32_32x32x16_bf16 {v(D,16)}, {v(A1,4)}, {v(CB+8*f,4)}, 0')
        A(f'v_mfma_f32_32x32x16_bf16 {v(D,16)}, {v(A2,4)}, {v(CB+8*f+4,4)}, {v(D,16)}')
    def m1(f): A(f'v_mfma_f32_32x32x16_bf16 {v(T+16*(f & 1),16)}, {v(A1,4)}, {v(CB+8*f,4)}, 0')
    def m2(f): A(f'v_mfma_f32_32x32x16_bf16 {v(T+16*(f & 1),16)}, {v(A2,4)}, {v(CB+8*f+4,4)}, {v(T+16*(f & 1),16)}')
    if P['mprio']: A('s_setprio 0')
    if P['ms']: stamp(4)
    mm2(0)
    for f in range(9):
        D = T + 16*(f & 1)
        nx = f + 1 < 9
        if f == 0: m1(1); nop(11)
        elif nx: nop(P['mnop']); m1(f+1)
        else: nop(P['mnop'] + 1)
        for e in range(5): A(f'v_exp_f32 {v(D+e)}, {v(D+e)}')
        A(f'v_pk_add_f32 {v(D,2)}, {v(D,2)}, 1.0 op_sel_hi:[1,0]\nv_pk_add_f32 {v(D+2,2)}, {v(D+2,2)}, 1.0 op_sel_hi:[1,0]\nv_add_f32 {v(D+4)}, 1.0, {v(D+4)}')
        if nx: m2(f+1)
        for e in range(5): A(f'v_rcp_f32 {v(D+e)}, {v(D+e)}')
        if f == 0:
            A(f'v_pk_mul_f32 {v(ACC,2)}, {v(D,2)}, {v(D+6,2)}\nv_pk_mul_f32 {v(ACC+2,2)}, {v(D+2,2)}, {v(D+8,2)}\nv_mul_f32 {v(ACC+4)}, {v(D+4)}, {v(D+10)}')
        else:
            A(f'v_pk_fma_f32 {v(ACC,2)}, {v(D,2)}, {v(D+6,2)}, {v(ACC,2)}\nv_pk_fma_f32 {v(ACC+2,2)}, {v(D+2,2)}, {v(D+8,2)}, {v(ACC+2,2)}\nv_fmac_f32 {v(ACC+4)}, {v(D+4)}, {v(D+10)}')
    if P['ms']: stamp(5)
    U = T + 16
    A(f'v_mov_b32 {v(U+4)}, {v(ACC+4)}')
    A(f'v_lshrrev_b32 {v(U)}, 6, {v(vL4)}\nv_and_b32 {v(U+1)}, 1, {v(U)}')
    A(f'v_permlane32_swap_b32 {v(ACC)}, {v(ACC+1)}\nv_permlane32_swap_b32 {v(ACC+2)}, {v(ACC+3)}\nv_permlane32_swap_b32 {v(ACC+4)}, {v(U+4)}')
    A(f'v_add_f32 {v(ACC)}, {v(ACC)}, {v(ACC+1)}\nv_add_f32 {v(ACC+2)}, {v(ACC+2)}, {v(ACC+3)}\nv_add_f32 {v(ACC+4)}, {v(ACC+4)}, {v(U+4)}')
    A(f'v_mov_b32 {v(U+4)}, {v(ACC+4)}')
    A(f'v_lshrrev_b32 {v(U)}, 1, {v(U)}\nv_lshl_add_u32 {v(U)}, {v(U+1)}, 1, {v(U)}')
    A(f'v_permlane16_swap_b32 {v(ACC)}, {v(ACC+2)}\nv_permlane16_swap_b32 {v(ACC+4)}, {v(U+4)}')
    A(f'v_add_f32 {v(ACC)}, {v(ACC)}, {v(ACC+2)}\nv_add_f32 {v(ACC+4)}, {v(ACC+4)}, {v(U+4)}')
    fill = [f's_lshl_b32 s6, {s(sW)}, 2', f's_add_u32 s6, s6, {SM+RED}', f'v_lshl_add_u32 {v(U)}, {v(U)}, 5, s6', f'v_mov_b32 {v(U+1)}, s6']
    for k, fi in zip((8, 4, 2, 1), fill):
        A(fi)
        dpp('v_add_f32', ACC, ACC, ACC, f'row_ror:{k}')
        dpp('v_add_f32', ACC+4, ACC+4, ACC+4, f'row_ror:{k}')
    A(f'ds_write_b32 {v(U)}, {v(ACC)}\nds_write_b32 {v(U+1)}, {v(ACC+4)} offset:128')
    if P['ms']: stamp(6)
    TT = T
    A(f's_cmp_lg_u32 {s(sW)}, 0\ns_cbranch_scc1 L_nofin')
    A(f'v_and_b32 {v(U)}, 28, {v(vL4)}\nv_lshl_add_u32 {v(U+1)}, {v(U)}, 3, {s(sSM)}')
    A(f's_lshl_b32 s6, {s(sE0)}, 2\ns_add_u32 s6, s6, {SM+X32}\nv_add_u32 {v(U+2)}, s6, {v(U)}\nds_read_b32 {v(U+2)}, {v(U+2)}')
    A(f'v_lshrrev_b32 {v(U+3)}, 5, {v(vL4)}\nv_mul_u32_u24 {v(U+3)}, {XDS}, {v(U+3)}\nv_add_u32 {v(U+3)}, {v(U+3)}, {v(U)}')
    A(f's_lshl_b32 s6, 1, {s(sNE)}\ns_sub_u32 s6, s6, 1\ns_mul_i32 s7, s6, 0x01010101\ns_lshl_b32 s5, {s(sB2)}, 16')
    A('s_waitcnt lgkmcnt(0)\ns_barrier')
    stamp(8)
    A(f'ds_read_b128 {v(TT,4)}, {v(U+1)} offset:{RED}\nds_read_b128 {v(TT+4,4)}, {v(U+1)} offset:{RED+16}')
    A(f'v_add_f32 {v(U+2)}, s5, {v(U+2)}\ns_waitcnt lgkmcnt(0)')
    A(f'v_pk_add_f32 {v(TT,2)}, {v(TT,2)}, {v(TT+2,2)}\nv_pk_add_f32 {v(TT+4,2)}, {v(TT+4,2)}, {v(TT+6,2)}\nv_pk_add_f32 {v(TT,2)}, {v(TT,2)}, {v(TT+4,2)}')
    A(f'v_add_f32 {v(TT)}, {v(TT)}, {v(U+2)}\nv_add_f32 {v(TT)}, {v(TT)}, {v(TT+1)}')
    A(f's_cmp_lg_u32 {s(sLAY)}, 0\ns_cbranch_scc1 L_out')
    A('s_mov_b32 exec_lo, s7\ns_mov_b32 exec_hi, s7')
    A(f'buffer_store_dword {v(TT)}, {v(U+3)}, {s(rWS,4)}, {s(sXDst)} offen sc1\ns_mov_b64 exec, -1\ns_branch L_dpace')
    A('L_nofin:\ns_waitcnt lgkmcnt(0)\ns_barrier')
    cstamp(8)
    A(f's_cmp_lg_u32 {s(sLAY)}, 0\ns_cbranch_scc1 L_fin')
    A('L_dpace:')
    A(f'v_lshl_add_u32 {v(xad)}, {v(vT4)}, 1, {s(sSM)}\nv_add_u32 {v(xad2)}, {s(sSM)}, {v(vT4)}\nv_lshlrev_b32 {v(T+22)}, 1, {v(vT4)}')
    A(f'v_mov_b32 {v(xs_)}, 0\nv_mov_b32 {v(xs_+1)}, 0')
    if P['fast']:
        A(f'v_mov_b32 {v(T+23)}, {SM+TAGW+4}\nds_read_b32 {v(T+23)}, {v(T+23)}\ns_waitcnt lgkmcnt(0)\nv_readfirstlane_b32 {s(sFAST)}, {v(T+23)}')
    for r in (sQAst, sQAld): A(f's_add_u32 {s(r)}, {s(r)}, {LQ}')
    for r in (sOBst, sLSEst, sOBld, sLSEld, sPCst, sPCld, sPCld2): A(f's_add_u32 {s(r)}, {s(r)}, {LA}')
    A(f's_mov_b32 {s(sLAY)}, 1\ns_waitcnt vmcnt(0)')
    if P['stamps'] == 1: cstamp(9)
    A('s_barrier')
    A(f's_cmp_gt_u32 {s(sW)}, 4\ns_cbranch_scc1 L_gd_done')
    A(f's_cmp_eq_u32 {s(sW)}, 4\ns_cselect_b32 exec_hi, 0, -1')
    A('L_gd:')
    for k in range(2):
        A(f'buffer_load_dword {v(xs_+k)}, {v(T+22)}, {s(rWS,4)}, {s(sXDld)} offen offset:{4*k} sc1')
    A('s_waitcnt vmcnt(0)')
    check_sentinel([xs_, xs_+1], g0+2, 'L_gd_f')
    A(f'v_cvt_pk_bf16_f32 {v(g0+2)}, {v(xs_)}, {v(xs_+1)}\nds_write_b64 {v(xad)}, {v(xs_,2)} offset:{X32}')
    A(f'v_lshlrev_b32 {v(g0+4)}, 16, {v(g0+2)}\nv_and_b32 {v(g0+5)}, 0xffff0000, {v(g0+2)}\nds_write_b32 {v(xad2)}, {v(g0+2)} offset:{XH}')
    A(f'v_sub_f32 {v(g0+4)}, {v(xs_)}, {v(g0+4)}\nv_sub_f32 {v(g0+5)}, {v(xs_+1)}, {v(g0+5)}\nv_cvt_pk_bf16_f32 {v(g0+4)}, {v(g0+4)}, {v(g0+5)}')
    A(f'ds_write_b32 {v(xad2)}, {v(g0+4)} offset:{XL}\ns_mov_b64 exec, -1')
    partial_stats(xs_, g0, vSTW)
    A('s_waitcnt lgkmcnt(0)')
    A('L_gd_done:\ns_barrier')
    if P['stamps'] == 1:
        A('s_waitcnt lgkmcnt(0)')
        emit_stamps(A, 0)
        stamp(0)
    A(f's_cmp_lt_u32 {s(sW)}, 4\ns_cbranch_scc1 L_attn')
    q_stage()
    stamp(2)
    A('s_barrier\ns_barrier\ns_branch L_wo')
    A('L_gc_f:')
    tmo_check(2)
    A('s_branch L_gc')
    A('L_gd_f:')
    tmo_check(3)
    A('s_branch L_gd')
    A('L_out:')
    A(f's_load_dwordx2 s[4:5], s[0:1], 80\ns_mov_b32 exec_lo, s6\ns_mov_b32 exec_hi, 0')
    A(f's_mul_i32 s6, {s(sB)}, 576\ns_add_u32 s6, s6, {s(sE0)}\ns_lshl_b32 s6, s6, 1')
    A(f'v_lshrrev_b32 {v(U)}, 1, {v(vL4)}\nv_add_u32 {v(U)}, s6, {v(U)}\nv_cvt_pk_bf16_f32 {v(TT)}, {v(TT)}, {v(TT)}')
    A(f's_waitcnt lgkmcnt(0)\nglobal_store_short {v(U)}, {v(TT)}, s[4:5]')
    A('L_fin:')
    if P['stamps']:
        A('s_mov_b64 exec, -1\ns_waitcnt vmcnt(0)')
        stamp(9, True)
        A('s_waitcnt lgkmcnt(0)')
        if P['stamps'] == 1:
            emit_stamps(A, 1)
    A('L_end:\ns_endpgm')
    hdr = open('cdna_kernels/' + NAME + '.s.ref').read().split('; Override launch')[0].rstrip('\n').split('\n')
    return wrap(A.text(), hdr, 256, 512, LDS_BYTES, 256, 128)


def emit_stamps(A, layer):
    A(f's_lshl_b32 s6, s2, 3\ns_add_u32 s6, s6, {s(sW)}\ns_lshl_b32 s6, s6, 7\ns_add_u32 s6, s6, {STAMP + 64*layer}')
    A(f'v_mov_b32 {v(T+44)}, s6')
    for i in range(10):
        A(f'v_mov_b32 {v(T+45)}, {s(sSTP+2*i)}\nglobal_store_dword {v(T+44)}, {v(T+45)}, {s(pWS,2)} offset:{4*i}')
    A(f'v_mov_b32 {v(T+45)}, {s(sCNT)}\nglobal_store_dword {v(T+44)}, {v(T+45)}, {s(pWS,2)} offset:40\ns_mov_b32 {s(sCNT)}, 0')


if __name__ == '__main__':
    out = sys.argv[1]
    kw = {}
    for x in sys.argv[2:]:
        k, val = x.split('='); kw[k] = int(val, 0)
    open(out, 'w').write(gen(**kw))
```

```python
import sys, math, struct
from asmlib import *

def f2u(x):
    return struct.unpack('<I', struct.pack('<f', x))[0]

DEF = dict(stamps=0, throttle=8, fast=1, tmo=1 << 22, prefetch=1, cprio=3, npa=6, touch=1, xp=0, mnop=0, mprio=1, ms=0, amp=-1)

LQ   = 0x20000
QA   = 0x0
QAB  = 0x40000
ARR  = 0x80000
EPO  = 0x81000
AR0  = 0x100000
LA   = 0x45000
OB   = AR0
PC   = AR0 + 0x20000
LSE  = AR0 + 0x44000
XD   = AR0 + 2*LA
XDS  = 2560
PCS  = 1152
WS_BYTES = 0x200000
STAMP = 0x300000
assert XD + 16*XDS <= AR0 + 256*2560
KB, VB, SP = 0, 65536, 131072
SM = 155648
WQB = SM - 36864
X32, XH, XL, ONES, QB, PB, ML, RED, ST, ZERO, FLAGS = 0, 2304, 3456, 4608, 5120, 6144, 7168, 7232, 7488, 7552, 7680
TAGW = FLAGS + 240
DUMMY = ST + 48
OL = QB
F_A, F_WQ, F_Q, F_K, F_KR, F_P, F_V, F_WO, F_WL = range(9)
LDS_BYTES = 163840
sW = 3
rK, rV, rWQ, rWO, rWS = 8, 12, 16, 20, 24
pX, pW1, pB1, pW2, pB2 = 28, 30, 32, 34, 36
sSEL, sCNT, sTG12, sTAG = 38, 39, 40, 41
pWS = 42
sX, sB, sHL, sSP, sHKV, sC, sU, sE0, sNE, sLAY, sFAST, sTMO = range(44, 56)
sQAst, sQAld, sOBst, sLSEst, sOBld, sLSEld, sPCst, sPCld, sPCld2, sXDld = range(56, 66)
sXDst, sB2 = 66, 67
sMHI, sMT, sMU = 68, 70, 72
sSM, sXCC = 74, 75
sKD, sPOL, sQC = 76, 77, 78
sSTP = 82
vTID, vL4, vT4, vR3, vQF, vR5, vMLR, vFL, vEA, vSTW = range(10)
vXA = vPW = vR3
vPCS = vOBS = vR5
CB = 10
T = 82
aK, aV = 0, 64
aWO, aWQ, aWQH, aSP = 0, 64, 96, 100

K1 = -2.0 * math.sqrt(2.0/math.pi) * math.log2(math.e)
K2 = K1 * 0.044715


def lane_masks():
    mt = mu = 0
    for l in range(64):
        i = l & 31
        if ((l >> 2) & 1) != (l >> 5):
            continue
        r = 4*(i >> 3) + (i & 3)
        if r <= 4: mt |= 1 << l
        if 6 <= r <= 10: mu |= 1 << l
    return mt, mu


def gen(**kw):
    P = dict(DEF); P.update(kw)
    A = Asm()
    amp_state = []
    def amp(k):
        if P['amp'] == k: A('s_memrealtime s[84:85]')
    nop = lambda n: A(f's_nop {n-1}') if n > 0 else None
    def stamp(i, final=False):
        if P['amp'] >= 0 and not P['stamps']:
            if i == 0 and not amp_state: A('s_memrealtime s[82:83]'); amp_state.append(1)
            return
        if P['stamps'] == 1 or (P['stamps'] == 2 and (i == 0 or final)):
            A(f's_memrealtime {s(sSTP+2*i,2)}')
        elif P['stamps'] == 2 and i != 9:
            l = A.label('st')
            A(f's_cmp_lg_u32 {s(sLAY)}, 0\ns_cbranch_scc1 {l}\ns_memrealtime {s(sSTP+2*i,2)}\n{l}:')
    def cstamp(i):
        if P['stamps']:
            l = A.label('cs')
            A(f's_cmp_gt_u32 {s(sW)}, 3\ns_cbranch_scc1 {l}'); stamp(i); A(f'{l}:')
    def tmo_check(cnt=None):
        if cnt is not None and P['stamps'] == 1:
            A(f's_add_u32 {s(sCNT)}, {s(sCNT)}, {1 << (8*cnt)}')
        A(f's_sub_u32 {s(sTMO)}, {s(sTMO)}, 1\ns_cbranch_scc1 L_end')
    FT = T + 40
    def signal(k):
        A(f'v_mov_b32 {v(FT+4)}, 1\nds_write_b32 {v(vFL)}, {v(FT+4)} offset:{16*k}')
    def flag_test(k):
        A(f'ds_read_b128 {v(FT,4)}, {v(FT+5)} offset:{16*k}\ns_waitcnt lgkmcnt(0)')
        A(f'v_and_b32 {v(FT)}, {v(FT)}, {v(FT+1)}\nv_and_b32 {v(FT+2)}, {v(FT+2)}, {v(FT+3)}\nv_and_b32 {v(FT)}, {v(FT)}, {v(FT+2)}')
        A(f'v_cmp_ne_u32 vcc, 0, {v(FT)}')
    def wait_flag(k, sleep=1):
        l = A.label('wf')
        A(f'v_mov_b32 {v(FT+5)}, {SM+FLAGS}\n{l}:')
        flag_test(k)
        A(f's_cbranch_vccnz {l}_d')
        tmo_check()
        if sleep: A(f's_sleep {sleep}')
        A(f's_branch {l}\n{l}_d:')
    def dpp(op, d, a_, b_, ctl, rm='0xf'):
        A(f'{op}_dpp {v(d)}, {v(a_)}, {v(b_)} {ctl} row_mask:{rm} bank_mask:0xf')
    def check_sentinel(regs, tmp, lfail):
        r = list(regs); cur = r.pop(0)
        while r:
            if len(r) >= 2:
                A(f'v_max3_u32 {v(tmp)}, {v(cur)}, {v(r[0])}, {v(r[1])}'); r = r[2:]
            else:
                A(f'v_max_u32 {v(tmp)}, {v(cur)}, {v(r[0])}'); r = r[1:]
            cur = tmp
        A(f'v_cmp_eq_u32 vcc, -1, {v(cur)}\ns_cbranch_vccnz {lfail}')
    def partial_stats(x, t, addr):
        A(f'v_add_f32 {v(t)}, {v(x)}, {v(x+1)}\nv_mul_f32 {v(t+1)}, {v(x)}, {v(x)}\nv_fmac_f32 {v(t+1)}, {v(x+1)}, {v(x+1)}')
        nop(2)
        A(f'v_permlane32_swap_b32 {v(t)}, {v(t+1)}\nv_add_f32 {v(t)}, {v(t)}, {v(t+1)}')
        for k in (8, 4, 2, 1):
            nop(2); dpp('v_add_f32', t, t, t, f'row_ror:{k}')
        nop(2); dpp('v_add_f32', t, t, t, 'row_bcast:15', '0xa')
        A(f'ds_write_b32 {v(addr)}, {v(t)}')
    EPS = hex(f2u(1e-5)); INV = hex(f2u(1.0/576))
    def stats_issue(t):
        A(f'v_mov_b32 {v(t+12)}, {s(sSM)}')
        for k in range(3): A(f'ds_read_b128 {v(t+4*k,4)}, {v(t+12)} offset:{ST+16*k}')
    def stats_calc(t, twice=False):
        A(f'v_pk_add_f32 {v(t,2)}, {v(t,2)}, {v(t+2,2)}\nv_pk_add_f32 {v(t+4,2)}, {v(t+4,2)}, {v(t+6,2)}')
        A(f'v_pk_add_f32 {v(t,2)}, {v(t,2)}, {v(t+8,2)}\nv_pk_add_f32 {v(t,2)}, {v(t,2)}, {v(t+4,2)}')
        A(f'v_mul_f32 {v(t)}, {INV}, {v(t)}\nv_mul_f32 {v(t+1)}, {INV}, {v(t+1)}')
        A(f'v_fma_f32 {v(t+1)}, -{v(t)}, {v(t)}, {v(t+1)}\nv_max_f32 {v(t+1)}, 0, {v(t+1)}')
        if twice:
            A(f'v_mul_f32 {v(t+1)}, {hex(f2u(1+1e-5))}, {v(t+1)}\nv_add_f32 {v(t+2)}, {hex(f2u(1e-10))}, {v(t+1)}\nv_rsq_f32 {v(t+2)}, {v(t+2)}')
        else:
            A(f'v_add_f32 {v(t+2)}, {EPS}, {v(t+1)}\nv_rsq_f32 {v(t+2)}, {v(t+2)}')
    def tr_addr(dst, tile_sreg, gshift, gbit, base, t):
        A(f'v_bfe_u32 {v(t)}, {v(vL4)}, 4, 2\nv_bfe_u32 {v(t+1)}, {v(vL4)}, 2, 2\nv_lshrrev_b32 {v(t+2)}, 6, {v(vL4)}')
        A(f'v_bfe_u32 {v(t+3)}, {v(t+2)}, {gbit}, 1\nv_lshl_or_b32 {v(t+3)}, {v(t+3)}, 2, {v(t)}')
        A(f'v_xor_b32 {v(t+3)}, {s(tile_sreg)}, {v(t+3)}\nv_lshlrev_b32 {v(t+3)}, 5, {v(t+3)}\nv_lshl_add_u32 {v(t+3)}, {v(t+1)}, 3, {v(t+3)}')
        A(f'v_lshl_add_u32 {v(t+2)}, {v(t+2)}, {gshift}, {v(t)}\nv_lshl_add_u32 {v(dst)}, {v(t+2)}, 8, {v(t+3)}')
        A(f'v_add_u32 {v(dst)}, {base}, {v(dst)}')
    RAW = T + 20
    def raw_loads():
        r = []
        r.append(f'v_add_u32 {v(T+36)}, 4096, {v(vT4)}\nv_lshlrev_b32 {v(T+37)}, 1, {v(vTID)}\nv_add_u32 {v(T+37)}, 8192, {v(T+37)}')
        A(r[0])
        for k, p in enumerate((pW1, pB1, pW2)):
            for i in range(4):
                A(f'global_load_dword {v(RAW+5*k+i)}, {v(vT4 if i < 2 else T+36)}, {s(p,2)} offset:{2048*(i & 1)}')
            A(f'global_load_ushort {v(RAW+5*k+4)}, {v(T+37)}, {s(p,2)}')
    def coef_build():
        L = []
        w, b, w2, t0, t1, t2, t3, t4 = (T + i for i in range(8))
        for f in range(9):
            c = CB + 8*f
            srcs = [RAW + 5*k + (f >> 1) for k in range(3)]
            for d, sr in zip((w, b, w2), srcs):
                L.append(f'v_and_b32 {v(d)}, 0xffff0000, {v(sr)}' if f & 1 else f'v_lshlrev_b32 {v(d)}, 16, {v(sr)}')
            def split(x, dst):
                L.append(f'v_and_b32 {v(t4)}, 0xffff0000, {v(x)}')
                L.append(f'v_sub_f32 {v(dst)}, {v(x)}, {v(t4)}')
                L.append(f'v_cvt_pk_bf16_f32 {v(dst)}, {v(t4)}, {v(dst)}')
            L.append(f'v_mul_f32 {v(t0)}, {v(w)}, {v(w)}')
            L.append(f'v_mul_f32 {v(t0)}, {hex(f2u(K2))}, {v(t0)}')
            L.append(f'v_mul_f32 {v(t1)}, {v(t0)}, {v(w)}')
            L.append(f'v_mul_f32 {v(t2)}, {v(t0)}, {v(b)}')
            L.append(f'v_mul_f32 {v(t2)}, 0x40400000, {v(t2)}')
            split(t1, c); split(t2, c+1)
            L.append(f'v_perm_b32 {v(c+2)}, {v(t2)}, {v(t1)}, {s(sSEL)}')
            L.append(f'v_mul_f32 {v(t0)}, {v(b)}, {v(b)}')
            L.append(f'v_mul_f32 {v(t0)}, {hex(f2u(K2))}, {v(t0)}')
            L.append(f'v_add_f32 {v(t1)}, {hex(f2u(K1))}, {v(t0)}')
            L.append(f'v_mul_f32 {v(t2)}, {v(t1)}, {v(b)}')
            L.append(f'v_fmac_f32 {v(t1)}, 2.0, {v(t0)}')
            L.append(f'v_mul_f32 {v(t1)}, {v(t1)}, {v(w)}')
            split(t1, c+3); split(t2, c+4)
            L.append(f'v_mul_f32 {v(t1)}, {v(w)}, {v(w2)}')
            L.append(f'v_mul_f32 {v(t2)}, {v(b)}, {v(w2)}')
            split(t1, c+5); split(t2, c+6)
            L.append(f'v_mov_b32 {v(c+7)}, 0')
        return L

    A('s_cmp_ge_u32 s2, 256\ns_cbranch_scc1 L_end')
    stamp(0)
    A('s_load_dwordx16 s[56:71], s[0:1], 0\ns_load_dwordx4 s[72:75], s[0:1], 64\ns_load_dwordx2 s[42:43], s[0:1], 96')
    vl, vj, vg = T+1, T+2, T+3
    A(f'v_lshrrev_b32 {v(T)}, 6, v0\nv_and_b32 {v(vl)}, 63, v0')
    A(f'v_readfirstlane_b32 {s(sW)}, {v(T)}')
    A(f'v_lshlrev_b32 {v(vL4)}, 2, {v(vl)}\nv_lshlrev_b32 {v(vT4)}, 2, v0')
    A(f'v_and_b32 {v(vj)}, 15, {v(vl)}\nv_lshrrev_b32 {v(vg)}, 4, {v(vl)}')
    A(f's_and_b32 {s(sX)}, s2, 7\ns_lshr_b32 s4, s2, 3')
    A(f's_lshr_b32 {s(sB)}, s4, 4\ns_bfe_u32 {s(sHL)}, s4, 0x10003\ns_and_b32 {s(sSP)}, s4, 7\ns_and_b32 {s(sC)}, s4, 15')
    A(f's_lshl_b32 {s(sHKV)}, {s(sX)}, 1\ns_add_u32 {s(sHKV)}, {s(sHKV)}, {s(sHL)}')
    A(f's_cmp_lg_u32 {s(sW)}, 0\ns_cbranch_scc1 L_noinit')
    A(f'v_mov_b32 {v(T+4)}, 0\nv_add_u32 {v(T+5)}, {SM}, {v(vL4)}\nds_write_b32 {v(T+5)}, {v(T+4)} offset:{FLAGS}\nds_write_b32 {v(T+5)}, {v(T+4)} offset:{FLAGS-256}')
    A(f'v_mov_b32 {v(T+4)}, 0x3f803f80\nds_write_b32 {v(T+5)}, {v(T+4)} offset:{ONES}\nds_write_b32 {v(T+5)}, {v(T+4)} offset:{ONES+256}')
    A('L_noinit:')
    A(f's_bfe_u32 s6, {s(sW)}, 0x10001\ns_lshl_b32 s6, s6, 2\nv_or_b32 {v(T+4)}, s6, {v(vg)}\nv_lshlrev_b32 {v(T+4)}, 1, {v(T+4)}')
    A(f'v_xor_b32 {v(T+4)}, {v(T+4)}, {v(vj)}\nv_lshlrev_b32 {v(T+4)}, 4, {v(T+4)}')
    vWQo, vKo, vVo = T+8, T+9, T+10
    A(f'v_lshl_add_u32 {v(vWQo)}, {v(vg)}, 13, {v(T+4)}\nv_lshl_add_u32 {v(vVo)}, {v(vg)}, 8, {v(T+4)}')
    A(f's_and_b32 s7, {s(sW)}, 3\ns_lshl_b32 s6, s7, 2\nv_add_u32 {v(vKo)}, s6, {v(vg)}\nv_xor_b32 {v(vKo)}, {v(vKo)}, {v(vj)}\nv_lshlrev_b32 {v(vKo)}, 4, {v(vKo)}')
    A(f'v_lshl_add_u32 {v(vKo)}, {v(vg)}, 8, {v(vKo)}')
    A(f's_add_u32 s6, s6, {SM+FLAGS}\nv_mov_b32 {v(vFL)}, s6')
    A(f's_lshr_b32 s4, {s(sSP)}, 1')
    A(f's_mul_i32 s6, s4, {144*8192}\ns_lshl_b32 s5, {s(sHKV)}, 9\ns_add_u32 s6, s6, s5\ns_and_b32 s5, {s(sSP)}, 1\ns_lshl_b32 s5, s5, 8\ns_add_u32 s6, s6, s5')
    A(f's_sub_u32 {s(rWQ+2)}, 4718592, s6\ns_mov_b32 {s(rWQ+3)}, 0x20000')
    A(f's_lshl_b32 s5, {s(sB)}, 4\ns_add_u32 s5, s5, {s(sHKV)}')
    A(f's_lshl_b32 {s(rK+2)}, s5, 21\ns_lshl_b32 {s(rK+3)}, {s(sSP)}, 16\ns_add_u32 {s(rK+2)}, {s(rK+2)}, {s(rK+3)}\ns_add_u32 {s(rV+2)}, {s(rK+2)}, 0x180000')
    A(f's_mov_b32 {s(rK+3)}, 0x20000\ns_mov_b32 {s(rV+3)}, 0x20000\ns_mov_b32 {s(rK+2)}, 0x10000')
    A('s_waitcnt lgkmcnt(0)\ns_barrier')
    A(f's_add_u32 {s(rWQ)}, s62, s6\ns_addc_u32 {s(rWQ+1)}, s63, 0')
    A(f's_add_u32 {s(rK)}, s58, {s(rV+2)}\ns_addc_u32 {s(rK+1)}, s59, 0')
    A(f's_add_u32 {s(rV)}, s60, {s(rV+2)}\ns_addc_u32 {s(rV+1)}, s61, 0\ns_mov_b32 {s(rV+2)}, 0x10000')
    A(f's_cmp_lt_u32 {s(sW)}, 4\ns_cbranch_scc1 L_nowq')
    A(f's_lshl_b32 s6, s7, 10\ns_add_u32 s6, s6, {WQB}\ns_lshl_b32 {s(sKD)}, s7, 15')
    for i in range(9):
        A(f's_mov_b32 m0, s6\ns_add_u32 s6, s6, 4096')
        A(f'buffer_load_dwordx4 {v(vWQo)}, {s(rWQ,4)}, {s(sKD)} offen nt lds\ns_add_u32 {s(sKD)}, {s(sKD)}, {4*32768}')
    A('L_nowq:')
    A(f's_mov_b64 {s(pX,2)}, s[56:57]\ns_mov_b64 {s(pW1,2)}, s[68:69]\ns_mov_b64 {s(pB1,2)}, s[70:71]')
    A(f's_mov_b64 {s(pW2,2)}, s[72:73]\ns_mov_b64 {s(pB2,2)}, s[74:75]')
    A(f's_mul_i32 s6, {s(sX)}, {512*1152}\ns_mul_i32 {s(sKD)}, {s(sC)}, 72\ns_and_b32 {s(sKD)}, {s(sKD)}, 0xfffffff0\ns_add_u32 s6, s6, {s(sKD)}')
    A(f's_add_u32 {s(rWO)}, s64, s6\ns_addc_u32 {s(rWO+1)}, s65, 0\ns_sub_u32 {s(rWO+2)}, 4718592, s6\ns_mov_b32 {s(rWO+3)}, 0x20000')
    A(f's_mov_b32 {s(rWS)}, s42\ns_mov_b32 {s(rWS+1)}, s43\ns_mov_b32 {s(rWS+2)}, {WS_BYTES}\ns_mov_b32 {s(rWS+3)}, 0x20000')
    A(f's_load_dword {s(sB2)}, {s(pB2,2)}, 0')
    A(f's_getreg_b32 {s(sXCC)}, hwreg(HW_REG_XCC_ID, 0, 4)')
    A(f's_lshl_b32 {s(sU)}, {s(sX)}, 4\ns_add_u32 {s(sU)}, {s(sU)}, {s(sC)}')
    A(f's_mul_i32 s6, {s(sU)}, 5\ns_lshl_b32 {s(sKD)}, {s(sU)}, 2\ns_add_u32 {s(sKD)}, {s(sKD)}, 64')
    A(f's_cmp_lt_u32 {s(sU)}, 64\ns_cselect_b32 {s(sE0)}, s6, {s(sKD)}\ns_cselect_b32 {s(sNE)}, 5, 4')
    A(f's_mov_b32 {s(sLAY)}, 0\ns_mov_b32 {s(sFAST)}, 0\ns_mov_b32 {s(sTMO)}, {P["tmo"]}\ns_mov_b32 {s(sCNT)}, 0\ns_mov_b32 {s(sSM)}, {SM}')
    A(f's_lshl_b32 {s(sQAld)}, s5, 12')
    A(f's_lshl_b32 s6, s4, 10\ns_add_u32 {s(sQAst)}, {s(sQAld)}, s6\ns_and_b32 s6, {s(sSP)}, 1\ns_lshl_b32 s6, s6, 9\ns_add_u32 {s(sQAst)}, {s(sQAst)}, s6')
    A(f's_lshl_b32 s6, s7, 7\ns_add_u32 {s(sQAst)}, {s(sQAst)}, s6')
    A(f's_lshl_b32 s5, {s(sB)}, 3\ns_add_u32 s5, s5, {s(sX)}')
    A(f's_lshl_b32 s6, s5, 13\ns_add_u32 s6, s6, {OB}\ns_lshl_b32 {s(sOBld)}, s7, 11\ns_add_u32 {s(sOBld)}, {s(sOBld)}, s6')
    A(f's_lshl_b32 {s(sOBst)}, {s(sC)}, 8\ns_add_u32 s6, s6, {s(sOBst)}\ns_lshl_b32 {s(sOBst)}, {s(sHL)}, 11\ns_add_u32 s6, s6, {s(sOBst)}')
    A(f's_lshl_b32 {s(sOBst)}, s7, 6\ns_add_u32 {s(sOBst)}, {s(sOBst)}, s6')
    A(f's_lshl_b32 s6, s5, 7\ns_add_u32 s6, s6, {LSE}\ns_lshl_b32 {s(sLSEld)}, s7, 5\ns_add_u32 {s(sLSEld)}, {s(sLSEld)}, s6')
    A(f's_lshl_b32 {s(sLSEst)}, {s(sHL)}, 6\ns_add_u32 s6, s6, {s(sLSEst)}\ns_lshl_b32 {s(sLSEst)}, {s(sSP)}, 2\ns_add_u32 {s(sLSEst)}, {s(sLSEst)}, s6')
    A(f's_mul_i32 {s(sPCld)}, s5, {8*PCS}\ns_add_u32 {s(sPCld)}, {s(sPCld)}, {PC}\ns_add_u32 {s(sPCld2)}, {s(sPCld)}, {4*PCS}')
    A(f's_mul_i32 s6, {s(sB)}, {64*PCS}\ns_mul_i32 {s(sPCst)}, {s(sX)}, {PCS}\ns_add_u32 s6, s6, {s(sPCst)}\ns_mul_i32 {s(sPCst)}, {s(sC)}, 72\ns_add_u32 s6, s6, {s(sPCst)}')
    A(f's_lshl_b32 {s(sPCst)}, s7, 5\ns_add_u32 {s(sPCst)}, {s(sPCst)}, s6\ns_add_u32 {s(sPCst)}, {s(sPCst)}, {PC}')
    A(f's_mul_i32 {s(sXDld)}, s5, {XDS}\ns_add_u32 {s(sXDld)}, {s(sXDld)}, {XD}')
    A(f's_mul_i32 s6, {s(sB)}, {8*XDS}\ns_lshl_b32 {s(sXDst)}, {s(sE0)}, 2\ns_add_u32 {s(sXDst)}, {s(sXDst)}, s6\ns_add_u32 {s(sXDst)}, {s(sXDst)}, {XD}')
    mt, mu = lane_masks()
    A(f's_mov_b32 {s(sMHI)}, 0\ns_mov_b32 {s(sMHI+1)}, -1\ns_mov_b32 {s(sSEL)}, 0x07060302')
    A(f's_mov_b32 {s(sMT)}, {hex(mt & 0xffffffff)}\ns_mov_b32 {s(sMT+1)}, {hex(mt >> 32)}\ns_mov_b32 {s(sMU)}, {hex(mu & 0xffffffff)}\ns_mov_b32 {s(sMU+1)}, {hex(mu >> 32)}')
    A(f'v_bfe_u32 {v(T+4)}, {v(vl)}, 3, 2\nv_and_b32 {v(T+5)}, 3, {v(vl)}\nv_lshl_add_u32 {v(T+4)}, {v(T+4)}, 2, {v(T+5)}')
    A(f'v_subrev_u32 {v(T+5)}, 6, {v(T+4)}\nv_min_u32 {v(T+4)}, {v(T+4)}, {v(T+5)}\nv_min_u32 {v(T+4)}, 4, {v(T+4)}')
    A(f's_lshl_b32 s6, {s(sE0)}, 2\ns_add_u32 s6, s6, {SM+X32}\nv_lshl_add_u32 {v(vEA)}, {v(T+4)}, 2, s6')
    A(f's_lshl_b32 s6, {s(sW)}, 3\ns_add_u32 s6, s6, {SM+ST}\nv_lshrrev_b32 {v(T+4)}, 1, {v(vg)}\nv_lshl_add_u32 {v(T+4)}, {v(T+4)}, 2, s6')
    A(f'v_mov_b32 {v(T+5)}, {SM+DUMMY}\nv_and_b32 {v(T+6)}, 1, {v(vg)}\nv_cmp_eq_u32 vcc, 1, {v(T+6)}')
    A(f'v_lshrrev_b32 {v(T+7)}, 1, {v(vg)}\nv_lshl_add_u32 {v(T+7)}, {v(T+7)}, 4, {v(vj)}\nv_lshlrev_b32 {v(T+7)}, 1, {v(T+7)}')
    A(f'v_cndmask_b32 {v(vSTW)}, {v(T+5)}, {v(T+4)}, vcc')
    A(f'v_lshlrev_b32 {v(vMLR)}, 5, {v(T+6)}\nv_add_u32 {v(vMLR)}, {SM+ML}, {v(vMLR)}')
    A(f's_cmp_ge_u32 {s(sW)}, 4\ns_cbranch_scc1 L_loader')

    if P['cprio']: A(f's_setprio {P["cprio"]}')
    A(f's_mul_i32 s6, {s(sB)}, 1152\nv_add_u32 {v(T+16)}, s6, {v(vT4)}')
    A(f'v_and_b32 {v(T+18)}, 31, {v(vl)}\nv_lshl_add_u32 {v(T+17)}, {v(T+18)}, 2, s6\nv_mov_b32 {v(T+19)}, {EPO}')
    A(f'global_load_dword {v(T+12)}, {v(T+16)}, {s(pX,2)}\nglobal_load_dword {v(T+13)}, {v(T+17)}, {s(pX,2)} offset:1024')
    A(f'buffer_load_dword {v(T+14)}, {v(T+19)}, {s(rWS,4)}, 0 offen sc1')
    raw_loads()
    A(f'v_bfe_u32 {v(T+4)}, {v(vj)}, 2, 1\nv_lshlrev_b32 {v(T+4)}, 9, {v(T+4)}')
    A(f'v_lshl_add_u32 {v(vQF)}, {v(vg)}, 4, {v(T+4)}\nv_add_u32 {v(vQF)}, {SM}, {v(vQF)}')
    A(f's_lshl_b32 s6, {s(sW)}, 7\ns_add_u32 s6, s6, {SM+PB}')
    A(f'v_lshl_add_u32 {v(vPW)}, {v(T+6)}, 9, {v(T+7)}\nv_add_u32 {v(vPW)}, s6, {v(vPW)}')
    A(f'v_lshl_add_u32 {v(vOBS)}, {v(T+6)}, 11, {v(T+7)}')
    A(f's_cmp_eq_u32 {s(sW)}, 3\ns_cbranch_scc1 L_clr')
    if P['prefetch']:
        A(f's_getpc_b64 s[4:5]\nL_pc:\ns_lshr_b32 s7, s2, 3\ns_mul_i32 s7, s7, 3\ns_add_u32 s7, s7, {s(sW)}\ns_lshl_b32 s7, s7, 8')
        A(f's_mov_b64 exec, 0xf\nv_lshl_add_u32 {v(T+19)}, {v(vl)}, 6, s7\nv_min_u32 {v(T+19)}, L_end-L_pc, {v(T+19)}')
        A(f'global_load_dword {v(T+39)}, {v(T+19)}, s[4:5]\ns_mov_b64 exec, -1\ns_waitcnt vmcnt(16)')
    else:
        A('s_waitcnt vmcnt(15)')
    A('s_branch L_cdone')
    A('L_clr:')
    for i in range(4): A(f'v_mov_b32 {v(T+8+i)}, -1')
    A(f's_mul_i32 s6, s2, 2560\ns_add_u32 s6, s6, {AR0}\nv_lshlrev_b32 {v(T+19)}, 2, {v(vL4)}')
    A(f'buffer_store_dwordx4 {v(T+8,4)}, {v(T+19)}, {s(rWS,4)}, s6 offen sc1\nbuffer_store_dwordx4 {v(T+8,4)}, {v(T+19)}, {s(rWS,4)}, s6 offen offset:1024 sc1')
    A(f's_mov_b32 exec_hi, 0\nbuffer_store_dwordx4 {v(T+8,4)}, {v(T+19)}, {s(rWS,4)}, s6 offen offset:2048 sc1\ns_mov_b32 exec_hi, -1')
    A('s_waitcnt vmcnt(18)')
    A('L_cdone:')
    A(f'v_readfirstlane_b32 {s(sTAG)}, {v(T+14)}')
    xa = T + 4
    def x_pair(src, areg):
        A(f'v_lshlrev_b32 {v(xa)}, 16, {v(src)}\nv_and_b32 {v(xa+1)}, 0xffff0000, {v(src)}\nv_mov_b32 {v(xa+2)}, 0')
        A(f'v_lshl_add_u32 {v(xa+3)}, {v(areg)}, 1, {s(sSM)}\nv_add_u32 {v(xa+4)}, {s(sSM)}, {v(areg)}')
        A(f'ds_write_b64 {v(xa+3)}, {v(xa,2)} offset:{X32}\nds_write_b32 {v(xa+4)}, {v(src)} offset:{XH}\nds_write_b32 {v(xa+4)}, {v(xa+2)} offset:{XL}')
    x_pair(T+12, vT4)
    partial_stats(xa, xa+6, vSTW)
    A(f's_mul_i32 {s(sTAG)}, {s(sTAG)}, 0x9e3779b1\ns_add_u32 {s(sTAG)}, {s(sTAG)}, 0x7f4a7c15\ns_and_b32 {s(sTAG)}, {s(sTAG)}, 0x1fffffff\ns_and_b32 {s(sTG12)}, {s(sTAG)}, 0xfff')
    A(f's_cmp_lg_u32 {s(sW)}, 0\ns_cbranch_scc1 L_noextra')
    A(f'v_lshlrev_b32 {v(T+18)}, 2, {v(T+18)}\nv_add_u32 {v(T+18)}, 1024, {v(T+18)}')
    x_pair(T+13, T+18)
    A(f'v_cndmask_b32 {v(xa)}, {v(xa)}, {v(xa+2)}, {s(sMHI,2)}\nv_cndmask_b32 {v(xa+1)}, {v(xa+1)}, {v(xa+2)}, {s(sMHI,2)}')
    A(f'v_add_u32 {v(T+18)}, 32, {v(vSTW)}\nv_min_u32 {v(T+18)}, {SM+DUMMY}, {v(T+18)}')
    partial_stats(xa, xa+6, T+18)
    A(f'v_mov_b32 {v(xa)}, {s(sTG12)}\nv_mov_b32 {v(xa+1)}, {SM+TAGW}\nds_write_b32 {v(xa+1)}, {v(xa)}')
    A('L_noextra:')
    A('s_waitcnt lgkmcnt(0)')
    amp(1)
    signal(F_A)
    A('s_waitcnt vmcnt(0)')
    A(f's_cmp_lg_u32 {s(sW)}, 3\ns_cbranch_scc1 L_noarr')
    wait_flag(F_A, sleep=0)
    A(f's_lshl_b32 s6, {s(sXCC)}, 29\ns_or_b32 s6, s6, {s(sTAG)}\nv_mov_b32 {v(T+8)}, s6')
    A(f's_lshl_b32 s6, {s(sX)}, 7\ns_lshr_b32 s7, s2, 3\ns_lshl_b32 s7, s7, 2\ns_add_u32 s6, s6, s7\ns_add_u32 s6, s6, {ARR}\nv_mov_b32 {v(T+9)}, s6')
    A(f's_mov_b64 exec, 1\nbuffer_store_dword {v(T+8)}, {v(T+9)}, {s(rWS,4)}, 0 offen sc1\ns_mov_b64 exec, -1')
    A('L_noarr:')
    for ins in coef_build(): A(ins)
    stamp(1)

    A('L_attn:')
    A(f's_mov_b32 {s(sQC)}, {s(sQAld)}\ns_mov_b32 {s(sKD)}, {s(sLAY)}\ns_mov_b32 {s(sPOL)}, {P["npa"]}')
    A(f's_cmp_eq_u32 {s(sLAY)}, 0\ns_cbranch_scc1 L_ga0\ns_mov_b32 {s(sPOL)}, -1')
    A(f's_cmp_lg_u32 {s(sFAST)}, 0\ns_cbranch_scc1 L_ga0\ns_add_u32 {s(sQC)}, {s(sQC)}, {QAB}')
    A('L_ga0:')
    pa = T + 36
    A(f'v_bfe_u32 {v(T+6)}, {v(vL4)}, 2, 2\nv_lshrrev_b32 {v(T+7)}, 6, {v(vL4)}\nv_lshlrev_b32 {v(T+7)}, 4, {v(T+7)}\nv_add_u32 {v(T+7)}, {SM+ZERO}, {v(T+7)}')
    for k in range(4):
        A(f'v_cmp_eq_u32 vcc, {k}, {v(T+6)}\nv_add_u32 {v(T+5)}, {PB+128*k}, {v(vQF)}')
        nop(1)
        A(f'v_cndmask_b32 {v(pa+k)}, {v(T+7)}, {v(T+5)}, vcc')
    A(f'v_lshrrev_b32 {v(T+6)}, 7, v0\nv_lshlrev_b32 {v(T+6)}, 8, {v(T+6)}\nv_lshl_add_u32 {v(T+6)}, v0, 1, {v(T+6)}\nv_add_u32 {v(T+6)}, {SM+QB}, {v(T+6)}')
    A('L_ga:')
    for kq in range(4):
        A(f'buffer_load_dword {v(T+kq)}, {v(vT4)}, {s(rWS,4)}, {s(sQC)} offen offset:{1024*kq} sc1')
    A('s_waitcnt vmcnt(0)')
    for k in range(4): A(f'v_xor_b32 {v(T+k)}, {s(sTG12)}, {v(T+k)}')
    A(f'v_or3_b32 {v(T+4)}, {v(T)}, {v(T+1)}, {v(T+2)}\nv_or_b32 {v(T+4)}, {v(T+4)}, {v(T+3)}\nv_and_b32 {v(T+4)}, 0xfff, {v(T+4)}')
    A(f'v_add_f32 {v(T)}, {v(T)}, {v(T+1)}\nv_add_f32 {v(T+2)}, {v(T+2)}, {v(T+3)}')
    A(f'v_cmp_ne_u32 vcc, 0, {v(T+4)}\nv_add_f32 {v(T)}, {v(T)}, {v(T+2)}\ns_cbranch_vccnz L_ga_f')
    A(f'v_cvt_pk_bf16_f32 {v(T)}, {v(T)}, {v(T)}\nds_write_b16 {v(T+6)}, {v(T)}\ns_waitcnt lgkmcnt(0)')
    stamp(3)
    A(f's_cmp_lg_u32 {s(sLAY)}, 0\ns_cbranch_scc1 L_qbar')
    signal(F_Q)
    A(f's_cmp_lg_u32 {s(sKD)}, 0\ns_cbranch_scc1 L_kdone')
    wait_flag(F_K)
    A(f's_mov_b32 {s(sKD)}, 2')
    A('L_kread:')
    kt = T + 8
    A(f'v_bfe_u32 {v(kt)}, {v(vL4)}, 2, 4\nv_lshrrev_b32 {v(kt+1)}, 6, {v(vL4)}\ns_lshl_b32 s6, {s(sW)}, 14')
    A(f'v_lshl_add_u32 {v(kt+2)}, {v(kt)}, 8, s6')
    for ks in range(4):
        A(f'v_add_u32 {v(kt+3)}, {4*ks}, {v(kt+1)}\nv_xor_b32 {v(kt+3)}, {v(kt+3)}, {v(kt)}\nv_lshl_add_u32 {v(kt+4+ks)}, {v(kt+3)}, 4, {v(kt+2)}')
        for tt in range(4):
            A(f'ds_read_b128 {a(aK+16*tt+4*ks,4)}, {v(kt+4+ks)} offset:{KB+4096*tt}')
    A('s_waitcnt lgkmcnt(0)')
    signal(F_KR)
    A(f's_cmp_eq_u32 {s(sKD)}, 1\ns_cbranch_scc1 L_ga')
    A('L_kdone:')
    amp(6)
    wait_flag(F_Q, sleep=0)
    A('s_branch L_qk')
    A('L_ga_f:')
    tmo_check(0)
    A(f's_sub_u32 {s(sPOL)}, {s(sPOL)}, 1\ns_cmp_lg_u32 {s(sPOL)}, 0\ns_cbranch_scc1 L_ga_f2\ns_add_u32 {s(sQC)}, {s(sQC)}, {QAB}')
    A(f'L_ga_f2:\ns_cmp_lg_u32 {s(sKD)}, 0\ns_cbranch_scc1 L_ga')
    A(f'v_mov_b32 {v(FT+5)}, {SM+FLAGS}')
    flag_test(F_K)
    A(f's_cbranch_vccz L_ga\ns_mov_b32 {s(sKD)}, 1\ns_branch L_kread')
    A('L_qbar:\ns_barrier')
    A('L_qk:')
    qf, DS = T, T+16
    for ks in range(4):
        A(f'ds_read_b128 {v(qf+4*ks,4)}, {v(vQF)} offset:{QB+64*ks}')
    for ks in range(4):
        A(f's_waitcnt lgkmcnt({3-ks})')
        for tt in range(4):
            A(f'v_mfma_f32_16x16x32_bf16 {v(DS+4*tt,4)}, {v(qf+4*ks,4)}, {a(aK+16*tt+4*ks,4)}, {v(DS+4*tt,4) if ks else 0}')
    sa, sb, mx, t0 = T+32, T+33, T+34, T+35
    A(f's_lshl_b32 s6, {s(sW)}, 3\nv_add_u32 {v(T)}, s6, {v(vMLR)}')
    nop(4)
    A(f'v_cndmask_b32 {v(sa)}, {v(DS)}, {v(DS+4)}, {s(sMHI,2)}')
    nop(2)
    A(f'v_cndmask_b32 {v(sb)}, {v(DS+8)}, {v(DS+12)}, {s(sMHI,2)}')
    A(f'v_max_f32 {v(mx)}, {v(sa)}, {v(sb)}')
    for k in (8, 4, 2, 1):
        nop(2); dpp('v_max_f32', mx, mx, mx, f'row_ror:{k}')
    A(f'v_mov_b32 {v(t0)}, {v(mx)}')
    nop(2)
    A(f'v_permlane32_swap_b32 {v(mx)}, {v(t0)}\nv_max_f32 {v(mx)}, {v(mx)}, {v(t0)}')
    A(f'v_sub_f32 {v(sa)}, {v(sa)}, {v(mx)}\nv_sub_f32 {v(sb)}, {v(sb)}, {v(mx)}\nv_exp_f32 {v(sa)}, {v(sa)}\nv_exp_f32 {v(sb)}, {v(sb)}')
    nop(1)
    A(f'v_cvt_pk_bf16_f32 {v(sa)}, {v(sa)}, {v(sb)}')
    A(f'v_lshlrev_b32 {v(sb)}, 16, {v(sa)}\nv_and_b32 {v(t0)}, 0xffff0000, {v(sa)}\nv_add_f32 {v(t0)}, {v(t0)}, {v(sb)}')
    A(f'ds_write_b16 {v(vPW)}, {v(sa)}\nds_write_b16_d16_hi {v(vPW)}, {v(sa)} offset:64')
    for k in (8, 4, 2, 1):
        dpp('v_add_f32', t0, t0, t0, f'row_ror:{k}')
        if k > 1: nop(2)
    A(f'v_mov_b32 {v(sb)}, {v(t0)}')
    nop(2)
    A(f'v_permlane32_swap_b32 {v(t0)}, {v(sb)}\nv_add_f32 {v(t0)}, {v(t0)}, {v(sb)}')
    A(f'ds_write_b64 {v(T)}, {v(mx,2)}\ns_waitcnt lgkmcnt(0)')
    stamp(4)
    A(f's_cmp_lg_u32 {s(sLAY)}, 0\ns_cbranch_scc1 L_pbar')
    signal(F_P)
    gc = T + 8
    A(f'v_lshlrev_b32 {v(gc+4)}, 2, {v(vL4)}\nv_add_u32 {v(gc+4)}, {ARR}, {v(gc+4)}')
    A(f'L_gchk:\nbuffer_load_dwordx4 {v(gc,4)}, {v(gc+4)}, {s(rWS,4)}, 0 offen sc1')
    for tt in range(2):
        A(f's_lshl_b32 s6, {s(sW)}, 1\ns_add_u32 s6, s6, {tt}')
        tr_addr(T+4+tt, 6, 3, 0, VB, T)
    wait_flag(F_V)
    amp(2)
    for ks in range(8):
        for tt in range(2):
            for hh in range(2):
                A(f'ds_read_b64_tr_b16 {a(aV+32*tt+4*ks+2*hh,2)}, {v(T+4+tt)} offset:{ks*8192+hh*1024}')
    A('s_waitcnt vmcnt(0)')
    for k in range(4): A(f'v_xor_b32 {v(gc+k)}, {s(sTAG)}, {v(gc+k)}')
    A(f'v_or3_b32 {v(gc+5)}, {v(gc)}, {v(gc+1)}, {v(gc+2)}\nv_or_b32 {v(gc+5)}, {v(gc+5)}, {v(gc+3)}\nv_and_b32 {v(gc+6)}, 0x1fffffff, {v(gc+5)}')
    A(f'v_cmp_ne_u32 vcc, 0, {v(gc+6)}\ns_cbranch_vccnz L_gchk_f')
    if P['fast']:
        A(f's_lshl_b32 s6, {s(sXCC)}, 29')
        for k in range(4): A(f'v_xor_b32 {v(gc+k)}, s6, {v(gc+k)}')
        A(f'v_or3_b32 {v(gc+5)}, {v(gc)}, {v(gc+1)}, {v(gc+2)}\nv_or_b32 {v(gc+5)}, {v(gc+5)}, {v(gc+3)}')
        A(f'v_cmp_ne_u32 vcc, 0, {v(gc+5)}\ns_lshl_b32 s6, {s(sX)}, 3\ns_lshr_b64 vcc, vcc, s6')
        A(f's_and_b32 s6, vcc_lo, 0xff\ns_cselect_b32 {s(sFAST)}, 0, 1')
        A(f'v_mov_b32 {v(gc)}, {s(sFAST)}\nv_mov_b32 {v(gc+1)}, {SM+TAGW+4}\nds_write_b32 {v(gc+1)}, {v(gc)}')
    wait_flag(F_P, sleep=0)
    A('s_branch L_pv')
    A('L_gchk_f:')
    tmo_check()
    A('s_branch L_gchk')
    A('L_pbar:\ns_barrier')
    A('L_pv:')
    pf, DO, ml = T, T+20, T+28
    NB = 5
    A(f'ds_read_b128 {v(ml,4)}, {v(vMLR)}\nds_read_b128 {v(ml+4,4)}, {v(vMLR)} offset:16')
    for ks in range(NB):
        A(f'ds_read_b128 {v(pf+4*ks,4)}, {v(pa+(ks >> 1))} offset:{64*(ks & 1)}')
    for ks in range(8):
        r = pf + 4*(ks % NB)
        A(f's_waitcnt lgkmcnt({min(NB-1, 7-ks)})')
        for tt in range(2):
            D = DO + 4*tt
            A(f'v_mfma_f32_16x16x32_bf16 {v(D,4)}, {v(r,4)}, {a(aV+32*tt+4*ks,4)}, {v(D,4) if ks else 0}')
        if ks + NB < 8:
            A(f'ds_read_b128 {v(r,4)}, {v(pa+((ks+NB) >> 1))} offset:{64*((ks+NB) & 1)}')
    M_, L_ = T+40, T+41
    A(f'v_max3_f32 {v(M_)}, {v(ml)}, {v(ml+2)}, {v(ml+4)}\nv_max_f32 {v(M_)}, {v(M_)}, {v(ml+6)}')
    for k in range(4): A(f'v_sub_f32 {v(ml+2*k)}, {v(ml+2*k)}, {v(M_)}')
    for k in range(4): A(f'v_exp_f32 {v(ml+2*k)}, {v(ml+2*k)}')
    A(f'v_mul_f32 {v(L_)}, {v(ml)}, {v(ml+1)}')
    for k in range(1, 4): A(f'v_fmac_f32 {v(L_)}, {v(ml+2*k)}, {v(ml+2*k+1)}')
    A(f'v_rcp_f32 {v(ml+1)}, {v(L_)}\nv_log_f32 {v(L_)}, {v(L_)}')
    for k in range(4): A(f'v_cndmask_b32 {v(DO+k)}, {v(DO+k)}, {v(DO+4+k)}, {s(sMHI,2)}')
    A(f'v_mul_f32 {v(DO)}, {v(DO)}, {v(ml)}')
    for k in range(1, 4): A(f'v_fmac_f32 {v(DO)}, {v(DO+k)}, {v(ml+2*k)}')
    A(f'v_mul_f32 {v(DO)}, {v(DO)}, {v(ml+1)}\nv_add_f32 {v(L_)}, {v(L_)}, {v(M_)}\nv_lshrrev_b32 {v(DO+2)}, 1, {v(vL4)}')
    A(f'v_mov_b32_dpp {v(DO+1)}, {v(DO)} quad_perm:[1,0,3,2] row_mask:0xf bank_mask:0xf')
    A(f's_mov_b32 exec_lo, 0x55555555\ns_mov_b32 exec_hi, 0x55555555')
    A(f'v_cvt_pk_bf16_f32 {v(DO)}, {v(DO)}, {v(DO+1)}')
    def o_st(m):
        A(f'buffer_store_dword {v(DO)}, {v(vOBS)}, {s(rWS,4)}, {s(sOBst)} offen{m}')
        l = A.label('nolse')
        A(f's_cmp_lg_u32 {s(sW)}, 0\ns_cbranch_scc1 {l}\ns_mov_b64 exec, 0x10001')
        A(f'buffer_store_dword {v(L_)}, {v(DO+2)}, {s(rWS,4)}, {s(sLSEst)} offen{m}')
        A(f'{l}:\ns_mov_b64 exec, -1')
    A(f's_cmp_eq_u32 {s(sFAST)}, 0\ns_cbranch_scc1 L_o_slow')
    o_st('')
    A('L_o_done:')
    stamp(5)
    A(f'v_and_b32 {v(T+9)}, 28, {v(vL4)}\nv_add_u32 {v(T+13)}, {s(sSM)}, {v(vT4)}')
    A('L_gb:')
    for k in range(8):
        A(f'buffer_load_dword {v(T+k)}, {v(vL4)}, {s(rWS,4)}, {s(sOBld)} offen offset:{256*k} sc1')
    A(f'buffer_load_dword {v(T+8)}, {v(T+9)}, {s(rWS,4)}, {s(sLSEld)} offen sc1')
    A('s_waitcnt vmcnt(0)')
    mm, ff = T+10, T+8
    check_sentinel(range(T, T+9), T+11, 'L_gb_f')
    dpp('v_max_f32', mm, ff, ff, 'row_ror:4')
    unp = [f'v_lshlrev_b32 {v(T+16+k)}, 16, {v(T+k)}\nv_and_b32 {v(T+k)}, 0xffff0000, {v(T+k)}' for k in range(8)]
    A(unp[0]); dpp('v_max_f32', mm, mm, mm, 'row_ror:2')
    A(unp[1]); dpp('v_max_f32', mm, mm, mm, 'row_ror:1')
    A(f'v_sub_f32 {v(ff)}, {v(ff)}, {v(mm)}\nv_exp_f32 {v(ff)}, {v(ff)}')
    A(unp[2]); dpp('v_add_f32', mm, ff, ff, 'row_ror:4')
    A(unp[3]); dpp('v_add_f32', mm, mm, mm, 'row_ror:2')
    A(unp[4]); dpp('v_add_f32', mm, mm, mm, 'row_ror:1')
    A(f'v_rcp_f32 {v(mm)}, {v(mm)}')
    A(unp[5])
    A(f'v_mul_f32 {v(ff)}, {v(ff)}, {v(mm)}')
    A(unp[6]); A(unp[7])
    lo, hi = T+11, T+12
    for k in range(8):
        op = 'v_mul_f32' if k == 0 else 'v_fmac_f32'
        dpp(op, lo, ff, T+16+k, f'row_newbcast:{k}')
        dpp(op, hi, ff, T+k, f'row_newbcast:{k}')
    A(f'v_cvt_pk_bf16_f32 {v(lo)}, {v(lo)}, {v(hi)}\nds_write_b32 {v(T+13)}, {v(lo)} offset:{OL}')
    A('s_waitcnt lgkmcnt(0)\ns_barrier')
    stamp(6)
    if P['amp'] == 3: A(f's_cmp_lg_u32 {s(sLAY)}, 0\ns_cbranch_scc1 L_amp3'); amp(3); A('L_amp3:')
    A(f's_or_b32 s6, s2, {s(sW)}\ns_or_b32 s6, s6, {s(sLAY)}\ns_cmp_lg_u32 s6, 0\ns_cbranch_scc1 L_cbar')
    A(f'v_mov_b32 {v(T)}, {s(sTAG)}\nv_mov_b32 {v(T+1)}, {EPO}\ns_mov_b64 exec, 1')
    A(f'buffer_store_dword {v(T)}, {v(T+1)}, {s(rWS,4)}, 0 offen sc1\ns_mov_b64 exec, -1\ns_branch L_cbar')
    A('L_o_slow:')
    o_st(' sc1')
    A('s_waitcnt vmcnt(0)\ns_branch L_o_done')
    A('L_gb_f:')
    tmo_check(1)
    A('s_branch L_gb')

    def q_stage():
        xf, st, D0, D1 = T, T+20, T+32, T+36
        A(f'v_lshrrev_b32 {v(T+18)}, 6, {v(vL4)}\nv_lshlrev_b32 {v(T+18)}, 3, {v(T+18)}\nv_sub_u32 {v(T+18)}, {v(vXA)}, {v(T+18)}')
        for ks in range(4):
            A(f'ds_read_b128 {v(xf+4*ks,4)}, {v(vXA)} offset:{64*ks}')
        A(f'ds_read_b64 {v(xf+16,2)}, {v(T+18)} offset:256')
        A(f'v_mov_b32 {v(T+19)}, {s(sSM)}')
        for k in range(3): A(f'ds_read_b128 {v(st+4*k,4)}, {v(T+19)} offset:{ST+16*k}')
        for ks in range(4):
            A(f's_waitcnt lgkmcnt({7-ks})')
            for tt, D in enumerate((D0, D1)):
                A(f'v_mfma_f32_16x16x32_bf16 {v(D,4)}, {v(xf+4*ks,4)}, {a(aWQ+16*tt+4*ks,4)}, {v(D,4) if ks else 0}')
        A('s_waitcnt lgkmcnt(3)')
        for tt, D in enumerate((D0, D1)):
            A(f'v_mfma_f32_16x16x16_bf16 {v(D,4)}, {v(xf+16,2)}, {a(aWQH+2*tt,2)}, {v(D,4)}')
        A('s_waitcnt lgkmcnt(0)')
        stats_calc(st)
        qs = (128 ** -0.5) * math.log2(math.e)
        for D in (D0, D1):
            A(f'v_add_f32 {v(D)}, {v(D)}, {v(D+1)}\nv_fma_f32 {v(D)}, -{v(st)}, {v(D+2)}, {v(D)}')
        A(f'v_mul_f32 {v(st+2)}, {hex(f2u(qs))}, {v(st+2)}\ns_mov_b64 exec, 0xffff')
        for D in (D0, D1): A(f'v_mul_f32 {v(D)}, {v(D)}, {v(st+2)}')
        for D in (D0, D1): A(f'v_and_b32 {v(D)}, 0xfffff000, {v(D)}')
        for D in (D0, D1): A(f'v_or_b32 {v(D)}, {s(sTG12)}, {v(D)}')
        A(f'buffer_store_dword {v(D0)}, {v(vL4)}, {s(rWS,4)}, {s(sQAst)} offen')
        A(f'buffer_store_dword {v(D1)}, {v(vL4)}, {s(rWS,4)}, {s(sQAst)} offen offset:64')
        l = A.label('q1')
        A(f's_cmp_lg_u32 {s(sFAST)}, 0\ns_cbranch_scc1 {l}\ns_add_u32 {s(sQC)}, {s(sQAst)}, {QAB}')
        A(f'buffer_store_dword {v(D0)}, {v(vL4)}, {s(rWS,4)}, {s(sQC)} offen sc1')
        A(f'buffer_store_dword {v(D1)}, {v(vL4)}, {s(rWS,4)}, {s(sQC)} offen offset:64 sc1')
        A(f'{l}:\ns_mov_b64 exec, -1')

    A('L_loader:')
    TH = P['throttle']
    vKo2, vVo2 = CB+70, CB+71
    A(f'v_mov_b32 {v(vKo2)}, {v(vKo)}\nv_mov_b32 {v(vVo2)}, {v(vVo)}')
    A(f's_and_b32 s4, {s(sW)}, 3\ns_lshl_b32 s6, s4, 10\ns_mov_b32 s7, s6')
    def dma(vr, srd, step_m0, step_off):
        A(f's_mov_b32 m0, s6\ns_add_u32 s6, s6, {step_m0}')
        A(f'buffer_load_dwordx4 {v(vr)}, {s(srd,4)}, s7 offen nt lds')
        if step_off: A(f's_add_u32 s7, s7, {step_off}')
    for i in range(TH):
        dma(vKo2, rK, 4096, 4096)
        if i == 0:
            A(f's_lshr_b32 s5, {s(sSP)}, 1\ns_mul_i32 s5, s5, 288\ns_add_u32 s5, s5, {SM+XH}')
            A(f'v_mov_b32 {v(vXA)}, {SM+ONES}\nv_mov_b32 {v(T+4)}, s5\nv_add_u32 {v(T+5)}, {XL-XH}, {v(T+4)}\nv_cmp_eq_u32 vcc, 0, {v(vj)}')
            A(f'v_lshlrev_b32 {v(vQF)}, 4, {v(vg)}\nv_add_u32 {v(vQF)}, {SM}, {v(vQF)}')
            A(f'v_cndmask_b32 {v(vXA)}, {v(vXA)}, {v(T+4)}, vcc\nv_cmp_eq_u32 vcc, 1, {v(vj)}')
            A(f'v_and_b32 {v(T+4)}, 1, {v(vj)}\nv_lshl_add_u32 {v(T+4)}, {v(vg)}, 1, {v(T+4)}\nv_mul_u32_u24 {v(T+4)}, {8*PCS}, {v(T+4)}')
            A(f'v_cndmask_b32 {v(vXA)}, {v(vXA)}, {v(T+5)}, vcc\nv_lshl_add_u32 {v(vXA)}, {v(vg)}, 4, {v(vXA)}')
            A(f'v_lshrrev_b32 {v(T+5)}, 1, {v(vj)}\nv_lshl_add_u32 {v(vPCS)}, {v(T+5)}, 2, {v(T+4)}')
        if i == 1:
            for tt in range(2):
                A(f's_lshl_b32 s5, s4, 1\ns_add_u32 s5, s5, {tt}')
                tr_addr(T+12+2*tt, 5, 3, 0, WQB, T+4)
                tr_addr(T+13+2*tt, 5, 2, 1, WQB + 128*256, T+4)
    A(f's_waitcnt vmcnt({TH})')
    signal(F_WL)
    stamp(1)
    wait_flag(F_WL, sleep=0)
    for tt in range(2):
        for ks in range(4):
            for hh in range(2):
                A(f'ds_read_b64_tr_b16 {a(aWQ+16*tt+4*ks+2*hh,2)}, {v(T+12+2*tt)} offset:{ks*8192+hh*1024}')
        A(f'ds_read_b64_tr_b16 {a(aWQH+2*tt,2)}, {v(T+13+2*tt)}')
    nk = TH
    for i in range(2):
        dma(vKo2, rK, 4096, 4096); nk += 1
    wait_flag(F_A, sleep=0)
    signal(F_WQ)
    A(f'v_mov_b32 {v(T)}, {SM+TAGW}\nds_read_b32 {v(T)}, {v(T)}\ns_waitcnt lgkmcnt(0)\nv_readfirstlane_b32 {s(sTG12)}, {v(T)}')
    q_stage()
    stamp(9)
    seq = ['K']*nk + ['q']*4
    def issue(name): seq.append(name)
    def landed(name):
        last = max(i for i, n in enumerate(seq) if n == name)
        return len(seq) - 1 - last
    def thr(): A(f's_waitcnt vmcnt({TH})')
    while nk < 16:
        dma(vKo2, rK, 4096, 4096); nk += 1; issue('K'); thr()
    raw_loads()
    for _ in range(15): issue('R')
    A('s_lshl_b32 s7, s4, 10')
    build = coef_build()
    wo_pat = []
    vl2 = T + 16
    wo_pat.append(f'v_lshrrev_b32 {v(vl2)}, 2, {v(vL4)}')
    vWO = T + 8
    for k in range(5):
        wo_pat.append(f'v_add_u32 {v(T+13)}, {64*k}, {v(vl2)}\nv_mul_u32_u24 {v(T+14)}, 13108, {v(T+13)}\nv_lshrrev_b32 {v(T+14)}, 16, {v(T+14)}')
        wo_pat.append(f'v_mul_u32_u24 {v(T+15)}, 5, {v(T+14)}\nv_sub_u32 {v(T+13)}, {v(T+13)}, {v(T+15)}\nv_mul_u32_u24 {v(T+14)}, 1152, {v(T+14)}')
        wo_pat.append(f'v_lshl_add_u32 {v(vWO+k)}, {v(T+13)}, 4, {v(T+14)}')
    ksig = False
    nslots = 16 + 5 - TH
    per = -(-len(build) // nslots)
    for i in range(16):
        if i == 13: wait_flag(F_WQ)
        dma(vVo2, rV, 4096, 4096); issue('V')
        if i == 0:
            for ins in wo_pat: A(ins)
        if not ksig and landed('K') - 15 >= min(TH, 4):
            A(f's_waitcnt vmcnt({landed("K")})'); signal(F_K); stamp(2); ksig = True
        if i >= TH - 1:
            thr()
        if i >= TH:
            for ins in build[:per]: A(ins)
            build = build[per:]
    stamp(3)
    A(f's_mul_i32 s6, s4, 5120\ns_add_u32 s6, s6, {SP}\ns_mul_i32 s7, s4, {128*1152}')
    for i in range(10):
        dma(vWO + i % 5, rWO, 1024, 0); issue('W')
        if i < 4: thr()
        if i == 4:
            A('s_waitcnt vmcnt(5)'); signal(F_V); stamp(4)
            A(f's_add_u32 s7, s7, {64*1152}\ns_mul_i32 s6, s4, 5120')
            wait_flag(F_KR)
        if i < 4 or i == 9:
            n = per if i < 4 else len(build)
            for ins in build[:n]: A(ins)
            build = build[n:]
    stamp(5)
    A(f'v_bfe_u32 {v(T)}, {v(vL4)}, 4, 2\nv_bfe_u32 {v(T+1)}, {v(vL4)}, 2, 2\nv_lshrrev_b32 {v(T+2)}, 6, {v(vL4)}\nv_lshl_add_u32 {v(T)}, {v(T+2)}, 3, {v(T)}')
    A(f'v_mul_u32_u24 {v(T)}, 80, {v(T)}\nv_lshl_add_u32 {v(T)}, {v(T+1)}, 3, {v(T)}')
    A(f's_and_b32 s6, {s(sC)}, 1\ns_lshl_b32 s6, s6, 3\ns_lshl_b32 s7, s4, 5\ns_add_u32 s6, s6, s7\nv_add_u32 {v(T)}, s6, {v(T)}')
    A(f'v_add_u32 {v(T+1)}, {SP}, {v(T)}\ns_waitcnt vmcnt(0)')
    signal(F_WO)
    wait_flag(F_WO, sleep=0)
    for ks in range(16):
        for hh in range(2):
            A(f'ds_read_b64_tr_b16 {a(aWO+4*ks+2*hh,2)}, {v(T if ks & 2 else T+1)} offset:{5120*(ks >> 2)+2560*(ks & 1)+320*hh}')
    A('s_waitcnt lgkmcnt(0)')
    stamp(6)
    A('L_wo:\ns_barrier')
    A(f's_cmp_eq_u32 {s(sW)}, 7\ns_cbranch_scc1 L_cbar')
    of = lambda ks: v(T+4*ks, 4) if ks < 9 else a(aSP+4*(ks-9), 4)
    for ks in range(16):
        A(f'ds_read_b128 {of(ks)}, {v(vQF)} offset:{OL+64*ks}')
    DW = T + 36
    for ks in range(16):
        A(f's_waitcnt lgkmcnt({15-ks})')
        A(f'v_mfma_f32_16x16x32_bf16 {v(DW,4)}, {of(ks)}, {a(aWO+4*ks,4)}, {v(DW,4) if ks else 0}')
    A(f's_cmp_eq_u32 {s(sW)}, 6\ns_cselect_b32 s6, 0x000f000f, -1')
    nop(6)
    A(f'v_mov_b32_dpp {v(DW+4)}, {v(DW)} quad_perm:[0,0,2,2] row_mask:0xf bank_mask:0xf')
    A(f'v_mov_b32_dpp {v(DW+5)}, {v(DW)} quad_perm:[1,1,3,3] row_mask:0xf bank_mask:0xf')
    A(f's_mov_b32 exec_lo, s6\ns_mov_b32 exec_hi, s6')
    A(f'v_cvt_pk_bf16_f32 {v(DW)}, {v(DW+4)}, {v(DW+5)}')
    A(f'buffer_store_dword {v(DW)}, {v(vPCS)}, {s(rWS,4)}, {s(sPCst)} offen sc1\ns_mov_b64 exec, -1')
    stamp(7)
    A('s_waitcnt vmcnt(0)')
    stamp(8)

    A('L_cbar:')
    g0 = T
    xs_, xad, xad2 = T+18, T+20, T+21
    A(f'v_lshl_add_u32 {v(xad)}, {v(vT4)}, 1, {s(sSM)}\nv_mov_b32 {v(xs_)}, 0\nv_mov_b32 {v(xs_+1)}, 0')
    A('s_barrier')
    if P['stamps'] == 1: cstamp(1)
    A(f's_cmp_gt_u32 {s(sW)}, 4\ns_cbranch_scc1 L_gc_done')
    A(f's_cmp_eq_u32 {s(sW)}, 4\ns_cselect_b32 exec_hi, 0, -1')
    A('L_gc:')
    for k in range(8):
        A(f'buffer_load_dword {v(g0+k)}, {v(vT4)}, {s(rWS,4)}, {s(sPCld if k < 4 else sPCld2)} offen offset:{PCS*(k & 3)} sc1')
    A(f'ds_read_b64 {v(xs_,2)}, {v(xad)} offset:{X32}')
    A('s_waitcnt vmcnt(0) lgkmcnt(0)')
    check_sentinel(range(g0, g0+8), g0+8, 'L_gc_f')
    for k in range(8):
        r = g0 + 8 + 2*(k & 1)
        A(f'v_lshlrev_b32 {v(r)}, 16, {v(g0+k)}\nv_and_b32 {v(r+1)}, 0xffff0000, {v(g0+k)}')
        if k == 1:
            A(f'v_pk_add_f32 {v(g0+12,2)}, {v(g0+8,2)}, {v(g0+10,2)}')
        elif k > 1:
            acc = xs_ if k & 1 else g0+12
            A(f'v_pk_add_f32 {v(acc,2)}, {v(acc,2)}, {v(r,2)}')
    A(f'v_pk_add_f32 {v(xs_,2)}, {v(xs_,2)}, {v(g0+12,2)}')
    A(f'ds_write_b64 {v(xad)}, {v(xs_,2)} offset:{X32}\ns_mov_b64 exec, -1')
    partial_stats(xs_, g0, vSTW)
    A('s_waitcnt lgkmcnt(0)')
    A('L_gc_done:')
    A1, A2, ACC = T+32, T+36, T+40
    A(f'v_mov_b32 {v(A2+3)}, 0\nv_mov_b32 {v(A2+1)}, 0x3f803f80')
    A(f'v_cndmask_b32 {v(A2)}, {v(A2+3)}, {v(A2+1)}, {s(sMT,2)}\nv_cndmask_b32 {v(A2+2)}, {v(A2+3)}, {v(A2+1)}, {s(sMU,2)}')
    A('s_barrier')
    cstamp(7)
    if P['ms']: stamp(3)
    st = T
    stats_issue(st)
    A(f'ds_read_b32 {v(st+13)}, {v(vEA)}')
    if P['touch']:
        A(f's_cmp_lg_u32 {s(sLAY)}, 0\ns_cbranch_scc1 L_notouch\ns_cmp_gt_u32 {s(sW)}, 3\ns_cbranch_scc1 L_notouch')
        A(f'v_lshlrev_b32 {v(st+14)}, 4, {v(vL4)}\ns_add_u32 s6, {s(sQAld)}, {LQ}\ns_add_u32 s7, {s(sOBld)}, {LA}')
        A(f'v_and_b32 {v(st+15)}, 0x7c0, {v(st+14)}')
        A(f'buffer_load_dword {v(ACC+5)}, {v(st+14)}, {s(rWS,4)}, s6 offen sc1\nbuffer_load_dword {v(ACC+5)}, {v(st+15)}, {s(rWS,4)}, s7 offen sc1')
        A(f's_add_u32 s7, {s(sLSEld)}, {LA}\nv_mov_b32 {v(st+15)}, 0\nbuffer_load_dword {v(ACC+5)}, {v(st+15)}, {s(rWS,4)}, s7 offen sc1')
        A('L_notouch:')
    A('s_waitcnt lgkmcnt(0)')
    stats_calc(st, twice=True)
    h = st + 13
    A(f'v_sub_f32 {v(h)}, {v(h)}, {v(st)}\nv_mul_f32 {v(h)}, {v(h)}, {v(st+2)}')
    A(f'v_cvt_pk_bf16_f32 {v(h)}, {v(h)}, {v(h)}')
    A(f'v_cndmask_b32 {v(A1+3)}, {v(A2+3)}, {v(h)}, {s(sMT,2)}\nv_cndmask_b32 {v(A2+1)}, {v(A2+3)}, {v(h)}, {s(sMU,2)}')
    A(f'v_and_b32 {v(st)}, 0xffff0000, {v(A1+3)}\nv_mul_f32 {v(st+1)}, {v(st)}, {v(st)}\nv_mul_f32 {v(st+2)}, {v(st+1)}, {v(st)}')
    A(f'v_and_b32 {v(st+3)}, 0xffff0000, {v(st+1)}\nv_perm_b32 {v(A1+1)}, {v(st+1)}, {v(st+1)}, {s(sSEL)}\nv_and_b32 {v(st+4)}, 0xffff0000, {v(st+2)}')
    A(f'v_sub_f32 {v(st+3)}, {v(st+1)}, {v(st+3)}\nv_sub_f32 {v(st+4)}, {v(st+2)}, {v(st+4)}\nv_perm_b32 {v(A1)}, {v(st+2)}, {v(st+2)}, {s(sSEL)}')
    A(f'v_cvt_pk_bf16_f32 {v(A1+2)}, {v(st+4)}, {v(st+3)}')
    nop(2)
    def mm2(f):
        D = T + 16*(f & 1)
        A(f'v_mfma_f32_32x32x16_bf16 {v(D,16)}, {v(A1,4)}, {v(CB+8*f,4)}, 0')
        A(f'v_mfma_f32_32x32x16_bf16 {v(D,16)}, {v(A2,4)}, {v(CB+8*f+4,4)}, {v(D,16)}')
    def m1(f): A(f'v_mfma_f32_32x32x16_bf16 {v(T+16*(f & 1),16)}, {v(A1,4)}, {v(CB+8*f,4)}, 0')
    def m2(f): A(f'v_mfma_f32_32x32x16_bf16 {v(T+16*(f & 1),16)}, {v(A2,4)}, {v(CB+8*f+4,4)}, {v(T+16*(f & 1),16)}')
    if P['mprio']: A('s_setprio 0')
    if P['ms']: stamp(4)
    mm2(0)
    for f in range(9):
        D = T + 16*(f & 1)
        nx = f + 1 < 9
        if f == 0: m1(1); nop(11)
        elif nx: nop(P['mnop']); m1(f+1)
        else: nop(P['mnop'] + 1)
        for e in range(5): A(f'v_exp_f32 {v(D+e)}, {v(D+e)}')
        A(f'v_pk_add_f32 {v(D,2)}, {v(D,2)}, 1.0 op_sel_hi:[1,0]\nv_pk_add_f32 {v(D+2,2)}, {v(D+2,2)}, 1.0 op_sel_hi:[1,0]\nv_add_f32 {v(D+4)}, 1.0, {v(D+4)}')
        if nx: m2(f+1)
        for e in range(5): A(f'v_rcp_f32 {v(D+e)}, {v(D+e)}')
        if f == 0:
            A(f'v_pk_mul_f32 {v(ACC,2)}, {v(D,2)}, {v(D+6,2)}\nv_pk_mul_f32 {v(ACC+2,2)}, {v(D+2,2)}, {v(D+8,2)}\nv_mul_f32 {v(ACC+4)}, {v(D+4)}, {v(D+10)}')
        else:
            A(f'v_pk_fma_f32 {v(ACC,2)}, {v(D,2)}, {v(D+6,2)}, {v(ACC,2)}\nv_pk_fma_f32 {v(ACC+2,2)}, {v(D+2,2)}, {v(D+8,2)}, {v(ACC+2,2)}\nv_fmac_f32 {v(ACC+4)}, {v(D+4)}, {v(D+10)}')
    if P['ms']: stamp(5)
    U = T + 16
    A(f'v_mov_b32 {v(U+4)}, {v(ACC+4)}')
    A(f'v_lshrrev_b32 {v(U)}, 6, {v(vL4)}\nv_and_b32 {v(U+1)}, 1, {v(U)}')
    A(f'v_permlane32_swap_b32 {v(ACC)}, {v(ACC+1)}\nv_permlane32_swap_b32 {v(ACC+2)}, {v(ACC+3)}\nv_permlane32_swap_b32 {v(ACC+4)}, {v(U+4)}')
    A(f'v_add_f32 {v(ACC)}, {v(ACC)}, {v(ACC+1)}\nv_add_f32 {v(ACC+2)}, {v(ACC+2)}, {v(ACC+3)}\nv_add_f32 {v(ACC+4)}, {v(ACC+4)}, {v(U+4)}')
    A(f'v_mov_b32 {v(U+4)}, {v(ACC+4)}')
    A(f'v_lshrrev_b32 {v(U)}, 1, {v(U)}\nv_lshl_add_u32 {v(U)}, {v(U+1)}, 1, {v(U)}')
    A(f'v_permlane16_swap_b32 {v(ACC)}, {v(ACC+2)}\nv_permlane16_swap_b32 {v(ACC+4)}, {v(U+4)}')
    A(f'v_add_f32 {v(ACC)}, {v(ACC)}, {v(ACC+2)}\nv_add_f32 {v(ACC+4)}, {v(ACC+4)}, {v(U+4)}')
    fill = [f's_lshl_b32 s6, {s(sW)}, 2', f's_add_u32 s6, s6, {SM+RED}', f'v_lshl_add_u32 {v(U)}, {v(U)}, 5, s6', f'v_mov_b32 {v(U+1)}, s6']
    for k, fi in zip((8, 4, 2, 1), fill):
        A(fi)
        dpp('v_add_f32', ACC, ACC, ACC, f'row_ror:{k}')
        dpp('v_add_f32', ACC+4, ACC+4, ACC+4, f'row_ror:{k}')
    A(f'ds_write_b32 {v(U)}, {v(ACC)}\nds_write_b32 {v(U+1)}, {v(ACC+4)} offset:128')
    if P['ms']: stamp(6)
    TT = T
    A(f's_cmp_lg_u32 {s(sW)}, 0\ns_cbranch_scc1 L_nofin')
    A(f'v_and_b32 {v(U)}, 28, {v(vL4)}\nv_lshl_add_u32 {v(U+1)}, {v(U)}, 3, {s(sSM)}')
    A(f's_lshl_b32 s6, {s(sE0)}, 2\ns_add_u32 s6, s6, {SM+X32}\nv_add_u32 {v(U+2)}, s6, {v(U)}\nds_read_b32 {v(U+2)}, {v(U+2)}')
    A(f'v_lshrrev_b32 {v(U+3)}, 5, {v(vL4)}\nv_mul_u32_u24 {v(U+3)}, {XDS}, {v(U+3)}\nv_add_u32 {v(U+3)}, {v(U+3)}, {v(U)}')
    A(f's_lshl_b32 s6, 1, {s(sNE)}\ns_sub_u32 s6, s6, 1\ns_mul_i32 s7, s6, 0x01010101\ns_lshl_b32 s5, {s(sB2)}, 16')
    A('s_waitcnt lgkmcnt(0)\ns_barrier')
    stamp(8)
    A(f'ds_read_b128 {v(TT,4)}, {v(U+1)} offset:{RED}\nds_read_b128 {v(TT+4,4)}, {v(U+1)} offset:{RED+16}')
    A(f'v_add_f32 {v(U+2)}, s5, {v(U+2)}\ns_waitcnt lgkmcnt(0)')
    A(f'v_pk_add_f32 {v(TT,2)}, {v(TT,2)}, {v(TT+2,2)}\nv_pk_add_f32 {v(TT+4,2)}, {v(TT+4,2)}, {v(TT+6,2)}\nv_pk_add_f32 {v(TT,2)}, {v(TT,2)}, {v(TT+4,2)}')
    A(f'v_add_f32 {v(TT)}, {v(TT)}, {v(U+2)}\nv_add_f32 {v(TT)}, {v(TT)}, {v(TT+1)}')
    A(f's_cmp_lg_u32 {s(sLAY)}, 0\ns_cbranch_scc1 L_out')
    A('s_mov_b32 exec_lo, s7\ns_mov_b32 exec_hi, s7')
    A(f'buffer_store_dword {v(TT)}, {v(U+3)}, {s(rWS,4)}, {s(sXDst)} offen sc1\ns_mov_b64 exec, -1\ns_branch L_dpace')
    A('L_nofin:\ns_waitcnt lgkmcnt(0)\ns_barrier')
    cstamp(8)
    A(f's_cmp_lg_u32 {s(sLAY)}, 0\ns_cbranch_scc1 L_fin')
    A('L_dpace:')
    amp(4)
    A(f'v_lshl_add_u32 {v(xad)}, {v(vT4)}, 1, {s(sSM)}\nv_add_u32 {v(xad2)}, {s(sSM)}, {v(vT4)}\nv_lshlrev_b32 {v(T+22)}, 1, {v(vT4)}')
    A(f'v_mov_b32 {v(xs_)}, 0\nv_mov_b32 {v(xs_+1)}, 0')
    if P['fast']:
        A(f'v_mov_b32 {v(T+23)}, {SM+TAGW+4}\nds_read_b32 {v(T+23)}, {v(T+23)}\ns_waitcnt lgkmcnt(0)\nv_readfirstlane_b32 {s(sFAST)}, {v(T+23)}')
    for r in (sQAst, sQAld): A(f's_add_u32 {s(r)}, {s(r)}, {LQ}')
    for r in (sOBst, sLSEst, sOBld, sLSEld, sPCst, sPCld, sPCld2): A(f's_add_u32 {s(r)}, {s(r)}, {LA}')
    A(f's_mov_b32 {s(sLAY)}, 1\ns_waitcnt vmcnt(0)')
    if P['stamps'] == 1: cstamp(9)
    A('s_barrier')
    A(f's_cmp_gt_u32 {s(sW)}, 4\ns_cbranch_scc1 L_gd_done')
    A(f's_cmp_eq_u32 {s(sW)}, 4\ns_cselect_b32 exec_hi, 0, -1')
    A('L_gd:')
    for k in range(2):
        A(f'buffer_load_dword {v(xs_+k)}, {v(T+22)}, {s(rWS,4)}, {s(sXDld)} offen offset:{4*k} sc1')
    A('s_waitcnt vmcnt(0)')
    check_sentinel([xs_, xs_+1], g0+2, 'L_gd_f')
    A(f'v_cvt_pk_bf16_f32 {v(g0+2)}, {v(xs_)}, {v(xs_+1)}\nds_write_b64 {v(xad)}, {v(xs_,2)} offset:{X32}')
    A(f'v_lshlrev_b32 {v(g0+4)}, 16, {v(g0+2)}\nv_and_b32 {v(g0+5)}, 0xffff0000, {v(g0+2)}\nds_write_b32 {v(xad2)}, {v(g0+2)} offset:{XH}')
    A(f'v_sub_f32 {v(g0+4)}, {v(xs_)}, {v(g0+4)}\nv_sub_f32 {v(g0+5)}, {v(xs_+1)}, {v(g0+5)}\nv_cvt_pk_bf16_f32 {v(g0+4)}, {v(g0+4)}, {v(g0+5)}')
    A(f'ds_write_b32 {v(xad2)}, {v(g0+4)} offset:{XL}\ns_mov_b64 exec, -1')
    partial_stats(xs_, g0, vSTW)
    A('s_waitcnt lgkmcnt(0)')
    A('L_gd_done:\ns_barrier')
    if P['stamps'] == 1:
        A('s_waitcnt lgkmcnt(0)')
        emit_stamps(A, 0)
        stamp(0)
    A(f's_cmp_lt_u32 {s(sW)}, 4\ns_cbranch_scc1 L_attn')
    q_stage()
    stamp(2)
    A('s_barrier\ns_barrier\ns_branch L_wo')
    A('L_gc_f:')
    tmo_check(2)
    A('s_branch L_gc')
    A('L_gd_f:')
    tmo_check(3)
    A('s_branch L_gd')
    A('L_out:')
    A(f's_load_dwordx2 s[4:5], s[0:1], 80\ns_mov_b32 exec_lo, s6\ns_mov_b32 exec_hi, 0')
    A(f's_mul_i32 s6, {s(sB)}, 576\ns_add_u32 s6, s6, {s(sE0)}\ns_lshl_b32 s6, s6, 1')
    A(f'v_lshrrev_b32 {v(U)}, 1, {v(vL4)}\nv_add_u32 {v(U)}, s6, {v(U)}\nv_cvt_pk_bf16_f32 {v(TT)}, {v(TT)}, {v(TT)}')
    A(f's_waitcnt lgkmcnt(0)\nglobal_store_short {v(U)}, {v(TT)}, s[4:5]')
    if P['amp'] >= 0:
        amp(5)
        A('s_memrealtime s[86:87]\ns_waitcnt lgkmcnt(0)\ns_sub_u32 s84, s84, s82\ns_lshl_b32 s84, s84, 2\ns_add_u32 s86, s86, s84')
        A('L_amp:\ns_memrealtime s[88:89]\ns_waitcnt lgkmcnt(0)\ns_sub_u32 s88, s88, s86\ns_cmp_lt_i32 s88, 0\ns_cbranch_scc1 L_amp')
    A('L_fin:')
    if P['stamps']:
        A('s_mov_b64 exec, -1\ns_waitcnt vmcnt(0)')
        stamp(9, True)
        A('s_waitcnt lgkmcnt(0)')
        if P['stamps'] == 1:
            emit_stamps(A, 1)
    A('L_end:\ns_endpgm')
    hdr = open('cdna_kernels/' + NAME + '.s.ref').read().split('; Override launch')[0].rstrip('\n').split('\n')
    return wrap(A.text(), hdr, 256, 512, LDS_BYTES, 256, 128)


def emit_stamps(A, layer):
    A(f's_lshl_b32 s6, s2, 3\ns_add_u32 s6, s6, {s(sW)}\ns_lshl_b32 s6, s6, 7\ns_add_u32 s6, s6, {STAMP + 64*layer}')
    A(f'v_mov_b32 {v(T+44)}, s6')
    for i in range(10):
        A(f'v_mov_b32 {v(T+45)}, {s(sSTP+2*i)}\nglobal_store_dword {v(T+44)}, {v(T+45)}, {s(pWS,2)} offset:{4*i}')
    A(f'v_mov_b32 {v(T+45)}, {s(sCNT)}\nglobal_store_dword {v(T+44)}, {v(T+45)}, {s(pWS,2)} offset:40\ns_mov_b32 {s(sCNT)}, 0')


if __name__ == '__main__':
    out = sys.argv[1]
    kw = {}
    for x in sys.argv[2:]:
        k, val = x.split('='); kw[k] = int(val, 0)
    open(out, 'w').write(gen(**kw))
```

```python
import sys, math, struct
from asmlib import *

def f2u(x):
    return struct.unpack('<I', struct.pack('<f', x))[0]

DEF = dict(stamps=0, throttle=5, fast=1, tmo=1 << 22, prefetch=1, cprio=3, npa=6, touch=1, xp=0, mnop=0, mprio=1, ms=0, amp=-1, order='V'*16+'W'*10, vlag=4, wfree=-1, ls=0, cpace=-1, dpace=-1, rot=1, ebar=1, egchk=0, ega=1)

LQ   = 0x20000
QA   = 0x0
QAB  = 0x40000
ARR  = 0x80000
EPO  = 0x81000
AR0  = 0x100000
LA   = 0x45000
OB   = AR0
PC   = AR0 + 0x20000
LSE  = AR0 + 0x44000
XD   = AR0 + 2*LA
XDS  = 2560
PCS  = 1152
WS_BYTES = 0x200000
STAMP = 0x300000
assert XD + 16*XDS <= AR0 + 256*2560
KB, VB, SP = 0, 65536, 131072
SM = 155648
WQB = SM - 36864
X32, XH, XL, ONES, QB, PB, ML, RED, ST, ZERO, FLAGS = 0, 2304, 3456, 4608, 5120, 6144, 7168, 7232, 7488, 7552, 7680
TAGW = FLAGS + 240
DUMMY = ST + 48
OL = QB
F_A, F_WQ, F_Q, F_K, F_KR, F_P, F_V, F_WO, F_WL, F_WQ2 = range(10)
LDS_BYTES = 163840
sW = 3
rK, rV, rWQ, rWO, rWS = 8, 12, 16, 20, 24
pX, pW1, pB1, pW2, pB2 = 28, 30, 32, 34, 36
sSEL, sCNT, sTG12, sTAG = 38, 39, 40, 41
pWS = 42
sX, sB, sHL, sSP, sHKV, sC, sU, sE0, sNE, sLAY, sFAST, sTMO = range(44, 56)
sQAst, sQAld, sOBst, sLSEst, sOBld, sLSEld, sPCst, sPCld, sPCld2, sXDld = range(56, 66)
sXDst, sB2 = 66, 67
sMHI, sMT, sMU = 68, 70, 72
sSM, sXCC = 74, 75
sKD, sPOL, sQC, sGOK = 76, 77, 78, 79
sSTP = 82
vTID, vL4, vT4, vR3, vQF, vR5, vMLR, vFL, vEA, vSTW = range(10)
vXA = vPW = vR3
vPCS = vOBS = vR5
CB = 10
T = 82
aK, aV = 0, 64
aWO, aWQ, aWQH, aSP = 0, 64, 96, 100

K1 = -2.0 * math.sqrt(2.0/math.pi) * math.log2(math.e)
K2 = K1 * 0.044715


def lane_masks():
    mt = mu = 0
    for l in range(64):
        i = l & 31
        if ((l >> 2) & 1) != (l >> 5):
            continue
        r = 4*(i >> 3) + (i & 3)
        if r <= 4: mt |= 1 << l
        if 6 <= r <= 10: mu |= 1 << l
    return mt, mu


def gen(**kw):
    P = dict(DEF); P.update(kw)
    A = Asm()
    amp_state = []
    def amp(k):
        if P['amp'] == k: A('s_memrealtime s[84:85]')
    nop = lambda n: A(f's_nop {n-1}') if n > 0 else None
    def stamp(i, final=False):
        if P['amp'] >= 0 and not P['stamps']:
            if i == 0 and not amp_state: A('s_memrealtime s[82:83]'); amp_state.append(1)
            return
        if P['stamps'] == 1 or (P['stamps'] == 2 and (i == 0 or final)):
            A(f's_memrealtime {s(sSTP+2*i,2)}')
        elif P['stamps'] == 2 and i != 9:
            l = A.label('st')
            A(f's_cmp_lg_u32 {s(sLAY)}, 0\ns_cbranch_scc1 {l}\ns_memrealtime {s(sSTP+2*i,2)}\n{l}:')
    def cstamp(i):
        if P['stamps']:
            l = A.label('cs')
            A(f's_cmp_gt_u32 {s(sW)}, 3\ns_cbranch_scc1 {l}'); stamp(i); A(f'{l}:')
    def tmo_check(cnt=None):
        if cnt is not None and P['stamps'] == 1:
            A(f's_add_u32 {s(sCNT)}, {s(sCNT)}, {1 << (8*cnt)}')
        A(f's_sub_u32 {s(sTMO)}, {s(sTMO)}, 1\ns_cbranch_scc1 L_end')
    FT = T + 40
    def signal(k):
        A(f'v_mov_b32 {v(FT+4)}, 1\nds_write_b32 {v(vFL)}, {v(FT+4)} offset:{16*k}')
    def flag_test(k):
        A(f'ds_read_b128 {v(FT,4)}, {v(FT+5)} offset:{16*k}\ns_waitcnt lgkmcnt(0)')
        A(f'v_and_b32 {v(FT)}, {v(FT)}, {v(FT+1)}\nv_and_b32 {v(FT+2)}, {v(FT+2)}, {v(FT+3)}\nv_and_b32 {v(FT)}, {v(FT)}, {v(FT+2)}')
        A(f'v_cmp_ne_u32 vcc, 0, {v(FT)}')
    def wait_flag(k, sleep=1):
        l = A.label('wf')
        A(f'v_mov_b32 {v(FT+5)}, {SM+FLAGS}\n{l}:')
        flag_test(k)
        A(f's_cbranch_vccnz {l}_d')
        tmo_check()
        if sleep: A(f's_sleep {sleep}')
        A(f's_branch {l}\n{l}_d:')
    def dpp(op, d, a_, b_, ctl, rm='0xf'):
        A(f'{op}_dpp {v(d)}, {v(a_)}, {v(b_)} {ctl} row_mask:{rm} bank_mask:0xf')
    def check_sentinel(regs, tmp, lfail):
        r = list(regs); cur = r.pop(0)
        while r:
            if len(r) >= 2:
                A(f'v_max3_u32 {v(tmp)}, {v(cur)}, {v(r[0])}, {v(r[1])}'); r = r[2:]
            else:
                A(f'v_max_u32 {v(tmp)}, {v(cur)}, {v(r[0])}'); r = r[1:]
            cur = tmp
        A(f'v_cmp_eq_u32 vcc, -1, {v(cur)}\ns_cbranch_vccnz {lfail}')
    def partial_stats(x, t, addr):
        A(f'v_add_f32 {v(t)}, {v(x)}, {v(x+1)}\nv_mul_f32 {v(t+1)}, {v(x)}, {v(x)}\nv_fmac_f32 {v(t+1)}, {v(x+1)}, {v(x+1)}')
        nop(2)
        A(f'v_permlane32_swap_b32 {v(t)}, {v(t+1)}\nv_add_f32 {v(t)}, {v(t)}, {v(t+1)}')
        for k in (8, 4, 2, 1):
            nop(2); dpp('v_add_f32', t, t, t, f'row_ror:{k}')
        nop(2); dpp('v_add_f32', t, t, t, 'row_bcast:15', '0xa')
        A(f'ds_write_b32 {v(addr)}, {v(t)}')
    EPS = hex(f2u(1e-5)); INV = hex(f2u(1.0/576))
    def stats_issue(t):
        A(f'v_mov_b32 {v(t+12)}, {s(sSM)}')
        for k in range(3): A(f'ds_read_b128 {v(t+4*k,4)}, {v(t+12)} offset:{ST+16*k}')
    def stats_calc(t, twice=False):
        A(f'v_pk_add_f32 {v(t,2)}, {v(t,2)}, {v(t+2,2)}\nv_pk_add_f32 {v(t+4,2)}, {v(t+4,2)}, {v(t+6,2)}')
        A(f'v_pk_add_f32 {v(t,2)}, {v(t,2)}, {v(t+8,2)}\nv_pk_add_f32 {v(t,2)}, {v(t,2)}, {v(t+4,2)}')
        A(f'v_mul_f32 {v(t)}, {INV}, {v(t)}\nv_mul_f32 {v(t+1)}, {INV}, {v(t+1)}')
        A(f'v_fma_f32 {v(t+1)}, -{v(t)}, {v(t)}, {v(t+1)}\nv_max_f32 {v(t+1)}, 0, {v(t+1)}')
        if twice:
            A(f'v_mul_f32 {v(t+1)}, {hex(f2u(1+1e-5))}, {v(t+1)}\nv_add_f32 {v(t+2)}, {hex(f2u(1e-10))}, {v(t+1)}\nv_rsq_f32 {v(t+2)}, {v(t+2)}')
        else:
            A(f'v_add_f32 {v(t+2)}, {EPS}, {v(t+1)}\nv_rsq_f32 {v(t+2)}, {v(t+2)}')
    def tr_addr(dst, tile_sreg, gshift, gbit, base, t):
        A(f'v_bfe_u32 {v(t)}, {v(vL4)}, 4, 2\nv_bfe_u32 {v(t+1)}, {v(vL4)}, 2, 2\nv_lshrrev_b32 {v(t+2)}, 6, {v(vL4)}')
        A(f'v_bfe_u32 {v(t+3)}, {v(t+2)}, {gbit}, 1\nv_lshl_or_b32 {v(t+3)}, {v(t+3)}, 2, {v(t)}')
        A(f'v_xor_b32 {v(t+3)}, {s(tile_sreg)}, {v(t+3)}\nv_lshlrev_b32 {v(t+3)}, 5, {v(t+3)}\nv_lshl_add_u32 {v(t+3)}, {v(t+1)}, 3, {v(t+3)}')
        A(f'v_lshl_add_u32 {v(t+2)}, {v(t+2)}, {gshift}, {v(t)}\nv_lshl_add_u32 {v(dst)}, {v(t+2)}, 8, {v(t+3)}')
        A(f'v_add_u32 {v(dst)}, {base}, {v(dst)}')
    RAW = T + 20
    def raw_loads():
        r = []
        r.append(f'v_add_u32 {v(T+18)}, 4096, {v(vT4)}\nv_lshlrev_b32 {v(T+19)}, 1, {v(vTID)}\nv_add_u32 {v(T+19)}, 8192, {v(T+19)}')
        A(r[0])
        for k, p in enumerate((pW1, pB1, pW2)):
            for i in range(4):
                A(f'global_load_dword {v(RAW+5*k+i)}, {v(vT4 if i < 2 else T+18)}, {s(p,2)} offset:{2048*(i & 1)}')
            A(f'global_load_ushort {v(RAW+5*k+4)}, {v(T+19)}, {s(p,2)}')
    def coef_build():
        L = []
        w, b, w2, t0, t1, t2, t3, t4 = (T + i for i in range(8))
        for f in range(9):
            c = CB + 8*f
            srcs = [RAW + 5*k + (f >> 1) for k in range(3)]
            for d, sr in zip((w, b, w2), srcs):
                L.append(f'v_and_b32 {v(d)}, 0xffff0000, {v(sr)}' if f & 1 else f'v_lshlrev_b32 {v(d)}, 16, {v(sr)}')
            def split(x, dst):
                L.append(f'v_and_b32 {v(t4)}, 0xffff0000, {v(x)}')
                L.append(f'v_sub_f32 {v(dst)}, {v(x)}, {v(t4)}')
                L.append(f'v_cvt_pk_bf16_f32 {v(dst)}, {v(t4)}, {v(dst)}')
            L.append(f'v_mul_f32 {v(t0)}, {v(w)}, {v(w)}')
            L.append(f'v_mul_f32 {v(t0)}, {hex(f2u(K2))}, {v(t0)}')
            L.append(f'v_mul_f32 {v(t1)}, {v(t0)}, {v(w)}')
            L.append(f'v_mul_f32 {v(t2)}, {v(t0)}, {v(b)}')
            L.append(f'v_mul_f32 {v(t2)}, 0x40400000, {v(t2)}')
            split(t1, c); split(t2, c+1)
            L.append(f'v_perm_b32 {v(c+2)}, {v(t2)}, {v(t1)}, {s(sSEL)}')
            L.append(f'v_mul_f32 {v(t0)}, {v(b)}, {v(b)}')
            L.append(f'v_mul_f32 {v(t0)}, {hex(f2u(K2))}, {v(t0)}')
            L.append(f'v_add_f32 {v(t1)}, {hex(f2u(K1))}, {v(t0)}')
            L.append(f'v_mul_f32 {v(t2)}, {v(t1)}, {v(b)}')
            L.append(f'v_fmac_f32 {v(t1)}, 2.0, {v(t0)}')
            L.append(f'v_mul_f32 {v(t1)}, {v(t1)}, {v(w)}')
            split(t1, c+3); split(t2, c+4)
            L.append(f'v_mul_f32 {v(t1)}, {v(w)}, {v(w2)}')
            L.append(f'v_mul_f32 {v(t2)}, {v(b)}, {v(w2)}')
            split(t1, c+5); split(t2, c+6)
            L.append(f'v_mov_b32 {v(c+7)}, 0')
        return L

    def q_stage(vXA, hook=None):
        xf, st, D0, D1 = T, T+20, T+36, T+40
        A(f'v_lshrrev_b32 {v(T+18)}, 6, {v(vL4)}\nv_lshlrev_b32 {v(T+18)}, 3, {v(T+18)}\nv_sub_u32 {v(T+18)}, {v(vXA)}, {v(T+18)}')
        for ks in range(4):
            A(f'ds_read_b128 {v(xf+4*ks,4)}, {v(vXA)} offset:{64*ks}')
        A(f'ds_read_b64 {v(xf+16,2)}, {v(T+18)} offset:256')
        A(f'v_mov_b32 {v(T+19)}, {s(sSM)}')
        for k in range(3): A(f'ds_read_b128 {v(st+4*k,4)}, {v(T+19)} offset:{ST+16*k}')
        for ks in range(4):
            A(f's_waitcnt lgkmcnt({7-ks})')
            for tt, D in enumerate((D0, D1)):
                A(f'v_mfma_f32_16x16x32_bf16 {v(D,4)}, {v(xf+4*ks,4)}, {a(aWQ+16*tt+4*ks,4)}, {v(D,4) if ks else 0}')
        A('s_waitcnt lgkmcnt(3)')
        for tt, D in enumerate((D0, D1)):
            A(f'v_mfma_f32_16x16x16_bf16 {v(D,4)}, {v(xf+16,2)}, {a(aWQH+2*tt,2)}, {v(D,4)}')
        A('s_waitcnt lgkmcnt(0)')
        stats_calc(st)
        qs = (128 ** -0.5) * math.log2(math.e)
        for D in (D0, D1):
            A(f'v_add_f32 {v(D)}, {v(D)}, {v(D+1)}\nv_fma_f32 {v(D)}, -{v(st)}, {v(D+2)}, {v(D)}')
        A(f'v_mul_f32 {v(st+2)}, {hex(f2u(qs))}, {v(st+2)}\ns_mov_b64 exec, 0xffff')
        for D in (D0, D1): A(f'v_mul_f32 {v(D)}, {v(D)}, {v(st+2)}')
        for D in (D0, D1): A(f'v_and_b32 {v(D)}, 0xfffff000, {v(D)}')
        for D in (D0, D1): A(f'v_or_b32 {v(D)}, {s(sTG12)}, {v(D)}')
        A(f'buffer_store_dword {v(D0)}, {v(vL4)}, {s(rWS,4)}, {s(sQAst)} offen')
        A(f'buffer_store_dword {v(D1)}, {v(vL4)}, {s(rWS,4)}, {s(sQAst)} offen offset:64')
        if hook:
            A('s_mov_b64 exec, -1'); hook(); A('s_mov_b64 exec, 0xffff')
        l = A.label('q1')
        A(f's_cmp_lg_u32 {s(sFAST)}, 0\ns_cbranch_scc1 {l}\ns_add_u32 {s(sQC)}, {s(sQAst)}, {QAB}')
        A(f'buffer_store_dword {v(D0)}, {v(vL4)}, {s(rWS,4)}, {s(sQC)} offen sc1')
        A(f'buffer_store_dword {v(D1)}, {v(vL4)}, {s(rWS,4)}, {s(sQC)} offen offset:64 sc1')
        A(f'{l}:\ns_mov_b64 exec, -1')

    def xa_addr(dst, t):
        A(f's_lshr_b32 s5, {s(sSP)}, 1\ns_mul_i32 s5, s5, 288\ns_add_u32 s5, s5, {SM+XH}\nv_bfe_u32 {v(t+2)}, {v(vL4)}, 2, 4')
        A(f'v_mov_b32 {v(dst)}, {SM+ONES}\nv_mov_b32 {v(t)}, s5\nv_cmp_eq_u32 vcc, 0, {v(t+2)}\nv_add_u32 {v(t+1)}, {XL-XH}, {v(t)}\nv_lshrrev_b32 {v(t+3)}, 6, {v(vL4)}')
        A(f'v_cndmask_b32 {v(dst)}, {v(dst)}, {v(t)}, vcc\nv_cmp_eq_u32 vcc, 1, {v(t+2)}')
        nop(2)
        A(f'v_cndmask_b32 {v(dst)}, {v(dst)}, {v(t+1)}, vcc\nv_lshl_add_u32 {v(dst)}, {v(t+3)}, 4, {v(dst)}')
    def wq_addr(t):
        for tt in range(2):
            A(f's_and_b32 s5, {s(sW)}, 3\ns_lshl_b32 s5, s5, 1\ns_add_u32 s5, s5, {tt}')
            tr_addr(t+4+2*tt, 5, 3, 0, WQB, t)
            tr_addr(t+5+2*tt, 5, 2, 1, WQB + 128*256, t)
    def wq_reads(t):
        for tt in range(2):
            for ks in range(4):
                for hh in range(2):
                    A(f'ds_read_b64_tr_b16 {a(aWQ+16*tt+4*ks+2*hh,2)}, {v(t+4+2*tt)} offset:{ks*8192+hh*1024}')
            A(f'ds_read_b64_tr_b16 {a(aWQH+2*tt,2)}, {v(t+5+2*tt)}')

    A('s_cmp_ge_u32 s2, 256\ns_cbranch_scc1 L_end')
    stamp(0)
    A('s_load_dwordx16 s[56:71], s[0:1], 0\ns_load_dwordx4 s[72:75], s[0:1], 64\ns_load_dwordx2 s[42:43], s[0:1], 96')
    vl, vj, vg = T+1, T+2, T+3
    A(f'v_lshrrev_b32 {v(T)}, 6, v0\nv_and_b32 {v(vl)}, 63, v0')
    A(f'v_readfirstlane_b32 {s(sW)}, {v(T)}')
    A(f'v_lshlrev_b32 {v(vL4)}, 2, {v(vl)}\nv_lshlrev_b32 {v(vT4)}, 2, v0')
    A(f'v_and_b32 {v(vj)}, 15, {v(vl)}\nv_lshrrev_b32 {v(vg)}, 4, {v(vl)}')
    A(f's_and_b32 {s(sX)}, s2, 7\ns_lshr_b32 s4, s2, 3')
    A(f's_lshr_b32 {s(sB)}, s4, 4\ns_bfe_u32 {s(sHL)}, s4, 0x10003\ns_and_b32 {s(sSP)}, s4, 7\ns_and_b32 {s(sC)}, s4, 15')
    A(f's_lshl_b32 {s(sHKV)}, {s(sX)}, 1\ns_add_u32 {s(sHKV)}, {s(sHKV)}, {s(sHL)}')
    A(f's_cmp_lg_u32 {s(sW)}, 0\ns_cbranch_scc1 L_noinit')
    A(f'v_mov_b32 {v(T+4)}, 0\nv_add_u32 {v(T+5)}, {SM}, {v(vL4)}\nds_write_b32 {v(T+5)}, {v(T+4)} offset:{FLAGS}\nds_write_b32 {v(T+5)}, {v(T+4)} offset:{FLAGS-256}')
    A(f'v_mov_b32 {v(T+4)}, 0x3f803f80\nds_write_b32 {v(T+5)}, {v(T+4)} offset:{ONES}\nds_write_b32 {v(T+5)}, {v(T+4)} offset:{ONES+256}')
    A('L_noinit:')
    A(f's_bfe_u32 s6, {s(sW)}, 0x10001\ns_lshl_b32 s6, s6, 2\nv_or_b32 {v(T+4)}, s6, {v(vg)}\nv_lshlrev_b32 {v(T+4)}, 1, {v(T+4)}')
    A(f'v_xor_b32 {v(T+4)}, {v(T+4)}, {v(vj)}\nv_lshlrev_b32 {v(T+4)}, 4, {v(T+4)}')
    vWQo, vKo, vVo = T+8, T+9, T+10
    A(f'v_lshl_add_u32 {v(vWQo)}, {v(vg)}, 13, {v(T+4)}\nv_lshl_add_u32 {v(vVo)}, {v(vg)}, 8, {v(T+4)}')
    A(f's_and_b32 s7, {s(sW)}, 3\ns_lshl_b32 s6, s7, 2\nv_add_u32 {v(vKo)}, s6, {v(vg)}\nv_xor_b32 {v(vKo)}, {v(vKo)}, {v(vj)}\nv_lshlrev_b32 {v(vKo)}, 4, {v(vKo)}')
    A(f'v_lshl_add_u32 {v(vKo)}, {v(vg)}, 8, {v(vKo)}')
    A(f's_add_u32 s6, s6, {SM+FLAGS}\nv_mov_b32 {v(vFL)}, s6')
    A(f's_lshr_b32 s4, {s(sSP)}, 1')
    A(f's_mul_i32 s6, s4, {144*8192}\ns_lshl_b32 s5, {s(sHKV)}, 9\ns_add_u32 s6, s6, s5\ns_and_b32 s5, {s(sSP)}, 1\ns_lshl_b32 s5, s5, 8\ns_add_u32 s6, s6, s5')
    A(f's_sub_u32 {s(rWQ+2)}, 4718592, s6\ns_mov_b32 {s(rWQ+3)}, 0x20000')
    A(f's_lshl_b32 s5, {s(sB)}, 4\ns_add_u32 s5, s5, {s(sHKV)}')
    A(f's_lshl_b32 {s(rK+2)}, s5, 21\ns_lshl_b32 {s(rK+3)}, {s(sSP)}, 16\ns_add_u32 {s(rK+2)}, {s(rK+2)}, {s(rK+3)}\ns_add_u32 {s(rV+2)}, {s(rK+2)}, 0x180000')
    A(f's_mov_b32 {s(rK+3)}, 0x20000\ns_mov_b32 {s(rV+3)}, 0x20000\ns_mov_b32 {s(rK+2)}, 0x10000')
    A('s_waitcnt lgkmcnt(0)')
    if not P['ebar']: A('s_barrier')
    A(f's_add_u32 {s(rWQ)}, s62, s6\ns_addc_u32 {s(rWQ+1)}, s63, 0')
    A(f's_add_u32 {s(rK)}, s58, {s(rV+2)}\ns_addc_u32 {s(rK+1)}, s59, 0')
    A(f's_add_u32 {s(rV)}, s60, {s(rV+2)}\ns_addc_u32 {s(rV+1)}, s61, 0\ns_mov_b32 {s(rV+2)}, 0x10000')
    A(f's_cmp_lt_u32 {s(sW)}, 4\ns_cbranch_scc1 L_nowq')
    A(f's_lshl_b32 s6, s7, 10\ns_add_u32 s6, s6, {WQB}\ns_lshl_b32 {s(sKD)}, s7, 15')
    for i in range(9):
        A(f's_mov_b32 m0, s6\ns_add_u32 s6, s6, 4096')
        A(f'buffer_load_dwordx4 {v(vWQo)}, {s(rWQ,4)}, {s(sKD)} offen nt lds\ns_add_u32 {s(sKD)}, {s(sKD)}, {4*32768}')
    A('L_nowq:')
    if P['ebar']: A('s_barrier')
    A(f's_mov_b64 {s(pX,2)}, s[56:57]\ns_mov_b64 {s(pW1,2)}, s[68:69]\ns_mov_b64 {s(pB1,2)}, s[70:71]')
    A(f's_mov_b64 {s(pW2,2)}, s[72:73]\ns_mov_b64 {s(pB2,2)}, s[74:75]')
    A(f's_mul_i32 s6, {s(sX)}, {512*1152}\ns_mul_i32 {s(sKD)}, {s(sC)}, 72\ns_and_b32 {s(sKD)}, {s(sKD)}, 0xfffffff0\ns_add_u32 s6, s6, {s(sKD)}')
    A(f's_add_u32 {s(rWO)}, s64, s6\ns_addc_u32 {s(rWO+1)}, s65, 0\ns_sub_u32 {s(rWO+2)}, 4718592, s6\ns_mov_b32 {s(rWO+3)}, 0x20000')
    A(f's_mov_b32 {s(rWS)}, s42\ns_mov_b32 {s(rWS+1)}, s43\ns_mov_b32 {s(rWS+2)}, {WS_BYTES}\ns_mov_b32 {s(rWS+3)}, 0x20000')
    A(f's_load_dword {s(sB2)}, {s(pB2,2)}, 0')
    A(f's_getreg_b32 {s(sXCC)}, hwreg(HW_REG_XCC_ID, 0, 4)')
    A(f's_lshl_b32 {s(sU)}, {s(sX)}, 4\ns_add_u32 {s(sU)}, {s(sU)}, {s(sC)}')
    A(f's_mul_i32 s6, {s(sU)}, 5\ns_lshl_b32 {s(sKD)}, {s(sU)}, 2\ns_add_u32 {s(sKD)}, {s(sKD)}, 64')
    A(f's_cmp_lt_u32 {s(sU)}, 64\ns_cselect_b32 {s(sE0)}, s6, {s(sKD)}\ns_cselect_b32 {s(sNE)}, 5, 4')
    A(f's_mov_b32 {s(sLAY)}, 0\ns_mov_b32 {s(sFAST)}, 0\ns_mov_b32 {s(sTMO)}, {P["tmo"]}\ns_mov_b32 {s(sCNT)}, 0\ns_mov_b32 {s(sSM)}, {SM}')
    A(f's_lshl_b32 {s(sQAld)}, s5, 12')
    A(f's_lshl_b32 s6, s4, 10\ns_add_u32 {s(sQAst)}, {s(sQAld)}, s6\ns_and_b32 s6, {s(sSP)}, 1\ns_lshl_b32 s6, s6, 9\ns_add_u32 {s(sQAst)}, {s(sQAst)}, s6')
    A(f's_lshl_b32 s6, s7, 7\ns_add_u32 {s(sQAst)}, {s(sQAst)}, s6')
    A(f's_lshl_b32 s5, {s(sB)}, 3\ns_add_u32 s5, s5, {s(sX)}')
    A(f's_lshl_b32 s6, s5, 13\ns_add_u32 s6, s6, {OB}\ns_lshl_b32 {s(sOBld)}, s7, 11\ns_add_u32 {s(sOBld)}, {s(sOBld)}, s6')
    A(f's_lshl_b32 {s(sOBst)}, {s(sC)}, 8\ns_add_u32 s6, s6, {s(sOBst)}\ns_lshl_b32 {s(sOBst)}, {s(sHL)}, 11\ns_add_u32 s6, s6, {s(sOBst)}')
    A(f's_lshl_b32 {s(sOBst)}, s7, 6\ns_add_u32 {s(sOBst)}, {s(sOBst)}, s6')
    A(f's_lshl_b32 s6, s5, 7\ns_add_u32 s6, s6, {LSE}\ns_lshl_b32 {s(sLSEld)}, s7, 5\ns_add_u32 {s(sLSEld)}, {s(sLSEld)}, s6')
    A(f's_lshl_b32 {s(sLSEst)}, {s(sHL)}, 6\ns_add_u32 s6, s6, {s(sLSEst)}\ns_lshl_b32 {s(sLSEst)}, {s(sSP)}, 2\ns_add_u32 {s(sLSEst)}, {s(sLSEst)}, s6')
    A(f's_mul_i32 {s(sPCld)}, s5, {8*PCS}\ns_add_u32 {s(sPCld)}, {s(sPCld)}, {PC}\ns_add_u32 {s(sPCld2)}, {s(sPCld)}, {4*PCS}')
    A(f's_mul_i32 s6, {s(sB)}, {64*PCS}\ns_mul_i32 {s(sPCst)}, {s(sX)}, {PCS}\ns_add_u32 s6, s6, {s(sPCst)}\ns_mul_i32 {s(sPCst)}, {s(sC)}, 72\ns_add_u32 s6, s6, {s(sPCst)}')
    A(f's_lshl_b32 {s(sPCst)}, s7, 5\ns_add_u32 {s(sPCst)}, {s(sPCst)}, s6\ns_add_u32 {s(sPCst)}, {s(sPCst)}, {PC}')
    A(f's_mul_i32 {s(sXDld)}, s5, {XDS}\ns_add_u32 {s(sXDld)}, {s(sXDld)}, {XD}')
    A(f's_mul_i32 s6, {s(sB)}, {8*XDS}\ns_lshl_b32 {s(sXDst)}, {s(sE0)}, 2\ns_add_u32 {s(sXDst)}, {s(sXDst)}, s6\ns_add_u32 {s(sXDst)}, {s(sXDst)}, {XD}')
    mt, mu = lane_masks()
    A(f's_mov_b32 {s(sMHI)}, 0\ns_mov_b32 {s(sMHI+1)}, -1\ns_mov_b32 {s(sSEL)}, 0x07060302')
    A(f's_mov_b32 {s(sMT)}, {hex(mt & 0xffffffff)}\ns_mov_b32 {s(sMT+1)}, {hex(mt >> 32)}\ns_mov_b32 {s(sMU)}, {hex(mu & 0xffffffff)}\ns_mov_b32 {s(sMU+1)}, {hex(mu >> 32)}')
    A(f'v_bfe_u32 {v(T+4)}, {v(vl)}, 3, 2\nv_and_b32 {v(T+5)}, 3, {v(vl)}\nv_lshl_add_u32 {v(T+4)}, {v(T+4)}, 2, {v(T+5)}')
    A(f'v_subrev_u32 {v(T+5)}, 6, {v(T+4)}\nv_min_u32 {v(T+4)}, {v(T+4)}, {v(T+5)}\nv_min_u32 {v(T+4)}, 4, {v(T+4)}')
    A(f's_lshl_b32 s6, {s(sE0)}, 2\ns_add_u32 s6, s6, {SM+X32}\nv_lshl_add_u32 {v(vEA)}, {v(T+4)}, 2, s6')
    A(f's_lshl_b32 s6, {s(sW)}, 3\ns_add_u32 s6, s6, {SM+ST}\nv_lshrrev_b32 {v(T+4)}, 1, {v(vg)}\nv_lshl_add_u32 {v(T+4)}, {v(T+4)}, 2, s6')
    A(f'v_mov_b32 {v(T+5)}, {SM+DUMMY}\nv_and_b32 {v(T+6)}, 1, {v(vg)}\nv_cmp_eq_u32 vcc, 1, {v(T+6)}')
    A(f'v_lshrrev_b32 {v(T+7)}, 1, {v(vg)}\nv_lshl_add_u32 {v(T+7)}, {v(T+7)}, 4, {v(vj)}\nv_lshlrev_b32 {v(T+7)}, 1, {v(T+7)}')
    A(f'v_cndmask_b32 {v(vSTW)}, {v(T+5)}, {v(T+4)}, vcc')
    A(f'v_lshlrev_b32 {v(vMLR)}, 5, {v(T+6)}\nv_add_u32 {v(vMLR)}, {SM+ML}, {v(vMLR)}')
    A(f's_cmp_ge_u32 {s(sW)}, 4\ns_cbranch_scc1 L_loader')

    if P['cprio']: A(f's_setprio {P["cprio"]}')
    A(f's_mul_i32 s6, {s(sB)}, 1152\nv_add_u32 {v(T+16)}, s6, {v(vT4)}')
    A(f'v_and_b32 {v(T+18)}, 31, {v(vl)}\nv_lshl_add_u32 {v(T+17)}, {v(T+18)}, 2, s6\nv_mov_b32 {v(T+19)}, {EPO}')
    A(f'global_load_dword {v(T+12)}, {v(T+16)}, {s(pX,2)}\nglobal_load_dword {v(T+13)}, {v(T+17)}, {s(pX,2)} offset:1024')
    A(f'buffer_load_dword {v(T+14)}, {v(T+19)}, {s(rWS,4)}, 0 offen sc1')
    A(f'v_bfe_u32 {v(T+4)}, {v(vj)}, 2, 1\nv_lshlrev_b32 {v(T+4)}, 9, {v(T+4)}')
    A(f'v_lshl_add_u32 {v(vQF)}, {v(vg)}, 4, {v(T+4)}\nv_add_u32 {v(vQF)}, {SM}, {v(vQF)}')
    A(f's_lshl_b32 s6, {s(sW)}, 7\ns_add_u32 s6, s6, {SM+PB}')
    A(f'v_lshl_add_u32 {v(vPW)}, {v(T+6)}, 9, {v(T+7)}\nv_add_u32 {v(vPW)}, s6, {v(vPW)}')
    A(f'v_lshl_add_u32 {v(vOBS)}, {v(T+6)}, 11, {v(T+7)}')
    A(f's_cmp_eq_u32 {s(sW)}, 3\ns_cbranch_scc1 L_clr')
    if P['prefetch']:
        A(f's_getpc_b64 s[4:5]\nL_pc:\ns_lshr_b32 s7, s2, 3\ns_mul_i32 s7, s7, 3\ns_add_u32 s7, s7, {s(sW)}\ns_lshl_b32 s7, s7, 8')
        A(f's_mov_b64 exec, 0xf\nv_lshl_add_u32 {v(T+19)}, {v(vl)}, 6, s7\nv_min_u32 {v(T+19)}, L_end-L_pc, {v(T+19)}')
        A(f'global_load_dword {v(CB+70)}, {v(T+19)}, s[4:5]\ns_mov_b64 exec, -1\ns_waitcnt vmcnt(1)')
    else:
        A('s_waitcnt vmcnt(0)')
    A('s_branch L_cdone')
    A('L_clr:')
    for i in range(4): A(f'v_mov_b32 {v(T+8+i)}, -1')
    A(f's_mul_i32 s6, s2, 2560\ns_add_u32 s6, s6, {AR0}\nv_lshlrev_b32 {v(T+19)}, 2, {v(vL4)}')
    A(f'buffer_store_dwordx4 {v(T+8,4)}, {v(T+19)}, {s(rWS,4)}, s6 offen sc1\nbuffer_store_dwordx4 {v(T+8,4)}, {v(T+19)}, {s(rWS,4)}, s6 offen offset:1024 sc1')
    A(f's_mov_b32 exec_hi, 0\nbuffer_store_dwordx4 {v(T+8,4)}, {v(T+19)}, {s(rWS,4)}, s6 offen offset:2048 sc1\ns_mov_b32 exec_hi, -1')
    A('s_waitcnt vmcnt(3)')
    A('L_cdone:')
    A(f'v_readfirstlane_b32 {s(sTAG)}, {v(T+14)}')
    xa = T + 4
    def x_pair(src, areg):
        A(f'v_lshlrev_b32 {v(xa)}, 16, {v(src)}\nv_and_b32 {v(xa+1)}, 0xffff0000, {v(src)}\nv_mov_b32 {v(xa+2)}, 0')
        A(f'v_lshl_add_u32 {v(xa+3)}, {v(areg)}, 1, {s(sSM)}\nv_add_u32 {v(xa+4)}, {s(sSM)}, {v(areg)}')
        A(f'ds_write_b64 {v(xa+3)}, {v(xa,2)} offset:{X32}\nds_write_b32 {v(xa+4)}, {v(src)} offset:{XH}\nds_write_b32 {v(xa+4)}, {v(xa+2)} offset:{XL}')
    x_pair(T+12, vT4)
    partial_stats(xa, xa+6, vSTW)
    A(f's_mul_i32 {s(sTAG)}, {s(sTAG)}, 0x9e3779b1\ns_add_u32 {s(sTAG)}, {s(sTAG)}, 0x7f4a7c15\ns_and_b32 {s(sTAG)}, {s(sTAG)}, 0x1fffffff\ns_and_b32 {s(sTG12)}, {s(sTAG)}, 0xfff')
    A(f's_cmp_lg_u32 {s(sW)}, 0\ns_cbranch_scc1 L_noextra')
    A(f'v_lshlrev_b32 {v(T+18)}, 2, {v(T+18)}\nv_add_u32 {v(T+18)}, 1024, {v(T+18)}')
    x_pair(T+13, T+18)
    A(f'v_cndmask_b32 {v(xa)}, {v(xa)}, {v(xa+2)}, {s(sMHI,2)}\nv_cndmask_b32 {v(xa+1)}, {v(xa+1)}, {v(xa+2)}, {s(sMHI,2)}')
    A(f'v_add_u32 {v(T+18)}, 32, {v(vSTW)}\nv_min_u32 {v(T+18)}, {SM+DUMMY}, {v(T+18)}')
    partial_stats(xa, xa+6, T+18)
    A(f'v_mov_b32 {v(xa)}, {s(sTG12)}\nv_mov_b32 {v(xa+1)}, {SM+TAGW}\nds_write_b32 {v(xa+1)}, {v(xa)}')
    A('L_noextra:')
    A('s_waitcnt lgkmcnt(0)')
    amp(1)
    signal(F_A)
    xa_addr(CB, T)
    wq_addr(T)
    A(f's_cmp_lg_u32 {s(sW)}, 3\ns_cbranch_scc1 L_noarr')
    wait_flag(F_A, sleep=0)
    A(f's_lshl_b32 s6, {s(sXCC)}, 29\ns_or_b32 s6, s6, {s(sTAG)}\nv_mov_b32 {v(T+8)}, s6')
    A(f's_lshl_b32 s6, {s(sX)}, 7\ns_lshr_b32 s7, s2, 3\ns_lshl_b32 s7, s7, 2\ns_add_u32 s6, s6, s7\ns_add_u32 s6, s6, {ARR}\nv_mov_b32 {v(T+9)}, s6')
    A(f's_waitcnt vmcnt(0)\ns_mov_b64 exec, 1\nbuffer_store_dword {v(T+8)}, {v(T+9)}, {s(rWS,4)}, 0 offen sc1\ns_mov_b64 exec, -1')
    A('L_noarr:')
    wait_flag(F_WL)
    wq_reads(T)
    wait_flag(F_A, sleep=0)
    signal(F_WQ)
    q_stage(CB, raw_loads)
    stamp(9)
    ga, gc, pa, qw = T+8, T+12, T+36, T+35
    def ga_issue():
        for kq in range(4):
            A(f'buffer_load_dword {v(ga+kq)}, {v(vT4)}, {s(rWS,4)}, {s(sQC)} offen offset:{1024*kq} sc1')
    def gchk_issue():
        A(f'v_lshlrev_b32 {v(gc+4)}, 2, {v(vL4)}\nv_add_u32 {v(gc+4)}, {ARR}, {v(gc+4)}')
        A(f'buffer_load_dwordx4 {v(gc,4)}, {v(gc+4)}, {s(rWS,4)}, 0 offen sc1')
    def gchk_test(lfail):
        for k in range(4): A(f'v_xor_b32 {v(gc+k)}, {s(sTAG)}, {v(gc+k)}')
        A(f'v_or3_b32 {v(gc+5)}, {v(gc)}, {v(gc+1)}, {v(gc+2)}\nv_or_b32 {v(gc+5)}, {v(gc+5)}, {v(gc+3)}\nv_and_b32 {v(gc+6)}, 0x1fffffff, {v(gc+5)}')
        A(f'v_cmp_ne_u32 vcc, 0, {v(gc+6)}\ns_cbranch_vccnz {lfail}')
        if P['fast']:
            A(f's_lshl_b32 s6, {s(sXCC)}, 29')
            for k in range(4): A(f'v_xor_b32 {v(gc+k)}, s6, {v(gc+k)}')
            A(f'v_or3_b32 {v(gc+5)}, {v(gc)}, {v(gc+1)}, {v(gc+2)}\nv_or_b32 {v(gc+5)}, {v(gc+5)}, {v(gc+3)}')
            A(f'v_cmp_ne_u32 vcc, 0, {v(gc+5)}\ns_lshl_b32 s6, {s(sX)}, 3\ns_lshr_b64 vcc, vcc, s6')
            A(f's_and_b32 s6, vcc_lo, 0xff\ns_cselect_b32 {s(sFAST)}, 0, 1')
            A(f'v_mov_b32 {v(gc)}, {s(sFAST)}\nv_mov_b32 {v(gc+1)}, {SM+TAGW+4}\nds_write_b32 {v(gc+1)}, {v(gc)}')
        A(f's_mov_b32 {s(sGOK)}, 1')
    def attn_addr():
        A(f'v_bfe_u32 {v(T+6)}, {v(vL4)}, 2, 2\nv_lshrrev_b32 {v(T+7)}, 6, {v(vL4)}\nv_lshlrev_b32 {v(T+7)}, 4, {v(T+7)}\nv_add_u32 {v(T+7)}, {SM+ZERO}, {v(T+7)}')
        for k in range(4):
            A(f'v_cmp_eq_u32 vcc, {k}, {v(T+6)}\nv_add_u32 {v(T+5)}, {PB+128*k}, {v(vQF)}')
            nop(1)
            A(f'v_cndmask_b32 {v(pa+k)}, {v(T+7)}, {v(T+5)}, vcc')
        A(f'v_lshrrev_b32 {v(qw)}, 7, v0\nv_lshlrev_b32 {v(qw)}, 8, {v(qw)}\nv_lshl_add_u32 {v(qw)}, v0, 1, {v(qw)}\nv_add_u32 {v(qw)}, {SM+QB}, {v(qw)}')
    A(f's_mov_b32 {s(sQC)}, {s(sQAld)}\ns_mov_b32 {s(sKD)}, 0\ns_mov_b32 {s(sPOL)}, {P["npa"]}\ns_mov_b32 {s(sGOK)}, 0')
    A('s_waitcnt vmcnt(2)')
    if P['ega']: ga_issue()
    if P['egchk']: gchk_issue()
    for ins in coef_build(): A(ins)
    attn_addr()
    stamp(1)
    if not P['ega']: ga_issue()
    A('s_waitcnt vmcnt(0)')
    if P['egchk']: gchk_test('L_ga_w')
    A('s_branch L_ga_w')

    A('L_attn:')
    A(f's_mov_b32 {s(sQC)}, {s(sQAld)}\ns_mov_b32 {s(sKD)}, 1\ns_mov_b32 {s(sPOL)}, -1')
    A(f's_cmp_lg_u32 {s(sFAST)}, 0\ns_cbranch_scc1 L_ga0\ns_add_u32 {s(sQC)}, {s(sQC)}, {QAB}')
    A('L_ga0:')
    attn_addr()
    A('L_ga:')
    ga_issue()
    A('s_waitcnt vmcnt(0)')
    A('L_ga_w:')
    for k in range(4): A(f'v_xor_b32 {v(ga+k)}, {s(sTG12)}, {v(ga+k)}')
    A(f'v_or3_b32 {v(T+4)}, {v(ga)}, {v(ga+1)}, {v(ga+2)}\nv_or_b32 {v(T+4)}, {v(T+4)}, {v(ga+3)}\nv_and_b32 {v(T+4)}, 0xfff, {v(T+4)}')
    A(f'v_add_f32 {v(T)}, {v(ga)}, {v(ga+1)}\nv_add_f32 {v(T+2)}, {v(ga+2)}, {v(ga+3)}')
    A(f'v_cmp_ne_u32 vcc, 0, {v(T+4)}\nv_add_f32 {v(T)}, {v(T)}, {v(T+2)}\ns_cbranch_vccnz L_ga_f')
    A(f'v_cvt_pk_bf16_f32 {v(T)}, {v(T)}, {v(T)}\nds_write_b16 {v(qw)}, {v(T)}\ns_waitcnt lgkmcnt(0)')
    stamp(3)
    A(f's_cmp_lg_u32 {s(sLAY)}, 0\ns_cbranch_scc1 L_qbar')
    signal(F_Q)
    A(f's_cmp_lg_u32 {s(sKD)}, 0\ns_cbranch_scc1 L_kdone')
    wait_flag(F_K)
    A(f's_mov_b32 {s(sKD)}, 2')
    A('L_kread:')
    kt = T + 8
    A(f'v_bfe_u32 {v(kt)}, {v(vL4)}, 2, 4\nv_lshrrev_b32 {v(kt+1)}, 6, {v(vL4)}\ns_lshl_b32 s6, {s(sW)}, 14')
    A(f'v_lshl_add_u32 {v(kt+2)}, {v(kt)}, 8, s6')
    for ks in range(4):
        A(f'v_add_u32 {v(kt+3)}, {4*ks}, {v(kt+1)}\nv_xor_b32 {v(kt+3)}, {v(kt+3)}, {v(kt)}\nv_lshl_add_u32 {v(kt+4+ks)}, {v(kt+3)}, 4, {v(kt+2)}')
        for tt in range(4):
            A(f'ds_read_b128 {a(aK+16*tt+4*ks,4)}, {v(kt+4+ks)} offset:{KB+4096*tt}')
    A('s_waitcnt lgkmcnt(0)')
    signal(F_KR)
    A(f's_cmp_eq_u32 {s(sKD)}, 1\ns_cbranch_scc1 L_ga')
    A('L_kdone:')
    amp(6)
    wait_flag(F_Q, sleep=0)
    A('s_branch L_qk')
    A('L_ga_f:')
    tmo_check(0)
    A(f's_sub_u32 {s(sPOL)}, {s(sPOL)}, 1\ns_cmp_lg_u32 {s(sPOL)}, 0\ns_cbranch_scc1 L_ga_f2\ns_add_u32 {s(sQC)}, {s(sQC)}, {QAB}')
    A(f'L_ga_f2:\ns_cmp_lg_u32 {s(sKD)}, 0\ns_cbranch_scc1 L_ga')
    A(f'v_mov_b32 {v(FT+5)}, {SM+FLAGS}')
    flag_test(F_K)
    A(f's_cbranch_vccz L_ga\ns_mov_b32 {s(sKD)}, 1\ns_branch L_kread')
    A('L_qbar:\ns_barrier')
    A('L_qk:')
    qf, DS = T, T+16
    for ks in range(4):
        A(f'ds_read_b128 {v(qf+4*ks,4)}, {v(vQF)} offset:{QB+64*ks}')
    for ks in range(4):
        A(f's_waitcnt lgkmcnt({3-ks})')
        for tt in range(4):
            A(f'v_mfma_f32_16x16x32_bf16 {v(DS+4*tt,4)}, {v(qf+4*ks,4)}, {a(aK+16*tt+4*ks,4)}, {v(DS+4*tt,4) if ks else 0}')
    sa, sb, mx, t0 = T+32, T+33, T+34, T+35
    A(f's_lshl_b32 s6, {s(sW)}, 3\nv_add_u32 {v(T)}, s6, {v(vMLR)}')
    nop(4)
    A(f'v_cndmask_b32 {v(sa)}, {v(DS)}, {v(DS+4)}, {s(sMHI,2)}')
    nop(2)
    A(f'v_cndmask_b32 {v(sb)}, {v(DS+8)}, {v(DS+12)}, {s(sMHI,2)}')
    A(f'v_max_f32 {v(mx)}, {v(sa)}, {v(sb)}')
    for k in (8, 4, 2, 1):
        nop(2); dpp('v_max_f32', mx, mx, mx, f'row_ror:{k}')
    A(f'v_mov_b32 {v(t0)}, {v(mx)}')
    nop(2)
    A(f'v_permlane32_swap_b32 {v(mx)}, {v(t0)}\nv_max_f32 {v(mx)}, {v(mx)}, {v(t0)}')
    A(f'v_sub_f32 {v(sa)}, {v(sa)}, {v(mx)}\nv_sub_f32 {v(sb)}, {v(sb)}, {v(mx)}\nv_exp_f32 {v(sa)}, {v(sa)}\nv_exp_f32 {v(sb)}, {v(sb)}')
    nop(1)
    A(f'v_cvt_pk_bf16_f32 {v(sa)}, {v(sa)}, {v(sb)}')
    A(f'v_lshlrev_b32 {v(sb)}, 16, {v(sa)}\nv_and_b32 {v(t0)}, 0xffff0000, {v(sa)}\nv_add_f32 {v(t0)}, {v(t0)}, {v(sb)}')
    A(f'ds_write_b16 {v(vPW)}, {v(sa)}\nds_write_b16_d16_hi {v(vPW)}, {v(sa)} offset:64')
    for k in (8, 4, 2, 1):
        dpp('v_add_f32', t0, t0, t0, f'row_ror:{k}')
        if k > 1: nop(2)
    A(f'v_mov_b32 {v(sb)}, {v(t0)}')
    nop(2)
    A(f'v_permlane32_swap_b32 {v(t0)}, {v(sb)}\nv_add_f32 {v(t0)}, {v(t0)}, {v(sb)}')
    A(f'ds_write_b64 {v(T)}, {v(mx,2)}\ns_waitcnt lgkmcnt(0)')
    stamp(4)
    A(f's_cmp_lg_u32 {s(sLAY)}, 0\ns_cbranch_scc1 L_pbar')
    signal(F_P)
    A(f's_cmp_lg_u32 {s(sGOK)}, 0\ns_cbranch_scc1 L_gchk_n')
    A('L_gchk:')
    gchk_issue()
    A('L_gchk_n:')
    for tt in range(2):
        A(f's_lshl_b32 s6, {s(sW)}, 1\ns_add_u32 s6, s6, {tt}')
        tr_addr(T+4+tt, 6, 3, 0, VB, T)
    wait_flag(F_V)
    amp(2)
    if P['ls']: stamp(2)
    for ks in range(8):
        for tt in range(2):
            for hh in range(2):
                A(f'ds_read_b64_tr_b16 {a(aV+32*tt+4*ks+2*hh,2)}, {v(T+4+tt)} offset:{ks*8192+hh*1024}')
    A(f's_cmp_lg_u32 {s(sGOK)}, 0\ns_cbranch_scc1 L_gchk_d\ns_waitcnt vmcnt(0)')
    gchk_test('L_gchk_f')
    A('L_gchk_d:')
    if P['ls']: stamp(7)
    wait_flag(F_P, sleep=0)
    if P['ls']: stamp(8)
    A('s_branch L_pv')
    A('L_gchk_f:')
    tmo_check()
    A('s_branch L_gchk')
    A('L_pbar:\ns_barrier')
    A('L_pv:')
    pf, DO, ml = T, T+20, T+28
    NB = 5
    A(f'ds_read_b128 {v(ml,4)}, {v(vMLR)}\nds_read_b128 {v(ml+4,4)}, {v(vMLR)} offset:16')
    for ks in range(NB):
        A(f'ds_read_b128 {v(pf+4*ks,4)}, {v(pa+(ks >> 1))} offset:{64*(ks & 1)}')
    for ks in range(8):
        r = pf + 4*(ks % NB)
        A(f's_waitcnt lgkmcnt({min(NB-1, 7-ks)})')
        for tt in range(2):
            D = DO + 4*tt
            A(f'v_mfma_f32_16x16x32_bf16 {v(D,4)}, {v(r,4)}, {a(aV+32*tt+4*ks,4)}, {v(D,4) if ks else 0}')
        if ks + NB < 8:
            A(f'ds_read_b128 {v(r,4)}, {v(pa+((ks+NB) >> 1))} offset:{64*((ks+NB) & 1)}')
    M_, L_ = T+40, T+41
    A(f'v_max3_f32 {v(M_)}, {v(ml)}, {v(ml+2)}, {v(ml+4)}\nv_max_f32 {v(M_)}, {v(M_)}, {v(ml+6)}')
    for k in range(4): A(f'v_sub_f32 {v(ml+2*k)}, {v(ml+2*k)}, {v(M_)}')
    for k in range(4): A(f'v_exp_f32 {v(ml+2*k)}, {v(ml+2*k)}')
    A(f'v_mul_f32 {v(L_)}, {v(ml)}, {v(ml+1)}')
    for k in range(1, 4): A(f'v_fmac_f32 {v(L_)}, {v(ml+2*k)}, {v(ml+2*k+1)}')
    A(f'v_rcp_f32 {v(ml+1)}, {v(L_)}\nv_log_f32 {v(L_)}, {v(L_)}')
    for k in range(4): A(f'v_cndmask_b32 {v(DO+k)}, {v(DO+k)}, {v(DO+4+k)}, {s(sMHI,2)}')
    A(f'v_mul_f32 {v(DO)}, {v(DO)}, {v(ml)}')
    for k in range(1, 4): A(f'v_fmac_f32 {v(DO)}, {v(DO+k)}, {v(ml+2*k)}')
    A(f'v_mul_f32 {v(DO)}, {v(DO)}, {v(ml+1)}\nv_add_f32 {v(L_)}, {v(L_)}, {v(M_)}\nv_lshrrev_b32 {v(DO+2)}, 1, {v(vL4)}')
    A(f'v_mov_b32_dpp {v(DO+1)}, {v(DO)} quad_perm:[1,0,3,2] row_mask:0xf bank_mask:0xf')
    A(f's_mov_b32 exec_lo, 0x55555555\ns_mov_b32 exec_hi, 0x55555555')
    A(f'v_cvt_pk_bf16_f32 {v(DO)}, {v(DO)}, {v(DO+1)}')
    def o_st(m):
        A(f'buffer_store_dword {v(DO)}, {v(vOBS)}, {s(rWS,4)}, {s(sOBst)} offen{m}')
        l = A.label('nolse')
        A(f's_cmp_lg_u32 {s(sW)}, 0\ns_cbranch_scc1 {l}\ns_mov_b64 exec, 0x10001')
        A(f'buffer_store_dword {v(L_)}, {v(DO+2)}, {s(rWS,4)}, {s(sLSEst)} offen{m}')
        A(f'{l}:\ns_mov_b64 exec, -1')
    A(f's_cmp_eq_u32 {s(sFAST)}, 0\ns_cbranch_scc1 L_o_slow')
    o_st('')
    A('L_o_done:')
    stamp(5)
    A(f'v_and_b32 {v(T+9)}, 28, {v(vL4)}\nv_add_u32 {v(T+13)}, {s(sSM)}, {v(vT4)}')
    A('L_gb:')
    for k in range(8):
        A(f'buffer_load_dword {v(T+k)}, {v(vL4)}, {s(rWS,4)}, {s(sOBld)} offen offset:{256*k} sc1')
    A(f'buffer_load_dword {v(T+8)}, {v(T+9)}, {s(rWS,4)}, {s(sLSEld)} offen sc1')
    A('s_waitcnt vmcnt(0)')
    mm, ff = T+10, T+8
    check_sentinel(range(T, T+9), T+11, 'L_gb_f')
    dpp('v_max_f32', mm, ff, ff, 'row_ror:4')
    unp = [f'v_lshlrev_b32 {v(T+16+k)}, 16, {v(T+k)}\nv_and_b32 {v(T+k)}, 0xffff0000, {v(T+k)}' for k in range(8)]
    A(unp[0]); dpp('v_max_f32', mm, mm, mm, 'row_ror:2')
    A(unp[1]); dpp('v_max_f32', mm, mm, mm, 'row_ror:1')
    A(f'v_sub_f32 {v(ff)}, {v(ff)}, {v(mm)}\nv_exp_f32 {v(ff)}, {v(ff)}')
    A(unp[2]); dpp('v_add_f32', mm, ff, ff, 'row_ror:4')
    A(unp[3]); dpp('v_add_f32', mm, mm, mm, 'row_ror:2')
    A(unp[4]); dpp('v_add_f32', mm, mm, mm, 'row_ror:1')
    A(f'v_rcp_f32 {v(mm)}, {v(mm)}')
    A(unp[5])
    A(f'v_mul_f32 {v(ff)}, {v(ff)}, {v(mm)}')
    A(unp[6]); A(unp[7])
    lo, hi = T+11, T+12
    for k in range(8):
        op = 'v_mul_f32' if k == 0 else 'v_fmac_f32'
        dpp(op, lo, ff, T+16+k, f'row_newbcast:{k}')
        dpp(op, hi, ff, T+k, f'row_newbcast:{k}')
    A(f'v_cvt_pk_bf16_f32 {v(lo)}, {v(lo)}, {v(hi)}\nds_write_b32 {v(T+13)}, {v(lo)} offset:{OL}')
    A('s_waitcnt lgkmcnt(0)\ns_barrier')
    stamp(6)
    if P['amp'] == 3: A(f's_cmp_lg_u32 {s(sLAY)}, 0\ns_cbranch_scc1 L_amp3'); amp(3); A('L_amp3:')
    A(f's_or_b32 s6, s2, {s(sW)}\ns_or_b32 s6, s6, {s(sLAY)}\ns_cmp_lg_u32 s6, 0\ns_cbranch_scc1 L_cbar')
    A(f'v_mov_b32 {v(T)}, {s(sTAG)}\nv_mov_b32 {v(T+1)}, {EPO}\ns_mov_b64 exec, 1')
    A(f'buffer_store_dword {v(T)}, {v(T+1)}, {s(rWS,4)}, 0 offen sc1\ns_mov_b64 exec, -1\ns_branch L_cbar')
    A('L_o_slow:')
    o_st(' sc1')
    A('s_waitcnt vmcnt(0)\ns_branch L_o_done')
    A('L_gb_f:')
    tmo_check(1)
    A('s_branch L_gb')

    A('L_loader:')
    TH = P['throttle']
    vKo2, vVo2 = CB+70, CB+71
    A(f'v_mov_b32 {v(vKo2)}, {v(vKo)}\nv_mov_b32 {v(vVo2)}, {v(vVo)}')
    A(f's_and_b32 s4, {s(sW)}, 3\ns_lshl_b32 s6, s4, 10')
    if P['rot']: A('s_mul_i32 s7, s2, 0x9e3779b1\ns_lshr_b32 s7, s7, 28\ns_lshl_b32 s7, s7, 12\ns_add_u32 s6, s6, s7')
    def dma(vr, srd, base):
        A(f's_add_u32 m0, s6, {base}\ns_add_u32 s7, s6, 4096')
        A(f'buffer_load_dwordx4 {v(vr)}, {s(srd,4)}, s6 offen nt lds\ns_and_b32 s6, s7, 0xffff')
    seq = []
    def issue(name): seq.append(name)
    def landed(name):
        last = max(i for i, n in enumerate(seq) if n == name)
        return len(seq) - 1 - last
    def thr(): A(f's_waitcnt vmcnt({TH})')
    for i in range(16):
        dma(vKo2, rK, KB); issue('K')
        if i == 0:
            xa_addr(vXA, T+4)
            A(f'v_lshlrev_b32 {v(vQF)}, 4, {v(vg)}\nv_add_u32 {v(vQF)}, {SM}, {v(vQF)}')
            A(f'v_and_b32 {v(T+4)}, 1, {v(vj)}\nv_lshl_add_u32 {v(T+4)}, {v(vg)}, 1, {v(T+4)}\nv_mul_u32_u24 {v(T+4)}, {8*PCS}, {v(T+4)}')
            A(f'v_lshrrev_b32 {v(T+5)}, 1, {v(vj)}\nv_lshl_add_u32 {v(vPCS)}, {v(T+5)}, 2, {v(T+4)}')
        if i == 1: wq_addr(T+8)
        if i >= TH - 1: thr()
        if i == TH - 1: signal(F_WL); stamp(1)
        if i == 13:
            wait_flag(F_WL, sleep=0)
            wq_reads(T+8)
        if i == 15:
            A('s_waitcnt lgkmcnt(0)'); signal(F_WQ2)
    raw_loads()
    for _ in range(15): issue('R')
    build = coef_build()
    wo_pat = []
    vl2 = T + 16
    wo_pat.append(f'v_lshrrev_b32 {v(vl2)}, 2, {v(vL4)}')
    vWO = T + 8
    for k in range(5):
        wo_pat.append(f'v_add_u32 {v(T+13)}, {64*k}, {v(vl2)}\nv_mul_u32_u24 {v(T+14)}, 13108, {v(T+13)}\nv_lshrrev_b32 {v(T+14)}, 16, {v(T+14)}')
        wo_pat.append(f'v_mul_u32_u24 {v(T+15)}, 5, {v(T+14)}\nv_sub_u32 {v(T+13)}, {v(T+13)}, {v(T+15)}\nv_mul_u32_u24 {v(T+14)}, 1152, {v(T+14)}')
        wo_pat.append(f'v_lshl_add_u32 {v(vWO+k)}, {v(T+13)}, 4, {v(T+14)}')
    order = P['order']
    assert order.count('V') == 16 and order.count('W') == 10
    ksig = False
    sM0W, sOFW = sKD, sPOL
    A(f's_mul_i32 {s(sM0W)}, s4, 5120\ns_add_u32 {s(sM0W)}, {s(sM0W)}, {SP}\ns_mul_i32 {s(sOFW)}, s4, {128*1152}')
    lastV = order.rindex('V')
    nslots = len(order) - TH
    per = -(-len(build) // nslots)
    nv = nw = 0
    wq_waited = False
    for i, op in enumerate(order):
        if op == 'V':
            if nv == (0 if P['rot'] else 13) and not wq_waited: wait_flag(F_WQ); wait_flag(F_WQ2); wq_waited = True
            dma(vVo2, rV, VB); issue('V'); nv += 1
        else:
            if nw == 0 and not wq_waited: wait_flag(F_WQ); wait_flag(F_WQ2); wq_waited = True
            if nw == 5:
                assert ksig
                A(f's_add_u32 {s(sOFW)}, {s(sOFW)}, {64*1152}\ns_mul_i32 {s(sM0W)}, s4, 5120')
                wait_flag(F_KR)
            A(f's_mov_b32 m0, {s(sM0W)}\ns_add_u32 {s(sM0W)}, {s(sM0W)}, 1024')
            A(f'buffer_load_dwordx4 {v(vWO + nw % 5)}, {s(rWO,4)}, {s(sOFW)} offen nt lds'); issue('W'); nw += 1
        if i == 0:
            for ins in wo_pat: A(ins)
        if not ksig and landed('K') - 15 >= min(TH, 4):
            A(f's_waitcnt vmcnt({landed("K")})'); signal(F_K); stamp(2); ksig = True
        if i == lastV: stamp(3)
        vs = min(lastV + P['vlag'], len(order) - 1)
        if i == vs:
            A(f's_waitcnt vmcnt({landed("V")})'); signal(F_V); stamp(4)
        elif TH - 1 <= i < vs and (i < lastV - P['wfree'] or P['wfree'] < 0):
            thr()
        if i >= TH and (P['wfree'] < 0 or i < lastV - P['wfree']):
            n = per
            if any(f'v{vVo2}' in x for x in build[:n]) and i < lastV: n = 0
            for ins in build[:n]: A(ins)
            build = build[n:]
    for ins in build: A(ins)
    stamp(5)
    A(f'v_bfe_u32 {v(T)}, {v(vL4)}, 4, 2\nv_bfe_u32 {v(T+1)}, {v(vL4)}, 2, 2\nv_lshrrev_b32 {v(T+2)}, 6, {v(vL4)}\nv_lshl_add_u32 {v(T)}, {v(T+2)}, 3, {v(T)}')
    A(f'v_mul_u32_u24 {v(T)}, 80, {v(T)}\nv_lshl_add_u32 {v(T)}, {v(T+1)}, 3, {v(T)}')
    A(f's_and_b32 s6, {s(sC)}, 1\ns_lshl_b32 s6, s6, 3\ns_lshl_b32 s7, s4, 5\ns_add_u32 s6, s6, s7\nv_add_u32 {v(T)}, s6, {v(T)}')
    A(f'v_add_u32 {v(T+1)}, {SP}, {v(T)}\ns_waitcnt vmcnt(0)')
    signal(F_WO)
    wait_flag(F_WO, sleep=0)
    for ks in range(16):
        for hh in range(2):
            A(f'ds_read_b64_tr_b16 {a(aWO+4*ks+2*hh,2)}, {v(T if ks & 2 else T+1)} offset:{5120*(ks >> 2)+2560*(ks & 1)+320*hh}')
    A('s_waitcnt lgkmcnt(0)')
    stamp(6)
    A('L_wo:\ns_barrier')
    A(f's_cmp_eq_u32 {s(sW)}, 7\ns_cbranch_scc1 L_cbar')
    of = lambda ks: v(T+4*ks, 4) if ks < 9 else a(aSP+4*(ks-9), 4)
    for ks in range(16):
        A(f'ds_read_b128 {of(ks)}, {v(vQF)} offset:{OL+64*ks}')
    DW = T + 36
    for ks in range(16):
        A(f's_waitcnt lgkmcnt({15-ks})')
        A(f'v_mfma_f32_16x16x32_bf16 {v(DW,4)}, {of(ks)}, {a(aWO+4*ks,4)}, {v(DW,4) if ks else 0}')
    A(f's_cmp_eq_u32 {s(sW)}, 6\ns_cselect_b32 s6, 0x000f000f, -1')
    nop(6)
    A(f'v_mov_b32_dpp {v(DW+4)}, {v(DW)} quad_perm:[0,0,2,2] row_mask:0xf bank_mask:0xf')
    A(f'v_mov_b32_dpp {v(DW+5)}, {v(DW)} quad_perm:[1,1,3,3] row_mask:0xf bank_mask:0xf')
    A(f's_mov_b32 exec_lo, s6\ns_mov_b32 exec_hi, s6')
    A(f'v_cvt_pk_bf16_f32 {v(DW)}, {v(DW+4)}, {v(DW+5)}')
    A(f'buffer_store_dword {v(DW)}, {v(vPCS)}, {s(rWS,4)}, {s(sPCst)} offen sc1\ns_mov_b64 exec, -1')
    stamp(7)
    if P['cpace'] < 0: A('s_waitcnt vmcnt(0)')
    elif P['cpace']: A(f's_sleep {P["cpace"]}')
    stamp(8)

    A('L_cbar:')
    g0 = T
    xs_, xad, xad2 = T+18, T+20, T+21
    A(f'v_lshl_add_u32 {v(xad)}, {v(vT4)}, 1, {s(sSM)}\nv_mov_b32 {v(xs_)}, 0\nv_mov_b32 {v(xs_+1)}, 0')
    A('s_barrier')
    if P['stamps'] == 1 and not P['ls']: cstamp(1)
    A(f's_cmp_gt_u32 {s(sW)}, 4\ns_cbranch_scc1 L_gc_done')
    A(f's_cmp_eq_u32 {s(sW)}, 4\ns_cselect_b32 exec_hi, 0, -1')
    A('L_gc:')
    for k in range(8):
        A(f'buffer_load_dword {v(g0+k)}, {v(vT4)}, {s(rWS,4)}, {s(sPCld if k < 4 else sPCld2)} offen offset:{PCS*(k & 3)} sc1')
    A(f'ds_read_b64 {v(xs_,2)}, {v(xad)} offset:{X32}')
    A('s_waitcnt vmcnt(0) lgkmcnt(0)')
    check_sentinel(range(g0, g0+8), g0+8, 'L_gc_f')
    for k in range(8):
        r = g0 + 8 + 2*(k & 1)
        A(f'v_lshlrev_b32 {v(r)}, 16, {v(g0+k)}\nv_and_b32 {v(r+1)}, 0xffff0000, {v(g0+k)}')
        if k == 1:
            A(f'v_pk_add_f32 {v(g0+12,2)}, {v(g0+8,2)}, {v(g0+10,2)}')
        elif k > 1:
            acc = xs_ if k & 1 else g0+12
            A(f'v_pk_add_f32 {v(acc,2)}, {v(acc,2)}, {v(r,2)}')
    A(f'v_pk_add_f32 {v(xs_,2)}, {v(xs_,2)}, {v(g0+12,2)}')
    A(f'ds_write_b64 {v(xad)}, {v(xs_,2)} offset:{X32}\ns_mov_b64 exec, -1')
    partial_stats(xs_, g0, vSTW)
    A('s_waitcnt lgkmcnt(0)')
    A('L_gc_done:')
    A1, A2, ACC = T+32, T+36, T+40
    A(f'v_mov_b32 {v(A2+3)}, 0\nv_mov_b32 {v(A2+1)}, 0x3f803f80')
    A(f'v_cndmask_b32 {v(A2)}, {v(A2+3)}, {v(A2+1)}, {s(sMT,2)}\nv_cndmask_b32 {v(A2+2)}, {v(A2+3)}, {v(A2+1)}, {s(sMU,2)}')
    A('s_barrier')
    if not P['ls']: cstamp(7)
    if P['ms']: stamp(3)
    st = T
    stats_issue(st)
    A(f'ds_read_b32 {v(st+13)}, {v(vEA)}')
    if P['touch']:
        A(f's_cmp_lg_u32 {s(sLAY)}, 0\ns_cbranch_scc1 L_notouch\ns_cmp_gt_u32 {s(sW)}, 3\ns_cbranch_scc1 L_notouch')
        A(f'v_lshlrev_b32 {v(st+14)}, 4, {v(vL4)}\ns_add_u32 s6, {s(sQAld)}, {LQ}\ns_add_u32 s7, {s(sOBld)}, {LA}')
        A(f'v_and_b32 {v(st+15)}, 0x7c0, {v(st+14)}')
        A(f'buffer_load_dword {v(ACC+5)}, {v(st+14)}, {s(rWS,4)}, s6 offen sc1\nbuffer_load_dword {v(ACC+5)}, {v(st+15)}, {s(rWS,4)}, s7 offen sc1')
        A(f's_add_u32 s7, {s(sLSEld)}, {LA}\nv_mov_b32 {v(st+15)}, 0\nbuffer_load_dword {v(ACC+5)}, {v(st+15)}, {s(rWS,4)}, s7 offen sc1')
        A('L_notouch:')
    A('s_waitcnt lgkmcnt(0)')
    stats_calc(st, twice=True)
    h = st + 13
    A(f'v_sub_f32 {v(h)}, {v(h)}, {v(st)}\nv_mul_f32 {v(h)}, {v(h)}, {v(st+2)}')
    A(f'v_cvt_pk_bf16_f32 {v(h)}, {v(h)}, {v(h)}')
    A(f'v_cndmask_b32 {v(A1+3)}, {v(A2+3)}, {v(h)}, {s(sMT,2)}\nv_cndmask_b32 {v(A2+1)}, {v(A2+3)}, {v(h)}, {s(sMU,2)}')
    A(f'v_and_b32 {v(st)}, 0xffff0000, {v(A1+3)}\nv_mul_f32 {v(st+1)}, {v(st)}, {v(st)}\nv_mul_f32 {v(st+2)}, {v(st+1)}, {v(st)}')
    A(f'v_and_b32 {v(st+3)}, 0xffff0000, {v(st+1)}\nv_perm_b32 {v(A1+1)}, {v(st+1)}, {v(st+1)}, {s(sSEL)}\nv_and_b32 {v(st+4)}, 0xffff0000, {v(st+2)}')
    A(f'v_sub_f32 {v(st+3)}, {v(st+1)}, {v(st+3)}\nv_sub_f32 {v(st+4)}, {v(st+2)}, {v(st+4)}\nv_perm_b32 {v(A1)}, {v(st+2)}, {v(st+2)}, {s(sSEL)}')
    A(f'v_cvt_pk_bf16_f32 {v(A1+2)}, {v(st+4)}, {v(st+3)}')
    nop(2)
    def mm2(f):
        D = T + 16*(f & 1)
        A(f'v_mfma_f32_32x32x16_bf16 {v(D,16)}, {v(A1,4)}, {v(CB+8*f,4)}, 0')
        A(f'v_mfma_f32_32x32x16_bf16 {v(D,16)}, {v(A2,4)}, {v(CB+8*f+4,4)}, {v(D,16)}')
    def m1(f): A(f'v_mfma_f32_32x32x16_bf16 {v(T+16*(f & 1),16)}, {v(A1,4)}, {v(CB+8*f,4)}, 0')
    def m2(f): A(f'v_mfma_f32_32x32x16_bf16 {v(T+16*(f & 1),16)}, {v(A2,4)}, {v(CB+8*f+4,4)}, {v(T+16*(f & 1),16)}')
    if P['mprio']: A('s_setprio 0')
    if P['ms']: stamp(4)
    mm2(0)
    for f in range(9):
        D = T + 16*(f & 1)
        nx = f + 1 < 9
        if f == 0: m1(1); nop(11)
        elif nx: nop(P['mnop']); m1(f+1)
        else: nop(P['mnop'] + 1)
        for e in range(5): A(f'v_exp_f32 {v(D+e)}, {v(D+e)}')
        A(f'v_pk_add_f32 {v(D,2)}, {v(D,2)}, 1.0 op_sel_hi:[1,0]\nv_pk_add_f32 {v(D+2,2)}, {v(D+2,2)}, 1.0 op_sel_hi:[1,0]\nv_add_f32 {v(D+4)}, 1.0, {v(D+4)}')
        if nx: m2(f+1)
        for e in range(5): A(f'v_rcp_f32 {v(D+e)}, {v(D+e)}')
        if f == 0:
            A(f'v_pk_mul_f32 {v(ACC,2)}, {v(D,2)}, {v(D+6,2)}\nv_pk_mul_f32 {v(ACC+2,2)}, {v(D+2,2)}, {v(D+8,2)}\nv_mul_f32 {v(ACC+4)}, {v(D+4)}, {v(D+10)}')
        else:
            A(f'v_pk_fma_f32 {v(ACC,2)}, {v(D,2)}, {v(D+6,2)}, {v(ACC,2)}\nv_pk_fma_f32 {v(ACC+2,2)}, {v(D+2,2)}, {v(D+8,2)}, {v(ACC+2,2)}\nv_fmac_f32 {v(ACC+4)}, {v(D+4)}, {v(D+10)}')
    if P['ms']: stamp(5)
    U = T + 16
    A(f'v_mov_b32 {v(U+4)}, {v(ACC+4)}')
    A(f'v_lshrrev_b32 {v(U)}, 6, {v(vL4)}\nv_and_b32 {v(U+1)}, 1, {v(U)}')
    A(f'v_permlane32_swap_b32 {v(ACC)}, {v(ACC+1)}\nv_permlane32_swap_b32 {v(ACC+2)}, {v(ACC+3)}\nv_permlane32_swap_b32 {v(ACC+4)}, {v(U+4)}')
    A(f'v_add_f32 {v(ACC)}, {v(ACC)}, {v(ACC+1)}\nv_add_f32 {v(ACC+2)}, {v(ACC+2)}, {v(ACC+3)}\nv_add_f32 {v(ACC+4)}, {v(ACC+4)}, {v(U+4)}')
    A(f'v_mov_b32 {v(U+4)}, {v(ACC+4)}')
    A(f'v_lshrrev_b32 {v(U)}, 1, {v(U)}\nv_lshl_add_u32 {v(U)}, {v(U+1)}, 1, {v(U)}')
    A(f'v_permlane16_swap_b32 {v(ACC)}, {v(ACC+2)}\nv_permlane16_swap_b32 {v(ACC+4)}, {v(U+4)}')
    A(f'v_add_f32 {v(ACC)}, {v(ACC)}, {v(ACC+2)}\nv_add_f32 {v(ACC+4)}, {v(ACC+4)}, {v(U+4)}')
    fill = [f's_lshl_b32 s6, {s(sW)}, 2', f's_add_u32 s6, s6, {SM+RED}', f'v_lshl_add_u32 {v(U)}, {v(U)}, 5, s6', f'v_mov_b32 {v(U+1)}, s6']
    for k, fi in zip((8, 4, 2, 1), fill):
        A(fi)
        dpp('v_add_f32', ACC, ACC, ACC, f'row_ror:{k}')
        dpp('v_add_f32', ACC+4, ACC+4, ACC+4, f'row_ror:{k}')
    A(f'ds_write_b32 {v(U)}, {v(ACC)}\nds_write_b32 {v(U+1)}, {v(ACC+4)} offset:128')
    if P['ms']: stamp(6)
    TT = T
    A(f's_cmp_lg_u32 {s(sW)}, 0\ns_cbranch_scc1 L_nofin')
    A(f'v_and_b32 {v(U)}, 28, {v(vL4)}\nv_lshl_add_u32 {v(U+1)}, {v(U)}, 3, {s(sSM)}')
    A(f's_lshl_b32 s6, {s(sE0)}, 2\ns_add_u32 s6, s6, {SM+X32}\nv_add_u32 {v(U+2)}, s6, {v(U)}\nds_read_b32 {v(U+2)}, {v(U+2)}')
    A(f'v_lshrrev_b32 {v(U+3)}, 5, {v(vL4)}\nv_mul_u32_u24 {v(U+3)}, {XDS}, {v(U+3)}\nv_add_u32 {v(U+3)}, {v(U+3)}, {v(U)}')
    A(f's_lshl_b32 s6, 1, {s(sNE)}\ns_sub_u32 s6, s6, 1\ns_mul_i32 s7, s6, 0x01010101\ns_lshl_b32 s5, {s(sB2)}, 16')
    A('s_waitcnt lgkmcnt(0)\ns_barrier')
    if not P['ls']: stamp(8)
    A(f'ds_read_b128 {v(TT,4)}, {v(U+1)} offset:{RED}\nds_read_b128 {v(TT+4,4)}, {v(U+1)} offset:{RED+16}')
    A(f'v_add_f32 {v(U+2)}, s5, {v(U+2)}\ns_waitcnt lgkmcnt(0)')
    A(f'v_pk_add_f32 {v(TT,2)}, {v(TT,2)}, {v(TT+2,2)}\nv_pk_add_f32 {v(TT+4,2)}, {v(TT+4,2)}, {v(TT+6,2)}\nv_pk_add_f32 {v(TT,2)}, {v(TT,2)}, {v(TT+4,2)}')
    A(f'v_add_f32 {v(TT)}, {v(TT)}, {v(U+2)}\nv_add_f32 {v(TT)}, {v(TT)}, {v(TT+1)}')
    A(f's_cmp_lg_u32 {s(sLAY)}, 0\ns_cbranch_scc1 L_out')
    A('s_mov_b32 exec_lo, s7\ns_mov_b32 exec_hi, s7')
    A(f'buffer_store_dword {v(TT)}, {v(U+3)}, {s(rWS,4)}, {s(sXDst)} offen sc1\ns_mov_b64 exec, -1\ns_branch L_dpace')
    A('L_nofin:\ns_waitcnt lgkmcnt(0)\ns_barrier')
    if not P['ls']: cstamp(8)
    A(f's_cmp_lg_u32 {s(sLAY)}, 0\ns_cbranch_scc1 L_fin')
    A('L_dpace:')
    A(f's_load_dwordx2 {s(pX,2)}, s[0:1], 80')
    amp(4)
    A(f'v_lshl_add_u32 {v(xad)}, {v(vT4)}, 1, {s(sSM)}\nv_add_u32 {v(xad2)}, {s(sSM)}, {v(vT4)}\nv_lshlrev_b32 {v(T+22)}, 1, {v(vT4)}')
    A(f'v_mov_b32 {v(xs_)}, 0\nv_mov_b32 {v(xs_+1)}, 0')
    A(f'v_mov_b32 {v(T+23)}, {SM+TAGW}\nds_read_b64 {v(T+24,2)}, {v(T+23)}\ns_waitcnt lgkmcnt(0)\nv_readfirstlane_b32 {s(sTG12)}, {v(T+24)}')
    if P['fast']: A(f'v_readfirstlane_b32 {s(sFAST)}, {v(T+25)}')
    for r in (sQAst, sQAld): A(f's_add_u32 {s(r)}, {s(r)}, {LQ}')
    for r in (sOBst, sLSEst, sOBld, sLSEld, sPCst, sPCld, sPCld2): A(f's_add_u32 {s(r)}, {s(r)}, {LA}')
    A(f's_mov_b32 {s(sLAY)}, 1')
    if P['dpace'] < 0: A('s_waitcnt vmcnt(0)')
    elif P['dpace']: A(f's_sleep {P["dpace"]}')
    if P['stamps'] == 1 and not P['ls']: cstamp(9)
    A('s_barrier')
    A(f's_cmp_gt_u32 {s(sW)}, 4\ns_cbranch_scc1 L_gd_done')
    A(f's_cmp_eq_u32 {s(sW)}, 4\ns_cselect_b32 exec_hi, 0, -1')
    A('L_gd:')
    for k in range(2):
        A(f'buffer_load_dword {v(xs_+k)}, {v(T+22)}, {s(rWS,4)}, {s(sXDld)} offen offset:{4*k} sc1')
    A('s_waitcnt vmcnt(0)')
    check_sentinel([xs_, xs_+1], g0+2, 'L_gd_f')
    A(f'v_cvt_pk_bf16_f32 {v(g0+2)}, {v(xs_)}, {v(xs_+1)}\nds_write_b64 {v(xad)}, {v(xs_,2)} offset:{X32}')
    A(f'v_lshlrev_b32 {v(g0+4)}, 16, {v(g0+2)}\nv_and_b32 {v(g0+5)}, 0xffff0000, {v(g0+2)}\nds_write_b32 {v(xad2)}, {v(g0+2)} offset:{XH}')
    A(f'v_sub_f32 {v(g0+4)}, {v(xs_)}, {v(g0+4)}\nv_sub_f32 {v(g0+5)}, {v(xs_+1)}, {v(g0+5)}\nv_cvt_pk_bf16_f32 {v(g0+4)}, {v(g0+4)}, {v(g0+5)}')
    A(f'ds_write_b32 {v(xad2)}, {v(g0+4)} offset:{XL}\ns_mov_b64 exec, -1')
    partial_stats(xs_, g0, vSTW)
    A('s_waitcnt lgkmcnt(0)')
    A('L_gd_done:\ns_barrier')
    if P['stamps'] == 1:
        A('s_waitcnt lgkmcnt(0)')
        emit_stamps(A, 0)
        stamp(0)
    A(f's_cmp_lt_u32 {s(sW)}, 4\ns_cbranch_scc1 L_attn')
    q_stage(vXA)
    stamp(2)
    A('s_barrier\ns_barrier\ns_branch L_wo')
    A('L_gc_f:')
    tmo_check(2)
    A('s_branch L_gc')
    A('L_gd_f:')
    tmo_check(3)
    A('s_branch L_gd')
    A('L_out:')
    A(f's_mov_b32 exec_lo, s6\ns_mov_b32 exec_hi, 0')
    A(f's_mul_i32 s6, {s(sB)}, 576\ns_add_u32 s6, s6, {s(sE0)}\ns_lshl_b32 s6, s6, 1')
    A(f'v_lshrrev_b32 {v(U)}, 1, {v(vL4)}\nv_add_u32 {v(U)}, s6, {v(U)}\nv_cvt_pk_bf16_f32 {v(TT)}, {v(TT)}, {v(TT)}')
    A(f'global_store_short {v(U)}, {v(TT)}, {s(pX,2)}')
    if P['amp'] >= 0:
        amp(5)
        A('s_memrealtime s[86:87]\ns_waitcnt lgkmcnt(0)\ns_sub_u32 s84, s84, s82\ns_lshl_b32 s84, s84, 2\ns_add_u32 s86, s86, s84')
        A('L_amp:\ns_memrealtime s[88:89]\ns_waitcnt lgkmcnt(0)\ns_sub_u32 s88, s88, s86\ns_cmp_lt_i32 s88, 0\ns_cbranch_scc1 L_amp')
    A('L_fin:')
    if P['stamps']:
        A('s_mov_b64 exec, -1\ns_waitcnt vmcnt(0)')
        stamp(9, True)
        A('s_waitcnt lgkmcnt(0)')
        if P['stamps'] == 1:
            emit_stamps(A, 1)
    A('L_end:\ns_endpgm')
    hdr = open('cdna_kernels/' + NAME + '.s.ref').read().split('; Override launch')[0].rstrip('\n').split('\n')
    return wrap(A.text(), hdr, 256, 512, LDS_BYTES, 256, 128)


def emit_stamps(A, layer):
    A(f's_lshl_b32 s6, s2, 3\ns_add_u32 s6, s6, {s(sW)}\ns_lshl_b32 s6, s6, 7\ns_add_u32 s6, s6, {STAMP + 64*layer}')
    A(f'v_mov_b32 {v(T+44)}, s6')
    for i in range(10):
        A(f'v_mov_b32 {v(T+45)}, {s(sSTP+2*i)}\nglobal_store_dword {v(T+44)}, {v(T+45)}, {s(pWS,2)} offset:{4*i}')
    A(f'v_mov_b32 {v(T+45)}, {s(sCNT)}\nglobal_store_dword {v(T+44)}, {v(T+45)}, {s(pWS,2)} offset:40\ns_mov_b32 {s(sCNT)}, 0')


if __name__ == '__main__':
    out = sys.argv[1]
    kw = {}
    for x in sys.argv[2:]:
        k, val = x.split('='); kw[k] = val if k == 'order' else int(val, 0)
    open(out, 'w').write(gen(**kw))
```

```python
import sys, math, struct
from asmlib import *

def f2u(x):
    return struct.unpack('<I', struct.pack('<f', x))[0]

DEF = dict(stamps=0, throttle=5, fast=1, tmo=1 << 22, prefetch=1, cprio=3, npa=6, touch=1, xp=0, mnop=0, mprio=1, ms=0, amp=-1, order='V'*16+'W'*10, vlag=4, wfree=-1, ls=0, cpace=-1, dpace=-1, rot=1, ebar=1, egchk=0, ega=1, thv=0, wo2=1, pure=0, barl=0, lateb=0)

LQ   = 0x20000
QA   = 0x0
QAB  = 0x40000
ARR  = 0x80000
EPO  = 0x81000
AR0  = 0x100000
LA   = 0x45000
OB   = AR0
PC   = AR0 + 0x20000
LSE  = AR0 + 0x44000
XD   = AR0 + 2*LA
XDS  = 2560
PCS  = 1152
WS_BYTES = 0x200000
STAMP = 0x300000
assert XD + 16*XDS <= AR0 + 256*2560
KB, VB, SP = 0, 65536, 131072
SM = 155648
WQB = SM - 36864
X32, XH, XL, ONES, QB, PB, ML, RED, ST, ZERO, FLAGS = 0, 2304, 3456, 4608, 5120, 6144, 7168, 7232, 7488, 7552, 7680
TAGW = FLAGS + 240
DUMMY = ST + 48
OL = QB
F_A, F_WQ, F_Q, F_K, F_KR, F_P, F_V, F_WO, F_WL, F_WQ2 = range(10)
LDS_BYTES = 163840
sW = 3
rK, rV, rWQ, rWO, rWS = 8, 12, 16, 20, 24
pX, pW1, pB1, pW2, pB2 = 28, 30, 32, 34, 36
sSEL, sCNT, sTG12, sTAG = 38, 39, 40, 41
pWS = 42
sX, sB, sHL, sSP, sHKV, sC, sU, sE0, sNE, sLAY, sFAST, sTMO = range(44, 56)
sQAst, sQAld, sOBst, sLSEst, sOBld, sLSEld, sPCst, sPCld, sPCld2, sXDld = range(56, 66)
sXDst, sB2 = 66, 67
sMHI, sMT, sMU = 68, 70, 72
sSM, sXCC = 74, 75
sKD, sPOL, sQC, sGOK = 76, 77, 78, 79
sSTP = 82
vTID, vL4, vT4, vR3, vQF, vR5, vMLR, vFL, vEA, vSTW = range(10)
vXA = vPW = vR3
vPCS = vOBS = vR5
CB = 10
T = 82
aK, aV = 0, 64
aWO, aWQ, aWQH, aSP = 0, 64, 96, 100

K1 = -2.0 * math.sqrt(2.0/math.pi) * math.log2(math.e)
K2 = K1 * 0.044715


def lane_masks():
    mt = mu = 0
    for l in range(64):
        i = l & 31
        if ((l >> 2) & 1) != (l >> 5):
            continue
        r = 4*(i >> 3) + (i & 3)
        if r <= 4: mt |= 1 << l
        if 6 <= r <= 10: mu |= 1 << l
    return mt, mu


def gen(**kw):
    P = dict(DEF); P.update(kw)
    A = Asm()
    amp_state = []
    def amp(k):
        if P['amp'] == k: A('s_memrealtime s[84:85]')
    nop = lambda n: A(f's_nop {n-1}') if n > 0 else None
    def stamp(i, final=False):
        if P['amp'] >= 0 and not P['stamps']:
            if i == 0 and not amp_state: A('s_memrealtime s[82:83]'); amp_state.append(1)
            return
        if P['stamps'] == 1 or (P['stamps'] == 2 and (i == 0 or final)):
            A(f's_memrealtime {s(sSTP+2*i,2)}')
        elif P['stamps'] == 2 and i != 9:
            l = A.label('st')
            A(f's_cmp_lg_u32 {s(sLAY)}, 0\ns_cbranch_scc1 {l}\ns_memrealtime {s(sSTP+2*i,2)}\n{l}:')
    def cstamp(i):
        if P['stamps']:
            l = A.label('cs')
            A(f's_cmp_gt_u32 {s(sW)}, 3\ns_cbranch_scc1 {l}'); stamp(i); A(f'{l}:')
    def tmo_check(cnt=None):
        if cnt is not None and P['stamps'] == 1:
            A(f's_add_u32 {s(sCNT)}, {s(sCNT)}, {1 << (8*cnt)}')
        A(f's_sub_u32 {s(sTMO)}, {s(sTMO)}, 1\ns_cbranch_scc1 L_end')
    FT = T + 40
    def signal(k):
        A(f'v_mov_b32 {v(FT+4)}, 1\nds_write_b32 {v(vFL)}, {v(FT+4)} offset:{16*k}')
    def flag_test(k):
        A(f'ds_read_b128 {v(FT,4)}, {v(FT+5)} offset:{16*k}\ns_waitcnt lgkmcnt(0)')
        A(f'v_and_b32 {v(FT)}, {v(FT)}, {v(FT+1)}\nv_and_b32 {v(FT+2)}, {v(FT+2)}, {v(FT+3)}\nv_and_b32 {v(FT)}, {v(FT)}, {v(FT+2)}')
        A(f'v_cmp_ne_u32 vcc, 0, {v(FT)}')
    def wait_flag(k, sleep=1):
        l = A.label('wf')
        A(f'v_mov_b32 {v(FT+5)}, {SM+FLAGS}\n{l}:')
        flag_test(k)
        A(f's_cbranch_vccnz {l}_d')
        tmo_check()
        if sleep: A(f's_sleep {sleep}')
        A(f's_branch {l}\n{l}_d:')
    def dpp(op, d, a_, b_, ctl, rm='0xf'):
        A(f'{op}_dpp {v(d)}, {v(a_)}, {v(b_)} {ctl} row_mask:{rm} bank_mask:0xf')
    def check_sentinel(regs, tmp, lfail):
        r = list(regs); cur = r.pop(0)
        while r:
            if len(r) >= 2:
                A(f'v_max3_u32 {v(tmp)}, {v(cur)}, {v(r[0])}, {v(r[1])}'); r = r[2:]
            else:
                A(f'v_max_u32 {v(tmp)}, {v(cur)}, {v(r[0])}'); r = r[1:]
            cur = tmp
        A(f'v_cmp_eq_u32 vcc, -1, {v(cur)}\ns_cbranch_vccnz {lfail}')
    def partial_stats(x, t, addr):
        A(f'v_add_f32 {v(t)}, {v(x)}, {v(x+1)}\nv_mul_f32 {v(t+1)}, {v(x)}, {v(x)}\nv_fmac_f32 {v(t+1)}, {v(x+1)}, {v(x+1)}')
        nop(2)
        A(f'v_permlane32_swap_b32 {v(t)}, {v(t+1)}\nv_add_f32 {v(t)}, {v(t)}, {v(t+1)}')
        for k in (8, 4, 2, 1):
            nop(2); dpp('v_add_f32', t, t, t, f'row_ror:{k}')
        nop(2); dpp('v_add_f32', t, t, t, 'row_bcast:15', '0xa')
        A(f'ds_write_b32 {v(addr)}, {v(t)}')
    EPS = hex(f2u(1e-5)); INV = hex(f2u(1.0/576))
    def stats_issue(t):
        A(f'v_mov_b32 {v(t+12)}, {s(sSM)}')
        for k in range(3): A(f'ds_read_b128 {v(t+4*k,4)}, {v(t+12)} offset:{ST+16*k}')
    def stats_calc(t, twice=False):
        A(f'v_pk_add_f32 {v(t,2)}, {v(t,2)}, {v(t+2,2)}\nv_pk_add_f32 {v(t+4,2)}, {v(t+4,2)}, {v(t+6,2)}')
        A(f'v_pk_add_f32 {v(t,2)}, {v(t,2)}, {v(t+8,2)}\nv_pk_add_f32 {v(t,2)}, {v(t,2)}, {v(t+4,2)}')
        A(f'v_mul_f32 {v(t)}, {INV}, {v(t)}\nv_mul_f32 {v(t+1)}, {INV}, {v(t+1)}')
        A(f'v_fma_f32 {v(t+1)}, -{v(t)}, {v(t)}, {v(t+1)}\nv_max_f32 {v(t+1)}, 0, {v(t+1)}')
        if twice:
            A(f'v_mul_f32 {v(t+1)}, {hex(f2u(1+1e-5))}, {v(t+1)}\nv_add_f32 {v(t+2)}, {hex(f2u(1e-10))}, {v(t+1)}\nv_rsq_f32 {v(t+2)}, {v(t+2)}')
        else:
            A(f'v_add_f32 {v(t+2)}, {EPS}, {v(t+1)}\nv_rsq_f32 {v(t+2)}, {v(t+2)}')
    def tr_addr(dst, tile_sreg, gshift, gbit, base, t):
        A(f'v_bfe_u32 {v(t)}, {v(vL4)}, 4, 2\nv_bfe_u32 {v(t+1)}, {v(vL4)}, 2, 2\nv_lshrrev_b32 {v(t+2)}, 6, {v(vL4)}')
        A(f'v_bfe_u32 {v(t+3)}, {v(t+2)}, {gbit}, 1\nv_lshl_or_b32 {v(t+3)}, {v(t+3)}, 2, {v(t)}')
        A(f'v_xor_b32 {v(t+3)}, {s(tile_sreg)}, {v(t+3)}\nv_lshlrev_b32 {v(t+3)}, 5, {v(t+3)}\nv_lshl_add_u32 {v(t+3)}, {v(t+1)}, 3, {v(t+3)}')
        A(f'v_lshl_add_u32 {v(t+2)}, {v(t+2)}, {gshift}, {v(t)}\nv_lshl_add_u32 {v(dst)}, {v(t+2)}, 8, {v(t+3)}')
        A(f'v_add_u32 {v(dst)}, {base}, {v(dst)}')
    RAW = T + 20
    def raw_loads():
        r = []
        r.append(f'v_add_u32 {v(T+18)}, 4096, {v(vT4)}\nv_lshlrev_b32 {v(T+19)}, 1, {v(vTID)}\nv_add_u32 {v(T+19)}, 8192, {v(T+19)}')
        A(r[0])
        for k, p in enumerate((pW1, pB1, pW2)):
            for i in range(4):
                A(f'global_load_dword {v(RAW+5*k+i)}, {v(vT4 if i < 2 else T+18)}, {s(p,2)} offset:{2048*(i & 1)}')
            A(f'global_load_ushort {v(RAW+5*k+4)}, {v(T+19)}, {s(p,2)}')
    def coef_build():
        L = []
        w, b, w2, t0, t1, t2, t3, t4 = (T + i for i in range(8))
        for f in range(9):
            c = CB + 8*f
            srcs = [RAW + 5*k + (f >> 1) for k in range(3)]
            for d, sr in zip((w, b, w2), srcs):
                L.append(f'v_and_b32 {v(d)}, 0xffff0000, {v(sr)}' if f & 1 else f'v_lshlrev_b32 {v(d)}, 16, {v(sr)}')
            def split(x, dst):
                L.append(f'v_and_b32 {v(t4)}, 0xffff0000, {v(x)}')
                L.append(f'v_sub_f32 {v(dst)}, {v(x)}, {v(t4)}')
                L.append(f'v_cvt_pk_bf16_f32 {v(dst)}, {v(t4)}, {v(dst)}')
            L.append(f'v_mul_f32 {v(t0)}, {v(w)}, {v(w)}')
            L.append(f'v_mul_f32 {v(t0)}, {hex(f2u(K2))}, {v(t0)}')
            L.append(f'v_mul_f32 {v(t1)}, {v(t0)}, {v(w)}')
            L.append(f'v_mul_f32 {v(t2)}, {v(t0)}, {v(b)}')
            L.append(f'v_mul_f32 {v(t2)}, 0x40400000, {v(t2)}')
            split(t1, c); split(t2, c+1)
            L.append(f'v_perm_b32 {v(c+2)}, {v(t2)}, {v(t1)}, {s(sSEL)}')
            L.append(f'v_mul_f32 {v(t0)}, {v(b)}, {v(b)}')
            L.append(f'v_mul_f32 {v(t0)}, {hex(f2u(K2))}, {v(t0)}')
            L.append(f'v_add_f32 {v(t1)}, {hex(f2u(K1))}, {v(t0)}')
            L.append(f'v_mul_f32 {v(t2)}, {v(t1)}, {v(b)}')
            L.append(f'v_fmac_f32 {v(t1)}, 2.0, {v(t0)}')
            L.append(f'v_mul_f32 {v(t1)}, {v(t1)}, {v(w)}')
            split(t1, c+3); split(t2, c+4)
            L.append(f'v_mul_f32 {v(t1)}, {v(w)}, {v(w2)}')
            L.append(f'v_mul_f32 {v(t2)}, {v(b)}, {v(w2)}')
            split(t1, c+5); split(t2, c+6)
            L.append(f'v_mov_b32 {v(c+7)}, 0')
        return L

    def q_stage(vXA, hook=None):
        xf, st, D0, D1 = T, T+20, T+36, T+40
        A(f'v_lshrrev_b32 {v(T+18)}, 6, {v(vL4)}\nv_lshlrev_b32 {v(T+18)}, 3, {v(T+18)}\nv_sub_u32 {v(T+18)}, {v(vXA)}, {v(T+18)}')
        for ks in range(4):
            A(f'ds_read_b128 {v(xf+4*ks,4)}, {v(vXA)} offset:{64*ks}')
        A(f'ds_read_b64 {v(xf+16,2)}, {v(T+18)} offset:256')
        A(f'v_mov_b32 {v(T+19)}, {s(sSM)}')
        for k in range(3): A(f'ds_read_b128 {v(st+4*k,4)}, {v(T+19)} offset:{ST+16*k}')
        for ks in range(4):
            A(f's_waitcnt lgkmcnt({7-ks})')
            for tt, D in enumerate((D0, D1)):
                A(f'v_mfma_f32_16x16x32_bf16 {v(D,4)}, {v(xf+4*ks,4)}, {a(aWQ+16*tt+4*ks,4)}, {v(D,4) if ks else 0}')
        A('s_waitcnt lgkmcnt(3)')
        for tt, D in enumerate((D0, D1)):
            A(f'v_mfma_f32_16x16x16_bf16 {v(D,4)}, {v(xf+16,2)}, {a(aWQH+2*tt,2)}, {v(D,4)}')
        A('s_waitcnt lgkmcnt(0)')
        stats_calc(st)
        qs = (128 ** -0.5) * math.log2(math.e)
        for D in (D0, D1):
            A(f'v_add_f32 {v(D)}, {v(D)}, {v(D+1)}\nv_fma_f32 {v(D)}, -{v(st)}, {v(D+2)}, {v(D)}')
        A(f'v_mul_f32 {v(st+2)}, {hex(f2u(qs))}, {v(st+2)}\ns_mov_b64 exec, 0xffff')
        for D in (D0, D1): A(f'v_mul_f32 {v(D)}, {v(D)}, {v(st+2)}')
        for D in (D0, D1): A(f'v_and_b32 {v(D)}, 0xfffff000, {v(D)}')
        for D in (D0, D1): A(f'v_or_b32 {v(D)}, {s(sTG12)}, {v(D)}')
        A(f'buffer_store_dword {v(D0)}, {v(vL4)}, {s(rWS,4)}, {s(sQAst)} offen')
        A(f'buffer_store_dword {v(D1)}, {v(vL4)}, {s(rWS,4)}, {s(sQAst)} offen offset:64')
        if hook:
            A('s_mov_b64 exec, -1'); hook()
        l = A.label('q1')
        if hook:
            return
        A(f's_cmp_lg_u32 {s(sFAST)}, 0\ns_cbranch_scc1 {l}\ns_add_u32 {s(sQC)}, {s(sQAst)}, {QAB}')
        A(f'buffer_store_dword {v(D0)}, {v(vL4)}, {s(rWS,4)}, {s(sQC)} offen sc1')
        A(f'buffer_store_dword {v(D1)}, {v(vL4)}, {s(rWS,4)}, {s(sQC)} offen offset:64 sc1')
        A(f'{l}:\ns_mov_b64 exec, -1')

    def xa_addr(dst, t):
        A(f's_lshr_b32 s5, {s(sSP)}, 1\ns_mul_i32 s5, s5, 288\ns_add_u32 s5, s5, {SM+XH}\nv_bfe_u32 {v(t+2)}, {v(vL4)}, 2, 4')
        A(f'v_mov_b32 {v(dst)}, {SM+ONES}\nv_mov_b32 {v(t)}, s5\nv_cmp_eq_u32 vcc, 0, {v(t+2)}\nv_add_u32 {v(t+1)}, {XL-XH}, {v(t)}\nv_lshrrev_b32 {v(t+3)}, 6, {v(vL4)}')
        A(f'v_cndmask_b32 {v(dst)}, {v(dst)}, {v(t)}, vcc\nv_cmp_eq_u32 vcc, 1, {v(t+2)}')
        nop(2)
        A(f'v_cndmask_b32 {v(dst)}, {v(dst)}, {v(t+1)}, vcc\nv_lshl_add_u32 {v(dst)}, {v(t+3)}, 4, {v(dst)}')
    def wq_addr(t):
        for tt in range(2):
            A(f's_and_b32 s5, {s(sW)}, 3\ns_lshl_b32 s5, s5, 1\ns_add_u32 s5, s5, {tt}')
            tr_addr(t+4+2*tt, 5, 3, 0, WQB, t)
            tr_addr(t+5+2*tt, 5, 2, 1, WQB + 128*256, t)
    def wq_reads(t):
        for tt in range(2):
            for ks in range(4):
                for hh in range(2):
                    A(f'ds_read_b64_tr_b16 {a(aWQ+16*tt+4*ks+2*hh,2)}, {v(t+4+2*tt)} offset:{ks*8192+hh*1024}')
            A(f'ds_read_b64_tr_b16 {a(aWQH+2*tt,2)}, {v(t+5+2*tt)}')

    vl, vj, vg = T+1, T+2, T+3
    def common_setup():
        A(f's_lshr_b32 s4, {s(sSP)}, 1\ns_lshl_b32 s5, {s(sB)}, 4\ns_add_u32 s5, s5, {s(sHKV)}\ns_and_b32 s7, {s(sW)}, 3')
        A(f's_lshl_b32 s6, s7, 2\ns_add_u32 s6, s6, {SM+FLAGS}\nv_mov_b32 {v(vFL)}, s6')
        A(f's_mov_b64 {s(pW1,2)}, s[68:69]\ns_mov_b64 {s(pB1,2)}, s[70:71]')
        A(f's_mov_b64 {s(pW2,2)}, s[72:73]\ns_mov_b64 {s(pB2,2)}, s[74:75]')
        A(f's_mul_i32 s6, {s(sX)}, {512*1152}\ns_mul_i32 {s(sKD)}, {s(sC)}, 72\ns_and_b32 {s(sKD)}, {s(sKD)}, 0xfffffff0\ns_add_u32 s6, s6, {s(sKD)}')
        A(f's_add_u32 {s(rWO)}, s64, s6\ns_addc_u32 {s(rWO+1)}, s65, 0\ns_sub_u32 {s(rWO+2)}, 4718592, s6\ns_mov_b32 {s(rWO+3)}, 0x20000')
        A(f's_mov_b32 {s(rWS)}, s42\ns_mov_b32 {s(rWS+1)}, s43\ns_mov_b32 {s(rWS+2)}, {WS_BYTES}\ns_mov_b32 {s(rWS+3)}, 0x20000')
        A(f's_load_dword {s(sB2)}, {s(pB2,2)}, 0')
        A(f's_getreg_b32 {s(sXCC)}, hwreg(HW_REG_XCC_ID, 0, 4)')
        A(f's_lshl_b32 {s(sU)}, {s(sX)}, 4\ns_add_u32 {s(sU)}, {s(sU)}, {s(sC)}')
        A(f's_mul_i32 s6, {s(sU)}, 5\ns_lshl_b32 {s(sKD)}, {s(sU)}, 2\ns_add_u32 {s(sKD)}, {s(sKD)}, 64')
        A(f's_cmp_lt_u32 {s(sU)}, 64\ns_cselect_b32 {s(sE0)}, s6, {s(sKD)}\ns_cselect_b32 {s(sNE)}, 5, 4')
        A(f's_mov_b32 {s(sLAY)}, 0\ns_mov_b32 {s(sFAST)}, 0\ns_mov_b32 {s(sTMO)}, {P["tmo"]}\ns_mov_b32 {s(sCNT)}, 0\ns_mov_b32 {s(sSM)}, {SM}')
        A(f's_lshl_b32 {s(sQAld)}, s5, 12')
        A(f's_lshl_b32 s6, s4, 10\ns_add_u32 {s(sQAst)}, {s(sQAld)}, s6\ns_and_b32 s6, {s(sSP)}, 1\ns_lshl_b32 s6, s6, 9\ns_add_u32 {s(sQAst)}, {s(sQAst)}, s6')
        A(f's_lshl_b32 s6, s7, 7\ns_add_u32 {s(sQAst)}, {s(sQAst)}, s6')
        A(f's_lshl_b32 s5, {s(sB)}, 3\ns_add_u32 s5, s5, {s(sX)}')
        A(f's_lshl_b32 s6, s5, 13\ns_add_u32 s6, s6, {OB}\ns_lshl_b32 {s(sOBld)}, s7, 11\ns_add_u32 {s(sOBld)}, {s(sOBld)}, s6')
        A(f's_lshl_b32 {s(sOBst)}, {s(sC)}, 8\ns_add_u32 s6, s6, {s(sOBst)}\ns_lshl_b32 {s(sOBst)}, {s(sHL)}, 11\ns_add_u32 s6, s6, {s(sOBst)}')
        A(f's_lshl_b32 {s(sOBst)}, s7, 6\ns_add_u32 {s(sOBst)}, {s(sOBst)}, s6')
        A(f's_lshl_b32 s6, s5, 7\ns_add_u32 s6, s6, {LSE}\ns_lshl_b32 {s(sLSEld)}, s7, 5\ns_add_u32 {s(sLSEld)}, {s(sLSEld)}, s6')
        A(f's_lshl_b32 {s(sLSEst)}, {s(sHL)}, 6\ns_add_u32 s6, s6, {s(sLSEst)}\ns_lshl_b32 {s(sLSEst)}, {s(sSP)}, 2\ns_add_u32 {s(sLSEst)}, {s(sLSEst)}, s6')
        A(f's_mul_i32 {s(sPCld)}, s5, {8*PCS}\ns_add_u32 {s(sPCld)}, {s(sPCld)}, {PC}\ns_add_u32 {s(sPCld2)}, {s(sPCld)}, {4*PCS}')
        A(f's_mul_i32 s6, {s(sB)}, {64*PCS}\ns_mul_i32 {s(sPCst)}, {s(sX)}, {PCS}\ns_add_u32 s6, s6, {s(sPCst)}\ns_mul_i32 {s(sPCst)}, {s(sC)}, 72\ns_add_u32 s6, s6, {s(sPCst)}')
        A(f's_lshl_b32 {s(sPCst)}, s7, 5\ns_add_u32 {s(sPCst)}, {s(sPCst)}, s6\ns_add_u32 {s(sPCst)}, {s(sPCst)}, {PC}')
        A(f's_mul_i32 {s(sXDld)}, s5, {XDS}\ns_add_u32 {s(sXDld)}, {s(sXDld)}, {XD}')
        A(f's_mul_i32 s6, {s(sB)}, {8*XDS}\ns_lshl_b32 {s(sXDst)}, {s(sE0)}, 2\ns_add_u32 {s(sXDst)}, {s(sXDst)}, s6\ns_add_u32 {s(sXDst)}, {s(sXDst)}, {XD}')
        mt, mu = lane_masks()
        A(f's_mov_b32 {s(sMHI)}, 0\ns_mov_b32 {s(sMHI+1)}, -1\ns_mov_b32 {s(sSEL)}, 0x07060302')
        A(f's_mov_b32 {s(sMT)}, {hex(mt & 0xffffffff)}\ns_mov_b32 {s(sMT+1)}, {hex(mt >> 32)}\ns_mov_b32 {s(sMU)}, {hex(mu & 0xffffffff)}\ns_mov_b32 {s(sMU+1)}, {hex(mu >> 32)}')
        A(f'v_bfe_u32 {v(T+4)}, {v(vl)}, 3, 2\nv_and_b32 {v(T+5)}, 3, {v(vl)}\nv_lshl_add_u32 {v(T+4)}, {v(T+4)}, 2, {v(T+5)}')
        A(f'v_subrev_u32 {v(T+5)}, 6, {v(T+4)}\nv_min_u32 {v(T+4)}, {v(T+4)}, {v(T+5)}\nv_min_u32 {v(T+4)}, 4, {v(T+4)}')
        A(f's_lshl_b32 s6, {s(sE0)}, 2\ns_add_u32 s6, s6, {SM+X32}\nv_lshl_add_u32 {v(vEA)}, {v(T+4)}, 2, s6')
        A(f's_lshl_b32 s6, {s(sW)}, 3\ns_add_u32 s6, s6, {SM+ST}\nv_lshrrev_b32 {v(T+4)}, 1, {v(vg)}\nv_lshl_add_u32 {v(T+4)}, {v(T+4)}, 2, s6')
        A(f'v_mov_b32 {v(T+5)}, {SM+DUMMY}\nv_and_b32 {v(T+6)}, 1, {v(vg)}\nv_cmp_eq_u32 vcc, 1, {v(T+6)}')
        A(f'v_lshrrev_b32 {v(T+7)}, 1, {v(vg)}\nv_lshl_add_u32 {v(T+7)}, {v(T+7)}, 4, {v(vj)}\nv_lshlrev_b32 {v(T+7)}, 1, {v(T+7)}')
        A(f'v_cndmask_b32 {v(vSTW)}, {v(T+5)}, {v(T+4)}, vcc')
        A(f'v_lshlrev_b32 {v(vMLR)}, 5, {v(T+6)}\nv_add_u32 {v(vMLR)}, {SM+ML}, {v(vMLR)}')
    A('s_cmp_ge_u32 s2, 256\ns_cbranch_scc1 L_end')
    stamp(0)
    A('s_load_dwordx16 s[56:71], s[0:1], 0\ns_load_dwordx4 s[72:75], s[0:1], 64\ns_load_dwordx2 s[42:43], s[0:1], 96')
    A(f'v_lshrrev_b32 {v(T)}, 6, v0\nv_and_b32 {v(vl)}, 63, v0')
    A(f'v_readfirstlane_b32 {s(sW)}, {v(T)}')
    A(f'v_lshlrev_b32 {v(vL4)}, 2, {v(vl)}\nv_lshlrev_b32 {v(vT4)}, 2, v0')
    A(f'v_and_b32 {v(vj)}, 15, {v(vl)}\nv_lshrrev_b32 {v(vg)}, 4, {v(vl)}')
    A(f's_and_b32 {s(sX)}, s2, 7\ns_lshr_b32 s4, s2, 3')
    A(f's_lshr_b32 {s(sB)}, s4, 4\ns_bfe_u32 {s(sHL)}, s4, 0x10003\ns_and_b32 {s(sSP)}, s4, 7\ns_and_b32 {s(sC)}, s4, 15')
    A(f's_lshl_b32 {s(sHKV)}, {s(sX)}, 1\ns_add_u32 {s(sHKV)}, {s(sHKV)}, {s(sHL)}')
    A(f's_cmp_ge_u32 {s(sW)}, 4\ns_cbranch_scc1 L_lentry')
    A(f's_mul_i32 s6, {s(sB)}, 1152\nv_add_u32 {v(T+16)}, s6, {v(vT4)}')
    A(f'v_and_b32 {v(T+18)}, 31, {v(vl)}\nv_lshl_add_u32 {v(T+17)}, {v(T+18)}, 2, s6\nv_mov_b32 {v(T+19)}, {EPO}\ns_waitcnt lgkmcnt(0)')
    if not P['pure'] & 32: A(f'global_load_dword {v(T+12)}, {v(T+16)}, s[56:57]\nglobal_load_dword {v(T+13)}, {v(T+17)}, s[56:57] offset:1024')
    if not P['pure'] & 16: A(f'global_load_dword {v(T+14)}, {v(T+19)}, {s(pWS,2)} sc1')
    A('s_branch L_centry\nL_lentry:')
    vKo2, vVo2, vWQo = CB+70, CB+71, T+8
    sDM, sDN = 80, 81
    A(f's_bfe_u32 s6, {s(sW)}, 0x10001\ns_lshl_b32 s6, s6, 2\nv_or_b32 {v(T+4)}, s6, {v(vg)}\nv_lshlrev_b32 {v(T+4)}, 1, {v(T+4)}')
    A(f'v_xor_b32 {v(T+4)}, {v(T+4)}, {v(vj)}\nv_lshlrev_b32 {v(T+4)}, 4, {v(T+4)}')
    A(f'v_lshl_add_u32 {v(vWQo)}, {v(vg)}, 13, {v(T+4)}\nv_lshl_add_u32 {v(vVo2)}, {v(vg)}, 8, {v(T+4)}')
    A(f's_and_b32 s7, {s(sW)}, 3\ns_lshl_b32 s6, s7, 2\nv_add_u32 {v(vKo2)}, s6, {v(vg)}\nv_xor_b32 {v(vKo2)}, {v(vKo2)}, {v(vj)}\nv_lshlrev_b32 {v(vKo2)}, 4, {v(vKo2)}')
    A(f'v_lshl_add_u32 {v(vKo2)}, {v(vg)}, 8, {v(vKo2)}')
    A(f's_lshr_b32 s4, {s(sSP)}, 1')
    A(f's_mul_i32 s6, s4, {144*8192}\ns_lshl_b32 s5, {s(sHKV)}, 9\ns_add_u32 s6, s6, s5\ns_and_b32 s5, {s(sSP)}, 1\ns_lshl_b32 s5, s5, 8\ns_add_u32 s6, s6, s5')
    A(f's_sub_u32 {s(rWQ+2)}, 4718592, s6\ns_mov_b32 {s(rWQ+3)}, 0x20000')
    A(f's_lshl_b32 s5, {s(sB)}, 4\ns_add_u32 s5, s5, {s(sHKV)}')
    A(f's_lshl_b32 s5, s5, 21\ns_lshl_b32 s4, {s(sSP)}, 16\ns_add_u32 s5, s5, s4\ns_add_u32 s5, s5, 0x180000')
    A(f's_mov_b32 {s(rK+3)}, 0x20000\ns_mov_b32 {s(rV+3)}, 0x20000\ns_mov_b32 {s(rK+2)}, 0x10000\ns_mov_b32 {s(rV+2)}, 0x10000')
    A(f's_lshl_b32 {s(sDM)}, s7, 10\ns_add_u32 s4, {s(sDM)}, {WQB}\ns_lshl_b32 s7, s7, 15')
    if P['rot']: A(f's_mul_i32 {s(sDN)}, s2, 0x9e3779b1\ns_lshr_b32 {s(sDN)}, {s(sDN)}, 28\ns_lshl_b32 {s(sDN)}, {s(sDN)}, 12\ns_add_u32 {s(sDM)}, {s(sDM)}, {s(sDN)}')
    A('s_waitcnt lgkmcnt(0)')
    A(f's_add_u32 {s(rWQ)}, s62, s6\ns_addc_u32 {s(rWQ+1)}, s63, 0')
    for i in range(9):
        A(f's_mov_b32 m0, s4\ns_add_u32 s4, s4, 4096')
        A(f'buffer_load_dwordx4 {v(vWQo)}, {s(rWQ,4)}, s7 offen nt lds\ns_add_u32 s7, s7, {4*32768}')
    A(f's_add_u32 {s(rK)}, s58, s5\ns_addc_u32 {s(rK+1)}, s59, 0\ns_add_u32 {s(rV)}, s60, s5\ns_addc_u32 {s(rV+1)}, s61, 0')
    TH = P['throttle']
    def dma(vr, srd, base):
        A(f's_add_u32 m0, {s(sDM)}, {base}\ns_add_u32 {s(sDN)}, {s(sDM)}, 4096')
        A(f'buffer_load_dwordx4 {v(vr)}, {s(srd,4)}, {s(sDM)} offen nt lds\ns_and_b32 {s(sDM)}, {s(sDN)}, 0xffff')
    seq = []
    def issue(name): seq.append(name)
    def landed(name):
        last = max(i for i, n in enumerate(seq) if n == name)
        return len(seq) - 1 - last
    def thr():
        if not P['thv']:
            big = [i for i, n in enumerate(seq) if n != 'R']
            A(f's_waitcnt vmcnt({len(seq) - big[-TH] if P["lateb"] and len(big) >= TH else TH})'); return
        idx = [i for i, n in enumerate(seq) if n in 'KV']
        n = len(seq) - idx[-TH] if len(idx) >= TH else len(seq)
        A(f's_waitcnt vmcnt({min(n, 63)})')
    for i in range(16):
        dma(vKo2, rK, KB); issue('K')
        if i == TH:
            common_setup()
            A(f's_and_b32 s4, {s(sW)}, 3')
            xa_addr(vXA, T+4)
            A(f'v_lshlrev_b32 {v(vQF)}, 4, {v(vg)}\nv_add_u32 {v(vQF)}, {SM}, {v(vQF)}')
            A(f'v_and_b32 {v(T+4)}, 1, {v(vj)}\nv_lshl_add_u32 {v(T+4)}, {v(vg)}, 1, {v(T+4)}\nv_mul_u32_u24 {v(T+4)}, {8*PCS}, {v(T+4)}')
            A(f'v_lshrrev_b32 {v(T+5)}, 1, {v(vj)}\nv_lshl_add_u32 {v(vPCS)}, {v(T+5)}, 2, {v(T+4)}')
        if i == TH + 1: wq_addr(T+8)
        if i >= TH - 1: thr()
        if i == TH - 1 + P['barl']: A('s_barrier'); stamp(1)
        if i == 13: wq_reads(T+8)
        if i == 15:
            A('s_waitcnt lgkmcnt(0)'); signal(F_WQ2)
    build = coef_build()
    if P['pure'] & 2 or P['xp'] & 4:
        build = ['s_nop 0']; NR = 0
    elif P['lateb']:
        NR = 0
    else:
        raw_loads(); NR = 15
    for _ in range(NR): issue('R')
    wo_pat = []
    vl2 = T + 16
    wo_pat.append(f'v_lshrrev_b32 {v(vl2)}, 2, {v(vL4)}')
    vWO = T + 8
    for k in range(5):
        wo_pat.append(f'v_add_u32 {v(T+13)}, {64*k}, {v(vl2)}\nv_mul_u32_u24 {v(T+14)}, 13108, {v(T+13)}\nv_lshrrev_b32 {v(T+14)}, 16, {v(T+14)}')
        wo_pat.append(f'v_mul_u32_u24 {v(T+15)}, 5, {v(T+14)}\nv_sub_u32 {v(T+13)}, {v(T+13)}, {v(T+15)}\nv_mul_u32_u24 {v(T+14)}, 1152, {v(T+14)}')
        wo_pat.append(f'v_lshl_add_u32 {v(vWO+k)}, {v(T+13)}, 4, {v(T+14)}')
    order = P['order']
    assert order.count('V') == 16 and order.count('W') == 10
    ksig = False
    sM0W, sOFW = sKD, sPOL
    A(f's_mul_i32 {s(sM0W)}, s4, 5120\ns_add_u32 {s(sM0W)}, {s(sM0W)}, {SP}\ns_mul_i32 {s(sOFW)}, s4, {128*1152}')
    lastV = order.rindex('V')
    nslots = len(order) - TH - 1
    per = -(-len(build) // nslots)
    nv = nw = 0
    wq_waited = False
    for i, op in enumerate(order):
        if op == 'V':
            if nv == (0 if P['rot'] else 13) and not wq_waited: (P['pure'] & 1 or wait_flag(F_WQ)); wait_flag(F_WQ2); wq_waited = True
            dma(vVo2, rV, VB); issue('V'); nv += 1
        else:
            if nw == 0 and not wq_waited: (P['pure'] & 1 or wait_flag(F_WQ)); wait_flag(F_WQ2); wq_waited = True
            if nw == 5:
                assert ksig
                A(f's_add_u32 {s(sOFW)}, {s(sOFW)}, {64*1152}\ns_mul_i32 {s(sM0W)}, s4, 5120')
                if not P['pure'] & 1: wait_flag(F_KR)
            A(f's_mov_b32 m0, {s(sM0W)}\ns_add_u32 {s(sM0W)}, {s(sM0W)}, 1024')
            A(f'buffer_load_dwordx4 {v(vWO + nw % 5)}, {s(rWO,4)}, {s(sOFW)} offen nt lds'); issue('W'); nw += 1
        if i == 0:
            for ins in wo_pat: A(ins)
        if P['lateb'] and i == lastV + P['lateb'] - 1:
            raw_loads()
            for _ in range(15): issue('R')
        if not P['lateb'] and i > TH and (P['wfree'] < 0 or i < lastV - P['wfree']):
            if i == TH + 1 and NR: A(f's_waitcnt vmcnt({landed("R")})')
            n = per
            if any(f'v{vVo2}' in x for x in build[:n]) and i < lastV: n = 0
            for ins in build[:n]: A(ins)
            build = build[n:]
        if not ksig and landed('K') - NR >= min(TH, 4):
            A(f's_waitcnt vmcnt({landed("K")})'); signal(F_K); stamp(2); ksig = True
        if i == lastV: stamp(3)
        vs = min(lastV + P['vlag'], len(order) - 1)
        if i == vs:
            A(f's_waitcnt vmcnt({landed("V")})'); signal(F_V); stamp(4)
        elif TH - 1 <= i < vs and (i < lastV - P['wfree'] or P['wfree'] < 0):
            thr()
    if P['lateb']: stamp(5); A(f's_waitcnt vmcnt({landed("R")})')
    for ins in build: A(ins)
    if not P['lateb']: stamp(5)
    A(f'v_bfe_u32 {v(T)}, {v(vL4)}, 4, 2\nv_bfe_u32 {v(T+1)}, {v(vL4)}, 2, 2\nv_lshrrev_b32 {v(T+2)}, 6, {v(vL4)}\nv_lshl_add_u32 {v(T)}, {v(T+2)}, 3, {v(T)}')
    A(f'v_mul_u32_u24 {v(T)}, 80, {v(T)}\nv_lshl_add_u32 {v(T)}, {v(T+1)}, 3, {v(T)}')
    A(f's_and_b32 s6, {s(sC)}, 1\ns_lshl_b32 s6, s6, 3\ns_lshl_b32 s7, s4, 5\ns_add_u32 s6, s6, s7\nv_add_u32 {v(T)}, s6, {v(T)}')
    A(f'v_add_u32 {v(T+1)}, {SP}, {v(T)}')
    def wo_reads(half):
        for ks in range(16):
            if half is None or bool(ks & 2) == bool(half):
                for hh in range(2):
                    A(f'ds_read_b64_tr_b16 {a(aWO+4*ks+2*hh,2)}, {v(T if ks & 2 else T+1)} offset:{5120*(ks >> 2)+2560*(ks & 1)+320*hh}')
    if P['wo2']:
        w4 = [i for i, n in enumerate(seq) if n == 'W'][4]
        A(f's_waitcnt vmcnt({len(seq)-1-w4})')
        signal(F_A); wait_flag(F_A, sleep=0)
        wo_reads(0)
    A('s_waitcnt vmcnt(0)')
    signal(F_WO)
    wait_flag(F_WO, sleep=0)
    wo_reads(1 if P['wo2'] else None)
    A('s_waitcnt lgkmcnt(0)')
    stamp(6)
    if P['pure'] & 1:
        A('s_waitcnt lgkmcnt(0)'); emit_stamps(A, 0); A('s_endpgm')
    A('L_wo:\ns_barrier')
    A(f's_cmp_eq_u32 {s(sW)}, 7\ns_cbranch_scc1 L_cbar')
    of = lambda ks: v(T+4*ks, 4) if ks < 9 else a(aSP+4*(ks-9), 4)
    for ks in range(16):
        A(f'ds_read_b128 {of(ks)}, {v(vQF)} offset:{OL+64*ks}')
    DW = T + 36
    for ks in range(16):
        A(f's_waitcnt lgkmcnt({15-ks})')
        A(f'v_mfma_f32_16x16x32_bf16 {v(DW,4)}, {of(ks)}, {a(aWO+4*ks,4)}, {v(DW,4) if ks else 0}')
    A(f's_cmp_eq_u32 {s(sW)}, 6\ns_cselect_b32 s6, 0x000f000f, -1')
    nop(6)
    A(f'v_mov_b32_dpp {v(DW+4)}, {v(DW)} quad_perm:[0,0,2,2] row_mask:0xf bank_mask:0xf')
    A(f'v_mov_b32_dpp {v(DW+5)}, {v(DW)} quad_perm:[1,1,3,3] row_mask:0xf bank_mask:0xf')
    A(f's_mov_b32 exec_lo, s6\ns_mov_b32 exec_hi, s6')
    A(f'v_cvt_pk_bf16_f32 {v(DW)}, {v(DW+4)}, {v(DW+5)}')
    A(f'buffer_store_dword {v(DW)}, {v(vPCS)}, {s(rWS,4)}, {s(sPCst)} offen sc1\ns_mov_b64 exec, -1')
    stamp(7)
    if P['cpace'] < 0: A('s_waitcnt vmcnt(0)')
    elif P['cpace']: A(f's_sleep {P["cpace"]}')
    stamp(8)

    A('L_cbar:')
    g0 = T
    xs_, xad, xad2 = T+18, T+20, T+21
    A(f'v_lshl_add_u32 {v(xad)}, {v(vT4)}, 1, {s(sSM)}\nv_mov_b32 {v(xs_)}, 0\nv_mov_b32 {v(xs_+1)}, 0')
    A('s_barrier')
    if P['stamps'] == 1 and not P['ls']: cstamp(1)
    A(f's_cmp_gt_u32 {s(sW)}, 4\ns_cbranch_scc1 L_gc_done')
    A(f's_cmp_eq_u32 {s(sW)}, 4\ns_cselect_b32 exec_hi, 0, -1')
    A('L_gc:')
    for k in range(8):
        A(f'buffer_load_dword {v(g0+k)}, {v(vT4)}, {s(rWS,4)}, {s(sPCld if k < 4 else sPCld2)} offen offset:{PCS*(k & 3)} sc1')
    A(f'ds_read_b64 {v(xs_,2)}, {v(xad)} offset:{X32}')
    A('s_waitcnt vmcnt(0) lgkmcnt(0)')
    check_sentinel(range(g0, g0+8), g0+8, 'L_gc_f')
    for k in range(8):
        r = g0 + 8 + 2*(k & 1)
        A(f'v_lshlrev_b32 {v(r)}, 16, {v(g0+k)}\nv_and_b32 {v(r+1)}, 0xffff0000, {v(g0+k)}')
        if k == 1:
            A(f'v_pk_add_f32 {v(g0+12,2)}, {v(g0+8,2)}, {v(g0+10,2)}')
        elif k > 1:
            acc = xs_ if k & 1 else g0+12
            A(f'v_pk_add_f32 {v(acc,2)}, {v(acc,2)}, {v(r,2)}')
    A(f'v_pk_add_f32 {v(xs_,2)}, {v(xs_,2)}, {v(g0+12,2)}')
    A(f'ds_write_b64 {v(xad)}, {v(xs_,2)} offset:{X32}\ns_mov_b64 exec, -1')
    partial_stats(xs_, g0, vSTW)
    A('s_waitcnt lgkmcnt(0)')
    A('L_gc_done:')
    A1, A2, ACC = T+32, T+36, T+40
    A(f'v_mov_b32 {v(A2+3)}, 0\nv_mov_b32 {v(A2+1)}, 0x3f803f80')
    A(f'v_cndmask_b32 {v(A2)}, {v(A2+3)}, {v(A2+1)}, {s(sMT,2)}\nv_cndmask_b32 {v(A2+2)}, {v(A2+3)}, {v(A2+1)}, {s(sMU,2)}')
    A('s_barrier')
    if not P['ls']: cstamp(7)
    if P['ms']: stamp(3)
    st = T
    stats_issue(st)
    A(f'ds_read_b32 {v(st+13)}, {v(vEA)}')
    if P['touch']:
        A(f's_cmp_lg_u32 {s(sLAY)}, 0\ns_cbranch_scc1 L_notouch\ns_cmp_gt_u32 {s(sW)}, 3\ns_cbranch_scc1 L_notouch')
        A(f'v_lshlrev_b32 {v(st+14)}, 4, {v(vL4)}\ns_add_u32 s6, {s(sQAld)}, {LQ}\ns_add_u32 s7, {s(sOBld)}, {LA}')
        A(f'v_and_b32 {v(st+15)}, 0x7c0, {v(st+14)}')
        A(f'buffer_load_dword {v(ACC+5)}, {v(st+14)}, {s(rWS,4)}, s6 offen sc1\nbuffer_load_dword {v(ACC+5)}, {v(st+15)}, {s(rWS,4)}, s7 offen sc1')
        A(f's_add_u32 s7, {s(sLSEld)}, {LA}\nv_mov_b32 {v(st+15)}, 0\nbuffer_load_dword {v(ACC+5)}, {v(st+15)}, {s(rWS,4)}, s7 offen sc1')
        A('L_notouch:')
    A('s_waitcnt lgkmcnt(0)')
    stats_calc(st, twice=True)
    h = st + 13
    A(f'v_sub_f32 {v(h)}, {v(h)}, {v(st)}\nv_mul_f32 {v(h)}, {v(h)}, {v(st+2)}')
    A(f'v_cvt_pk_bf16_f32 {v(h)}, {v(h)}, {v(h)}')
    A(f'v_cndmask_b32 {v(A1+3)}, {v(A2+3)}, {v(h)}, {s(sMT,2)}\nv_cndmask_b32 {v(A2+1)}, {v(A2+3)}, {v(h)}, {s(sMU,2)}')
    A(f'v_and_b32 {v(st)}, 0xffff0000, {v(A1+3)}\nv_mul_f32 {v(st+1)}, {v(st)}, {v(st)}\nv_mul_f32 {v(st+2)}, {v(st+1)}, {v(st)}')
    A(f'v_and_b32 {v(st+3)}, 0xffff0000, {v(st+1)}\nv_perm_b32 {v(A1+1)}, {v(st+1)}, {v(st+1)}, {s(sSEL)}\nv_and_b32 {v(st+4)}, 0xffff0000, {v(st+2)}')
    A(f'v_sub_f32 {v(st+3)}, {v(st+1)}, {v(st+3)}\nv_sub_f32 {v(st+4)}, {v(st+2)}, {v(st+4)}\nv_perm_b32 {v(A1)}, {v(st+2)}, {v(st+2)}, {s(sSEL)}')
    A(f'v_cvt_pk_bf16_f32 {v(A1+2)}, {v(st+4)}, {v(st+3)}')
    nop(2)
    def mm2(f):
        D = T + 16*(f & 1)
        A(f'v_mfma_f32_32x32x16_bf16 {v(D,16)}, {v(A1,4)}, {v(CB+8*f,4)}, 0')
        A(f'v_mfma_f32_32x32x16_bf16 {v(D,16)}, {v(A2,4)}, {v(CB+8*f+4,4)}, {v(D,16)}')
    def m1(f): A(f'v_mfma_f32_32x32x16_bf16 {v(T+16*(f & 1),16)}, {v(A1,4)}, {v(CB+8*f,4)}, 0')
    def m2(f): A(f'v_mfma_f32_32x32x16_bf16 {v(T+16*(f & 1),16)}, {v(A2,4)}, {v(CB+8*f+4,4)}, {v(T+16*(f & 1),16)}')
    if P['mprio']: A('s_setprio 0')
    if P['ms']: stamp(4)
    mm2(0)
    for f in range(9):
        D = T + 16*(f & 1)
        nx = f + 1 < 9
        if f == 0: m1(1); nop(11)
        elif nx: nop(P['mnop']); m1(f+1)
        else: nop(P['mnop'] + 1)
        for e in range(5): A(f'v_exp_f32 {v(D+e)}, {v(D+e)}')
        A(f'v_pk_add_f32 {v(D,2)}, {v(D,2)}, 1.0 op_sel_hi:[1,0]\nv_pk_add_f32 {v(D+2,2)}, {v(D+2,2)}, 1.0 op_sel_hi:[1,0]\nv_add_f32 {v(D+4)}, 1.0, {v(D+4)}')
        if nx: m2(f+1)
        for e in range(5): A(f'v_rcp_f32 {v(D+e)}, {v(D+e)}')
        if f == 0:
            A(f'v_pk_mul_f32 {v(ACC,2)}, {v(D,2)}, {v(D+6,2)}\nv_pk_mul_f32 {v(ACC+2,2)}, {v(D+2,2)}, {v(D+8,2)}\nv_mul_f32 {v(ACC+4)}, {v(D+4)}, {v(D+10)}')
        else:
            A(f'v_pk_fma_f32 {v(ACC,2)}, {v(D,2)}, {v(D+6,2)}, {v(ACC,2)}\nv_pk_fma_f32 {v(ACC+2,2)}, {v(D+2,2)}, {v(D+8,2)}, {v(ACC+2,2)}\nv_fmac_f32 {v(ACC+4)}, {v(D+4)}, {v(D+10)}')
    if P['ms']: stamp(5)
    U = T + 16
    A(f'v_mov_b32 {v(U+4)}, {v(ACC+4)}')
    A(f'v_lshrrev_b32 {v(U)}, 6, {v(vL4)}\nv_and_b32 {v(U+1)}, 1, {v(U)}')
    A(f'v_permlane32_swap_b32 {v(ACC)}, {v(ACC+1)}\nv_permlane32_swap_b32 {v(ACC+2)}, {v(ACC+3)}\nv_permlane32_swap_b32 {v(ACC+4)}, {v(U+4)}')
    A(f'v_add_f32 {v(ACC)}, {v(ACC)}, {v(ACC+1)}\nv_add_f32 {v(ACC+2)}, {v(ACC+2)}, {v(ACC+3)}\nv_add_f32 {v(ACC+4)}, {v(ACC+4)}, {v(U+4)}')
    A(f'v_mov_b32 {v(U+4)}, {v(ACC+4)}')
    A(f'v_lshrrev_b32 {v(U)}, 1, {v(U)}\nv_lshl_add_u32 {v(U)}, {v(U+1)}, 1, {v(U)}')
    A(f'v_permlane16_swap_b32 {v(ACC)}, {v(ACC+2)}\nv_permlane16_swap_b32 {v(ACC+4)}, {v(U+4)}')
    A(f'v_add_f32 {v(ACC)}, {v(ACC)}, {v(ACC+2)}\nv_add_f32 {v(ACC+4)}, {v(ACC+4)}, {v(U+4)}')
    fill = [f's_lshl_b32 s6, {s(sW)}, 2', f's_add_u32 s6, s6, {SM+RED}', f'v_lshl_add_u32 {v(U)}, {v(U)}, 5, s6', f'v_mov_b32 {v(U+1)}, s6']
    for k, fi in zip((8, 4, 2, 1), fill):
        A(fi)
        dpp('v_add_f32', ACC, ACC, ACC, f'row_ror:{k}')
        dpp('v_add_f32', ACC+4, ACC+4, ACC+4, f'row_ror:{k}')
    A(f'ds_write_b32 {v(U)}, {v(ACC)}\nds_write_b32 {v(U+1)}, {v(ACC+4)} offset:128')
    if P['ms']: stamp(6)
    TT = T
    A(f's_cmp_lg_u32 {s(sW)}, 0\ns_cbranch_scc1 L_nofin')
    A(f'v_and_b32 {v(U)}, 28, {v(vL4)}\nv_lshl_add_u32 {v(U+1)}, {v(U)}, 3, {s(sSM)}')
    A(f's_lshl_b32 s6, {s(sE0)}, 2\ns_add_u32 s6, s6, {SM+X32}\nv_add_u32 {v(U+2)}, s6, {v(U)}\nds_read_b32 {v(U+2)}, {v(U+2)}')
    A(f'v_lshrrev_b32 {v(U+3)}, 5, {v(vL4)}\nv_mul_u32_u24 {v(U+3)}, {XDS}, {v(U+3)}\nv_add_u32 {v(U+3)}, {v(U+3)}, {v(U)}')
    A(f's_lshl_b32 s6, 1, {s(sNE)}\ns_sub_u32 s6, s6, 1\ns_mul_i32 s7, s6, 0x01010101\ns_lshl_b32 s5, {s(sB2)}, 16')
    A('s_waitcnt lgkmcnt(0)\ns_barrier')
    if not P['ls']: stamp(8)
    A(f'ds_read_b128 {v(TT,4)}, {v(U+1)} offset:{RED}\nds_read_b128 {v(TT+4,4)}, {v(U+1)} offset:{RED+16}')
    A(f'v_add_f32 {v(U+2)}, s5, {v(U+2)}\ns_waitcnt lgkmcnt(0)')
    A(f'v_pk_add_f32 {v(TT,2)}, {v(TT,2)}, {v(TT+2,2)}\nv_pk_add_f32 {v(TT+4,2)}, {v(TT+4,2)}, {v(TT+6,2)}\nv_pk_add_f32 {v(TT,2)}, {v(TT,2)}, {v(TT+4,2)}')
    A(f'v_add_f32 {v(TT)}, {v(TT)}, {v(U+2)}\nv_add_f32 {v(TT)}, {v(TT)}, {v(TT+1)}')
    A(f's_cmp_lg_u32 {s(sLAY)}, 0\ns_cbranch_scc1 L_out')
    A('s_mov_b32 exec_lo, s7\ns_mov_b32 exec_hi, s7')
    A(f'buffer_store_dword {v(TT)}, {v(U+3)}, {s(rWS,4)}, {s(sXDst)} offen sc1\ns_mov_b64 exec, -1\ns_branch L_dpace')
    A('L_nofin:\ns_waitcnt lgkmcnt(0)\ns_barrier')
    if not P['ls']: cstamp(8)
    A(f's_cmp_lg_u32 {s(sLAY)}, 0\ns_cbranch_scc1 L_fin')
    A('L_dpace:')
    A(f's_load_dwordx2 {s(pX,2)}, s[0:1], 80')
    amp(4)
    A(f'v_lshl_add_u32 {v(xad)}, {v(vT4)}, 1, {s(sSM)}\nv_add_u32 {v(xad2)}, {s(sSM)}, {v(vT4)}\nv_lshlrev_b32 {v(T+22)}, 1, {v(vT4)}')
    A(f'v_mov_b32 {v(xs_)}, 0\nv_mov_b32 {v(xs_+1)}, 0')
    A(f'v_mov_b32 {v(T+23)}, {SM+TAGW}\nds_read_b64 {v(T+24,2)}, {v(T+23)}\ns_waitcnt lgkmcnt(0)\nv_readfirstlane_b32 {s(sTG12)}, {v(T+24)}')
    if P['fast']: A(f'v_readfirstlane_b32 {s(sFAST)}, {v(T+25)}')
    for r in (sQAst, sQAld): A(f's_add_u32 {s(r)}, {s(r)}, {LQ}')
    for r in (sOBst, sLSEst, sOBld, sLSEld, sPCst, sPCld, sPCld2): A(f's_add_u32 {s(r)}, {s(r)}, {LA}')
    A(f's_mov_b32 {s(sLAY)}, 1')
    if P['dpace'] < 0: A('s_waitcnt vmcnt(0)')
    elif P['dpace']: A(f's_sleep {P["dpace"]}')
    if P['stamps'] == 1 and not P['ls']: cstamp(9)
    A('s_barrier')
    A(f's_cmp_gt_u32 {s(sW)}, 4\ns_cbranch_scc1 L_gd_done')
    A(f's_cmp_eq_u32 {s(sW)}, 4\ns_cselect_b32 exec_hi, 0, -1')
    A('L_gd:')
    for k in range(2):
        A(f'buffer_load_dword {v(xs_+k)}, {v(T+22)}, {s(rWS,4)}, {s(sXDld)} offen offset:{4*k} sc1')
    A('s_waitcnt vmcnt(0)')
    check_sentinel([xs_, xs_+1], g0+2, 'L_gd_f')
    A(f'v_cvt_pk_bf16_f32 {v(g0+2)}, {v(xs_)}, {v(xs_+1)}\nds_write_b64 {v(xad)}, {v(xs_,2)} offset:{X32}')
    A(f'v_lshlrev_b32 {v(g0+4)}, 16, {v(g0+2)}\nv_and_b32 {v(g0+5)}, 0xffff0000, {v(g0+2)}\nds_write_b32 {v(xad2)}, {v(g0+2)} offset:{XH}')
    A(f'v_sub_f32 {v(g0+4)}, {v(xs_)}, {v(g0+4)}\nv_sub_f32 {v(g0+5)}, {v(xs_+1)}, {v(g0+5)}\nv_cvt_pk_bf16_f32 {v(g0+4)}, {v(g0+4)}, {v(g0+5)}')
    A(f'ds_write_b32 {v(xad2)}, {v(g0+4)} offset:{XL}\ns_mov_b64 exec, -1')
    partial_stats(xs_, g0, vSTW)
    A('s_waitcnt lgkmcnt(0)')
    A('L_gd_done:\ns_barrier')
    if P['stamps'] == 1:
        A('s_waitcnt lgkmcnt(0)')
        emit_stamps(A, 0)
        stamp(0)
    A(f's_cmp_lt_u32 {s(sW)}, 4\ns_cbranch_scc1 L_attn')
    q_stage(vXA)
    stamp(2)
    A('s_barrier\ns_barrier\ns_branch L_wo')
    A('L_gc_f:')
    tmo_check(2)
    A('s_branch L_gc')
    A('L_gd_f:')
    tmo_check(3)
    A('s_branch L_gd')
    A('L_out:')
    A(f's_mov_b32 exec_lo, s6\ns_mov_b32 exec_hi, 0')
    A(f's_mul_i32 s6, {s(sB)}, 576\ns_add_u32 s6, s6, {s(sE0)}\ns_lshl_b32 s6, s6, 1')
    A(f'v_lshrrev_b32 {v(U)}, 1, {v(vL4)}\nv_add_u32 {v(U)}, s6, {v(U)}\nv_cvt_pk_bf16_f32 {v(TT)}, {v(TT)}, {v(TT)}')
    A(f'global_store_short {v(U)}, {v(TT)}, {s(pX,2)}')
    if P['amp'] >= 0:
        amp(5)
        A('s_memrealtime s[86:87]\ns_waitcnt lgkmcnt(0)\ns_sub_u32 s84, s84, s82\ns_lshl_b32 s84, s84, 2\ns_add_u32 s86, s86, s84')
        A('L_amp:\ns_memrealtime s[88:89]\ns_waitcnt lgkmcnt(0)\ns_sub_u32 s88, s88, s86\ns_cmp_lt_i32 s88, 0\ns_cbranch_scc1 L_amp')
    A('L_fin:')
    if P['stamps']:
        A('s_mov_b64 exec, -1\ns_waitcnt vmcnt(0)')
        stamp(9, True)
        A('s_waitcnt lgkmcnt(0)')
        if P['stamps'] == 1:
            emit_stamps(A, 1)
    A('L_end:\ns_endpgm')
    A('L_centry:')
    if P['pure'] & 4:
        A(f's_cmp_lg_u32 {s(sW)}, 0\ns_cbranch_scc1 L_pp')
        A(f'v_mov_b32 {v(T+4)}, 0\nv_add_u32 {v(T+5)}, {SM}, {v(vL4)}\nds_write_b32 {v(T+5)}, {v(T+4)} offset:{FLAGS}')
        A('L_pp:\ns_waitcnt lgkmcnt(0)\ns_barrier'); emit_stamps(A, 0); A('s_endpgm')
    if P['prefetch']:
        A(f's_getpc_b64 s[4:5]\nL_pc:\ns_sub_u32 s4, s4, L_pc-{NAME}_kernel\ns_subb_u32 s5, s5, 0')
        A(f's_lshr_b32 s7, s2, 3\ns_lshl_b32 s7, s7, 2\ns_add_u32 s7, s7, {s(sW)}\ns_mul_i32 s7, s7, 192')
        A(f's_mov_b64 exec, 7\nv_lshl_add_u32 {v(T+15)}, {v(vl)}, 6, s7\nv_min_u32 {v(T+15)}, L_last-{NAME}_kernel, {v(T+15)}')
        A(f'global_load_dword {v(CB+70)}, {v(T+15)}, s[4:5]\ns_mov_b64 exec, -1')
    A(f's_cmp_lg_u32 {s(sW)}, 0\ns_cbranch_scc1 L_noinit')
    A(f'v_mov_b32 {v(T+4)}, 0\nv_add_u32 {v(T+5)}, {SM}, {v(vL4)}\nds_write_b32 {v(T+5)}, {v(T+4)} offset:{FLAGS}\nds_write_b32 {v(T+5)}, {v(T+4)} offset:{ZERO}')
    A(f'v_mov_b32 {v(T+4)}, 0x3f803f80\nds_write_b32 {v(T+5)}, {v(T+4)} offset:{ONES}\nds_write_b32 {v(T+5)}, {v(T+4)} offset:{ONES+256}')
    A('L_noinit:\ns_waitcnt lgkmcnt(0)')
    common_setup()
    if P['cprio']: A(f's_setprio {P["cprio"]}')
    A(f'v_bfe_u32 {v(T+4)}, {v(vj)}, 2, 1\nv_lshlrev_b32 {v(T+4)}, 9, {v(T+4)}')
    A(f'v_lshl_add_u32 {v(vQF)}, {v(vg)}, 4, {v(T+4)}\nv_add_u32 {v(vQF)}, {SM}, {v(vQF)}')
    A(f's_lshl_b32 s6, {s(sW)}, 7\ns_add_u32 s6, s6, {SM+PB}')
    A(f'v_lshl_add_u32 {v(vPW)}, {v(T+6)}, 9, {v(T+7)}\nv_add_u32 {v(vPW)}, s6, {v(vPW)}')
    A(f'v_lshl_add_u32 {v(vOBS)}, {v(T+6)}, 11, {v(T+7)}')
    if not P['pure'] & 8: A(f's_cmp_eq_u32 {s(sW)}, 3\ns_cbranch_scc1 L_clr')
    A(f's_waitcnt vmcnt({1 if P["prefetch"] else 0})')
    A('s_branch L_cdone')
    A('L_clr:')
    for i in range(4): A(f'v_mov_b32 {v(T+8+i)}, -1')
    A(f's_mul_i32 s6, s2, 2560\ns_add_u32 s6, s6, {AR0}\nv_lshlrev_b32 {v(T+19)}, 2, {v(vL4)}')
    A(f'buffer_store_dwordx4 {v(T+8,4)}, {v(T+19)}, {s(rWS,4)}, s6 offen sc1\nbuffer_store_dwordx4 {v(T+8,4)}, {v(T+19)}, {s(rWS,4)}, s6 offen offset:1024 sc1')
    A(f's_mov_b32 exec_hi, 0\nbuffer_store_dwordx4 {v(T+8,4)}, {v(T+19)}, {s(rWS,4)}, s6 offen offset:2048 sc1\ns_mov_b32 exec_hi, -1')
    A(f's_waitcnt vmcnt({4 if P["prefetch"] else 3})')
    A('L_cdone:')
    A(f'v_readfirstlane_b32 {s(sTAG)}, {v(T+14)}')
    xa = T + 4
    def x_pair(src, areg):
        A(f'v_lshlrev_b32 {v(xa)}, 16, {v(src)}\nv_and_b32 {v(xa+1)}, 0xffff0000, {v(src)}\nv_mov_b32 {v(xa+2)}, 0')
        A(f'v_lshl_add_u32 {v(xa+3)}, {v(areg)}, 1, {s(sSM)}\nv_add_u32 {v(xa+4)}, {s(sSM)}, {v(areg)}')
        A(f'ds_write_b64 {v(xa+3)}, {v(xa,2)} offset:{X32}\nds_write_b32 {v(xa+4)}, {v(src)} offset:{XH}\nds_write_b32 {v(xa+4)}, {v(xa+2)} offset:{XL}')
    x_pair(T+12, vT4)
    partial_stats(xa, xa+6, vSTW)
    A(f's_mul_i32 {s(sTAG)}, {s(sTAG)}, 0x9e3779b1\ns_add_u32 {s(sTAG)}, {s(sTAG)}, 0x7f4a7c15\ns_and_b32 {s(sTAG)}, {s(sTAG)}, 0x1fffffff\ns_and_b32 {s(sTG12)}, {s(sTAG)}, 0xfff')
    A(f's_cmp_lg_u32 {s(sW)}, 0\ns_cbranch_scc1 L_noextra')
    A(f'v_lshlrev_b32 {v(T+18)}, 2, {v(T+18)}\nv_add_u32 {v(T+18)}, 1024, {v(T+18)}')
    x_pair(T+13, T+18)
    A(f'v_cndmask_b32 {v(xa)}, {v(xa)}, {v(xa+2)}, {s(sMHI,2)}\nv_cndmask_b32 {v(xa+1)}, {v(xa+1)}, {v(xa+2)}, {s(sMHI,2)}')
    A(f'v_add_u32 {v(T+18)}, 32, {v(vSTW)}\nv_min_u32 {v(T+18)}, {SM+DUMMY}, {v(T+18)}')
    partial_stats(xa, xa+6, T+18)
    A(f'v_mov_b32 {v(xa)}, {s(sTG12)}\nv_mov_b32 {v(xa+1)}, {SM+TAGW}\nds_write_b32 {v(xa+1)}, {v(xa)}')
    A('L_noextra:')
    A('s_waitcnt lgkmcnt(0)')
    amp(1)
    xa_addr(CB, T)
    wq_addr(T)
    A('s_barrier')
    if P['pure'] & 1:
        A('s_waitcnt lgkmcnt(0)'); emit_stamps(A, 0); A('s_endpgm')
    wq_reads(T)
    A(f's_cmp_lg_u32 {s(sW)}, 3\ns_cbranch_scc1 L_noarr')
    A(f's_lshl_b32 s6, {s(sXCC)}, 29\ns_or_b32 s6, s6, {s(sTAG)}\nv_mov_b32 {v(T+8)}, s6')
    A(f's_lshl_b32 s6, {s(sX)}, 7\ns_lshr_b32 s7, s2, 3\ns_lshl_b32 s7, s7, 2\ns_add_u32 s6, s6, s7\ns_add_u32 s6, s6, {ARR}\nv_mov_b32 {v(T+9)}, s6')
    A(f's_waitcnt vmcnt(0)\ns_mov_b64 exec, 1\nbuffer_store_dword {v(T+8)}, {v(T+9)}, {s(rWS,4)}, 0 offen sc1\ns_mov_b64 exec, -1')
    A('L_noarr:\ns_waitcnt lgkmcnt(0)')
    signal(F_WQ)
    q_stage(CB, (lambda: None) if P['xp'] & 2 else raw_loads)
    stamp(9)
    ga, gc, pa, qw = T+8, T+12, T+36, T+35
    def ga_issue():
        for kq in range(4):
            A(f'buffer_load_dword {v(ga+kq)}, {v(vT4)}, {s(rWS,4)}, {s(sQC)} offen offset:{1024*kq} sc1')
    def gchk_issue():
        A(f'v_lshlrev_b32 {v(gc+4)}, 2, {v(vL4)}\nv_add_u32 {v(gc+4)}, {ARR}, {v(gc+4)}')
        A(f'buffer_load_dwordx4 {v(gc,4)}, {v(gc+4)}, {s(rWS,4)}, 0 offen sc1')
    def gchk_test(lfail):
        for k in range(4): A(f'v_xor_b32 {v(gc+k)}, {s(sTAG)}, {v(gc+k)}')
        A(f'v_or3_b32 {v(gc+5)}, {v(gc)}, {v(gc+1)}, {v(gc+2)}\nv_or_b32 {v(gc+5)}, {v(gc+5)}, {v(gc+3)}\nv_and_b32 {v(gc+6)}, 0x1fffffff, {v(gc+5)}')
        A(f'v_cmp_ne_u32 vcc, 0, {v(gc+6)}\ns_cbranch_vccnz {lfail}')
        if P['fast']:
            A(f's_lshl_b32 s6, {s(sXCC)}, 29')
            for k in range(4): A(f'v_xor_b32 {v(gc+k)}, s6, {v(gc+k)}')
            A(f'v_or3_b32 {v(gc+5)}, {v(gc)}, {v(gc+1)}, {v(gc+2)}\nv_or_b32 {v(gc+5)}, {v(gc+5)}, {v(gc+3)}')
            A(f'v_cmp_ne_u32 vcc, 0, {v(gc+5)}\ns_lshl_b32 s6, {s(sX)}, 3\ns_lshr_b64 vcc, vcc, s6')
            A(f's_and_b32 s6, vcc_lo, 0xff\ns_cselect_b32 {s(sFAST)}, 0, 1')
            A(f'v_mov_b32 {v(gc)}, {s(sFAST)}\nv_mov_b32 {v(gc+1)}, {SM+TAGW+4}\nds_write_b32 {v(gc+1)}, {v(gc)}')
        A(f's_mov_b32 {s(sGOK)}, 1')
    def q_copy():
        A(f's_add_u32 s7, {s(sQAst)}, {QAB}\ns_mov_b64 exec, 0xffff')
        A(f'buffer_load_dword {v(gc+7)}, {v(vL4)}, {s(rWS,4)}, {s(sQAst)} offen sc1\nbuffer_load_dword {v(gc+8)}, {v(vL4)}, {s(rWS,4)}, {s(sQAst)} offen offset:64 sc1')
        A(f's_waitcnt vmcnt(0)\nbuffer_store_dword {v(gc+7)}, {v(vL4)}, {s(rWS,4)}, s7 offen sc1\nbuffer_store_dword {v(gc+8)}, {v(vL4)}, {s(rWS,4)}, s7 offen offset:64 sc1')
        A('s_mov_b64 exec, -1')
    def attn_addr():
        A(f'v_bfe_u32 {v(T+6)}, {v(vL4)}, 2, 2\nv_lshrrev_b32 {v(T+7)}, 6, {v(vL4)}\nv_lshlrev_b32 {v(T+7)}, 4, {v(T+7)}\nv_add_u32 {v(T+7)}, {SM+ZERO}, {v(T+7)}')
        for k in range(4):
            A(f'v_cmp_eq_u32 vcc, {k}, {v(T+6)}\nv_add_u32 {v(T+5)}, {PB+128*k}, {v(vQF)}')
            nop(1)
            A(f'v_cndmask_b32 {v(pa+k)}, {v(T+7)}, {v(T+5)}, vcc')
        A(f'v_lshrrev_b32 {v(qw)}, 7, v0\nv_lshlrev_b32 {v(qw)}, 8, {v(qw)}\nv_lshl_add_u32 {v(qw)}, v0, 1, {v(qw)}\nv_add_u32 {v(qw)}, {SM+QB}, {v(qw)}')
    A(f's_mov_b32 {s(sQC)}, {s(sQAld)}\ns_mov_b32 {s(sKD)}, 0\ns_mov_b32 {s(sPOL)}, {P["npa"]}\ns_mov_b32 {s(sGOK)}, 0')
    A('s_waitcnt vmcnt(0)')
    if P['ega']: ga_issue()
    if P['egchk']: gchk_issue()
    for ins in coef_build(): A(ins)
    attn_addr()
    stamp(1)
    if not P['ega']: ga_issue()
    A('s_waitcnt vmcnt(0)')
    if P['egchk']: gchk_test('L_ga_w')
    A('s_branch L_ga_w')

    A('L_attn:')
    A(f's_mov_b32 {s(sQC)}, {s(sQAld)}\ns_mov_b32 {s(sKD)}, 1\ns_mov_b32 {s(sPOL)}, -1')
    A(f's_cmp_lg_u32 {s(sFAST)}, 0\ns_cbranch_scc1 L_ga0\ns_add_u32 {s(sQC)}, {s(sQC)}, {QAB}')
    A('L_ga0:')
    attn_addr()
    A('L_ga:')
    ga_issue()
    A('s_waitcnt vmcnt(0)')
    A('L_ga_w:')
    for k in range(4): A(f'v_xor_b32 {v(ga+k)}, {s(sTG12)}, {v(ga+k)}')
    A(f'v_or3_b32 {v(T+4)}, {v(ga)}, {v(ga+1)}, {v(ga+2)}\nv_or_b32 {v(T+4)}, {v(T+4)}, {v(ga+3)}\nv_and_b32 {v(T+4)}, 0xfff, {v(T+4)}')
    A(f'v_add_f32 {v(T)}, {v(ga)}, {v(ga+1)}\nv_add_f32 {v(T+2)}, {v(ga+2)}, {v(ga+3)}')
    A(f'v_cmp_ne_u32 vcc, 0, {v(T+4)}\nv_add_f32 {v(T)}, {v(T)}, {v(T+2)}\ns_cbranch_vccnz L_ga_f')
    A(f'v_cvt_pk_bf16_f32 {v(T)}, {v(T)}, {v(T)}\nds_write_b16 {v(qw)}, {v(T)}\ns_waitcnt lgkmcnt(0)')
    stamp(3)
    A(f's_cmp_lg_u32 {s(sLAY)}, 0\ns_cbranch_scc1 L_qbar')
    signal(F_Q)
    A(f's_cmp_lg_u32 {s(sKD)}, 0\ns_cbranch_scc1 L_kdone')
    wait_flag(F_K)
    A(f's_mov_b32 {s(sKD)}, 2')
    A('L_kread:')
    kt = T + 8
    A(f'v_bfe_u32 {v(kt)}, {v(vL4)}, 2, 4\nv_lshrrev_b32 {v(kt+1)}, 6, {v(vL4)}\ns_lshl_b32 s6, {s(sW)}, 14')
    A(f'v_lshl_add_u32 {v(kt+2)}, {v(kt)}, 8, s6')
    for ks in range(4):
        A(f'v_add_u32 {v(kt+3)}, {4*ks}, {v(kt+1)}\nv_xor_b32 {v(kt+3)}, {v(kt+3)}, {v(kt)}\nv_lshl_add_u32 {v(kt+4+ks)}, {v(kt+3)}, 4, {v(kt+2)}')
        for tt in range(4):
            A(f'ds_read_b128 {a(aK+16*tt+4*ks,4)}, {v(kt+4+ks)} offset:{KB+4096*tt}')
    A('s_waitcnt lgkmcnt(0)')
    signal(F_KR)
    A(f's_cmp_eq_u32 {s(sKD)}, 1\ns_cbranch_scc1 L_ga')
    A('L_kdone:')
    amp(6)
    A(f's_mov_b32 {s(sPOL)}, 48\nv_mov_b32 {v(FT+5)}, {SM+FLAGS}\nL_fq:')
    flag_test(F_Q)
    A('s_cbranch_vccnz L_qk')
    tmo_check()
    A(f's_sub_u32 {s(sPOL)}, {s(sPOL)}, 1\ns_cmp_lg_u32 {s(sPOL)}, 0\ns_cbranch_scc1 L_fq')
    q_copy()
    A('s_branch L_fq')
    A('L_ga_f:')
    tmo_check(0)
    A(f's_sub_u32 {s(sPOL)}, {s(sPOL)}, 1\ns_cmp_lg_u32 {s(sPOL)}, 0\ns_cbranch_scc1 L_ga_f2\ns_add_u32 {s(sQC)}, {s(sQC)}, {QAB}')
    q_copy()
    A(f'L_ga_f2:\ns_cmp_lg_u32 {s(sKD)}, 0\ns_cbranch_scc1 L_ga')
    A(f'v_mov_b32 {v(FT+5)}, {SM+FLAGS}')
    flag_test(F_K)
    A(f's_cbranch_vccz L_ga\ns_mov_b32 {s(sKD)}, 1\ns_branch L_kread')
    A('L_qbar:\ns_barrier')
    A('L_qk:')
    qf, DS = T, T+16
    for ks in range(4):
        A(f'ds_read_b128 {v(qf+4*ks,4)}, {v(vQF)} offset:{QB+64*ks}')
    for ks in range(4):
        A(f's_waitcnt lgkmcnt({3-ks})')
        for tt in range(4):
            A(f'v_mfma_f32_16x16x32_bf16 {v(DS+4*tt,4)}, {v(qf+4*ks,4)}, {a(aK+16*tt+4*ks,4)}, {v(DS+4*tt,4) if ks else 0}')
    sa, sb, mx, t0 = T+32, T+33, T+34, T+35
    A(f's_lshl_b32 s6, {s(sW)}, 3\nv_add_u32 {v(T)}, s6, {v(vMLR)}')
    nop(4)
    A(f'v_cndmask_b32 {v(sa)}, {v(DS)}, {v(DS+4)}, {s(sMHI,2)}')
    nop(2)
    A(f'v_cndmask_b32 {v(sb)}, {v(DS+8)}, {v(DS+12)}, {s(sMHI,2)}')
    A(f'v_max_f32 {v(mx)}, {v(sa)}, {v(sb)}')
    for k in (8, 4, 2, 1):
        nop(2); dpp('v_max_f32', mx, mx, mx, f'row_ror:{k}')
    A(f'v_mov_b32 {v(t0)}, {v(mx)}')
    nop(2)
    A(f'v_permlane32_swap_b32 {v(mx)}, {v(t0)}\nv_max_f32 {v(mx)}, {v(mx)}, {v(t0)}')
    A(f'v_sub_f32 {v(sa)}, {v(sa)}, {v(mx)}\nv_sub_f32 {v(sb)}, {v(sb)}, {v(mx)}\nv_exp_f32 {v(sa)}, {v(sa)}\nv_exp_f32 {v(sb)}, {v(sb)}')
    nop(1)
    A(f'v_cvt_pk_bf16_f32 {v(sa)}, {v(sa)}, {v(sb)}')
    A(f'v_lshlrev_b32 {v(sb)}, 16, {v(sa)}\nv_and_b32 {v(t0)}, 0xffff0000, {v(sa)}\nv_add_f32 {v(t0)}, {v(t0)}, {v(sb)}')
    A(f'ds_write_b16 {v(vPW)}, {v(sa)}\nds_write_b16_d16_hi {v(vPW)}, {v(sa)} offset:64')
    for k in (8, 4, 2, 1):
        dpp('v_add_f32', t0, t0, t0, f'row_ror:{k}')
        if k > 1: nop(2)
    A(f'v_mov_b32 {v(sb)}, {v(t0)}')
    nop(2)
    A(f'v_permlane32_swap_b32 {v(t0)}, {v(sb)}\nv_add_f32 {v(t0)}, {v(t0)}, {v(sb)}')
    A(f'ds_write_b64 {v(T)}, {v(mx,2)}\ns_waitcnt lgkmcnt(0)')
    stamp(4)
    A(f's_cmp_lg_u32 {s(sLAY)}, 0\ns_cbranch_scc1 L_pbar')
    signal(F_P)
    A(f's_cmp_lg_u32 {s(sGOK)}, 0\ns_cbranch_scc1 L_gchk_n')
    A('L_gchk:')
    gchk_issue()
    A('L_gchk_n:')
    for tt in range(2):
        A(f's_lshl_b32 s6, {s(sW)}, 1\ns_add_u32 s6, s6, {tt}')
        tr_addr(T+4+tt, 6, 3, 0, VB, T)
    wait_flag(F_V)
    amp(2)
    if P['ls']: stamp(2)
    for ks in range(8):
        for tt in range(2):
            for hh in range(2):
                A(f'ds_read_b64_tr_b16 {a(aV+32*tt+4*ks+2*hh,2)}, {v(T+4+tt)} offset:{ks*8192+hh*1024}')
    A(f's_cmp_lg_u32 {s(sGOK)}, 0\ns_cbranch_scc1 L_gchk_d\ns_waitcnt vmcnt(0)')
    gchk_test('L_gchk_f')
    A('L_gchk_d:')
    A(f's_cmp_lg_u32 {s(sFAST)}, 0\ns_cbranch_scc1 L_nocopy')
    q_copy()
    A('L_nocopy:')
    if P['ls']: stamp(7)
    wait_flag(F_P, sleep=0)
    if P['ls']: stamp(8)
    A('s_branch L_pv')
    A('L_gchk_f:')
    tmo_check()
    A('s_branch L_gchk')
    A('L_pbar:\ns_barrier')
    A('L_pv:')
    pf, DO, ml = T, T+20, T+28
    NB = 5
    A(f'ds_read_b128 {v(ml,4)}, {v(vMLR)}\nds_read_b128 {v(ml+4,4)}, {v(vMLR)} offset:16')
    for ks in range(NB):
        A(f'ds_read_b128 {v(pf+4*ks,4)}, {v(pa+(ks >> 1))} offset:{64*(ks & 1)}')
    for ks in range(8):
        r = pf + 4*(ks % NB)
        A(f's_waitcnt lgkmcnt({min(NB-1, 7-ks)})')
        for tt in range(2):
            D = DO + 4*tt
            A(f'v_mfma_f32_16x16x32_bf16 {v(D,4)}, {v(r,4)}, {a(aV+32*tt+4*ks,4)}, {v(D,4) if ks else 0}')
        if ks + NB < 8:
            A(f'ds_read_b128 {v(r,4)}, {v(pa+((ks+NB) >> 1))} offset:{64*((ks+NB) & 1)}')
    M_, L_ = T+40, T+41
    A(f'v_max3_f32 {v(M_)}, {v(ml)}, {v(ml+2)}, {v(ml+4)}\nv_max_f32 {v(M_)}, {v(M_)}, {v(ml+6)}')
    for k in range(4): A(f'v_sub_f32 {v(ml+2*k)}, {v(ml+2*k)}, {v(M_)}')
    for k in range(4): A(f'v_exp_f32 {v(ml+2*k)}, {v(ml+2*k)}')
    A(f'v_mul_f32 {v(L_)}, {v(ml)}, {v(ml+1)}')
    for k in range(1, 4): A(f'v_fmac_f32 {v(L_)}, {v(ml+2*k)}, {v(ml+2*k+1)}')
    A(f'v_rcp_f32 {v(ml+1)}, {v(L_)}\nv_log_f32 {v(L_)}, {v(L_)}')
    for k in range(4): A(f'v_cndmask_b32 {v(DO+k)}, {v(DO+k)}, {v(DO+4+k)}, {s(sMHI,2)}')
    A(f'v_mul_f32 {v(DO)}, {v(DO)}, {v(ml)}')
    for k in range(1, 4): A(f'v_fmac_f32 {v(DO)}, {v(DO+k)}, {v(ml+2*k)}')
    A(f'v_mul_f32 {v(DO)}, {v(DO)}, {v(ml+1)}\nv_add_f32 {v(L_)}, {v(L_)}, {v(M_)}\nv_lshrrev_b32 {v(DO+2)}, 1, {v(vL4)}')
    A(f'v_mov_b32_dpp {v(DO+1)}, {v(DO)} quad_perm:[1,0,3,2] row_mask:0xf bank_mask:0xf')
    A(f's_mov_b32 exec_lo, 0x55555555\ns_mov_b32 exec_hi, 0x55555555')
    A(f'v_cvt_pk_bf16_f32 {v(DO)}, {v(DO)}, {v(DO+1)}')
    def o_st(m):
        A(f'buffer_store_dword {v(DO)}, {v(vOBS)}, {s(rWS,4)}, {s(sOBst)} offen{m}')
        l = A.label('nolse')
        A(f's_cmp_lg_u32 {s(sW)}, 0\ns_cbranch_scc1 {l}\ns_mov_b64 exec, 0x10001')
        A(f'buffer_store_dword {v(L_)}, {v(DO+2)}, {s(rWS,4)}, {s(sLSEst)} offen{m}')
        A(f'{l}:\ns_mov_b64 exec, -1')
    A(f's_cmp_eq_u32 {s(sFAST)}, 0\ns_cbranch_scc1 L_o_slow')
    o_st('')
    A('L_o_done:')
    stamp(5)
    A(f'v_and_b32 {v(T+9)}, 28, {v(vL4)}\nv_add_u32 {v(T+13)}, {s(sSM)}, {v(vT4)}')
    A('L_gb:')
    for k in range(8):
        A(f'buffer_load_dword {v(T+k)}, {v(vL4)}, {s(rWS,4)}, {s(sOBld)} offen offset:{256*k} sc1')
    A(f'buffer_load_dword {v(T+8)}, {v(T+9)}, {s(rWS,4)}, {s(sLSEld)} offen sc1')
    A('s_waitcnt vmcnt(0)')
    mm, ff = T+10, T+8
    check_sentinel(range(T, T+9), T+11, 'L_gb_f')
    dpp('v_max_f32', mm, ff, ff, 'row_ror:4')
    unp = [f'v_lshlrev_b32 {v(T+16+k)}, 16, {v(T+k)}\nv_and_b32 {v(T+k)}, 0xffff0000, {v(T+k)}' for k in range(8)]
    A(unp[0]); dpp('v_max_f32', mm, mm, mm, 'row_ror:2')
    A(unp[1]); dpp('v_max_f32', mm, mm, mm, 'row_ror:1')
    A(f'v_sub_f32 {v(ff)}, {v(ff)}, {v(mm)}\nv_exp_f32 {v(ff)}, {v(ff)}')
    A(unp[2]); dpp('v_add_f32', mm, ff, ff, 'row_ror:4')
    A(unp[3]); dpp('v_add_f32', mm, mm, mm, 'row_ror:2')
    A(unp[4]); dpp('v_add_f32', mm, mm, mm, 'row_ror:1')
    A(f'v_rcp_f32 {v(mm)}, {v(mm)}')
    A(unp[5])
    A(f'v_mul_f32 {v(ff)}, {v(ff)}, {v(mm)}')
    A(unp[6]); A(unp[7])
    lo, hi = T+11, T+12
    for k in range(8):
        op = 'v_mul_f32' if k == 0 else 'v_fmac_f32'
        dpp(op, lo, ff, T+16+k, f'row_newbcast:{k}')
        dpp(op, hi, ff, T+k, f'row_newbcast:{k}')
    A(f'v_cvt_pk_bf16_f32 {v(lo)}, {v(lo)}, {v(hi)}\nds_write_b32 {v(T+13)}, {v(lo)} offset:{OL}')
    A('s_waitcnt lgkmcnt(0)\ns_barrier')
    stamp(6)
    if P['amp'] == 3: A(f's_cmp_lg_u32 {s(sLAY)}, 0\ns_cbranch_scc1 L_amp3'); amp(3); A('L_amp3:')
    A(f's_or_b32 s6, s2, {s(sW)}\ns_or_b32 s6, s6, {s(sLAY)}\ns_cmp_lg_u32 s6, 0\ns_cbranch_scc1 L_cbar')
    A(f'v_mov_b32 {v(T)}, {s(sTAG)}\nv_mov_b32 {v(T+1)}, {EPO}\ns_mov_b64 exec, 1')
    A(f'buffer_store_dword {v(T)}, {v(T+1)}, {s(rWS,4)}, 0 offen sc1\ns_mov_b64 exec, -1\ns_branch L_cbar')
    A('L_o_slow:')
    o_st(' sc1')
    A('s_waitcnt vmcnt(0)\ns_branch L_o_done')
    A('L_gb_f:')
    tmo_check(1)
    A('s_branch L_gb')
    A('L_last:\ns_endpgm')
    hdr = open('cdna_kernels/' + NAME + '.s.ref').read().split('; Override launch')[0].rstrip('\n').split('\n')
    return wrap(A.text(), hdr, 256, 512, LDS_BYTES, 256, 128)


def emit_stamps(A, layer):
    A(f's_lshl_b32 s6, s2, 3\ns_add_u32 s6, s6, {s(sW)}\ns_lshl_b32 s6, s6, 7\ns_add_u32 s6, s6, {STAMP + 64*layer}')
    A(f'v_mov_b32 {v(T+44)}, s6')
    for i in range(10):
        A(f'v_mov_b32 {v(T+45)}, {s(sSTP+2*i)}\nglobal_store_dword {v(T+44)}, {v(T+45)}, {s(pWS,2)} offset:{4*i}')
    A(f'v_mov_b32 {v(T+45)}, {s(sCNT)}\nglobal_store_dword {v(T+44)}, {v(T+45)}, {s(pWS,2)} offset:40\ns_mov_b32 {s(sCNT)}, 0')


if __name__ == '__main__':
    out = sys.argv[1]
    kw = {}
    for x in sys.argv[2:]:
        k, val = x.split('='); kw[k] = val if k == 'order' else int(val, 0)
    open(out, 'w').write(gen(**kw))
```

```python
import sys, math, struct
from asmlib import *

def f2u(x):
    return struct.unpack('<I', struct.pack('<f', x))[0]

DEF = dict(stamps=0, throttle=5, fast=1, tmo=1 << 22, prefetch=1, cprio=3, npa=6, touch=1, xp=0, mnop=0, mprio=1, ms=0, amp=-1, order='V'*16+'X'+'W'*8, vlag=6, wfree=-1, ls=0, cpace=-1, dpace=-1, rot=1, ebar=1, egchk=0, ega=1, thv=0, wo2=1, pure=0, barl=0, lateb=0, wb=0, vs1=12, vbar=1, bend=15, vsl=0, nwo=1, wbar=1, ini=0, wrot=0, lpoll=0, touch0=0)

LQ   = 0x20000
QA   = 0x0
QAB  = 0x40000
ARR  = 0x80000
EPO  = 0x81000
AR0  = 0x100000
LA   = 0x61000
OB   = AR0
PC   = AR0 + 0x20000
LSE  = AR0 + 0x60000
XD   = AR0 + 2*LA
XDS  = 2560
PCS  = 2048
WS_BYTES = 0x200000
STAMP = 0x300000
assert XD + 16*XDS <= AR0 + 256*3328
KB, VB, SP = 0, 65536, 131072
SM = 155648
WQB = SM - 36864
X32, QB, XH, PB, ML, ST, XL, RED, ONES, ZERO, FLAGS = 0, 2304, 3328, 4480, 5568, 5632, 5760, 6912, 7168, 7680, 7808
HS = 576
TAGW = FLAGS + 240
DUMMY = ST + 64
OL = QB
F_A, F_WQ, F_Q, F_K, F_KR, F_P, F_V, F_WO, F_V1, F_WQ2 = range(10)
LDS_BYTES = 163840
sW = 3
rK, rV, rWQ, rWO, rWS = 8, 12, 16, 20, 24
pX, pW1, pB1, pW2, pB2 = 28, 30, 32, 34, 36
sSEL, sCNT, sTG12, sTAG = 38, 39, 40, 41
pWS = 42
sX, sB, sHL, sSP, sHKV, sC, sU, sE0, sNE, sLAY, sFAST, sTMO = range(44, 56)
sQAst, sQAld, sOBst, sLSEst, sOBld, sLSEld, sPCst, sPCld, sPCld2, sXDld = range(56, 66)
sXDst, sB2 = 66, 67
sMHI, sMT, sMU = 68, 70, 72
sSM, sXCC = 74, 75
sKD, sPOL, sQC, sGOK = 76, 77, 78, 79
sSTP = 82
vTID, vL4, vT4, vR3, vQF, vR5, vMLR, vFL, vEA, vSTW = range(10)
vXA = vPW = vR3
vPCS = vOBS = vR5
CB = 10
T = 82
aK, aV = 0, 64
aWO, aWQ, aWQH, aSP = 0, 64, 96, 100

K1 = -2.0 * math.sqrt(2.0/math.pi) * math.log2(math.e)
K2 = K1 * 0.044715


def lane_masks():
    mt = mu = 0
    for l in range(64):
        i = l & 31
        if ((l >> 2) & 1) != (l >> 5):
            continue
        r = 4*(i >> 3) + (i & 3)
        if r <= 4: mt |= 1 << l
        if 6 <= r <= 10: mu |= 1 << l
    return mt, mu


def gen(**kw):
    P = dict(DEF); P.update(kw)
    A = Asm()
    amp_state = []
    def amp(k):
        if P['amp'] == k: A('s_memrealtime s[84:85]')
    nop = lambda n: A(f's_nop {n-1}') if n > 0 else None
    def stamp(i, final=False):
        if P['amp'] >= 0 and not P['stamps']:
            if i == 0 and not amp_state: A('s_memrealtime s[82:83]'); amp_state.append(1)
            return
        if P['stamps'] == 1 or (P['stamps'] == 2 and (i == 0 or final)):
            A(f's_memrealtime {s(sSTP+2*i,2)}')
        elif P['stamps'] == 2 and i != 9:
            l = A.label('st')
            A(f's_cmp_lg_u32 {s(sLAY)}, 0\ns_cbranch_scc1 {l}\ns_memrealtime {s(sSTP+2*i,2)}\n{l}:')
    def cstamp(i):
        if P['stamps']:
            l = A.label('cs')
            A(f's_cmp_gt_u32 {s(sW)}, 3\ns_cbranch_scc1 {l}'); stamp(i); A(f'{l}:')
    def tmo_check(cnt=None):
        if cnt is not None and P['stamps'] == 1:
            A(f's_add_u32 {s(sCNT)}, {s(sCNT)}, {1 << (8*cnt)}')
        A(f's_sub_u32 {s(sTMO)}, {s(sTMO)}, 1\ns_cbranch_scc1 L_end')
    FT = T + 40
    def signal(k):
        A(f'v_mov_b32 {v(FT+4)}, 1\nds_write_b32 {v(vFL)}, {v(FT+4)} offset:{16*k}')
    def flag_test(k):
        A(f'ds_read_b128 {v(FT,4)}, {v(FT+5)} offset:{16*k}\ns_waitcnt lgkmcnt(0)')
        A(f'v_and_b32 {v(FT)}, {v(FT)}, {v(FT+1)}\nv_and_b32 {v(FT+2)}, {v(FT+2)}, {v(FT+3)}\nv_and_b32 {v(FT)}, {v(FT)}, {v(FT+2)}')
        A(f'v_cmp_ne_u32 vcc, 0, {v(FT)}')
    def wait_flag(k, sleep=1):
        l = A.label('wf')
        A(f'v_mov_b32 {v(FT+5)}, {SM+FLAGS}\n{l}:')
        flag_test(k)
        A(f's_cbranch_vccnz {l}_d')
        tmo_check()
        if sleep: A(f's_sleep {sleep}')
        A(f's_branch {l}\n{l}_d:')
    def dpp(op, d, a_, b_, ctl, rm='0xf'):
        A(f'{op}_dpp {v(d)}, {v(a_)}, {v(b_)} {ctl} row_mask:{rm} bank_mask:0xf')
    def check_sentinel(regs, tmp, lfail):
        r = list(regs); cur = r.pop(0)
        while r:
            if len(r) >= 2:
                A(f'v_max3_u32 {v(tmp)}, {v(cur)}, {v(r[0])}, {v(r[1])}'); r = r[2:]
            else:
                A(f'v_max_u32 {v(tmp)}, {v(cur)}, {v(r[0])}'); r = r[1:]
            cur = tmp
        A(f'v_cmp_eq_u32 vcc, -1, {v(cur)}\ns_cbranch_vccnz {lfail}')
    def partial_stats(x, t, addr, fill=()):
        fill = list(fill)
        def gap():
            k = 0
            while fill and k < 2: A(fill.pop(0)); k += 1
            nop(2 - k)
        A(f'v_mul_f32 {v(t+1)}, {v(x)}, {v(x)}\nv_add_f32 {v(t)}, {v(x)}, {v(x+1)}\nv_fmac_f32 {v(t+1)}, {v(x+1)}, {v(x+1)}')
        gap()
        A(f'v_permlane32_swap_b32 {v(t)}, {v(t+1)}\nv_add_f32 {v(t)}, {v(t)}, {v(t+1)}')
        for k in (8, 4, 2, 1):
            gap(); dpp('v_add_f32', t, t, t, f'row_ror:{k}')
        gap(); dpp('v_add_f32', t, t, t, 'row_bcast:15', '0xa')
        A(f'ds_write_b32 {v(addr)}, {v(t)}')
        for x_ in fill: A(x_)
    EPS = hex(f2u(1e-5)); INV = hex(f2u(1.0/576))
    def stats_issue(t):
        A(f'v_mov_b32 {v(t+16)}, {s(sSM)}')
        for k in range(4): A(f'ds_read_b128 {v(t+4*k,4)}, {v(t+16)} offset:{ST+16*k}')
    def stats_calc(t, twice=False):
        A(f'v_pk_add_f32 {v(t,2)}, {v(t,2)}, {v(t+2,2)}\nv_pk_add_f32 {v(t+4,2)}, {v(t+4,2)}, {v(t+6,2)}')
        if twice:
            A(f'v_pk_add_f32 {v(t+8,2)}, {v(t+8,2)}, {v(t+10,2)}\nv_pk_add_f32 {v(t+12,2)}, {v(t+12,2)}, {v(t+14,2)}')
            A(f'v_pk_add_f32 {v(t,2)}, {v(t,2)}, {v(t+4,2)}\nv_pk_add_f32 {v(t+8,2)}, {v(t+8,2)}, {v(t+12,2)}\nv_pk_add_f32 {v(t,2)}, {v(t,2)}, {v(t+8,2)}')
        else:
            A(f'v_pk_add_f32 {v(t,2)}, {v(t,2)}, {v(t+8,2)}\nv_pk_add_f32 {v(t,2)}, {v(t,2)}, {v(t+4,2)}')
        A(f'v_mul_f32 {v(t)}, {INV}, {v(t)}\nv_mul_f32 {v(t+1)}, {INV}, {v(t+1)}')
        A(f'v_fma_f32 {v(t+1)}, -{v(t)}, {v(t)}, {v(t+1)}\nv_max_f32 {v(t+1)}, 0, {v(t+1)}')
        if twice:
            A(f'v_mul_f32 {v(t+1)}, {hex(f2u(1+1e-5))}, {v(t+1)}\nv_add_f32 {v(t+2)}, {hex(f2u(1e-10))}, {v(t+1)}\nv_rsq_f32 {v(t+2)}, {v(t+2)}')
        else:
            A(f'v_add_f32 {v(t+2)}, {EPS}, {v(t+1)}\nv_rsq_f32 {v(t+2)}, {v(t+2)}')
    def tr_addr(dst, tile_sreg, gshift, gbit, base, t):
        A(f'v_bfe_u32 {v(t)}, {v(vL4)}, 4, 2\nv_bfe_u32 {v(t+1)}, {v(vL4)}, 2, 2\nv_lshrrev_b32 {v(t+2)}, 6, {v(vL4)}')
        A(f'v_bfe_u32 {v(t+3)}, {v(t+2)}, {gbit}, 1\nv_lshl_or_b32 {v(t+3)}, {v(t+3)}, 2, {v(t)}')
        A(f'v_xor_b32 {v(t+3)}, {s(tile_sreg)}, {v(t+3)}\nv_lshlrev_b32 {v(t+3)}, 5, {v(t+3)}\nv_lshl_add_u32 {v(t+3)}, {v(t+1)}, 3, {v(t+3)}')
        A(f'v_lshl_add_u32 {v(t+2)}, {v(t+2)}, {gshift}, {v(t)}\nv_lshl_add_u32 {v(dst)}, {v(t+2)}, 8, {v(t+3)}')
        A(f'v_add_u32 {v(dst)}, {base}, {v(dst)}')
    RAW = T + 20
    def raw_loads():
        r = []
        r.append(f'v_add_u32 {v(T+18)}, 4096, {v(vT4)}\nv_lshlrev_b32 {v(T+19)}, 1, {v(vTID)}\nv_add_u32 {v(T+19)}, 8192, {v(T+19)}')
        A(r[0])
        for k, p in enumerate((pW1, pB1, pW2)):
            for i in range(4):
                A(f'global_load_dword {v(RAW+5*k+i)}, {v(vT4 if i < 2 else T+18)}, {s(p,2)} offset:{2048*(i & 1)}')
            A(f'global_load_ushort {v(RAW+5*k+4)}, {v(T+19)}, {s(p,2)}')
    def coef_build():
        L = []
        w, b, w2, t0, t1, t2, t3, t4 = (T + i for i in range(8))
        for f in range(9):
            c = CB + 8*f
            srcs = [RAW + 5*k + (f >> 1) for k in range(3)]
            for d, sr in zip((w, b, w2), srcs):
                L.append(f'v_and_b32 {v(d)}, 0xffff0000, {v(sr)}' if f & 1 else f'v_lshlrev_b32 {v(d)}, 16, {v(sr)}')
            def split(x, dst):
                L.append(f'v_and_b32 {v(t4)}, 0xffff0000, {v(x)}')
                L.append(f'v_sub_f32 {v(dst)}, {v(x)}, {v(t4)}')
                L.append(f'v_cvt_pk_bf16_f32 {v(dst)}, {v(t4)}, {v(dst)}')
            L.append(f'v_mul_f32 {v(t0)}, {v(w)}, {v(w)}')
            L.append(f'v_mul_f32 {v(t0)}, {hex(f2u(K2))}, {v(t0)}')
            L.append(f'v_mul_f32 {v(t1)}, {v(t0)}, {v(w)}')
            L.append(f'v_mul_f32 {v(t2)}, {v(t0)}, {v(b)}')
            L.append(f'v_mul_f32 {v(t2)}, 0x40400000, {v(t2)}')
            split(t1, c); split(t2, c+1)
            L.append(f'v_perm_b32 {v(c+2)}, {v(t2)}, {v(t1)}, {s(sSEL)}')
            L.append(f'v_mul_f32 {v(t0)}, {v(b)}, {v(b)}')
            L.append(f'v_mul_f32 {v(t0)}, {hex(f2u(K2))}, {v(t0)}')
            L.append(f'v_add_f32 {v(t1)}, {hex(f2u(K1))}, {v(t0)}')
            L.append(f'v_mul_f32 {v(t2)}, {v(t1)}, {v(b)}')
            L.append(f'v_fmac_f32 {v(t1)}, 2.0, {v(t0)}')
            L.append(f'v_mul_f32 {v(t1)}, {v(t1)}, {v(w)}')
            split(t1, c+3); split(t2, c+4)
            L.append(f'v_mul_f32 {v(t1)}, {v(w)}, {v(w2)}')
            L.append(f'v_mul_f32 {v(t2)}, {v(b)}, {v(w2)}')
            split(t1, c+5); split(t2, c+6)
            L.append(f'v_mov_b32 {v(c+7)}, 0')
        return L

    def q_stage(vXA, hook=None):
        xf, st, D0, D1 = T, T+20, T+36, T+40
        for ks in range(4):
            A(f'ds_read_b128 {v(xf+4*ks,4)}, {v(vXA)} offset:{64*ks}')
        A(f'ds_read_b64 {v(xf+16,2)}, {v(T+44)} offset:256')
        for k in range(3): A(f'ds_read_b128 {v(st+4*k,4)}, {v(T+45)} offset:{ST+16*k}')
        for ks in range(4):
            A(f's_waitcnt lgkmcnt({7-ks})')
            for tt, D in enumerate((D0, D1)):
                A(f'v_mfma_f32_16x16x32_bf16 {v(D,4)}, {v(xf+4*ks,4)}, {a(aWQ+16*tt+4*ks,4)}, {v(D,4) if ks else 0}')
        A('s_waitcnt lgkmcnt(3)')
        for tt, D in enumerate((D0, D1)):
            A(f'v_mfma_f32_16x16x16_bf16 {v(D,4)}, {v(xf+16,2)}, {a(aWQH+2*tt,2)}, {v(D,4)}')
        A('s_waitcnt lgkmcnt(0)')
        stats_calc(st)
        qs = (128 ** -0.5) * math.log2(math.e)
        for D in (D0, D1):
            A(f'v_add_f32 {v(D)}, {v(D)}, {v(D+1)}\nv_fma_f32 {v(D)}, -{v(st)}, {v(D+2)}, {v(D)}')
        A(f'v_mul_f32 {v(st+2)}, {hex(f2u(qs))}, {v(st+2)}\ns_mov_b64 exec, 0xffff')
        for D in (D0, D1): A(f'v_mul_f32 {v(D)}, {v(D)}, {v(st+2)}')
        for D in (D0, D1): A(f'v_and_b32 {v(D)}, 0xfffff000, {v(D)}')
        for D in (D0, D1): A(f'v_or_b32 {v(D)}, {s(sTG12)}, {v(D)}')
        A(f'buffer_store_dword {v(D0)}, {v(vL4)}, {s(rWS,4)}, {s(sQAst)} offen')
        A(f'buffer_store_dword {v(D1)}, {v(vL4)}, {s(rWS,4)}, {s(sQAst)} offen offset:64')
        if hook:
            A('s_mov_b64 exec, -1'); hook()
        l = A.label('q1')
        if hook:
            return
        A(f's_cmp_lg_u32 {s(sFAST)}, 0\ns_cbranch_scc1 {l}\ns_add_u32 {s(sQC)}, {s(sQAst)}, {QAB}')
        A(f'buffer_store_dword {v(D0)}, {v(vL4)}, {s(rWS,4)}, {s(sQC)} offen sc1')
        A(f'buffer_store_dword {v(D1)}, {v(vL4)}, {s(rWS,4)}, {s(sQC)} offen offset:64 sc1')
        A(f'{l}:\ns_mov_b64 exec, -1')

    def q_prep(vXA):
        A(f'v_lshrrev_b32 {v(T+44)}, 6, {v(vL4)}\nv_lshlrev_b32 {v(T+44)}, 3, {v(T+44)}\nv_sub_u32 {v(T+44)}, {v(vXA)}, {v(T+44)}\nv_mov_b32 {v(T+45)}, {s(sSM)}')
    def xa_addr(dst, t):
        A(f's_lshr_b32 s5, {s(sSP)}, 1\ns_lshl_b32 s6, s5, 5\ns_add_u32 s6, s6, {SM+ONES+64}\ns_mul_i32 s5, s5, 288\ns_add_u32 s5, s5, {SM+XH}\nv_bfe_u32 {v(t+2)}, {v(vL4)}, 2, 4')
        A(f'v_mov_b32 {v(dst)}, s6\nv_mov_b32 {v(t)}, s5\nv_cmp_eq_u32 vcc, 0, {v(t+2)}\nv_add_u32 {v(t+1)}, {XL-XH}, {v(t)}\nv_lshrrev_b32 {v(t+3)}, 6, {v(vL4)}')
        A(f'v_cndmask_b32 {v(dst)}, {v(dst)}, {v(t)}, vcc\nv_cmp_eq_u32 vcc, 1, {v(t+2)}')
        nop(2)
        A(f'v_cndmask_b32 {v(dst)}, {v(dst)}, {v(t+1)}, vcc\nv_lshl_add_u32 {v(dst)}, {v(t+3)}, 4, {v(dst)}')
    def wq_addr(t):
        for tt in range(2):
            A(f's_and_b32 s5, {s(sW)}, 3\ns_lshl_b32 s5, s5, 1\ns_add_u32 s5, s5, {tt}')
            tr_addr(t+4+2*tt, 5, 3, 0, WQB, t)
            tr_addr(t+5+2*tt, 5, 2, 1, WQB + 128*256, t)
    def wq_reads(t):
        for tt in range(2):
            for ks in range(4):
                for hh in range(2):
                    A(f'ds_read_b64_tr_b16 {a(aWQ+16*tt+4*ks+2*hh,2)}, {v(t+4+2*tt)} offset:{ks*8192+hh*1024}')
            A(f'ds_read_b64_tr_b16 {a(aWQH+2*tt,2)}, {v(t+5+2*tt)}')

    vl, vj, vg = T+1, T+2, T+3
    def common_setup():
        A(f's_lshr_b32 s4, {s(sSP)}, 1\ns_lshl_b32 s5, {s(sB)}, 4\ns_add_u32 s5, s5, {s(sHKV)}\ns_and_b32 s7, {s(sW)}, 3')
        A(f's_lshl_b32 s6, s7, 2\ns_add_u32 s6, s6, {SM+FLAGS}\nv_mov_b32 {v(vFL)}, s6')
        A(f's_mov_b64 {s(pW1,2)}, s[68:69]\ns_mov_b64 {s(pB1,2)}, s[70:71]')
        A(f's_mov_b64 {s(pW2,2)}, s[72:73]\ns_mov_b64 {s(pB2,2)}, s[74:75]')
        A(f's_mul_i32 s6, {s(sX)}, {512*1152}')
        A(f's_add_u32 {s(rWO)}, s64, s6\ns_addc_u32 {s(rWO+1)}, s65, 0\ns_sub_u32 {s(rWO+2)}, 4718592, s6\ns_mov_b32 {s(rWO+3)}, 0x20000')
        A(f's_mov_b32 {s(rWS)}, s42\ns_mov_b32 {s(rWS+1)}, s43\ns_mov_b32 {s(rWS+2)}, {WS_BYTES}\ns_mov_b32 {s(rWS+3)}, 0x20000')
        A(f's_load_dword {s(sB2)}, {s(pB2,2)}, 0')
        A(f's_getreg_b32 {s(sXCC)}, hwreg(HW_REG_XCC_ID, 0, 4)')
        A(f's_lshl_b32 {s(sU)}, {s(sX)}, 4\ns_add_u32 {s(sU)}, {s(sU)}, {s(sC)}')
        A(f's_mul_i32 s6, {s(sU)}, 5\ns_lshl_b32 {s(sKD)}, {s(sU)}, 2\ns_add_u32 {s(sKD)}, {s(sKD)}, 64')
        A(f's_cmp_lt_u32 {s(sU)}, 64\ns_cselect_b32 {s(sE0)}, s6, {s(sKD)}\ns_cselect_b32 {s(sNE)}, 5, 4')
        A(f's_mov_b32 {s(sLAY)}, 0\ns_mov_b32 {s(sFAST)}, 0\ns_mov_b32 {s(sTMO)}, {P["tmo"]}\ns_mov_b32 {s(sCNT)}, 0\ns_mov_b32 {s(sSM)}, {SM}')
        A(f's_lshl_b32 {s(sQAld)}, s5, 12')
        A(f's_lshl_b32 s6, s4, 10\ns_add_u32 {s(sQAst)}, {s(sQAld)}, s6\ns_and_b32 s6, {s(sSP)}, 1\ns_lshl_b32 s6, s6, 9\ns_add_u32 {s(sQAst)}, {s(sQAst)}, s6')
        A(f's_lshl_b32 s6, s7, 7\ns_add_u32 {s(sQAst)}, {s(sQAst)}, s6')
        A(f's_lshl_b32 s5, {s(sB)}, 3\ns_add_u32 s5, s5, {s(sX)}')
        A(f's_lshl_b32 s6, s5, 13\ns_add_u32 s6, s6, {OB}\ns_lshl_b32 {s(sOBld)}, s7, 11\ns_add_u32 {s(sOBld)}, {s(sOBld)}, s6')
        A(f's_lshl_b32 {s(sOBst)}, {s(sC)}, 8\ns_add_u32 s6, s6, {s(sOBst)}\ns_lshl_b32 {s(sOBst)}, {s(sHL)}, 11\ns_add_u32 s6, s6, {s(sOBst)}')
        A(f's_lshl_b32 {s(sOBst)}, s7, 6\ns_add_u32 {s(sOBst)}, {s(sOBst)}, s6')
        A(f's_lshl_b32 s6, s5, 7\ns_add_u32 s6, s6, {LSE}\ns_lshl_b32 {s(sLSEld)}, s7, 5\ns_add_u32 {s(sLSEld)}, {s(sLSEld)}, s6')
        A(f's_lshl_b32 {s(sLSEst)}, {s(sHL)}, 6\ns_add_u32 s6, s6, {s(sLSEst)}\ns_lshl_b32 {s(sLSEst)}, {s(sSP)}, 2\ns_add_u32 {s(sLSEst)}, {s(sLSEst)}, s6')
        A(f's_mul_i32 {s(sPCld)}, s5, {8*PCS}\ns_add_u32 {s(sPCld)}, {s(sPCld)}, {PC}\ns_add_u32 {s(sPCld2)}, {s(sPCld)}, {2*PCS}')
        A(f's_and_b32 s6, {s(sC)}, 7\ns_lshl_b32 s6, s6, 7\ns_lshr_b32 {s(sKD)}, {s(sC)}, 3\ns_lshl_b32 {s(sKD)}, {s(sKD)}, 6\ns_add_u32 s6, s6, {s(sKD)}\ns_add_u32 s6, s6, 1024')
        A(f's_lshl_b32 {s(sKD)}, {s(sC)}, 6\ns_bitcmp1_b32 s7, 1\ns_cselect_b32 s6, s6, {s(sKD)}\ns_and_b32 {s(sKD)}, s7, 1\ns_lshl_b32 {s(sKD)}, {s(sKD)}, 5\ns_add_u32 s6, s6, {s(sKD)}')
        A(f's_mul_i32 {s(sKD)}, {s(sB)}, {64*PCS}\ns_add_u32 s6, s6, {s(sKD)}\ns_mul_i32 {s(sPCst)}, {s(sX)}, {PCS}\ns_add_u32 s6, s6, {s(sPCst)}\ns_add_u32 {s(sPCst)}, s6, {PC}')
        A(f's_mul_i32 {s(sXDld)}, s5, {XDS}\ns_add_u32 {s(sXDld)}, {s(sXDld)}, {XD}')
        A(f's_mul_i32 s6, {s(sB)}, {8*XDS}\ns_lshl_b32 {s(sXDst)}, {s(sE0)}, 2\ns_add_u32 {s(sXDst)}, {s(sXDst)}, s6\ns_add_u32 {s(sXDst)}, {s(sXDst)}, {XD}')
        mt, mu = lane_masks()
        A(f's_mov_b32 {s(sMHI)}, 0\ns_mov_b32 {s(sMHI+1)}, -1\ns_mov_b32 {s(sSEL)}, 0x07060302')
        A(f's_mov_b32 {s(sMT)}, {hex(mt & 0xffffffff)}\ns_mov_b32 {s(sMT+1)}, {hex(mt >> 32)}\ns_mov_b32 {s(sMU)}, {hex(mu & 0xffffffff)}\ns_mov_b32 {s(sMU+1)}, {hex(mu >> 32)}')
        A(f'v_bfe_u32 {v(T+4)}, {v(vl)}, 3, 2\nv_and_b32 {v(T+5)}, 3, {v(vl)}\nv_lshl_add_u32 {v(T+4)}, {v(T+4)}, 2, {v(T+5)}')
        A(f'v_subrev_u32 {v(T+5)}, 6, {v(T+4)}\nv_min_u32 {v(T+4)}, {v(T+4)}, {v(T+5)}\nv_min_u32 {v(T+4)}, 4, {v(T+4)}')
        A(f's_lshl_b32 s6, {s(sE0)}, 2\ns_add_u32 s6, s6, {SM+X32}\nv_lshl_add_u32 {v(vEA)}, {v(T+4)}, 2, s6')
        A(f's_lshl_b32 s6, {s(sW)}, 3\ns_add_u32 s6, s6, {SM+ST}\nv_lshrrev_b32 {v(T+4)}, 1, {v(vg)}\nv_lshl_add_u32 {v(T+4)}, {v(T+4)}, 2, s6')
        A(f'v_mov_b32 {v(T+5)}, {SM+DUMMY}\nv_and_b32 {v(T+6)}, 1, {v(vg)}\nv_cmp_eq_u32 vcc, 1, {v(T+6)}')
        A(f'v_lshrrev_b32 {v(T+7)}, 1, {v(vg)}\nv_lshl_add_u32 {v(T+7)}, {v(T+7)}, 4, {v(vj)}\nv_lshlrev_b32 {v(T+7)}, 1, {v(T+7)}')
        A(f'v_cndmask_b32 {v(vSTW)}, {v(T+5)}, {v(T+4)}, vcc')
        A(f'v_lshlrev_b32 {v(vMLR)}, 5, {v(T+6)}\nv_add_u32 {v(vMLR)}, {SM+ML}, {v(vMLR)}')
    A('s_cmp_ge_u32 s2, 256\ns_cbranch_scc1 L_end')
    stamp(0)
    A('s_load_dwordx16 s[56:71], s[0:1], 0\ns_load_dwordx4 s[72:75], s[0:1], 64\ns_load_dwordx2 s[42:43], s[0:1], 96')
    A(f'v_lshrrev_b32 {v(T)}, 6, v0\nv_and_b32 {v(vl)}, 63, v0')
    A(f'v_readfirstlane_b32 {s(sW)}, {v(T)}')
    A(f'v_lshlrev_b32 {v(vL4)}, 2, {v(vl)}\nv_lshlrev_b32 {v(vT4)}, 2, v0')
    A(f'v_and_b32 {v(vj)}, 15, {v(vl)}\nv_lshrrev_b32 {v(vg)}, 4, {v(vl)}')
    A(f's_and_b32 {s(sX)}, s2, 7\ns_lshr_b32 s4, s2, 3')
    A(f's_lshr_b32 {s(sB)}, s4, 4\ns_bfe_u32 {s(sHL)}, s4, 0x10003\ns_and_b32 {s(sSP)}, s4, 7\ns_and_b32 {s(sC)}, s4, 15')
    A(f's_lshl_b32 {s(sHKV)}, {s(sX)}, 1\ns_add_u32 {s(sHKV)}, {s(sHKV)}, {s(sHL)}')
    A(f's_cmp_ge_u32 {s(sW)}, 4\ns_cbranch_scc1 L_lentry')
    A(f's_mul_i32 s6, {s(sB)}, 1152\nv_add_u32 {v(T+16)}, s6, {v(vT4)}')
    A(f'v_and_b32 {v(T+18)}, 31, {v(vl)}\nv_lshl_add_u32 {v(T+17)}, {v(T+18)}, 2, s6\nv_mov_b32 {v(T+19)}, {EPO}\ns_waitcnt lgkmcnt(0)')
    if not P['pure'] & 32: A(f'global_load_dword {v(T+12)}, {v(T+16)}, s[56:57]\nglobal_load_dword {v(T+13)}, {v(T+17)}, s[56:57] offset:1024')
    if not P['pure'] & 16: A(f'global_load_dword {v(T+14)}, {v(T+19)}, {s(pWS,2)} sc1')
    A('s_branch L_centry\nL_lentry:')
    vKo2, vVo2, vWQo = CB+70, CB+71, T+8
    sDM, sDN = 80, 81
    A(f's_bfe_u32 s6, {s(sW)}, 0x10001\ns_lshl_b32 s6, s6, 2\nv_or_b32 {v(T+4)}, s6, {v(vg)}\nv_lshlrev_b32 {v(T+4)}, 1, {v(T+4)}')
    A(f'v_xor_b32 {v(T+4)}, {v(T+4)}, {v(vj)}\nv_lshlrev_b32 {v(T+4)}, 4, {v(T+4)}')
    A(f'v_lshl_add_u32 {v(vWQo)}, {v(vg)}, 13, {v(T+4)}\nv_lshl_add_u32 {v(vVo2)}, {v(vg)}, 8, {v(T+4)}')
    A(f's_and_b32 s7, {s(sW)}, 3\ns_lshl_b32 s6, s7, 2\nv_add_u32 {v(vKo2)}, s6, {v(vg)}\nv_xor_b32 {v(vKo2)}, {v(vKo2)}, {v(vj)}\nv_lshlrev_b32 {v(vKo2)}, 4, {v(vKo2)}')
    A(f'v_lshl_add_u32 {v(vKo2)}, {v(vg)}, 8, {v(vKo2)}')
    A(f's_lshr_b32 s4, {s(sSP)}, 1')
    A(f's_mul_i32 s6, s4, {144*8192}\ns_lshl_b32 s5, {s(sHKV)}, 9\ns_add_u32 s6, s6, s5\ns_and_b32 s5, {s(sSP)}, 1\ns_lshl_b32 s5, s5, 8\ns_add_u32 s6, s6, s5')
    A(f's_sub_u32 {s(rWQ+2)}, 4718592, s6\ns_mov_b32 {s(rWQ+3)}, 0x20000')
    A(f's_lshl_b32 s5, {s(sB)}, 4\ns_add_u32 s5, s5, {s(sHKV)}')
    A(f's_lshl_b32 s5, s5, 21\ns_lshl_b32 s4, {s(sSP)}, 16\ns_add_u32 s5, s5, s4\ns_add_u32 s5, s5, 0x180000')
    A(f's_mov_b32 {s(rK+3)}, 0x20000\ns_mov_b32 {s(rV+3)}, 0x20000\ns_mov_b32 {s(rK+2)}, 0x10000\ns_mov_b32 {s(rV+2)}, 0x10000')
    A(f's_lshl_b32 {s(sDM)}, s7, 10\ns_add_u32 s4, {s(sDM)}, {WQB}\ns_lshl_b32 s7, s7, 15')
    A(f's_mul_i32 {s(sKD)}, s2, 0x9e3779b1\ns_lshr_b32 {s(sKD)}, {s(sKD)}, 28\ns_lshl_b32 {s(sKD)}, {s(sKD)}, 12')
    A(f's_mov_b32 {s(sDN)}, {s(sDM)}\ns_add_u32 {s(sDM)}, {s(sDM)}, {s(sKD)}')
    A('s_waitcnt lgkmcnt(0)')
    A(f's_add_u32 {s(rWQ)}, s62, s6\ns_addc_u32 {s(rWQ+1)}, s63, 0')
    for i in range(9):
        A(f's_mov_b32 m0, s4\ns_add_u32 s4, s4, 4096')
        A(f'buffer_load_dwordx4 {v(vWQo)}, {s(rWQ,4)}, s7 offen nt lds\ns_add_u32 s7, s7, {4*32768}')
    A(f's_add_u32 {s(rK)}, s58, s5\ns_addc_u32 {s(rK+1)}, s59, 0\ns_add_u32 {s(rV)}, s60, s5\ns_addc_u32 {s(rV+1)}, s61, 0')
    TH = P['throttle']
    def dma(vr, srd, base):
        A(f's_add_u32 m0, {s(sDN)}, {base}')
        A(f'buffer_load_dwordx4 {v(vr)}, {s(srd,4)}, {s(sDM)} offen nt lds\ns_add_u32 {s(sDM)}, {s(sDM)}, 4096\ns_and_b32 {s(sDM)}, {s(sDM)}, 0xffff')
    seq = []
    def issue(name): seq.append(name)
    def landed(name):
        last = max(i for i, n in enumerate(seq) if n == name)
        return len(seq) - 1 - last
    def thr():
        if not P['thv']:
            big = [i for i, n in enumerate(seq) if n != 'R']
            A(f's_waitcnt vmcnt({len(seq) - big[-TH] if P["lateb"] and len(big) >= TH else TH})'); return
        idx = [i for i, n in enumerate(seq) if n in 'KV']
        n = len(seq) - idx[-TH] if len(idx) >= TH else len(seq)
        A(f's_waitcnt vmcnt({min(n, 63)})')
    for i in range(16):
        dma(vKo2, rK, KB + 4096*i); issue('K')
        if i == TH:
            common_setup()
            A(f's_and_b32 s4, {s(sW)}, 3')
            xa_addr(vXA, T+4)
            A(f'v_lshlrev_b32 {v(vQF)}, 4, {v(vg)}\nv_add_u32 {v(vQF)}, {SM}, {v(vQF)}')
            A(f'v_and_b32 {v(T+4)}, 1, {v(vj)}\nv_lshl_add_u32 {v(T+4)}, {v(vg)}, 1, {v(T+4)}\nv_mul_u32_u24 {v(T+4)}, {8*PCS}, {v(T+4)}')
            A(f'v_lshrrev_b32 {v(T+5)}, 1, {v(vj)}\nv_lshl_add_u32 {v(vPCS)}, {v(T+5)}, 2, {v(T+4)}')
        if i == TH + 1: wq_addr(T+8)
        INI = max(P['ini'], TH)
        if i == INI - 1: A(f's_waitcnt vmcnt({len(seq)})')
        elif i >= INI: thr()
        if i == INI - 1 + P['barl']: A('s_barrier'); stamp(1)
        if i == 13: wq_reads(T+8)
        if i == 15:
            A('s_waitcnt lgkmcnt(0)'); signal(F_WQ2)
    build = coef_build()
    if P['pure'] & 2 or P['xp'] & 4:
        build = ['s_nop 0']; NR = 0
    elif P['lateb']:
        NR = 0
    else:
        raw_loads(); NR = 15
    for _ in range(NR): issue('R')
    vWO = T + 8
    wo_pat = [f'v_lshrrev_b32 {v(vWO)}, 4, {v(vL4)}\nv_mul_u32_u24 {v(vWO)}, 1152, {v(vWO)}\nv_lshrrev_b32 {v(vWO+1)}, 7, {v(vL4)}',
              f'v_lshlrev_b32 {v(vWO+1)}, 3, {v(vWO+1)}\nv_xor_b32 {v(vWO+1)}, {v(vWO+1)}, {v(vL4)}\nv_and_b32 {v(vWO+1)}, 12, {v(vWO+1)}\nv_lshl_add_u32 {v(vWO)}, {v(vWO+1)}, 2, {v(vWO)}']
    order = P['order']
    assert order.count('V') == 16 and order.count('W') == 8 and order.count('X') == 1
    ksig = False
    sM0W, sOFW = sKD, sPOL
    A(f's_lshl_b32 {s(sM0W)}, s4, 12\ns_add_u32 {s(sM0W)}, {s(sM0W)}, {SP}\ns_mul_i32 {s(sOFW)}, s4, {128*1152}\ns_lshl_b32 s6, {s(sC)}, 6\ns_add_u32 {s(sOFW)}, {s(sOFW)}, s6')
    if P['wrot'] & 1: A(f's_mul_i32 s6, {s(sB)}, {64*1152}\ns_add_u32 {s(sOFW)}, {s(sOFW)}, s6')
    lastV = order.rindex('V')
    nslots = (len(order) if P['bend'] < 0 else P['bend'] + 1) - TH - 1
    v1sig = not P['vs1']
    per = -(-len(build) // nslots)
    nv = nw = 0
    wq_waited = False
    for i, op in enumerate(order):
        if op == 'V':
            if nv == 13 and not wq_waited: (P['pure'] & 1 or wait_flag(F_WQ)); wait_flag(F_WQ2); wq_waited = True
            dma(vVo2, rV, VB + 4096*nv); issue('V'); nv += 1
        else:
            if not wq_waited: (P['pure'] & 1 or wait_flag(F_WQ)); wait_flag(F_WQ2); wq_waited = True
            if op == 'X':
                A(f's_and_b32 s6, {s(sC)}, 7\ns_lshl_b32 s6, s6, 2\ns_add_u32 s6, s6, s4\ns_mul_i32 s6, s6, {16*1152}\ns_lshr_b32 s7, {s(sC)}, 3\ns_lshl_b32 s7, s7, 6\ns_add_u32 s6, s6, s7')
                A(f's_add_u32 s6, s6, 1024\ns_add_u32 m0, {s(sDN)}, {SP+16384}')
                A(f'buffer_load_dwordx4 {v(vWO)}, {s(rWO,4)}, s6 offen nt lds'); issue('A')
            else:
                if nw == 4:
                    assert ksig
                    if P['wrot'] & 1: A(f's_mul_i32 s6, {s(sB)}, {128*1152}\ns_sub_u32 {s(sOFW)}, {s(sOFW)}, s6')
                    A(f's_lshl_b32 {s(sM0W)}, s4, 12')
                    if not P['pure'] & 1: wait_flag(F_KR)
                A(f's_mov_b32 m0, {s(sM0W)}\ns_add_u32 {s(sM0W)}, {s(sM0W)}, 1024')
                A(f'buffer_load_dwordx4 {v(vWO)}, {s(rWO,4)}, {s(sOFW)} offen nt lds\ns_add_u32 {s(sOFW)}, {s(sOFW)}, {16*1152}'); issue('A' if nw < 4 else 'W'); nw += 1
        if i == 0:
            for ins in wo_pat: A(ins)
        if P['lateb'] and i == lastV + P['lateb'] - 1:
            raw_loads()
            for _ in range(15): issue('R')
        if not P['lateb'] and i > TH and (P['wfree'] < 0 or i < lastV - P['wfree']):
            if i == TH + 1 and NR: A(f's_waitcnt vmcnt({landed("R")})')
            n = per
            if any(f'v{vVo2}' in x for x in build[:n]) and i < lastV: n = 0
            for ins in build[:n]: A(ins)
            build = build[n:]
        if not ksig and landed('K') - NR >= min(TH, 4):
            A(f's_waitcnt vmcnt({landed("K")})'); signal(F_K); stamp(2); ksig = True
        if i == lastV: stamp(3)
        vs = min(lastV + P['vlag'], len(order) - 1)
        if i == vs:
            if not v1sig:
                vi = [k for k, n in enumerate(seq) if n == 'V']
                A(f's_waitcnt vmcnt({len(seq) - 1 - vi[P["vs1"] - 1]})'); signal(F_V1); v1sig = True
            A(f's_waitcnt vmcnt({landed("V")})')
            if P['vbar']: A('s_barrier')
            else: signal(F_V)
            stamp(4)
        elif TH - 1 <= i < vs and (i < lastV - P['wfree'] or P['wfree'] < 0):
            thr()
            vi = [k for k, n in enumerate(seq) if n == 'V']
            if not v1sig and len(vi) >= P['vs1'] and len(seq) - 1 - vi[P['vs1'] - 1] >= TH:
                signal(F_V1); v1sig = True
    if P['lateb']: stamp(5); A(f's_waitcnt vmcnt({landed("R")})')
    for ins in build: A(ins)
    if not P['lateb']: stamp(5)
    A(f'v_bfe_u32 {v(T)}, {v(vL4)}, 4, 2\nv_lshrrev_b32 {v(T+2)}, 6, {v(vL4)}\nv_lshl_add_u32 {v(T)}, {v(T+2)}, 3, {v(T)}\nv_xor_b32 {v(T+2)}, s4, {v(T+2)}')
    A(f'v_and_b32 {v(T+2)}, 1, {v(T+2)}\nv_lshlrev_b32 {v(T+2)}, 5, {v(T+2)}\nv_lshl_add_u32 {v(T)}, {v(T)}, 6, {v(T+2)}')
    A(f'v_and_b32 {v(T+1)}, 12, {v(vL4)}\nv_lshl_add_u32 {v(T)}, {v(T+1)}, 1, {v(T)}\nv_add_u32 {v(T+1)}, {SP}, {v(T)}')
    def wo_read(ks, hh):
        A(f'ds_read_b64_tr_b16 {a(aWO+4*ks+2*hh,2)}, {v(T if ks & 2 else T+1)} offset:{4096*(ks >> 2)+2048*(ks & 1)+256*hh}')
    OA, OD, WA = T + 2, T + 8, T + 24
    DW = T + 36
    def o_addr():
        A(f'v_bfe_u32 {v(OD)}, {v(vL4)}, 2, 4')
        if P['wrot'] & 1: A(f's_lshl_b32 s6, {s(sB)}, 1\nv_xor_b32 {v(OD+1)}, s6, {v(OD)}')
        A(f'v_lshl_add_u32 {v(OD+1)}, {v(OD+(P["wrot"] & 1))}, 6, {v(vQF)}\nv_add_u32 {v(OD+1)}, {OL}, {v(OD+1)}')
        A(f'v_add_u32 {v(OD+2)}, {ZERO}, {v(vQF)}\nv_lshrrev_b32 {v(OD)}, 2, {v(OD)}')
        for k in range(4):
            A(f'v_cmp_eq_u32 vcc, {k}, {v(OD)}'); nop(1)
            A(f'v_cndmask_b32 {v(OA+k)}, {v(OD+2)}, {v(OD+1)}, vcc')
        A(f's_and_b32 s6, {s(sC)}, 7\ns_lshl_b32 s6, s6, 7\nv_add_u32 {v(OA+4)}, s6, {v(vQF)}')
    def wo_mfma(q_, r_):
        A(f'v_mfma_f32_16x16x32_bf16 {v(WA+4*r_,4)}, {v(OD+4*q_,4)}, {a(aWO+4*(4*q_+r_),4)}, {v(WA+4*r_,4) if q_ else 0}')
    if P['pure'] & 1:
        A('s_waitcnt vmcnt(0)'); stamp(6); A('s_waitcnt lgkmcnt(0)'); emit_stamps(A, 0); A('s_endpgm')
    A(f's_waitcnt vmcnt({landed("A")})')
    signal(F_A)
    o_addr()
    wait_flag(F_A, sleep=0)
    A(f's_cmp_gt_u32 {s(sW)}, 5\ns_cbranch_scc1 L_wx')
    for ks in range(16):
        if not ks & 2:
            for hh in range(2): wo_read(ks, hh)
    A('s_waitcnt vmcnt(0) lgkmcnt(0)')
    stamp(6)
    A('s_barrier')
    for k in range(4): A(f'ds_read_b128 {v(OD+4*k,4)}, {v(OA+k)}')
    order2 = [ks for ks in range(16) if ks & 2]
    for ks in order2:
        for hh in range(2): wo_read(ks, hh)
    A('s_waitcnt lgkmcnt(14)')
    for q_ in range(4):
        for r_ in range(2): wo_mfma(q_, r_)
    for n_, ks in enumerate(order2):
        A(f's_waitcnt lgkmcnt({14 - 2*n_})')
        wo_mfma(ks >> 2, ks & 3)
    A('s_branch L_wot')
    A('L_wx:')
    for kx in range(2):
        for hh in range(2):
            A(f'ds_read_b64_tr_b16 {a(aWO+4*kx+2*hh,2)}, {v(T+1)} offset:{16384+2048*kx+256*hh}')
    A('s_waitcnt vmcnt(0) lgkmcnt(0)')
    stamp(6)
    A('L_wo:\ns_barrier')
    A(f's_cmp_lt_u32 {s(sW)}, 6\ns_cbranch_scc1 L_wm')
    for kx in range(2): A(f'ds_read_b128 {v(OD+4*kx,4)}, {v(OA+4)} offset:{OL+64*kx}')
    for kx in range(2):
        A(f's_waitcnt lgkmcnt({1-kx})')
        A(f'v_mfma_f32_16x16x32_bf16 {v(DW,4)}, {v(OD+4*kx,4)}, {a(aWO+4*kx,4)}, {v(DW,4) if kx else 0}')
    nop(7)
    A('s_branch L_wos\nL_wm:')
    for k in range(4): A(f'ds_read_b128 {v(OD+4*k,4)}, {v(OA+k)}')
    for q_ in range(4):
        A(f's_waitcnt lgkmcnt({3-q_})')
        for r_ in range(4): wo_mfma(q_, r_)
    A('L_wot:')
    nop(5)
    A(f'v_add_f32 {v(WA)}, {v(WA)}, {v(WA+5)}')
    nop(2)
    A(f'v_add_f32 {v(WA+1)}, {v(WA+10)}, {v(WA+15)}\nv_add_f32 {v(WA)}, {v(WA)}, {v(WA+1)}\nv_mov_b32 {v(WA+1)}, {v(WA)}')
    nop(2)
    A(f'v_permlane32_swap_b32 {v(WA)}, {v(WA+1)}\nv_add_f32 {v(WA)}, {v(WA)}, {v(WA+1)}\nv_mov_b32 {v(WA+1)}, {v(WA)}')
    nop(2)
    A(f'v_permlane16_swap_b32 {v(WA)}, {v(WA+1)}\nv_add_f32 {v(DW)}, {v(WA)}, {v(WA+1)}')
    nop(2)
    A('L_wos:')
    A(f'v_mov_b32_dpp {v(DW+4)}, {v(DW)} quad_perm:[0,0,2,2] row_mask:0xf bank_mask:0xf')
    A(f'v_mov_b32_dpp {v(DW+5)}, {v(DW)} quad_perm:[1,1,3,3] row_mask:0xf bank_mask:0xf')
    A(f'v_cvt_pk_bf16_f32 {v(DW)}, {v(DW+4)}, {v(DW+5)}')
    A(f'buffer_store_dword {v(DW)}, {v(vPCS)}, {s(rWS,4)}, {s(sPCst)} offen sc1')
    stamp(7)

    A('L_cbar:')
    g0 = T
    xs_, xad, xad2 = T+18, T+20, T+21
    ga_, gb_ = T+22, T+23
    A(f's_cmp_gt_u32 {s(sW)}, 3\ns_cbranch_scc1 L_cx')
    A(f'v_lshl_add_u32 {v(xad)}, {v(vT4)}, 1, {s(sSM)}\nv_mov_b32 {v(ga_)}, {v(vT4)}\ns_branch L_cy\nL_cx:')
    A(f's_lshl_b32 s6, {s(sW)}, 5\ns_add_u32 s6, s6, {1024-128}\nv_and_b32 {v(xad)}, 28, {v(vL4)}\nv_lshrrev_b32 {v(ga_)}, 5, {v(vL4)}')
    A(f'v_lshl_add_u32 {v(ga_)}, {v(ga_)}, 7, {v(xad)}\nv_add_u32 {v(ga_)}, s6, {v(ga_)}')
    A(f's_lshl_b32 s6, s6, 1\ns_add_u32 s6, s6, {SM}\nv_lshrrev_b32 {v(xad2)}, 7, {v(vL4)}\nv_lshl_add_u32 {v(xad)}, {v(xad)}, 1, s6\nv_lshl_add_u32 {v(xad)}, {v(xad2)}, 2, {v(xad)}')
    A(f'L_cy:\nv_add_u32 {v(gb_)}, {4*PCS}, {v(ga_)}')
    A1, A2, ACC = T+32, T+36, T+40
    A(f's_mov_b32 s4, 0x3f80\ns_mov_b32 s5, 0x3f800000')
    A('s_waitcnt vmcnt(0)')
    if not P['ls']: stamp(8)
    A(f'v_mov_b32 {v(A2+3)}, 0\nv_mov_b32 {v(A2+1)}, 0x3f803f80')
    A('s_barrier')
    if P['stamps'] == 1 and not P['ls']: cstamp(1)
    A('L_gc:')
    for k in range(8):
        A(f'buffer_load_dword {v(g0+k)}, {v(gb_ if k & 4 else ga_)}, {s(rWS,4)}, {s(sPCld2 if k & 2 else sPCld)} offen offset:{PCS*(k & 1)} sc1')
    A(f'v_cndmask_b32 {v(A2)}, {v(A2+3)}, {v(A2+1)}, {s(sMT,2)}\nv_cndmask_b32 {v(A2+2)}, {v(A2+3)}, {v(A2+1)}, {s(sMU,2)}')
    A(f's_cmp_gt_u32 {s(sW)}, 3\ns_cbranch_scc1 L_gx')
    A(f'ds_read_b64 {v(xs_,2)}, {v(xad)} offset:{X32}')
    A('s_waitcnt vmcnt(0) lgkmcnt(0)')
    check_sentinel(range(g0, g0+8), g0+8, 'L_gc_f')
    for k in range(8):
        A(f'v_dot2c_f32_bf16 {v(xs_)}, s4, {v(g0+k)}\nv_dot2c_f32_bf16 {v(xs_+1)}, s5, {v(g0+k)}')
    nop(3)
    partial_stats(xs_, g0, vSTW, [f'ds_write_b64 {v(xad)}, {v(xs_,2)} offset:{X32}'])
    A('s_branch L_gc_done\nL_gx:')
    A(f'ds_read_b32 {v(g0+9)}, {v(xad)} offset:{X32}\nv_mov_b32 {v(xs_)}, 0\nv_mov_b32 {v(xs_+1)}, 0')
    A(f's_mov_b32 s6, 0xff\ns_mov_b32 s7, 0xff')
    A('s_waitcnt vmcnt(0) lgkmcnt(0)')
    check_sentinel(range(g0, g0+8), g0+8, 'L_gc_f')
    for k in range(8):
        A(f'v_dot2c_f32_bf16 {v(xs_)}, s4, {v(g0+k)}\nv_dot2c_f32_bf16 {v(xs_+1)}, s5, {v(g0+k)}')
    nop(3)
    A(f'v_permlane32_swap_b32 {v(xs_)}, {v(xs_+1)}\nv_add_f32 {v(xs_)}, {v(xs_)}, {v(xs_+1)}\nv_mov_b32 {v(xs_+1)}, {v(xs_)}')
    nop(2)
    A(f'v_permlane16_swap_b32 {v(xs_)}, {v(xs_+1)}\nv_add_f32 {v(xs_)}, {v(xs_)}, {v(xs_+1)}\nv_mov_b32 {v(xs_+1)}, 0')
    nop(1)
    dpp('v_add_f32', xs_, xs_, xs_, 'row_ror:8')
    A(f'v_add_f32 {v(g0+9)}, {v(xs_)}, {v(g0+9)}\nv_cndmask_b32 {v(xs_)}, {v(xs_+1)}, {v(g0+9)}, s[6:7]')
    partial_stats(xs_, g0, vSTW, [f'ds_write_b32 {v(xad)}, {v(g0+9)} offset:{X32}'])
    A('L_gc_done:')
    A('s_waitcnt lgkmcnt(0)\ns_barrier')
    if not P['ls']: cstamp(7)
    if P['ms']: stamp(3)
    st = T
    stats_issue(st)
    A(f'ds_read_b32 {v(st+17)}, {v(vEA)}')
    if P['wb']:
        A(f's_cmp_lg_u32 {s(sW)}, 7\ns_cbranch_scc1 L_nowb')
        if P['wb'] & 1: A('s_cmp_gt_u32 s2, 7\ns_cbranch_scc1 L_nowb')
        if P['wb'] & 4: A(f's_cmp_eq_u32 {s(sLAY)}, 0\ns_cbranch_scc1 L_nowb')
        A('buffer_wbl2 sc1\nL_nowb:')
    if P['touch']:
        A(f's_cmp_lg_u32 {s(sLAY)}, 0\ns_cbranch_scc1 L_notouch\ns_cmp_gt_u32 {s(sW)}, 3\ns_cbranch_scc1 L_notouch')
        A(f'v_lshlrev_b32 {v(st+18)}, 4, {v(vL4)}\ns_add_u32 s6, {s(sQAld)}, {LQ}\ns_add_u32 s7, {s(sOBld)}, {LA}')
        A(f'v_and_b32 {v(st+19)}, 0x7c0, {v(st+18)}')
        A(f'buffer_load_dword {v(ACC+5)}, {v(st+18)}, {s(rWS,4)}, s6 offen sc1\nbuffer_load_dword {v(ACC+5)}, {v(st+19)}, {s(rWS,4)}, s7 offen sc1')
        A(f's_add_u32 s7, {s(sLSEld)}, {LA}\nv_mov_b32 {v(st+19)}, 0\nbuffer_load_dword {v(ACC+5)}, {v(st+19)}, {s(rWS,4)}, s7 offen sc1')
        A('L_notouch:')
    A('s_waitcnt lgkmcnt(0)')
    stats_calc(st, twice=True)
    h = st + 17
    A(f'v_sub_f32 {v(h)}, {v(h)}, {v(st)}\nv_mul_f32 {v(h)}, {v(h)}, {v(st+2)}')
    A(f'v_cvt_pk_bf16_f32 {v(h)}, {v(h)}, {v(h)}')
    A(f'v_cndmask_b32 {v(A1+3)}, {v(A2+3)}, {v(h)}, {s(sMT,2)}\nv_cndmask_b32 {v(A2+1)}, {v(A2+3)}, {v(h)}, {s(sMU,2)}')
    A(f'v_and_b32 {v(st)}, 0xffff0000, {v(A1+3)}\nv_mul_f32 {v(st+1)}, {v(st)}, {v(st)}\nv_mul_f32 {v(st+2)}, {v(st+1)}, {v(st)}')
    A(f'v_and_b32 {v(st+3)}, 0xffff0000, {v(st+1)}\nv_perm_b32 {v(A1+1)}, {v(st+1)}, {v(st+1)}, {s(sSEL)}\nv_and_b32 {v(st+4)}, 0xffff0000, {v(st+2)}')
    A(f'v_sub_f32 {v(st+3)}, {v(st+1)}, {v(st+3)}\nv_sub_f32 {v(st+4)}, {v(st+2)}, {v(st+4)}\nv_perm_b32 {v(A1)}, {v(st+2)}, {v(st+2)}, {s(sSEL)}')
    A(f'v_cvt_pk_bf16_f32 {v(A1+2)}, {v(st+4)}, {v(st+3)}')
    nop(2)
    def mm2(f):
        D = T + 16*(f & 1)
        A(f'v_mfma_f32_32x32x16_bf16 {v(D,16)}, {v(A1,4)}, {v(CB+8*f,4)}, 0')
        A(f'v_mfma_f32_32x32x16_bf16 {v(D,16)}, {v(A2,4)}, {v(CB+8*f+4,4)}, {v(D,16)}')
    def m1(f): A(f'v_mfma_f32_32x32x16_bf16 {v(T+16*(f & 1),16)}, {v(A1,4)}, {v(CB+8*f,4)}, 0')
    def m2(f): A(f'v_mfma_f32_32x32x16_bf16 {v(T+16*(f & 1),16)}, {v(A2,4)}, {v(CB+8*f+4,4)}, {v(T+16*(f & 1),16)}')
    if P['mprio']: A('s_setprio 0')
    if P['ms']: stamp(4)
    mm2(0)
    for f in range(9):
        D = T + 16*(f & 1)
        nx = f + 1 < 9
        if f == 0: m1(1); nop(11)
        elif nx: nop(P['mnop']); m1(f+1)
        else: nop(P['mnop'] + 1)
        for e in range(5): A(f'v_exp_f32 {v(D+e)}, {v(D+e)}')
        A(f'v_pk_add_f32 {v(D,2)}, {v(D,2)}, 1.0 op_sel_hi:[1,0]\nv_pk_add_f32 {v(D+2,2)}, {v(D+2,2)}, 1.0 op_sel_hi:[1,0]\nv_add_f32 {v(D+4)}, 1.0, {v(D+4)}')
        if nx: m2(f+1)
        for e in range(5): A(f'v_rcp_f32 {v(D+e)}, {v(D+e)}')
        if f == 0:
            A(f'v_pk_mul_f32 {v(ACC,2)}, {v(D,2)}, {v(D+6,2)}\nv_pk_mul_f32 {v(ACC+2,2)}, {v(D+2,2)}, {v(D+8,2)}\nv_mul_f32 {v(ACC+4)}, {v(D+4)}, {v(D+10)}')
        else:
            A(f'v_pk_fma_f32 {v(ACC,2)}, {v(D,2)}, {v(D+6,2)}, {v(ACC,2)}\nv_pk_fma_f32 {v(ACC+2,2)}, {v(D+2,2)}, {v(D+8,2)}, {v(ACC+2,2)}\nv_fmac_f32 {v(ACC+4)}, {v(D+4)}, {v(D+10)}')
    if P['ms']: stamp(5)
    U = T + 16
    A(f'v_mov_b32 {v(U+4)}, {v(ACC+4)}')
    A(f'v_lshrrev_b32 {v(U)}, 6, {v(vL4)}\nv_and_b32 {v(U+1)}, 1, {v(U)}')
    A(f'v_permlane32_swap_b32 {v(ACC)}, {v(ACC+1)}\nv_permlane32_swap_b32 {v(ACC+2)}, {v(ACC+3)}\nv_permlane32_swap_b32 {v(ACC+4)}, {v(U+4)}')
    A(f'v_add_f32 {v(ACC)}, {v(ACC)}, {v(ACC+1)}\nv_add_f32 {v(ACC+2)}, {v(ACC+2)}, {v(ACC+3)}\nv_add_f32 {v(ACC+4)}, {v(ACC+4)}, {v(U+4)}')
    A(f'v_mov_b32 {v(U+4)}, {v(ACC+4)}')
    A(f'v_lshrrev_b32 {v(U)}, 1, {v(U)}\nv_lshl_add_u32 {v(U)}, {v(U+1)}, 1, {v(U)}')
    A(f'v_permlane16_swap_b32 {v(ACC)}, {v(ACC+2)}\nv_permlane16_swap_b32 {v(ACC+4)}, {v(U+4)}')
    A(f'v_add_f32 {v(ACC)}, {v(ACC)}, {v(ACC+2)}\nv_add_f32 {v(ACC+4)}, {v(ACC+4)}, {v(U+4)}')
    fill = [f's_lshl_b32 s6, {s(sW)}, 2', f's_add_u32 s6, s6, {SM+RED}', f'v_lshl_add_u32 {v(U)}, {v(U)}, 5, s6', f'v_mov_b32 {v(U+1)}, s6']
    for k, fi in zip((8, 4, 2, 1), fill):
        A(fi)
        dpp('v_add_f32', ACC, ACC, ACC, f'row_ror:{k}')
        dpp('v_add_f32', ACC+4, ACC+4, ACC+4, f'row_ror:{k}')
    A(f'ds_write_b32 {v(U)}, {v(ACC)}\nds_write_b32 {v(U+1)}, {v(ACC+4)} offset:128')
    if P['ms']: stamp(6)
    TT = T
    A(f's_cmp_lg_u32 {s(sW)}, 0\ns_cbranch_scc1 L_nofin')
    A(f'v_and_b32 {v(U)}, 28, {v(vL4)}\nv_lshl_add_u32 {v(U+1)}, {v(U)}, 3, {s(sSM)}')
    A(f's_lshl_b32 s6, {s(sE0)}, 2\ns_add_u32 s6, s6, {SM+X32}\nv_add_u32 {v(U+2)}, s6, {v(U)}\nds_read_b32 {v(U+2)}, {v(U+2)}')
    A(f'v_lshrrev_b32 {v(U+3)}, 5, {v(vL4)}\nv_mul_u32_u24 {v(U+3)}, {XDS}, {v(U+3)}\nv_add_u32 {v(U+3)}, {v(U+3)}, {v(U)}')
    A(f's_mul_i32 s6, {s(sB)}, 576\ns_add_u32 s6, s6, {s(sE0)}\ns_lshl_b32 s6, s6, 1\nv_lshrrev_b32 {v(U+5)}, 1, {v(vL4)}\nv_add_u32 {v(U+5)}, s6, {v(U+5)}')
    A(f's_lshl_b32 s6, 1, {s(sNE)}\ns_sub_u32 s6, s6, 1\ns_mul_i32 s7, s6, 0x01010101\ns_lshl_b32 s5, {s(sB2)}, 16')
    A('s_waitcnt lgkmcnt(0)\ns_barrier')
    if not P['ls']: stamp(8)
    A(f'ds_read_b128 {v(TT,4)}, {v(U+1)} offset:{RED}\nds_read_b128 {v(TT+4,4)}, {v(U+1)} offset:{RED+16}')
    A(f'v_add_f32 {v(U+2)}, s5, {v(U+2)}\ns_waitcnt lgkmcnt(0)')
    A(f'v_pk_add_f32 {v(TT,2)}, {v(TT,2)}, {v(TT+2,2)}\nv_pk_add_f32 {v(TT+4,2)}, {v(TT+4,2)}, {v(TT+6,2)}\nv_pk_add_f32 {v(TT,2)}, {v(TT,2)}, {v(TT+4,2)}')
    A(f'v_add_f32 {v(TT)}, {v(TT)}, {v(U+2)}\nv_add_f32 {v(TT)}, {v(TT)}, {v(TT+1)}')
    A(f's_cmp_lg_u32 {s(sLAY)}, 0\ns_cbranch_scc1 L_out')
    A('s_mov_b32 exec_lo, s7\ns_mov_b32 exec_hi, s7')
    A(f'buffer_store_dword {v(TT)}, {v(U+3)}, {s(rWS,4)}, {s(sXDst)} offen sc1\ns_mov_b64 exec, -1\ns_branch L_dpace')
    A('L_nofin:\ns_waitcnt lgkmcnt(0)\ns_barrier')
    if not P['ls']: cstamp(8)
    A(f's_cmp_lg_u32 {s(sLAY)}, 0\ns_cbranch_scc1 L_fin')
    A('L_dpace:')
    A(f's_load_dwordx2 {s(pX,2)}, s[0:1], 80')
    amp(4)
    A(f'v_lshl_add_u32 {v(xad)}, {v(vT4)}, 1, {s(sSM)}\nv_add_u32 {v(xad2)}, {s(sSM)}, {v(vT4)}\nv_lshlrev_b32 {v(T+22)}, 1, {v(vT4)}')
    A(f'v_mov_b32 {v(xs_)}, 0\nv_mov_b32 {v(xs_+1)}, 0')
    A(f'v_mov_b32 {v(T+23)}, {SM+TAGW}\nds_read_b64 {v(T+24,2)}, {v(T+23)}\ns_waitcnt lgkmcnt(0)\nv_readfirstlane_b32 {s(sTG12)}, {v(T+24)}')
    if P['fast']: A(f'v_readfirstlane_b32 {s(sFAST)}, {v(T+25)}')
    for r in (sQAst, sQAld): A(f's_add_u32 {s(r)}, {s(r)}, {LQ}')
    for r in (sOBst, sLSEst, sOBld, sLSEld, sPCst, sPCld, sPCld2): A(f's_add_u32 {s(r)}, {s(r)}, {LA}')
    A(f's_mov_b32 {s(sLAY)}, 1')
    if P['dpace'] < 0: A('s_waitcnt vmcnt(0)')
    elif P['dpace']: A(f's_sleep {P["dpace"]}')
    q_prep(vXA)
    if P['stamps'] == 1 and not P['ls']: cstamp(9)
    A('s_barrier')
    A(f's_cmp_gt_u32 {s(sW)}, 4\ns_cbranch_scc1 L_gd_done')
    A(f's_cmp_eq_u32 {s(sW)}, 4\ns_cselect_b32 exec_hi, 0, -1')
    A('L_gd:')
    for k in range(2):
        A(f'buffer_load_dword {v(xs_+k)}, {v(T+22)}, {s(rWS,4)}, {s(sXDld)} offen offset:{4*k} sc1')
    A('s_waitcnt vmcnt(0)')
    check_sentinel([xs_, xs_+1], g0+2, 'L_gd_f')
    A('s_mov_b64 exec, -1')
    partial_stats(xs_, g0, vSTW, [
        f'v_cvt_pk_bf16_f32 {v(g0+2)}, {v(xs_)}, {v(xs_+1)}', f'ds_write_b64 {v(xad)}, {v(xs_,2)} offset:{X32}',
        f'v_lshlrev_b32 {v(g0+4)}, 16, {v(g0+2)}', f'v_and_b32 {v(g0+5)}, 0xffff0000, {v(g0+2)}',
        f'ds_write_b32 {v(xad2)}, {v(g0+2)} offset:{XH}', f'v_sub_f32 {v(g0+4)}, {v(xs_)}, {v(g0+4)}',
        f'v_sub_f32 {v(g0+5)}, {v(xs_+1)}, {v(g0+5)}', f'v_cvt_pk_bf16_f32 {v(g0+4)}, {v(g0+4)}, {v(g0+5)}',
        f'ds_write_b32 {v(xad2)}, {v(g0+4)} offset:{XL}'])
    A('s_waitcnt lgkmcnt(0)')
    A('L_gd_done:\ns_barrier')
    if P['stamps'] == 1:
        A('s_waitcnt lgkmcnt(0)')
        emit_stamps(A, 0)
        stamp(0)
    A(f's_cmp_lt_u32 {s(sW)}, 4\ns_cbranch_scc1 L_attn')
    q_stage(vXA)
    stamp(2)
    o_addr()
    A('s_barrier\ns_barrier\ns_branch L_wo')
    A('L_gc_f:')
    tmo_check(2)
    A('s_branch L_gc')
    A('L_gd_f:')
    tmo_check(3)
    A('s_branch L_gd')
    A('L_out:')
    A(f's_mov_b32 exec_lo, s6\ns_mov_b32 exec_hi, 0\nv_cvt_pk_bf16_f32 {v(TT)}, {v(TT)}, {v(TT)}')
    A(f'global_store_short {v(U+5)}, {v(TT)}, {s(pX,2)}')
    if P['amp'] >= 0:
        amp(5)
        A('s_memrealtime s[86:87]\ns_waitcnt lgkmcnt(0)\ns_sub_u32 s84, s84, s82\ns_lshl_b32 s84, s84, 2\ns_add_u32 s86, s86, s84')
        A('L_amp:\ns_memrealtime s[88:89]\ns_waitcnt lgkmcnt(0)\ns_sub_u32 s88, s88, s86\ns_cmp_lt_i32 s88, 0\ns_cbranch_scc1 L_amp')
    A('L_fin:')
    if P['stamps']:
        A('s_mov_b64 exec, -1\ns_waitcnt vmcnt(0)')
        stamp(9, True)
        A('s_waitcnt lgkmcnt(0)')
        if P['stamps'] == 1:
            emit_stamps(A, 1)
    A('L_end:\ns_endpgm')
    A('L_centry:')
    if P['pure'] & 4:
        A(f's_cmp_lg_u32 {s(sW)}, 0\ns_cbranch_scc1 L_pp')
        A(f'v_mov_b32 {v(T+4)}, 0\nv_add_u32 {v(T+5)}, {SM}, {v(vL4)}\nds_write_b32 {v(T+5)}, {v(T+4)} offset:{FLAGS}')
        A('L_pp:\ns_waitcnt lgkmcnt(0)\ns_barrier'); emit_stamps(A, 0); A('s_endpgm')
    if P['prefetch']:
        A(f's_getpc_b64 s[4:5]\nL_pc:\ns_sub_u32 s4, s4, L_pc-{NAME}_kernel\ns_subb_u32 s5, s5, 0')
        A(f's_lshr_b32 s7, s2, 3\ns_lshl_b32 s7, s7, 2\ns_add_u32 s7, s7, {s(sW)}\ns_mul_i32 s7, s7, 192')
        A(f's_mov_b64 exec, 7\nv_lshl_add_u32 {v(T+15)}, {v(vl)}, 6, s7\nv_min_u32 {v(T+15)}, L_last-{NAME}_kernel, {v(T+15)}')
        A(f'global_load_dword {v(CB+70)}, {v(T+15)}, s[4:5]\ns_mov_b64 exec, -1')
    A(f's_cmp_lg_u32 {s(sW)}, 0\ns_cbranch_scc1 L_noinit')
    A(f'v_mov_b32 {v(T+4)}, 0\nv_add_u32 {v(T+5)}, {SM}, {v(vL4)}\nds_write_b32 {v(T+5)}, {v(T+4)} offset:{FLAGS}\nds_write_b32 {v(T+5)}, {v(T+4)} offset:{ZERO}')
    A(f'v_mov_b32 {v(T+4)}, 0x3f803f80\nds_write_b32 {v(T+5)}, {v(T+4)} offset:{ONES}\nds_write_b32 {v(T+5)}, {v(T+4)} offset:{ONES+256}')
    A('L_noinit:\ns_waitcnt lgkmcnt(0)')
    common_setup()
    if P['cprio']: A(f's_setprio {P["cprio"]}')
    A(f'v_bfe_u32 {v(T+4)}, {v(vj)}, 2, 1\nv_mul_u32_u24 {v(T+4)}, {HS}, {v(T+4)}')
    A(f'v_lshl_add_u32 {v(vQF)}, {v(vg)}, 4, {v(T+4)}\nv_add_u32 {v(vQF)}, {SM}, {v(vQF)}')
    A(f's_lshl_b32 s6, {s(sW)}, 7\ns_add_u32 s6, s6, {SM+PB}')
    A(f'v_mul_u32_u24 {v(vPW)}, {HS}, {v(T+6)}\nv_add3_u32 {v(vPW)}, {v(vPW)}, {v(T+7)}, s6')
    A(f'v_lshl_add_u32 {v(vOBS)}, {v(T+6)}, 11, {v(T+7)}')
    if not P['pure'] & 8: A(f's_cmp_eq_u32 {s(sW)}, 3\ns_cbranch_scc1 L_clr')
    A(f's_waitcnt vmcnt({1 if P["prefetch"] else 0})')
    A('s_branch L_cdone')
    A('L_clr:')
    for i in range(4): A(f'v_mov_b32 {v(T+8+i)}, -1')
    A(f's_mul_i32 s6, s2, 3328\ns_add_u32 s6, s6, {AR0}\nv_lshlrev_b32 {v(T+19)}, 2, {v(vL4)}')
    A(f'buffer_store_dwordx4 {v(T+8,4)}, {v(T+19)}, {s(rWS,4)}, s6 offen sc1\nbuffer_store_dwordx4 {v(T+8,4)}, {v(T+19)}, {s(rWS,4)}, s6 offen offset:1024 sc1')
    A(f'buffer_store_dwordx4 {v(T+8,4)}, {v(T+19)}, {s(rWS,4)}, s6 offen offset:2048 sc1')
    A(f's_mov_b64 exec, 0xffff\nbuffer_store_dwordx4 {v(T+8,4)}, {v(T+19)}, {s(rWS,4)}, s6 offen offset:3072 sc1\ns_mov_b64 exec, -1')
    A(f's_waitcnt vmcnt({5 if P["prefetch"] else 4})')
    A('L_cdone:')
    A(f'v_readfirstlane_b32 {s(sTAG)}, {v(T+14)}')
    xa = T + 4
    def x_pair(src, areg):
        A(f'v_lshlrev_b32 {v(xa)}, 16, {v(src)}\nv_and_b32 {v(xa+1)}, 0xffff0000, {v(src)}\nv_mov_b32 {v(xa+2)}, 0')
        A(f'v_lshl_add_u32 {v(xa+3)}, {v(areg)}, 1, {s(sSM)}\nv_add_u32 {v(xa+4)}, {s(sSM)}, {v(areg)}')
        A(f'ds_write_b64 {v(xa+3)}, {v(xa,2)} offset:{X32}\nds_write_b32 {v(xa+4)}, {v(src)} offset:{XH}\nds_write_b32 {v(xa+4)}, {v(xa+2)} offset:{XL}')
    x_pair(T+12, vT4)
    partial_stats(xa, xa+6, vSTW)
    A(f's_mul_i32 {s(sTAG)}, {s(sTAG)}, 0x9e3779b1\ns_add_u32 {s(sTAG)}, {s(sTAG)}, 0x7f4a7c15\ns_and_b32 {s(sTAG)}, {s(sTAG)}, 0x1fffffff\ns_and_b32 {s(sTG12)}, {s(sTAG)}, 0xfff')
    A(f's_cmp_lg_u32 {s(sW)}, 0\ns_cbranch_scc1 L_noextra')
    A(f'v_lshlrev_b32 {v(T+18)}, 2, {v(T+18)}\nv_add_u32 {v(T+18)}, 1024, {v(T+18)}')
    x_pair(T+13, T+18)
    A(f'v_cndmask_b32 {v(xa)}, {v(xa)}, {v(xa+2)}, {s(sMHI,2)}\nv_cndmask_b32 {v(xa+1)}, {v(xa+1)}, {v(xa+2)}, {s(sMHI,2)}')
    A(f'v_add_u32 {v(T+18)}, 32, {v(vSTW)}\nv_min_u32 {v(T+18)}, {SM+DUMMY}, {v(T+18)}')
    partial_stats(xa, xa+6, T+18)
    A(f'v_mov_b32 {v(xa)}, {s(sTG12)}\nv_mov_b32 {v(xa+1)}, {SM+TAGW}\nds_write_b32 {v(xa+1)}, {v(xa)}')
    A('L_noextra:')
    A('s_waitcnt lgkmcnt(0)')
    amp(1)
    xa_addr(CB, T)
    wq_addr(T)
    A('s_barrier')
    if P['pure'] & 1:
        A('s_waitcnt lgkmcnt(0)'); emit_stamps(A, 0); A('s_endpgm')
    wq_reads(T)
    A(f's_cmp_lg_u32 {s(sW)}, 3\ns_cbranch_scc1 L_noarr')
    A(f's_lshl_b32 s6, {s(sXCC)}, 29\ns_or_b32 s6, s6, {s(sTAG)}\nv_mov_b32 {v(T+8)}, s6')
    A(f's_lshl_b32 s6, {s(sX)}, 7\ns_lshr_b32 s7, s2, 3\ns_lshl_b32 s7, s7, 2\ns_add_u32 s6, s6, s7\ns_add_u32 s6, s6, {ARR}\nv_mov_b32 {v(T+9)}, s6')
    A(f's_waitcnt vmcnt(0)\ns_mov_b64 exec, 1\nbuffer_store_dword {v(T+8)}, {v(T+9)}, {s(rWS,4)}, 0 offen sc1\ns_mov_b64 exec, -1')
    A('L_noarr:\ns_waitcnt lgkmcnt(0)')
    signal(F_WQ)
    q_prep(CB)
    q_stage(CB, (lambda: None) if P['xp'] & 2 else raw_loads)
    stamp(9)
    ga, gc, pa, qw = T+8, T+12, T+36, T+35
    def ga_issue():
        for kq in range(4):
            A(f'buffer_load_dword {v(ga+kq)}, {v(vT4)}, {s(rWS,4)}, {s(sQC)} offen offset:{1024*kq} sc1')
    def gchk_issue():
        A(f'v_lshlrev_b32 {v(gc+4)}, 2, {v(vL4)}\nv_add_u32 {v(gc+4)}, {ARR}, {v(gc+4)}')
        A(f'buffer_load_dwordx4 {v(gc,4)}, {v(gc+4)}, {s(rWS,4)}, 0 offen sc1')
    def gchk_test(lfail):
        for k in range(4): A(f'v_xor_b32 {v(gc+k)}, {s(sTAG)}, {v(gc+k)}')
        A(f'v_or3_b32 {v(gc+5)}, {v(gc)}, {v(gc+1)}, {v(gc+2)}\nv_or_b32 {v(gc+5)}, {v(gc+5)}, {v(gc+3)}\nv_and_b32 {v(gc+6)}, 0x1fffffff, {v(gc+5)}')
        A(f'v_cmp_ne_u32 vcc, 0, {v(gc+6)}\ns_cbranch_vccnz {lfail}')
        if P['fast']:
            A(f's_lshl_b32 s6, {s(sXCC)}, 29')
            for k in range(4): A(f'v_xor_b32 {v(gc+k)}, s6, {v(gc+k)}')
            A(f'v_or3_b32 {v(gc+5)}, {v(gc)}, {v(gc+1)}, {v(gc+2)}\nv_or_b32 {v(gc+5)}, {v(gc+5)}, {v(gc+3)}')
            A(f'v_cmp_ne_u32 vcc, 0, {v(gc+5)}\ns_lshl_b32 s6, {s(sX)}, 3\ns_lshr_b64 vcc, vcc, s6')
            A(f's_and_b32 s6, vcc_lo, 0xff\ns_cselect_b32 {s(sFAST)}, 0, 1')
            A(f'v_mov_b32 {v(gc)}, {s(sFAST)}\nv_mov_b32 {v(gc+1)}, {SM+TAGW+4}\nds_write_b32 {v(gc+1)}, {v(gc)}')
        A(f's_mov_b32 {s(sGOK)}, 1')
    def q_copy():
        A(f's_add_u32 s7, {s(sQAst)}, {QAB}\ns_mov_b64 exec, 0xffff')
        A(f'buffer_load_dword {v(gc+7)}, {v(vL4)}, {s(rWS,4)}, {s(sQAst)} offen sc1\nbuffer_load_dword {v(gc+8)}, {v(vL4)}, {s(rWS,4)}, {s(sQAst)} offen offset:64 sc1')
        A(f's_waitcnt vmcnt(0)\nbuffer_store_dword {v(gc+7)}, {v(vL4)}, {s(rWS,4)}, s7 offen sc1\nbuffer_store_dword {v(gc+8)}, {v(vL4)}, {s(rWS,4)}, s7 offen offset:64 sc1')
        A('s_mov_b64 exec, -1')
    def attn_addr():
        A(f'v_bfe_u32 {v(T+6)}, {v(vL4)}, 2, 2\nv_lshrrev_b32 {v(T+7)}, 6, {v(vL4)}\nv_lshlrev_b32 {v(T+7)}, 4, {v(T+7)}\nv_add_u32 {v(T+7)}, {SM+ZERO}, {v(T+7)}')
        for k in range(4):
            A(f'v_cmp_eq_u32 vcc, {k}, {v(T+6)}\nv_add_u32 {v(T+5)}, {PB+128*k}, {v(vQF)}')
            nop(1)
            A(f'v_cndmask_b32 {v(pa+k)}, {v(T+7)}, {v(T+5)}, vcc')
        A(f'v_lshrrev_b32 {v(qw)}, 7, v0\nv_mul_u32_u24 {v(qw)}, {HS-256}, {v(qw)}\nv_lshl_add_u32 {v(qw)}, v0, 1, {v(qw)}\nv_add_u32 {v(qw)}, {SM+QB}, {v(qw)}')
    A(f's_mov_b32 {s(sQC)}, {s(sQAld)}\ns_mov_b32 {s(sKD)}, 0\ns_mov_b32 {s(sPOL)}, {P["npa"]}\ns_mov_b32 {s(sGOK)}, 0')
    A('s_waitcnt vmcnt(0)')
    if P['ega']: ga_issue()
    if P['egchk']: gchk_issue()
    for ins in coef_build(): A(ins)
    attn_addr()
    stamp(1)
    if not P['ega']: ga_issue()
    A('s_waitcnt vmcnt(0)')
    if P['egchk']: gchk_test('L_ga_w')
    A('s_branch L_ga_w')

    A('L_attn:')
    A(f's_mov_b32 {s(sQC)}, {s(sQAld)}\ns_mov_b32 {s(sKD)}, 1\ns_mov_b32 {s(sPOL)}, -1')
    A(f's_cmp_lg_u32 {s(sFAST)}, 0\ns_cbranch_scc1 L_ga0\ns_add_u32 {s(sQC)}, {s(sQC)}, {QAB}')
    A('L_ga0:')
    attn_addr()
    A('L_ga:')
    ga_issue()
    A('s_waitcnt vmcnt(0)')
    A('L_ga_w:')
    for k in range(4): A(f'v_xor_b32 {v(ga+k)}, {s(sTG12)}, {v(ga+k)}')
    A(f'v_or3_b32 {v(T+4)}, {v(ga)}, {v(ga+1)}, {v(ga+2)}\nv_or_b32 {v(T+4)}, {v(T+4)}, {v(ga+3)}\nv_and_b32 {v(T+4)}, 0xfff, {v(T+4)}')
    A(f'v_add_f32 {v(T)}, {v(ga)}, {v(ga+1)}\nv_add_f32 {v(T+2)}, {v(ga+2)}, {v(ga+3)}')
    A(f'v_cmp_ne_u32 vcc, 0, {v(T+4)}\nv_add_f32 {v(T)}, {v(T)}, {v(T+2)}\ns_cbranch_vccnz L_ga_f')
    A(f'v_cvt_pk_bf16_f32 {v(T)}, {v(T)}, {v(T)}\nds_write_b16 {v(qw)}, {v(T)}\ns_waitcnt lgkmcnt(0)')
    stamp(3)
    A(f's_cmp_lg_u32 {s(sLAY)}, 0\ns_cbranch_scc1 L_qbar')
    signal(F_Q)
    A(f's_cmp_lg_u32 {s(sKD)}, 0\ns_cbranch_scc1 L_kdone')
    wait_flag(F_K)
    A(f's_mov_b32 {s(sKD)}, 2')
    A('L_kread:')
    kt = T + 8
    A(f'v_bfe_u32 {v(kt)}, {v(vL4)}, 2, 4\nv_lshrrev_b32 {v(kt+1)}, 6, {v(vL4)}\ns_lshl_b32 s6, {s(sW)}, 14')
    A(f'v_lshl_add_u32 {v(kt+2)}, {v(kt)}, 8, s6')
    for ks in range(4):
        A(f'v_add_u32 {v(kt+3)}, {4*ks}, {v(kt+1)}\nv_xor_b32 {v(kt+3)}, {v(kt+3)}, {v(kt)}\nv_lshl_add_u32 {v(kt+4+ks)}, {v(kt+3)}, 4, {v(kt+2)}')
        for tt in range(4):
            A(f'ds_read_b128 {a(aK+16*tt+4*ks,4)}, {v(kt+4+ks)} offset:{KB+4096*tt}')
    A('s_waitcnt lgkmcnt(0)')
    signal(F_KR)
    A(f's_cmp_eq_u32 {s(sKD)}, 1\ns_cbranch_scc1 L_ga')
    A('L_kdone:')
    amp(6)
    A(f's_mov_b32 {s(sPOL)}, 48\nv_mov_b32 {v(FT+5)}, {SM+FLAGS}\nL_fq:')
    flag_test(F_Q)
    A('s_cbranch_vccnz L_qk')
    tmo_check()
    A(f's_sub_u32 {s(sPOL)}, {s(sPOL)}, 1\ns_cmp_lg_u32 {s(sPOL)}, 0\ns_cbranch_scc1 L_fq')
    q_copy()
    A('s_branch L_fq')
    A('L_ga_f:')
    tmo_check(0)
    A(f's_sub_u32 {s(sPOL)}, {s(sPOL)}, 1\ns_cmp_lg_u32 {s(sPOL)}, 0\ns_cbranch_scc1 L_ga_f2\ns_add_u32 {s(sQC)}, {s(sQC)}, {QAB}')
    q_copy()
    A(f'L_ga_f2:\ns_cmp_lg_u32 {s(sKD)}, 0\ns_cbranch_scc1 L_ga')
    A(f'v_mov_b32 {v(FT+5)}, {SM+FLAGS}')
    flag_test(F_K)
    A(f's_cbranch_vccz L_ga\ns_mov_b32 {s(sKD)}, 1\ns_branch L_kread')
    A('L_qbar:\ns_barrier')
    A('L_qk:')
    qf, DS = T, T+16
    for ks in range(4):
        A(f'ds_read_b128 {v(qf+4*ks,4)}, {v(vQF)} offset:{QB+64*ks}')
    for ks in range(4):
        A(f's_waitcnt lgkmcnt({3-ks})')
        for tt in range(4):
            A(f'v_mfma_f32_16x16x32_bf16 {v(DS+4*tt,4)}, {v(qf+4*ks,4)}, {a(aK+16*tt+4*ks,4)}, {v(DS+4*tt,4) if ks else 0}')
    sa, sb, mx, t0 = T+32, T+33, T+34, T+35
    A(f's_lshl_b32 s6, {s(sW)}, 3\nv_add_u32 {v(T)}, s6, {v(vMLR)}')
    nop(4)
    A(f'v_cndmask_b32 {v(sa)}, {v(DS)}, {v(DS+4)}, {s(sMHI,2)}')
    nop(2)
    A(f'v_cndmask_b32 {v(sb)}, {v(DS+8)}, {v(DS+12)}, {s(sMHI,2)}')
    A(f'v_max_f32 {v(mx)}, {v(sa)}, {v(sb)}')
    for k in (8, 4, 2, 1):
        nop(2); dpp('v_max_f32', mx, mx, mx, f'row_ror:{k}')
    A(f'v_mov_b32 {v(t0)}, {v(mx)}')
    nop(2)
    A(f'v_permlane32_swap_b32 {v(mx)}, {v(t0)}\nv_max_f32 {v(mx)}, {v(mx)}, {v(t0)}')
    A(f'v_sub_f32 {v(sa)}, {v(sa)}, {v(mx)}\nv_sub_f32 {v(sb)}, {v(sb)}, {v(mx)}\nv_exp_f32 {v(sa)}, {v(sa)}\nv_exp_f32 {v(sb)}, {v(sb)}')
    nop(1)
    A(f'v_cvt_pk_bf16_f32 {v(sa)}, {v(sa)}, {v(sb)}')
    A(f'v_lshlrev_b32 {v(sb)}, 16, {v(sa)}\nv_and_b32 {v(t0)}, 0xffff0000, {v(sa)}\nv_add_f32 {v(t0)}, {v(t0)}, {v(sb)}')
    A(f'ds_write_b16 {v(vPW)}, {v(sa)}\nds_write_b16_d16_hi {v(vPW)}, {v(sa)} offset:64')
    for k in (8, 4, 2, 1):
        dpp('v_add_f32', t0, t0, t0, f'row_ror:{k}')
        if k > 1: nop(2)
    A(f'v_mov_b32 {v(sb)}, {v(t0)}')
    nop(2)
    A(f'v_permlane32_swap_b32 {v(t0)}, {v(sb)}\nv_add_f32 {v(t0)}, {v(t0)}, {v(sb)}')
    A(f'ds_write_b64 {v(T)}, {v(mx,2)}\ns_waitcnt lgkmcnt(0)')
    stamp(4)
    A(f's_cmp_lg_u32 {s(sLAY)}, 0\ns_cbranch_scc1 L_pbar')
    signal(F_P)
    A(f's_cmp_lg_u32 {s(sGOK)}, 0\ns_cbranch_scc1 L_gchk_n')
    A('L_gchk:')
    gchk_issue()
    A('L_gchk_n:')
    for tt in range(2):
        A(f's_lshl_b32 s6, {s(sW)}, 1\ns_add_u32 s6, s6, {tt}')
        tr_addr(T+4+tt, 6, 3, 0, VB, T)
    vt = T + 4
    def v_reads(ks):
        return [f'ds_read_b64_tr_b16 {a(aV+32*tt+4*ks+2*hh,2)}, {v(vt+tt)} offset:{ks*8192+hh*1024}' for tt in range(2) for hh in range(2)]
    pf, DO, ml = T, T+20, T+28
    NB = 5
    M_, L_ = T+40, T+41
    def ml_chain():
        chain = [f'v_max3_f32 {v(M_)}, {v(ml)}, {v(ml+2)}, {v(ml+4)}', f'v_max_f32 {v(M_)}, {v(M_)}, {v(ml+6)}']
        chain += [f'v_sub_f32 {v(ml+2*k)}, {v(ml+2*k)}, {v(M_)}' for k in range(4)]
        chain += [f'v_exp_f32 {v(ml+2*k)}, {v(ml+2*k)}' for k in range(4)]
        chain += [f'v_mul_f32 {v(L_)}, {v(ml)}, {v(ml+1)}'] + [f'v_fmac_f32 {v(L_)}, {v(ml+2*k)}, {v(ml+2*k+1)}' for k in range(1, 4)]
        return chain + [f'v_rcp_f32 {v(ml+1)}, {v(L_)}', f'v_log_f32 {v(L_)}, {v(L_)}']
    def pv_mfma(ks, r, tt):
        D = DO + 4*tt
        A(f'v_mfma_f32_16x16x32_bf16 {v(D,4)}, {v(r,4)}, {a(aV+32*tt+4*ks,4)}, {v(D,4) if ks else 0}')
    if not P['vs1']:
        wait_flag(F_V)
        if P['ls']: stamp(2)
        for ks in range(8):
            for ins in v_reads(ks): A(ins)
    A(f's_cmp_lg_u32 {s(sGOK)}, 0\ns_cbranch_scc1 L_gchk_d\ns_waitcnt vmcnt(0)')
    gchk_test('L_gchk_f')
    A('L_gchk_d:')
    A(f's_cmp_lg_u32 {s(sFAST)}, 0\ns_cbranch_scc1 L_nocopy')
    q_copy()
    A('L_nocopy:')
    if P['touch0']:
        A(f'v_lshlrev_b32 {v(T+16)}, 4, {v(vL4)}\nv_and_b32 {v(T+16)}, 0x7c0, {v(T+16)}\nv_mov_b32 {v(T+17)}, 0')
        A(f'buffer_load_dword {v(T+16)}, {v(T+16)}, {s(rWS,4)}, {s(sOBld)} offen sc1\nbuffer_load_dword {v(T+17)}, {v(T+17)}, {s(rWS,4)}, {s(sLSEld)} offen sc1')
    if P['ls']: stamp(7)
    wait_flag(F_P, sleep=0)
    if P['ls']: stamp(8)
    if not P['vs1']:
        A('s_branch L_pv')
    else:
        n1 = P['vs1'] // 2
        A(f'v_mov_b32 {v(T+18)}, {v(T+4)}\nv_mov_b32 {v(T+19)}, {v(T+5)}')
        vt = T + 18
        wait_flag(F_V1)
        NB0 = 4
        q = []
        def rd(ins, key): A(ins); q.append(key)
        def need(keys):
            last = max(i_ for i_, k_ in enumerate(q) if k_ in keys)
            A(f's_waitcnt lgkmcnt({min(14, len(q) - 1 - last)})')
        def p_read(ks): rd(f'ds_read_b128 {v(pf+4*(ks % NB0),4)}, {v(pa+(ks >> 1))} offset:{64*(ks & 1)}', ('P', ks))
        rd(f'ds_read_b128 {v(ml,4)}, {v(vMLR)}', 'ml'); rd(f'ds_read_b128 {v(ml+4,4)}, {v(vMLR)} offset:16', 'ml')
        for ks in range(n1):
            if ks < NB0: p_read(ks)
            for ins in v_reads(ks): rd(ins, ('V', ks))
        for ks in range(n1):
            need([('P', ks), ('V', ks)])
            for tt in range(2): pv_mfma(ks, pf+4*(ks % NB0), tt)
            if ks + NB0 < 8: p_read(ks + NB0)
        if P['vbar']: A('s_waitcnt lgkmcnt(0)')
        chain = ml_chain()
        if P['vbar']:
            for ins in chain: A(ins)
            chain = []
            A('s_barrier')
        else:
            wait_flag(F_V, sleep=P['vsl'])
        if P['ls']: stamp(2)
        q = []
        for ks in range(n1, 8):
            for ins in v_reads(ks): rd(ins, ('V', ks))
        for ins in chain: A(ins)
        for ks in range(n1, 8):
            need([('V', ks)])
            for tt in range(2): pv_mfma(ks, pf+4*(ks % NB0), tt)
        A('s_branch L_pvt')
    A('L_gchk_f:')
    tmo_check()
    A('s_branch L_gchk')
    A('L_pbar:\ns_barrier')
    A('L_pv:')
    A(f'ds_read_b128 {v(ml,4)}, {v(vMLR)}\nds_read_b128 {v(ml+4,4)}, {v(vMLR)} offset:16')
    for ks in range(NB):
        A(f'ds_read_b128 {v(pf+4*ks,4)}, {v(pa+(ks >> 1))} offset:{64*(ks & 1)}')
    chain = ml_chain()
    for ks in range(8):
        r = pf + 4*(ks % NB)
        A(f's_waitcnt lgkmcnt({min(NB-1, 7-ks)})')
        for tt in range(2):
            D = DO + 4*tt
            A(f'v_mfma_f32_16x16x32_bf16 {v(D,4)}, {v(r,4)}, {a(aV+32*tt+4*ks,4)}, {v(D,4) if ks else 0}')
            A(chain.pop(0))
        if ks + NB < 8:
            A(f'ds_read_b128 {v(r,4)}, {v(pa+((ks+NB) >> 1))} offset:{64*((ks+NB) & 1)}')
    assert not chain
    A('L_pvt:')
    A(f'v_lshrrev_b32 {v(T)}, 1, {v(vL4)}\nv_add_f32 {v(L_)}, {v(L_)}, {v(M_)}')
    nop(5)
    for k in range(4): A(f'v_cndmask_b32 {v(DO+k)}, {v(DO+k)}, {v(DO+4+k)}, {s(sMHI,2)}')
    A(f'v_mul_f32 {v(DO)}, {v(DO)}, {v(ml)}')
    for k in range(1, 4): A(f'v_fmac_f32 {v(DO)}, {v(DO+k)}, {v(ml+2*k)}')
    A(f'v_mul_f32 {v(DO)}, {v(DO)}, {v(ml+1)}')
    nop(2)
    A(f'v_mov_b32_dpp {v(DO+1)}, {v(DO)} quad_perm:[1,0,3,2] row_mask:0xf bank_mask:0xf')
    A(f's_mov_b32 exec_lo, 0x55555555\ns_mov_b32 exec_hi, 0x55555555')
    A(f'v_cvt_pk_bf16_f32 {v(DO)}, {v(DO)}, {v(DO+1)}')
    def o_st(m):
        A(f'buffer_store_dword {v(DO)}, {v(vOBS)}, {s(rWS,4)}, {s(sOBst)} offen{m}')
        l = A.label('nolse')
        A(f's_cmp_lg_u32 {s(sW)}, 0\ns_cbranch_scc1 {l}\ns_mov_b64 exec, 0x10001')
        A(f'buffer_store_dword {v(L_)}, {v(T)}, {s(rWS,4)}, {s(sLSEst)} offen{m}')
        A(f'{l}:\ns_mov_b64 exec, -1')
    A(f's_cmp_eq_u32 {s(sFAST)}, 0\ns_cbranch_scc1 L_o_slow')
    o_st('')
    A('L_o_done:')
    stamp(5)
    A(f'v_and_b32 {v(T+9)}, 28, {v(vL4)}\nv_add_u32 {v(T+13)}, {s(sSM)}, {v(vT4)}')
    A('L_gb:')
    for k in range(8):
        A(f'buffer_load_dword {v(T+k)}, {v(vL4)}, {s(rWS,4)}, {s(sOBld)} offen offset:{256*k} sc1')
    A(f'buffer_load_dword {v(T+8)}, {v(T+9)}, {s(rWS,4)}, {s(sLSEld)} offen sc1')
    A('s_waitcnt vmcnt(0)')
    mm, ff = T+10, T+8
    check_sentinel(range(T, T+9), T+11, 'L_gb_f')
    dpp('v_max_f32', mm, ff, ff, 'row_ror:4')
    unp = [f'v_lshlrev_b32 {v(T+16+k)}, 16, {v(T+k)}\nv_and_b32 {v(T+k)}, 0xffff0000, {v(T+k)}' for k in range(8)]
    A(unp[0]); dpp('v_max_f32', mm, mm, mm, 'row_ror:2')
    A(unp[1]); dpp('v_max_f32', mm, mm, mm, 'row_ror:1')
    A(f'v_sub_f32 {v(ff)}, {v(ff)}, {v(mm)}\nv_exp_f32 {v(ff)}, {v(ff)}')
    A(unp[2]); dpp('v_add_f32', mm, ff, ff, 'row_ror:4')
    A(unp[3]); dpp('v_add_f32', mm, mm, mm, 'row_ror:2')
    A(unp[4]); dpp('v_add_f32', mm, mm, mm, 'row_ror:1')
    A(f'v_rcp_f32 {v(mm)}, {v(mm)}')
    A(unp[5])
    A(f'v_mul_f32 {v(ff)}, {v(ff)}, {v(mm)}')
    A(unp[6]); A(unp[7])
    lo, hi = T+11, T+12
    for k in range(8):
        op = 'v_mul_f32' if k == 0 else 'v_fmac_f32'
        dpp(op, lo, ff, T+16+k, f'row_newbcast:{k}')
        dpp(op, hi, ff, T+k, f'row_newbcast:{k}')
    A(f'v_cvt_pk_bf16_f32 {v(lo)}, {v(lo)}, {v(hi)}\nds_write_b32 {v(T+13)}, {v(lo)} offset:{OL}')
    A('s_waitcnt lgkmcnt(0)\ns_barrier')
    stamp(6)
    if P['amp'] == 3: A(f's_cmp_lg_u32 {s(sLAY)}, 0\ns_cbranch_scc1 L_amp3'); amp(3); A('L_amp3:')
    A(f's_or_b32 s6, s2, {s(sW)}\ns_or_b32 s6, s6, {s(sLAY)}\ns_cmp_lg_u32 s6, 0\ns_cbranch_scc1 L_cbar')
    A(f'v_mov_b32 {v(T)}, {s(sTAG)}\nv_mov_b32 {v(T+1)}, {EPO}\ns_mov_b64 exec, 1')
    A(f'buffer_store_dword {v(T)}, {v(T+1)}, {s(rWS,4)}, 0 offen sc1\ns_mov_b64 exec, -1\ns_branch L_cbar')
    A('L_o_slow:')
    o_st(' sc1')
    A('s_waitcnt vmcnt(0)\ns_branch L_o_done')
    A('L_gb_f:')
    tmo_check(1)
    A('s_branch L_gb')
    A('L_last:\ns_endpgm')
    hdr = open('cdna_kernels/' + NAME + '.s.ref').read().split('; Override launch')[0].rstrip('\n').split('\n')
    return wrap(A.text(), hdr, 256, 512, LDS_BYTES, 256, 128)


def emit_stamps(A, layer):
    A(f's_lshl_b32 s6, s2, 3\ns_add_u32 s6, s6, {s(sW)}\ns_lshl_b32 s6, s6, 7\ns_add_u32 s6, s6, {STAMP + 64*layer}')
    A(f'v_mov_b32 {v(T)}, s6')
    for i in range(10):
        A(f'v_mov_b32 {v(T+1)}, {s(sSTP+2*i)}\nglobal_store_dword {v(T)}, {v(T+1)}, {s(pWS,2)} offset:{4*i}')
    A(f'v_mov_b32 {v(T+1)}, {s(sCNT)}\nglobal_store_dword {v(T)}, {v(T+1)}, {s(pWS,2)} offset:40\ns_mov_b32 {s(sCNT)}, 0')


if __name__ == '__main__':
    out = sys.argv[1]
    kw = {}
    for x in sys.argv[2:]:
        k, val = x.split('='); kw[k] = val if k == 'order' else int(val, 0)
    open(out, 'w').write(gen(**kw))
```

```python
import sys, math, struct
from asmlib import *

def f2u(x):
    return struct.unpack('<I', struct.pack('<f', x))[0]

DEF = dict(stamps=0, throttle=5, fast=1, tmo=1 << 22, prefetch=1, cprio=3, npa=6, touch=1, xp=0, mnop=0, mprio=1, ms=0, amp=-1, order='V'*16+'X'+'W'*8, vlag=6, wfree=-1, ls=0, cpace=-1, dpace=-1, rot=1, ebar=1, egchk=0, ega=1, thv=0, wo2=1, pure=0, barl=0, lateb=0, wb=0, vs1=12, vbar=1, bend=15, vsl=0, nwo=1, wbar=1, ini=0, wrot=0, lpoll=0, touch0=0, upv=1, uwo=0, hold=0)

LQ   = 0x20000
QA   = 0x0
QAB  = 0x40000
ARR  = 0x80000
EPO  = 0x81000
AR0  = 0x100000
LA   = 0x61000
OB   = AR0
PC   = AR0 + 0x20000
LSE  = AR0 + 0x60000
XD   = AR0 + 2*LA
XDS  = 2560
PCS  = 2048
WS_BYTES = 0x200000
STAMP = 0x300000
assert XD + 16*XDS <= AR0 + 256*3328
KB, VB, SP = 0, 65536, 131072
SM = 155648
WQB = SM - 36864
X32, QB, XH, PB, ML, ST, XL, RED, ONES, ZERO, FLAGS = 0, 2304, 3328, 4480, 5568, 5632, 5760, 6912, 7168, 7680, 7808
HS = 576
TAGW = FLAGS + 240
DUMMY = ST + 64
OL = QB
F_A, F_WQ, F_Q, F_K, F_KR, F_P, F_V, F_WO, F_V1, F_WQ2 = range(10)
LDS_BYTES = 163840
sW = 3
rK, rV, rWQ, rWO, rWS = 8, 12, 16, 20, 24
pX, pW1, pB1, pW2, pB2 = 28, 30, 32, 34, 36
sSEL, sCNT, sTG12, sTAG = 38, 39, 40, 41
pWS = 42
sX, sB, sHL, sSP, sHKV, sC, sU, sE0, sNE, sLAY, sFAST, sTMO = range(44, 56)
sQAst, sQAld, sOBst, sLSEst, sOBld, sLSEld, sPCst, sPCld, sPCld2, sXDld = range(56, 66)
sXDst, sB2 = 66, 67
sMHI, sMT, sMU = 68, 70, 72
sSM, sXCC = 74, 75
sKD, sPOL, sQC, sGOK = 76, 77, 78, 79
sSTP = 82
vTID, vL4, vT4, vR3, vQF, vR5, vMLR, vFL, vEA, vSTW = range(10)
vXA = vPW = vR3
vPCS = vOBS = vR5
CB = 10
T = 82
aK, aV = 0, 64
aWO, aWQ, aWQH, aSP = 0, 64, 96, 100

K1 = -2.0 * math.sqrt(2.0/math.pi) * math.log2(math.e)
K2 = K1 * 0.044715


def lane_masks():
    mt = mu = 0
    for l in range(64):
        i = l & 31
        if ((l >> 2) & 1) != (l >> 5):
            continue
        r = 4*(i >> 3) + (i & 3)
        if r <= 4: mt |= 1 << l
        if 6 <= r <= 10: mu |= 1 << l
    return mt, mu


def gen(**kw):
    P = dict(DEF); P.update(kw)
    A = Asm()
    amp_state = []
    def amp(k):
        if P['amp'] == k: A('s_memrealtime s[84:85]')
    nop = lambda n: A(f's_nop {n-1}') if n > 0 else None
    def stamp(i, final=False):
        if P['amp'] >= 0 and not P['stamps']:
            if i == 0 and not amp_state: A('s_memrealtime s[82:83]'); amp_state.append(1)
            return
        if P['stamps'] == 1 or (P['stamps'] == 2 and (i == 0 or final)):
            A(f's_memrealtime {s(sSTP+2*i,2)}')
        elif P['stamps'] == 2 and i != 9:
            l = A.label('st')
            A(f's_cmp_lg_u32 {s(sLAY)}, 0\ns_cbranch_scc1 {l}\ns_memrealtime {s(sSTP+2*i,2)}\n{l}:')
    def cstamp(i):
        if P['stamps']:
            l = A.label('cs')
            A(f's_cmp_gt_u32 {s(sW)}, 3\ns_cbranch_scc1 {l}'); stamp(i); A(f'{l}:')
    def tmo_check(cnt=None):
        if cnt is not None and P['stamps'] == 1:
            A(f's_add_u32 {s(sCNT)}, {s(sCNT)}, {1 << (8*cnt)}')
        A(f's_sub_u32 {s(sTMO)}, {s(sTMO)}, 1\ns_cbranch_scc1 L_end')
    FT = T + 40
    def signal(k):
        A(f'v_mov_b32 {v(FT+4)}, 1\nds_write_b32 {v(vFL)}, {v(FT+4)} offset:{16*k}')
    def flag_test(k):
        A(f'ds_read_b128 {v(FT,4)}, {v(FT+5)} offset:{16*k}\ns_waitcnt lgkmcnt(0)')
        A(f'v_and_b32 {v(FT)}, {v(FT)}, {v(FT+1)}\nv_and_b32 {v(FT+2)}, {v(FT+2)}, {v(FT+3)}\nv_and_b32 {v(FT)}, {v(FT)}, {v(FT+2)}')
        A(f'v_cmp_ne_u32 vcc, 0, {v(FT)}')
    def wait_flag(k, sleep=1):
        l = A.label('wf')
        A(f'v_mov_b32 {v(FT+5)}, {SM+FLAGS}\n{l}:')
        flag_test(k)
        A(f's_cbranch_vccnz {l}_d')
        tmo_check()
        if sleep: A(f's_sleep {sleep}')
        A(f's_branch {l}\n{l}_d:')
    def dpp(op, d, a_, b_, ctl, rm='0xf'):
        A(f'{op}_dpp {v(d)}, {v(a_)}, {v(b_)} {ctl} row_mask:{rm} bank_mask:0xf')
    def check_sentinel(regs, tmp, lfail):
        r = list(regs); cur = r.pop(0)
        while r:
            if len(r) >= 2:
                A(f'v_max3_u32 {v(tmp)}, {v(cur)}, {v(r[0])}, {v(r[1])}'); r = r[2:]
            else:
                A(f'v_max_u32 {v(tmp)}, {v(cur)}, {v(r[0])}'); r = r[1:]
            cur = tmp
        A(f'v_cmp_eq_u32 vcc, -1, {v(cur)}\ns_cbranch_vccnz {lfail}')
    def partial_stats(x, t, addr, fill=()):
        fill = list(fill)
        def gap():
            k = 0
            while fill and k < 2: A(fill.pop(0)); k += 1
            nop(2 - k)
        A(f'v_mul_f32 {v(t+1)}, {v(x)}, {v(x)}\nv_add_f32 {v(t)}, {v(x)}, {v(x+1)}\nv_fmac_f32 {v(t+1)}, {v(x+1)}, {v(x+1)}')
        gap()
        A(f'v_permlane32_swap_b32 {v(t)}, {v(t+1)}\nv_add_f32 {v(t)}, {v(t)}, {v(t+1)}')
        for k in (8, 4, 2, 1):
            gap(); dpp('v_add_f32', t, t, t, f'row_ror:{k}')
        gap(); dpp('v_add_f32', t, t, t, 'row_bcast:15', '0xa')
        A(f'ds_write_b32 {v(addr)}, {v(t)}')
        for x_ in fill: A(x_)
    EPS = hex(f2u(1e-5)); INV = hex(f2u(1.0/576))
    def stats_issue(t):
        A(f'ds_read_b64 {v(t,2)}, {v(t+24)} offset:{ST}')
    def stats_calc(t, twice=False):
        if twice:
            for k in (4, 2, 1):
                dpp('v_add_f32', t, t, t, f'row_ror:{k}'); dpp('v_add_f32', t+1, t+1, t+1, f'row_ror:{k}')
                if k > 1: nop(1)
        else:
            A(f'v_pk_add_f32 {v(t,2)}, {v(t,2)}, {v(t+2,2)}\nv_pk_add_f32 {v(t+4,2)}, {v(t+4,2)}, {v(t+6,2)}')
            A(f'v_pk_add_f32 {v(t,2)}, {v(t,2)}, {v(t+8,2)}\nv_pk_add_f32 {v(t,2)}, {v(t,2)}, {v(t+4,2)}')
        A(f'v_mul_f32 {v(t)}, {INV}, {v(t)}\nv_mul_f32 {v(t+1)}, {INV}, {v(t+1)}')
        A(f'v_fma_f32 {v(t+1)}, -{v(t)}, {v(t)}, {v(t+1)}\nv_max_f32 {v(t+1)}, 0, {v(t+1)}')
        if twice:
            A(f'v_mul_f32 {v(t+1)}, {hex(f2u(1+1e-5))}, {v(t+1)}\nv_add_f32 {v(t+2)}, {hex(f2u(1e-10))}, {v(t+1)}\nv_rsq_f32 {v(t+2)}, {v(t+2)}')
        else:
            A(f'v_add_f32 {v(t+2)}, {EPS}, {v(t+1)}\nv_rsq_f32 {v(t+2)}, {v(t+2)}')
    def tr_addr(dst, tile_sreg, gshift, gbit, base, t):
        A(f'v_bfe_u32 {v(t)}, {v(vL4)}, 4, 2\nv_bfe_u32 {v(t+1)}, {v(vL4)}, 2, 2\nv_lshrrev_b32 {v(t+2)}, 6, {v(vL4)}')
        A(f'v_bfe_u32 {v(t+3)}, {v(t+2)}, {gbit}, 1\nv_lshl_or_b32 {v(t+3)}, {v(t+3)}, 2, {v(t)}')
        A(f'v_xor_b32 {v(t+3)}, {s(tile_sreg)}, {v(t+3)}\nv_lshlrev_b32 {v(t+3)}, 5, {v(t+3)}\nv_lshl_add_u32 {v(t+3)}, {v(t+1)}, 3, {v(t+3)}')
        A(f'v_lshl_add_u32 {v(t+2)}, {v(t+2)}, {gshift}, {v(t)}\nv_lshl_add_u32 {v(dst)}, {v(t+2)}, 8, {v(t+3)}')
        A(f'v_add_u32 {v(dst)}, {base}, {v(dst)}')
    RAW = T + 20
    def raw_loads():
        r = []
        r.append(f'v_add_u32 {v(T+18)}, 4096, {v(vT4)}\nv_lshlrev_b32 {v(T+19)}, 1, {v(vTID)}\nv_add_u32 {v(T+19)}, 8192, {v(T+19)}')
        A(r[0])
        for k, p in enumerate((pW1, pB1, pW2)):
            for i in range(4):
                A(f'global_load_dword {v(RAW+5*k+i)}, {v(vT4 if i < 2 else T+18)}, {s(p,2)} offset:{2048*(i & 1)}')
            A(f'global_load_ushort {v(RAW+5*k+4)}, {v(T+19)}, {s(p,2)}')
    def coef_build():
        L = []
        w, b, w2, t0, t1, t2, t3, t4 = (T + i for i in range(8))
        for f in range(9):
            c = CB + 8*f
            srcs = [RAW + 5*k + (f >> 1) for k in range(3)]
            for d, sr in zip((w, b, w2), srcs):
                L.append(f'v_and_b32 {v(d)}, 0xffff0000, {v(sr)}' if f & 1 else f'v_lshlrev_b32 {v(d)}, 16, {v(sr)}')
            def split(x, dst):
                L.append(f'v_and_b32 {v(t4)}, 0xffff0000, {v(x)}')
                L.append(f'v_sub_f32 {v(dst)}, {v(x)}, {v(t4)}')
                L.append(f'v_cvt_pk_bf16_f32 {v(dst)}, {v(t4)}, {v(dst)}')
            L.append(f'v_mul_f32 {v(t0)}, {v(w)}, {v(w)}')
            L.append(f'v_mul_f32 {v(t0)}, {hex(f2u(K2))}, {v(t0)}')
            L.append(f'v_mul_f32 {v(t1)}, {v(t0)}, {v(w)}')
            L.append(f'v_mul_f32 {v(t2)}, {v(t0)}, {v(b)}')
            L.append(f'v_mul_f32 {v(t2)}, 0x40400000, {v(t2)}')
            split(t1, c); split(t2, c+1)
            L.append(f'v_perm_b32 {v(c+2)}, {v(t2)}, {v(t1)}, {s(sSEL)}')
            L.append(f'v_mul_f32 {v(t0)}, {v(b)}, {v(b)}')
            L.append(f'v_mul_f32 {v(t0)}, {hex(f2u(K2))}, {v(t0)}')
            L.append(f'v_add_f32 {v(t1)}, {hex(f2u(K1))}, {v(t0)}')
            L.append(f'v_mul_f32 {v(t2)}, {v(t1)}, {v(b)}')
            L.append(f'v_fmac_f32 {v(t1)}, 2.0, {v(t0)}')
            L.append(f'v_mul_f32 {v(t1)}, {v(t1)}, {v(w)}')
            split(t1, c+3); split(t2, c+4)
            L.append(f'v_mul_f32 {v(t1)}, {v(w)}, {v(w2)}')
            L.append(f'v_mul_f32 {v(t2)}, {v(b)}, {v(w2)}')
            split(t1, c+5); split(t2, c+6)
            L.append(f'v_mov_b32 {v(c+7)}, 0')
        return L

    def q_stage(vXA, hook=None):
        xf, st, D0, D1 = T, T+20, T+36, T+40
        for ks in range(4):
            A(f'ds_read_b128 {v(xf+4*ks,4)}, {v(vXA)} offset:{64*ks}')
        A(f'ds_read_b64 {v(xf+16,2)}, {v(T+44)} offset:256')
        for k in range(3): A(f'ds_read_b128 {v(st+4*k,4)}, {v(T+45)} offset:{ST+16*k}')
        for ks in range(4):
            A(f's_waitcnt lgkmcnt({7-ks})')
            for tt, D in enumerate((D0, D1)):
                A(f'v_mfma_f32_16x16x32_bf16 {v(D,4)}, {v(xf+4*ks,4)}, {a(aWQ+16*tt+4*ks,4)}, {v(D,4) if ks else 0}')
        A('s_waitcnt lgkmcnt(3)')
        for tt, D in enumerate((D0, D1)):
            A(f'v_mfma_f32_16x16x16_bf16 {v(D,4)}, {v(xf+16,2)}, {a(aWQH+2*tt,2)}, {v(D,4)}')
        A('s_waitcnt lgkmcnt(0)')
        stats_calc(st)
        qs = (128 ** -0.5) * math.log2(math.e)
        for D in (D0, D1):
            A(f'v_add_f32 {v(D)}, {v(D)}, {v(D+1)}\nv_fma_f32 {v(D)}, -{v(st)}, {v(D+2)}, {v(D)}')
        A(f'v_mul_f32 {v(st+2)}, {hex(f2u(qs))}, {v(st+2)}\ns_mov_b64 exec, 0xffff')
        for D in (D0, D1): A(f'v_mul_f32 {v(D)}, {v(D)}, {v(st+2)}')
        for D in (D0, D1): A(f'v_and_b32 {v(D)}, 0xfffff000, {v(D)}')
        for D in (D0, D1): A(f'v_or_b32 {v(D)}, {s(sTG12)}, {v(D)}')
        A(f'buffer_store_dword {v(D0)}, {v(vL4)}, {s(rWS,4)}, {s(sQAst)} offen')
        A(f'buffer_store_dword {v(D1)}, {v(vL4)}, {s(rWS,4)}, {s(sQAst)} offen offset:64')
        if hook:
            A('s_mov_b64 exec, -1'); hook()
        l = A.label('q1')
        if hook:
            return
        A(f's_cmp_lg_u32 {s(sFAST)}, 0\ns_cbranch_scc1 {l}\ns_add_u32 {s(sQC)}, {s(sQAst)}, {QAB}')
        A(f'buffer_store_dword {v(D0)}, {v(vL4)}, {s(rWS,4)}, {s(sQC)} offen sc1')
        A(f'buffer_store_dword {v(D1)}, {v(vL4)}, {s(rWS,4)}, {s(sQC)} offen offset:64 sc1')
        A(f'{l}:\ns_mov_b64 exec, -1')

    def q_prep(vXA):
        A(f'v_lshrrev_b32 {v(T+44)}, 6, {v(vL4)}\nv_lshlrev_b32 {v(T+44)}, 3, {v(T+44)}\nv_sub_u32 {v(T+44)}, {v(vXA)}, {v(T+44)}\nv_mov_b32 {v(T+45)}, {s(sSM)}')
    def xa_addr(dst, t):
        A(f's_lshr_b32 s5, {s(sSP)}, 1\ns_lshl_b32 s6, s5, 5\ns_add_u32 s6, s6, {SM+ONES+64}\ns_mul_i32 s5, s5, 288\ns_add_u32 s5, s5, {SM+XH}\nv_bfe_u32 {v(t+2)}, {v(vL4)}, 2, 4')
        A(f'v_mov_b32 {v(dst)}, s6\nv_mov_b32 {v(t)}, s5\nv_cmp_eq_u32 vcc, 0, {v(t+2)}\nv_add_u32 {v(t+1)}, {XL-XH}, {v(t)}\nv_lshrrev_b32 {v(t+3)}, 6, {v(vL4)}')
        A(f'v_cndmask_b32 {v(dst)}, {v(dst)}, {v(t)}, vcc\nv_cmp_eq_u32 vcc, 1, {v(t+2)}')
        nop(2)
        A(f'v_cndmask_b32 {v(dst)}, {v(dst)}, {v(t+1)}, vcc\nv_lshl_add_u32 {v(dst)}, {v(t+3)}, 4, {v(dst)}')
    def wq_addr(t):
        for tt in range(2):
            A(f's_and_b32 s5, {s(sW)}, 3\ns_lshl_b32 s5, s5, 1\ns_add_u32 s5, s5, {tt}')
            tr_addr(t+4+2*tt, 5, 3, 0, WQB, t)
            tr_addr(t+5+2*tt, 5, 2, 1, WQB + 128*256, t)
    def wq_reads(t):
        for tt in range(2):
            for ks in range(4):
                for hh in range(2):
                    A(f'ds_read_b64_tr_b16 {a(aWQ+16*tt+4*ks+2*hh,2)}, {v(t+4+2*tt)} offset:{ks*8192+hh*1024}')
            A(f'ds_read_b64_tr_b16 {a(aWQH+2*tt,2)}, {v(t+5+2*tt)}')

    vl, vj, vg = T+1, T+2, T+3
    def common_setup():
        A(f's_lshr_b32 s4, {s(sSP)}, 1\ns_lshl_b32 s5, {s(sB)}, 4\ns_add_u32 s5, s5, {s(sHKV)}\ns_and_b32 s7, {s(sW)}, 3')
        A(f's_lshl_b32 s6, s7, 2\ns_add_u32 s6, s6, {SM+FLAGS}\nv_mov_b32 {v(vFL)}, s6')
        A(f's_mov_b64 {s(pW1,2)}, s[68:69]\ns_mov_b64 {s(pB1,2)}, s[70:71]')
        A(f's_mov_b64 {s(pW2,2)}, s[72:73]\ns_mov_b64 {s(pB2,2)}, s[74:75]')
        A(f's_mul_i32 s6, {s(sX)}, {512*1152}')
        A(f's_add_u32 {s(rWO)}, s64, s6\ns_addc_u32 {s(rWO+1)}, s65, 0\ns_sub_u32 {s(rWO+2)}, 4718592, s6\ns_mov_b32 {s(rWO+3)}, 0x20000')
        A(f's_mov_b32 {s(rWS)}, s42\ns_mov_b32 {s(rWS+1)}, s43\ns_mov_b32 {s(rWS+2)}, {WS_BYTES}\ns_mov_b32 {s(rWS+3)}, 0x20000')
        A(f's_load_dword {s(sB2)}, {s(pB2,2)}, 0')
        A(f's_getreg_b32 {s(sXCC)}, hwreg(HW_REG_XCC_ID, 0, 4)')
        A(f's_lshl_b32 {s(sU)}, {s(sX)}, 4\ns_add_u32 {s(sU)}, {s(sU)}, {s(sC)}')
        A(f's_mul_i32 s6, {s(sU)}, 5\ns_lshl_b32 {s(sKD)}, {s(sU)}, 2\ns_add_u32 {s(sKD)}, {s(sKD)}, 64')
        A(f's_cmp_lt_u32 {s(sU)}, 64\ns_cselect_b32 {s(sE0)}, s6, {s(sKD)}\ns_cselect_b32 {s(sNE)}, 5, 4')
        A(f's_mov_b32 {s(sLAY)}, 0\ns_mov_b32 {s(sFAST)}, 0\ns_mov_b32 {s(sTMO)}, {P["tmo"]}\ns_mov_b32 {s(sCNT)}, 0\ns_mov_b32 {s(sSM)}, {SM}')
        A(f's_lshl_b32 {s(sQAld)}, s5, 12')
        A(f's_lshl_b32 s6, s4, 10\ns_add_u32 {s(sQAst)}, {s(sQAld)}, s6\ns_and_b32 s6, {s(sSP)}, 1\ns_lshl_b32 s6, s6, 9\ns_add_u32 {s(sQAst)}, {s(sQAst)}, s6')
        A(f's_lshl_b32 s6, s7, 7\ns_add_u32 {s(sQAst)}, {s(sQAst)}, s6')
        A(f's_lshl_b32 s5, {s(sB)}, 3\ns_add_u32 s5, s5, {s(sX)}')
        A(f's_lshl_b32 s6, s5, 13\ns_add_u32 s6, s6, {OB}\ns_lshl_b32 {s(sOBld)}, s7, 11\ns_add_u32 {s(sOBld)}, {s(sOBld)}, s6')
        A(f's_lshl_b32 {s(sOBst)}, {s(sC)}, 8\ns_add_u32 s6, s6, {s(sOBst)}\ns_lshl_b32 {s(sOBst)}, {s(sHL)}, 11\ns_add_u32 s6, s6, {s(sOBst)}')
        A(f's_lshl_b32 {s(sOBst)}, s7, 6\ns_add_u32 {s(sOBst)}, {s(sOBst)}, s6')
        A(f's_lshl_b32 s6, s5, 7\ns_add_u32 s6, s6, {LSE}\ns_lshl_b32 {s(sLSEld)}, s7, 5\ns_add_u32 {s(sLSEld)}, {s(sLSEld)}, s6')
        A(f's_lshl_b32 {s(sLSEst)}, {s(sHL)}, 6\ns_add_u32 s6, s6, {s(sLSEst)}\ns_lshl_b32 {s(sLSEst)}, {s(sSP)}, 2\ns_add_u32 {s(sLSEst)}, {s(sLSEst)}, s6')
        A(f's_mul_i32 {s(sPCld)}, s5, {8*PCS}\ns_add_u32 {s(sPCld)}, {s(sPCld)}, {PC}\ns_add_u32 {s(sPCld2)}, {s(sPCld)}, {2*PCS}')
        A(f's_and_b32 s6, {s(sC)}, 7\ns_lshl_b32 s6, s6, 5\ns_lshr_b32 {s(sKD)}, {s(sC)}, 3\ns_lshl_b32 {s(sKD)}, {s(sKD)}, 9\ns_add_u32 s6, s6, {s(sKD)}')
        A(f's_lshl_b32 {s(sKD)}, s7, 8\ns_add_u32 s6, s6, {s(sKD)}\ns_add_u32 s6, s6, 512')
        A(f's_lshl_b32 {s(sKD)}, {s(sC)}, 6\ns_lshl_b32 {s(sPCst)}, s7, 5\ns_add_u32 {s(sKD)}, {s(sKD)}, {s(sPCst)}\ns_bitcmp1_b32 s7, 1\ns_cselect_b32 s6, s6, {s(sKD)}')
        A(f's_mul_i32 {s(sKD)}, {s(sB)}, {64*PCS}\ns_add_u32 s6, s6, {s(sKD)}\ns_mul_i32 {s(sPCst)}, {s(sX)}, {PCS}\ns_add_u32 s6, s6, {s(sPCst)}\ns_add_u32 {s(sPCst)}, s6, {PC}')
        A(f's_mul_i32 {s(sXDld)}, s5, {XDS}\ns_add_u32 {s(sXDld)}, {s(sXDld)}, {XD}')
        A(f's_mul_i32 s6, {s(sB)}, {8*XDS}\ns_lshl_b32 {s(sXDst)}, {s(sE0)}, 2\ns_add_u32 {s(sXDst)}, {s(sXDst)}, s6\ns_add_u32 {s(sXDst)}, {s(sXDst)}, {XD}')
        mt, mu = lane_masks()
        A(f's_mov_b32 {s(sMHI)}, 0\ns_mov_b32 {s(sMHI+1)}, -1\ns_mov_b32 {s(sSEL)}, 0x07060302')
        A(f's_mov_b32 {s(sMT)}, {hex(mt & 0xffffffff)}\ns_mov_b32 {s(sMT+1)}, {hex(mt >> 32)}\ns_mov_b32 {s(sMU)}, {hex(mu & 0xffffffff)}\ns_mov_b32 {s(sMU+1)}, {hex(mu >> 32)}')
        A(f'v_bfe_u32 {v(T+4)}, {v(vl)}, 3, 2\nv_and_b32 {v(T+5)}, 3, {v(vl)}\nv_lshl_add_u32 {v(T+4)}, {v(T+4)}, 2, {v(T+5)}')
        A(f'v_subrev_u32 {v(T+5)}, 6, {v(T+4)}\nv_min_u32 {v(T+4)}, {v(T+4)}, {v(T+5)}\nv_min_u32 {v(T+4)}, 4, {v(T+4)}')
        A(f's_lshl_b32 s6, {s(sE0)}, 2\ns_add_u32 s6, s6, {SM+X32}\nv_lshl_add_u32 {v(vEA)}, {v(T+4)}, 2, s6')
        A(f's_lshl_b32 s6, {s(sW)}, 3\ns_add_u32 s6, s6, {SM+ST}\nv_lshrrev_b32 {v(T+4)}, 1, {v(vg)}\nv_lshl_add_u32 {v(T+4)}, {v(T+4)}, 2, s6')
        A(f'v_mov_b32 {v(T+5)}, {SM+DUMMY}\nv_and_b32 {v(T+6)}, 1, {v(vg)}\nv_cmp_eq_u32 vcc, 1, {v(T+6)}')
        A(f'v_lshrrev_b32 {v(T+7)}, 1, {v(vg)}\nv_lshl_add_u32 {v(T+7)}, {v(T+7)}, 4, {v(vj)}\nv_lshlrev_b32 {v(T+7)}, 1, {v(T+7)}')
        A(f'v_cndmask_b32 {v(vSTW)}, {v(T+5)}, {v(T+4)}, vcc')
        A(f'v_lshlrev_b32 {v(vMLR)}, 5, {v(T+6)}\nv_add_u32 {v(vMLR)}, {SM+ML}, {v(vMLR)}')
    A('s_cmp_ge_u32 s2, 256\ns_cbranch_scc1 L_end')
    stamp(0)
    A('s_load_dwordx16 s[56:71], s[0:1], 0\ns_load_dwordx4 s[72:75], s[0:1], 64\ns_load_dwordx2 s[42:43], s[0:1], 96')
    A(f'v_lshrrev_b32 {v(T)}, 6, v0\nv_and_b32 {v(vl)}, 63, v0')
    A(f'v_readfirstlane_b32 {s(sW)}, {v(T)}')
    A(f'v_lshlrev_b32 {v(vL4)}, 2, {v(vl)}\nv_lshlrev_b32 {v(vT4)}, 2, v0')
    A(f'v_and_b32 {v(vj)}, 15, {v(vl)}\nv_lshrrev_b32 {v(vg)}, 4, {v(vl)}')
    A(f's_and_b32 {s(sX)}, s2, 7\ns_lshr_b32 s4, s2, 3')
    A(f's_lshr_b32 {s(sB)}, s4, 4\ns_bfe_u32 {s(sHL)}, s4, 0x10003\ns_and_b32 {s(sSP)}, s4, 7\ns_and_b32 {s(sC)}, s4, 15')
    A(f's_lshl_b32 {s(sHKV)}, {s(sX)}, 1\ns_add_u32 {s(sHKV)}, {s(sHKV)}, {s(sHL)}')
    A(f's_cmp_ge_u32 {s(sW)}, 4\ns_cbranch_scc1 L_lentry')
    A(f's_mul_i32 s6, {s(sB)}, 1152\nv_add_u32 {v(T+16)}, s6, {v(vT4)}')
    A(f'v_and_b32 {v(T+18)}, 31, {v(vl)}\nv_lshl_add_u32 {v(T+17)}, {v(T+18)}, 2, s6\nv_mov_b32 {v(T+19)}, {EPO}\ns_waitcnt lgkmcnt(0)')
    if not P['pure'] & 32: A(f'global_load_dword {v(T+12)}, {v(T+16)}, s[56:57]\nglobal_load_dword {v(T+13)}, {v(T+17)}, s[56:57] offset:1024')
    if not P['pure'] & 16: A(f'global_load_dword {v(T+14)}, {v(T+19)}, {s(pWS,2)} sc1')
    A('s_branch L_centry\nL_lentry:')
    vKo2, vVo2, vWQo = CB+70, CB+71, T+8
    sDM, sDN = 80, 81
    A(f's_bfe_u32 s6, {s(sW)}, 0x10001\ns_lshl_b32 s6, s6, 2\nv_or_b32 {v(T+4)}, s6, {v(vg)}\nv_lshlrev_b32 {v(T+4)}, 1, {v(T+4)}')
    A(f'v_xor_b32 {v(T+4)}, {v(T+4)}, {v(vj)}\nv_lshlrev_b32 {v(T+4)}, 4, {v(T+4)}')
    A(f'v_lshl_add_u32 {v(vWQo)}, {v(vg)}, 13, {v(T+4)}\nv_lshl_add_u32 {v(vVo2)}, {v(vg)}, 8, {v(T+4)}')
    A(f's_and_b32 s7, {s(sW)}, 3\ns_lshl_b32 s6, s7, 2\nv_add_u32 {v(vKo2)}, s6, {v(vg)}\nv_xor_b32 {v(vKo2)}, {v(vKo2)}, {v(vj)}\nv_lshlrev_b32 {v(vKo2)}, 4, {v(vKo2)}')
    A(f'v_lshl_add_u32 {v(vKo2)}, {v(vg)}, 8, {v(vKo2)}')
    A(f's_lshr_b32 s4, {s(sSP)}, 1')
    A(f's_mul_i32 s6, s4, {144*8192}\ns_lshl_b32 s5, {s(sHKV)}, 9\ns_add_u32 s6, s6, s5\ns_and_b32 s5, {s(sSP)}, 1\ns_lshl_b32 s5, s5, 8\ns_add_u32 s6, s6, s5')
    A(f's_sub_u32 {s(rWQ+2)}, 4718592, s6\ns_mov_b32 {s(rWQ+3)}, 0x20000')
    A(f's_lshl_b32 s5, {s(sB)}, 4\ns_add_u32 s5, s5, {s(sHKV)}')
    A(f's_lshl_b32 s5, s5, 21\ns_lshl_b32 s4, {s(sSP)}, 16\ns_add_u32 s5, s5, s4\ns_add_u32 s5, s5, 0x180000')
    A(f's_mov_b32 {s(rK+3)}, 0x20000\ns_mov_b32 {s(rV+3)}, 0x20000\ns_mov_b32 {s(rK+2)}, 0x10000\ns_mov_b32 {s(rV+2)}, 0x10000')
    A(f's_lshl_b32 {s(sDM)}, s7, 10\ns_add_u32 s4, {s(sDM)}, {WQB}\ns_lshl_b32 s7, s7, 15')
    A(f's_mul_i32 {s(sKD)}, s2, 0x9e3779b1\ns_lshr_b32 {s(sKD)}, {s(sKD)}, 28\ns_lshl_b32 {s(sKD)}, {s(sKD)}, 12')
    A(f's_mov_b32 {s(sDN)}, {s(sDM)}\ns_add_u32 {s(sDM)}, {s(sDM)}, {s(sKD)}')
    A('s_waitcnt lgkmcnt(0)')
    A(f's_add_u32 {s(rWQ)}, s62, s6\ns_addc_u32 {s(rWQ+1)}, s63, 0')
    for i in range(9):
        A(f's_mov_b32 m0, s4\ns_add_u32 s4, s4, 4096')
        A(f'buffer_load_dwordx4 {v(vWQo)}, {s(rWQ,4)}, s7 offen nt lds\ns_add_u32 s7, s7, {4*32768}')
    A(f's_add_u32 {s(rK)}, s58, s5\ns_addc_u32 {s(rK+1)}, s59, 0\ns_add_u32 {s(rV)}, s60, s5\ns_addc_u32 {s(rV+1)}, s61, 0')
    TH = P['throttle']
    def dma(vr, srd, base):
        A(f's_add_u32 m0, {s(sDN)}, {base}')
        A(f'buffer_load_dwordx4 {v(vr)}, {s(srd,4)}, {s(sDM)} offen nt lds\ns_add_u32 {s(sDM)}, {s(sDM)}, 4096\ns_and_b32 {s(sDM)}, {s(sDM)}, 0xffff')
    seq = []
    def issue(name): seq.append(name)
    def landed(name):
        last = max(i for i, n in enumerate(seq) if n == name)
        return len(seq) - 1 - last
    def thr():
        if not P['thv']:
            big = [i for i, n in enumerate(seq) if n != 'R']
            A(f's_waitcnt vmcnt({len(seq) - big[-TH] if P["lateb"] and len(big) >= TH else TH})'); return
        idx = [i for i, n in enumerate(seq) if n in 'KV']
        n = len(seq) - idx[-TH] if len(idx) >= TH else len(seq)
        A(f's_waitcnt vmcnt({min(n, 63)})')
    for i in range(16):
        dma(vKo2, rK, KB + 4096*i); issue('K')
        if i == TH:
            common_setup()
            A(f's_and_b32 s4, {s(sW)}, 3')
            xa_addr(vXA, T+4)
            A(f'v_lshlrev_b32 {v(vQF)}, 4, {v(vg)}\nv_add_u32 {v(vQF)}, {SM}, {v(vQF)}')
            A(f'v_and_b32 {v(T+4)}, 1, {v(vj)}\nv_lshl_add_u32 {v(T+4)}, {v(vg)}, 1, {v(T+4)}\nv_mul_u32_u24 {v(T+4)}, {8*PCS}, {v(T+4)}')
            A(f'v_lshrrev_b32 {v(T+5)}, 1, {v(vj)}\nv_lshl_add_u32 {v(vPCS)}, {v(T+5)}, 2, {v(T+4)}')
        if i == TH + 1: wq_addr(T+8)
        INI = max(P['ini'], TH)
        if i == INI - 1: A(f's_waitcnt vmcnt({len(seq)})')
        elif i >= INI: thr()
        if i == INI - 1 + P['barl']: A('s_barrier'); stamp(1)
        if i == 13: wq_reads(T+8)
        if i == 15:
            A('s_waitcnt lgkmcnt(0)'); signal(F_WQ2)
    build = coef_build()
    if P['pure'] & 2 or P['xp'] & 4:
        build = ['s_nop 0']; NR = 0
    elif P['lateb']:
        NR = 0
    else:
        raw_loads(); NR = 15
    for _ in range(NR): issue('R')
    vWO = T + 8
    wo_pat = [f'v_lshrrev_b32 {v(vWO)}, 4, {v(vL4)}\nv_mul_u32_u24 {v(vWO)}, 1152, {v(vWO)}\nv_lshrrev_b32 {v(vWO+1)}, 7, {v(vL4)}',
              f'v_lshlrev_b32 {v(vWO+1)}, 3, {v(vWO+1)}\nv_xor_b32 {v(vWO+1)}, {v(vWO+1)}, {v(vL4)}\nv_and_b32 {v(vWO+1)}, 12, {v(vWO+1)}\nv_lshl_add_u32 {v(vWO)}, {v(vWO+1)}, 2, {v(vWO)}']
    order = P['order']
    assert order.count('V') == 16 and order.count('W') == 8 and order.count('X') == 1
    ksig = False
    sM0W, sOFW = sKD, sPOL
    A(f's_lshl_b32 {s(sM0W)}, s4, 12\ns_add_u32 {s(sM0W)}, {s(sM0W)}, {SP}\ns_mul_i32 {s(sOFW)}, s4, {128*1152}\ns_lshl_b32 s6, {s(sC)}, 6\ns_add_u32 {s(sOFW)}, {s(sOFW)}, s6')
    if P['wrot'] & 1: A(f's_mul_i32 s6, {s(sB)}, {64*1152}\ns_add_u32 {s(sOFW)}, {s(sOFW)}, s6')
    lastV = order.rindex('V')
    nslots = (len(order) if P['bend'] < 0 else P['bend'] + 1) - TH - 1
    v1sig = not P['vs1']
    per = -(-len(build) // nslots)
    nv = nw = 0
    wq_waited = False
    for i, op in enumerate(order):
        if op == 'V':
            if nv == 13 and not wq_waited: (P['pure'] & 1 or wait_flag(F_WQ)); wait_flag(F_WQ2); wq_waited = True
            dma(vVo2, rV, VB + 4096*nv); issue('V'); nv += 1
        else:
            if not wq_waited: (P['pure'] & 1 or wait_flag(F_WQ)); wait_flag(F_WQ2); wq_waited = True
            if op == 'X':
                A(f's_and_b32 s6, {s(sC)}, 7\ns_lshl_b32 s6, s6, 2\ns_add_u32 s6, s6, s4\ns_mul_i32 s6, s6, {16*1152}\ns_lshr_b32 s7, {s(sC)}, 3\ns_lshl_b32 s7, s7, 6\ns_add_u32 s6, s6, s7')
                A(f's_add_u32 s6, s6, 1024\ns_add_u32 m0, {s(sDN)}, {SP+16384}')
                A(f'buffer_load_dwordx4 {v(vWO)}, {s(rWO,4)}, s6 offen nt lds'); issue('A')
            else:
                if nw == 4:
                    assert ksig
                    if P['wrot'] & 1: A(f's_mul_i32 s6, {s(sB)}, {128*1152}\ns_sub_u32 {s(sOFW)}, {s(sOFW)}, s6')
                    A(f's_lshl_b32 {s(sM0W)}, s4, 12')
                    if not P['pure'] & 1: wait_flag(F_KR)
                A(f's_mov_b32 m0, {s(sM0W)}\ns_add_u32 {s(sM0W)}, {s(sM0W)}, 1024')
                A(f'buffer_load_dwordx4 {v(vWO)}, {s(rWO,4)}, {s(sOFW)} offen nt lds\ns_add_u32 {s(sOFW)}, {s(sOFW)}, {16*1152}'); issue('A' if nw < 4 else 'W'); nw += 1
        if i == 0:
            for ins in wo_pat: A(ins)
        if P['lateb'] and i == lastV + P['lateb'] - 1:
            raw_loads()
            for _ in range(15): issue('R')
        if not P['lateb'] and i > TH and (P['wfree'] < 0 or i < lastV - P['wfree']):
            if i == TH + 1 and NR: A(f's_waitcnt vmcnt({landed("R")})')
            n = per
            if any(f'v{vVo2}' in x for x in build[:n]) and i < lastV: n = 0
            for ins in build[:n]: A(ins)
            build = build[n:]
        if not ksig and landed('K') - NR >= min(TH, 4):
            A(f's_waitcnt vmcnt({landed("K")})'); signal(F_K); stamp(2); ksig = True
        if i == lastV: stamp(3)
        vs = min(lastV + P['vlag'], len(order) - 1)
        if i == vs:
            if not v1sig:
                vi = [k for k, n in enumerate(seq) if n == 'V']
                A(f's_waitcnt vmcnt({len(seq) - 1 - vi[P["vs1"] - 1]})'); signal(F_V1); v1sig = True
            A(f's_waitcnt vmcnt({landed("V")})')
            if P['vbar']: A('s_barrier')
            else: signal(F_V)
            stamp(4)
            if P['hold']: A('s_barrier')
        elif TH - 1 <= i < vs and (i < lastV - P['wfree'] or P['wfree'] < 0):
            thr()
            vi = [k for k, n in enumerate(seq) if n == 'V']
            if not v1sig and len(vi) >= P['vs1'] and len(seq) - 1 - vi[P['vs1'] - 1] >= TH:
                signal(F_V1); v1sig = True
    if P['lateb']: stamp(5); A(f's_waitcnt vmcnt({landed("R")})')
    for ins in build: A(ins)
    if not P['lateb']: stamp(5)
    A(f'v_bfe_u32 {v(T)}, {v(vL4)}, 4, 2\nv_lshrrev_b32 {v(T+2)}, 6, {v(vL4)}\nv_lshl_add_u32 {v(T)}, {v(T+2)}, 3, {v(T)}\nv_xor_b32 {v(T+2)}, s4, {v(T+2)}')
    A(f'v_and_b32 {v(T+2)}, 1, {v(T+2)}\nv_lshlrev_b32 {v(T+2)}, 5, {v(T+2)}\nv_lshl_add_u32 {v(T)}, {v(T)}, 6, {v(T+2)}')
    A(f'v_and_b32 {v(T+1)}, 12, {v(vL4)}\nv_lshl_add_u32 {v(T)}, {v(T+1)}, 1, {v(T)}\nv_add_u32 {v(T+1)}, {SP}, {v(T)}')
    def wo_read(ks, hh):
        A(f'ds_read_b64_tr_b16 {a(aWO+4*ks+2*hh,2)}, {v(T if ks & 2 else T+1)} offset:{4096*(ks >> 2)+2048*(ks & 1)+256*hh}')
    OA, OD, WA = T + 2, T + 8, T + 24
    DW = T + 36
    def o_addr():
        A(f'v_bfe_u32 {v(OD)}, {v(vL4)}, 2, 4')
        if P['wrot'] & 1: A(f's_lshl_b32 s6, {s(sB)}, 1\nv_xor_b32 {v(OD+1)}, s6, {v(OD)}')
        A(f'v_lshl_add_u32 {v(OD+1)}, {v(OD+(P["wrot"] & 1))}, 6, {v(vQF)}\nv_add_u32 {v(OD+1)}, {OL}, {v(OD+1)}')
        A(f'v_add_u32 {v(OD+2)}, {ZERO}, {v(vQF)}\nv_lshrrev_b32 {v(OD)}, 2, {v(OD)}')
        for k in range(4):
            A(f'v_cmp_eq_u32 vcc, {k}, {v(OD)}'); nop(1)
            A(f'v_cndmask_b32 {v(OA+k)}, {v(OD+2)}, {v(OD+1)}, vcc')
        A(f's_and_b32 s6, {s(sC)}, 7\ns_lshl_b32 s6, s6, 7\nv_add_u32 {v(OA+4)}, s6, {v(vQF)}')
    def wo_mfma(q_, r_):
        A(f'v_mfma_f32_16x16x32_bf16 {v(WA+4*r_,4)}, {v(OD+4*q_,4)}, {a(aWO+4*(4*q_+r_),4)}, {v(WA+4*r_,4) if q_ else 0}')
    if P['pure'] & 1:
        A('s_waitcnt vmcnt(0)'); stamp(6); A('s_waitcnt lgkmcnt(0)'); emit_stamps(A, 0); A('s_endpgm')
    A(f's_waitcnt vmcnt({landed("A")})')
    signal(F_A)
    o_addr()
    wait_flag(F_A, sleep=0)
    A(f's_cmp_gt_u32 {s(sW)}, 5\ns_cbranch_scc1 L_wx')
    for ks in range(16):
        if not ks & 2:
            for hh in range(2): wo_read(ks, hh)
    A('s_waitcnt vmcnt(0) lgkmcnt(0)')
    stamp(6)
    order2 = [ks for ks in range(16) if ks & 2]
    if P['uwo']:
        A('s_branch L_wo\nL_wm0:')
        for ks in order2:
            for hh in range(2): wo_read(ks, hh)
        A('s_waitcnt lgkmcnt(0)\ns_branch L_wm1')
    else:
        A('s_barrier')
        for k in range(4): A(f'ds_read_b128 {v(OD+4*k,4)}, {v(OA+k)}')
        for ks in order2:
            for hh in range(2): wo_read(ks, hh)
        A('s_waitcnt lgkmcnt(14)')
        for q_ in range(4):
            for r_ in range(2): wo_mfma(q_, r_)
        for n_, ks in enumerate(order2):
            A(f's_waitcnt lgkmcnt({14 - 2*n_})')
            wo_mfma(ks >> 2, ks & 3)
        A('s_branch L_wot')
    A('L_wx:')
    for kx in range(2):
        for hh in range(2):
            A(f'ds_read_b64_tr_b16 {a(aWO+4*kx+2*hh,2)}, {v(T+1)} offset:{16384+2048*kx+256*hh}')
    A('s_waitcnt vmcnt(0) lgkmcnt(0)')
    stamp(6)
    A('L_wo:\ns_barrier')
    A(f's_cmp_lt_u32 {s(sW)}, 6\ns_cbranch_scc1 L_wm')
    for kx in range(2): A(f'ds_read_b128 {v(OD+4*kx,4)}, {v(OA+4)} offset:{OL+64*kx}')
    for kx in range(2):
        A(f's_waitcnt lgkmcnt({1-kx})')
        A(f'v_mfma_f32_16x16x32_bf16 {v(DW,4)}, {v(OD+4*kx,4)}, {a(aWO+4*kx,4)}, {v(DW,4) if kx else 0}')
    nop(7)
    A('s_branch L_wos\nL_wm:')
    for k in range(4): A(f'ds_read_b128 {v(OD+4*k,4)}, {v(OA+k)}')
    if P['uwo']: A(f's_cmp_eq_u32 {s(sLAY)}, 0\ns_cbranch_scc1 L_wm0\nL_wm1:')
    for q_ in range(4):
        A(f's_waitcnt lgkmcnt({3-q_})')
        for r_ in range(4): wo_mfma(q_, r_)
    A('L_wot:')
    nop(5)
    A(f'v_add_f32 {v(WA)}, {v(WA)}, {v(WA+5)}')
    nop(2)
    A(f'v_add_f32 {v(WA+1)}, {v(WA+10)}, {v(WA+15)}\nv_add_f32 {v(WA)}, {v(WA)}, {v(WA+1)}\nv_mov_b32 {v(WA+1)}, {v(WA)}')
    nop(2)
    A(f'v_permlane32_swap_b32 {v(WA)}, {v(WA+1)}\nv_add_f32 {v(WA)}, {v(WA)}, {v(WA+1)}\nv_mov_b32 {v(WA+1)}, {v(WA)}')
    nop(2)
    A(f'v_permlane16_swap_b32 {v(WA)}, {v(WA+1)}\nv_add_f32 {v(DW)}, {v(WA)}, {v(WA+1)}')
    nop(2)
    A('L_wos:')
    A(f'v_mov_b32_dpp {v(DW+4)}, {v(DW)} quad_perm:[0,0,2,2] row_mask:0xf bank_mask:0xf')
    A(f'v_mov_b32_dpp {v(DW+5)}, {v(DW)} quad_perm:[1,1,3,3] row_mask:0xf bank_mask:0xf')
    A(f'v_cvt_pk_bf16_f32 {v(DW)}, {v(DW+4)}, {v(DW+5)}')
    A(f'buffer_store_dword {v(DW)}, {v(vPCS)}, {s(rWS,4)}, {s(sPCst)} offen sc1')
    stamp(7)

    A('L_cbar:')
    g0 = T
    xs_, xad, xad2 = T+18, T+20, T+21
    ga_, gb_ = vT4, T+23
    A(f'v_lshl_add_u32 {v(xad)}, {v(vT4)}, 1, {s(sSM)}\nv_add_u32 {v(gb_)}, {4*PCS}, {v(ga_)}')
    A(f's_cmp_lt_u32 {s(sW)}, 4\ns_cbranch_scc1 L_cy')
    A(f's_lshl_b32 s6, {s(sW)}, 6\ns_add_u32 s6, s6, {SM+2048-256}\nv_and_b32 {v(xad)}, 28, {v(vL4)}\nv_lshrrev_b32 {v(xad2)}, 7, {v(vL4)}')
    A(f'v_lshl_add_u32 {v(xad)}, {v(xad)}, 1, s6\nv_lshl_add_u32 {v(xad)}, {v(xad2)}, 2, {v(xad)}\nL_cy:')
    A1, A2, ACC = T+32, T+36, T+40
    A(f's_mov_b32 s4, 0x3f80\ns_mov_b32 s5, 0x3f800000')
    A(f'v_and_b32 {v(T+24)}, 28, {v(vL4)}\nv_lshl_add_u32 {v(T+24)}, {v(T+24)}, 1, {s(sSM)}')
    A('s_waitcnt vmcnt(0)')
    if not P['ls']: stamp(8)
    A(f'v_mov_b32 {v(A2+3)}, 0\nv_mov_b32 {v(A2+1)}, 0x3f803f80')
    A('s_barrier')
    if P['stamps'] == 1 and not P['ls']: cstamp(1)
    A('L_gc:')
    for k in range(8):
        A(f'buffer_load_dword {v(g0+k)}, {v(gb_ if k & 4 else ga_)}, {s(rWS,4)}, {s(sPCld2 if k & 2 else sPCld)} offen offset:{PCS*(k & 1)} sc1')
    A(f'v_cndmask_b32 {v(A2)}, {v(A2+3)}, {v(A2+1)}, {s(sMT,2)}\nv_cndmask_b32 {v(A2+2)}, {v(A2+3)}, {v(A2+1)}, {s(sMU,2)}')
    A(f's_cmp_gt_u32 {s(sW)}, 3\ns_cbranch_scc1 L_gx')
    A(f'ds_read_b64 {v(xs_,2)}, {v(xad)} offset:{X32}')
    A('s_waitcnt vmcnt(0) lgkmcnt(0)')
    check_sentinel(range(g0, g0+8), g0+8, 'L_gc_f')
    for k in range(8):
        A(f'v_dot2c_f32_bf16 {v(xs_)}, s4, {v(g0+k)}\nv_dot2c_f32_bf16 {v(xs_+1)}, s5, {v(g0+k)}')
    nop(3)
    partial_stats(xs_, g0, vSTW, [f'ds_write_b64 {v(xad)}, {v(xs_,2)} offset:{X32}'])
    A('s_branch L_gc_done\nL_gx:')
    A(f'ds_read_b32 {v(g0+9)}, {v(xad)} offset:{X32}\nv_mov_b32 {v(xs_)}, 0\nv_mov_b32 {v(xs_+1)}, 0')
    A(f's_mov_b32 s6, 0xff\ns_mov_b32 s7, 0xff')
    A('s_waitcnt vmcnt(0) lgkmcnt(0)')
    check_sentinel(range(g0, g0+8), g0+8, 'L_gc_f')
    for k in range(8):
        A(f'v_dot2c_f32_bf16 {v(xs_)}, s4, {v(g0+k)}\nv_dot2c_f32_bf16 {v(xs_+1)}, s5, {v(g0+k)}')
    nop(3)
    A(f'v_permlane32_swap_b32 {v(xs_)}, {v(xs_+1)}\nv_add_f32 {v(xs_)}, {v(xs_)}, {v(xs_+1)}\nv_mov_b32 {v(xs_+1)}, {v(xs_)}')
    nop(2)
    A(f'v_permlane16_swap_b32 {v(xs_)}, {v(xs_+1)}\nv_add_f32 {v(xs_)}, {v(xs_)}, {v(xs_+1)}\nv_mov_b32 {v(xs_+1)}, 0')
    nop(1)
    dpp('v_add_f32', xs_, xs_, xs_, 'row_ror:8')
    A(f'v_add_f32 {v(g0+9)}, {v(xs_)}, {v(g0+9)}\nv_cndmask_b32 {v(xs_)}, {v(xs_+1)}, {v(g0+9)}, s[6:7]')
    partial_stats(xs_, g0, vSTW, [f'ds_write_b32 {v(xad)}, {v(g0+9)} offset:{X32}'])
    A('L_gc_done:')
    A('s_waitcnt lgkmcnt(0)\ns_barrier')
    if not P['ls']: cstamp(7)
    if P['ms']: stamp(3)
    st = T
    stats_issue(st)
    A(f'ds_read_b32 {v(st+17)}, {v(vEA)}')
    if P['wb']:
        A(f's_cmp_lg_u32 {s(sW)}, 7\ns_cbranch_scc1 L_nowb')
        if P['wb'] & 1: A('s_cmp_gt_u32 s2, 7\ns_cbranch_scc1 L_nowb')
        if P['wb'] & 4: A(f's_cmp_eq_u32 {s(sLAY)}, 0\ns_cbranch_scc1 L_nowb')
        A('buffer_wbl2 sc1\nL_nowb:')
    if P['touch']:
        A(f's_cmp_lg_u32 {s(sLAY)}, 0\ns_cbranch_scc1 L_notouch\ns_cmp_gt_u32 {s(sW)}, 3\ns_cbranch_scc1 L_notouch')
        A(f'v_lshlrev_b32 {v(st+18)}, 4, {v(vL4)}\ns_add_u32 s6, {s(sQAld)}, {LQ}\ns_add_u32 s7, {s(sOBld)}, {LA}')
        A(f'v_and_b32 {v(st+19)}, 0x7c0, {v(st+18)}')
        A(f'buffer_load_dword {v(ACC+5)}, {v(st+18)}, {s(rWS,4)}, s6 offen sc1\nbuffer_load_dword {v(ACC+5)}, {v(st+19)}, {s(rWS,4)}, s7 offen sc1')
        A(f's_add_u32 s7, {s(sLSEld)}, {LA}\nv_mov_b32 {v(st+19)}, 0\nbuffer_load_dword {v(ACC+5)}, {v(st+19)}, {s(rWS,4)}, s7 offen sc1')
        A('L_notouch:')
    A('s_waitcnt lgkmcnt(0)')
    stats_calc(st, twice=True)
    h = st + 17
    A(f'v_sub_f32 {v(h)}, {v(h)}, {v(st)}\nv_mul_f32 {v(h)}, {v(h)}, {v(st+2)}')
    A(f'v_cvt_pk_bf16_f32 {v(h)}, {v(h)}, {v(h)}')
    A(f'v_cndmask_b32 {v(A1+3)}, {v(A2+3)}, {v(h)}, {s(sMT,2)}\nv_cndmask_b32 {v(A2+1)}, {v(A2+3)}, {v(h)}, {s(sMU,2)}')
    A(f'v_and_b32 {v(st)}, 0xffff0000, {v(A1+3)}\nv_mul_f32 {v(st+1)}, {v(st)}, {v(st)}\nv_mul_f32 {v(st+2)}, {v(st+1)}, {v(st)}')
    A(f'v_and_b32 {v(st+3)}, 0xffff0000, {v(st+1)}\nv_perm_b32 {v(A1+1)}, {v(st+1)}, {v(st+1)}, {s(sSEL)}\nv_and_b32 {v(st+4)}, 0xffff0000, {v(st+2)}')
    A(f'v_sub_f32 {v(st+3)}, {v(st+1)}, {v(st+3)}\nv_sub_f32 {v(st+4)}, {v(st+2)}, {v(st+4)}\nv_perm_b32 {v(A1)}, {v(st+2)}, {v(st+2)}, {s(sSEL)}')
    A(f'v_cvt_pk_bf16_f32 {v(A1+2)}, {v(st+4)}, {v(st+3)}')
    nop(2)
    def mm2(f):
        D = T + 16*(f & 1)
        A(f'v_mfma_f32_32x32x16_bf16 {v(D,16)}, {v(A1,4)}, {v(CB+8*f,4)}, 0')
        A(f'v_mfma_f32_32x32x16_bf16 {v(D,16)}, {v(A2,4)}, {v(CB+8*f+4,4)}, {v(D,16)}')
    def m1(f): A(f'v_mfma_f32_32x32x16_bf16 {v(T+16*(f & 1),16)}, {v(A1,4)}, {v(CB+8*f,4)}, 0')
    def m2(f): A(f'v_mfma_f32_32x32x16_bf16 {v(T+16*(f & 1),16)}, {v(A2,4)}, {v(CB+8*f+4,4)}, {v(T+16*(f & 1),16)}')
    if P['mprio']: A('s_setprio 0')
    if P['ms']: stamp(4)
    mm2(0)
    for f in range(9):
        D = T + 16*(f & 1)
        nx = f + 1 < 9
        if f == 0: m1(1); nop(11)
        elif nx: nop(P['mnop']); m1(f+1)
        else: nop(P['mnop'] + 1)
        for e in range(5): A(f'v_exp_f32 {v(D+e)}, {v(D+e)}')
        A(f'v_pk_add_f32 {v(D,2)}, {v(D,2)}, 1.0 op_sel_hi:[1,0]\nv_pk_add_f32 {v(D+2,2)}, {v(D+2,2)}, 1.0 op_sel_hi:[1,0]\nv_add_f32 {v(D+4)}, 1.0, {v(D+4)}')
        if nx: m2(f+1)
        for e in range(5): A(f'v_rcp_f32 {v(D+e)}, {v(D+e)}')
        if f == 0:
            A(f'v_pk_mul_f32 {v(ACC,2)}, {v(D,2)}, {v(D+6,2)}\nv_pk_mul_f32 {v(ACC+2,2)}, {v(D+2,2)}, {v(D+8,2)}\nv_mul_f32 {v(ACC+4)}, {v(D+4)}, {v(D+10)}')
        else:
            A(f'v_pk_fma_f32 {v(ACC,2)}, {v(D,2)}, {v(D+6,2)}, {v(ACC,2)}\nv_pk_fma_f32 {v(ACC+2,2)}, {v(D+2,2)}, {v(D+8,2)}, {v(ACC+2,2)}\nv_fmac_f32 {v(ACC+4)}, {v(D+4)}, {v(D+10)}')
    if P['ms']: stamp(5)
    U = T + 16
    A(f'v_mov_b32 {v(U+4)}, {v(ACC+4)}')
    A(f'v_lshrrev_b32 {v(U)}, 6, {v(vL4)}\nv_and_b32 {v(U+1)}, 1, {v(U)}')
    A(f'v_permlane32_swap_b32 {v(ACC)}, {v(ACC+1)}\nv_permlane32_swap_b32 {v(ACC+2)}, {v(ACC+3)}\nv_permlane32_swap_b32 {v(ACC+4)}, {v(U+4)}')
    A(f'v_add_f32 {v(ACC)}, {v(ACC)}, {v(ACC+1)}\nv_add_f32 {v(ACC+2)}, {v(ACC+2)}, {v(ACC+3)}\nv_add_f32 {v(ACC+4)}, {v(ACC+4)}, {v(U+4)}')
    A(f'v_mov_b32 {v(U+4)}, {v(ACC+4)}')
    A(f'v_lshrrev_b32 {v(U)}, 1, {v(U)}\nv_lshl_add_u32 {v(U)}, {v(U+1)}, 1, {v(U)}')
    A(f'v_permlane16_swap_b32 {v(ACC)}, {v(ACC+2)}\nv_permlane16_swap_b32 {v(ACC+4)}, {v(U+4)}')
    A(f'v_add_f32 {v(ACC)}, {v(ACC)}, {v(ACC+2)}\nv_add_f32 {v(ACC+4)}, {v(ACC+4)}, {v(U+4)}')
    fill = [f's_lshl_b32 s6, {s(sW)}, 2', f's_add_u32 s6, s6, {SM+RED}', f'v_lshl_add_u32 {v(U)}, {v(U)}, 5, s6', f'v_mov_b32 {v(U+1)}, s6']
    for k, fi in zip((8, 4, 2, 1), fill):
        A(fi)
        dpp('v_add_f32', ACC, ACC, ACC, f'row_ror:{k}')
        dpp('v_add_f32', ACC+4, ACC+4, ACC+4, f'row_ror:{k}')
    A(f'ds_write_b32 {v(U)}, {v(ACC)}\nds_write_b32 {v(U+1)}, {v(ACC+4)} offset:128')
    if P['ms']: stamp(6)
    TT = T
    A(f's_cmp_lg_u32 {s(sW)}, 0\ns_cbranch_scc1 L_nofin')
    A(f'v_and_b32 {v(U)}, 28, {v(vL4)}\nv_lshl_add_u32 {v(U+1)}, {v(U)}, 3, {s(sSM)}')
    A(f's_lshl_b32 s6, {s(sE0)}, 2\ns_add_u32 s6, s6, {SM+X32}\nv_add_u32 {v(U+2)}, s6, {v(U)}\nds_read_b32 {v(U+2)}, {v(U+2)}')
    A(f'v_lshrrev_b32 {v(U+3)}, 5, {v(vL4)}\nv_mul_u32_u24 {v(U+3)}, {XDS}, {v(U+3)}\nv_add_u32 {v(U+3)}, {v(U+3)}, {v(U)}')
    A(f's_mul_i32 s6, {s(sB)}, 576\ns_add_u32 s6, s6, {s(sE0)}\ns_lshl_b32 s6, s6, 1\nv_lshrrev_b32 {v(U+5)}, 1, {v(vL4)}\nv_add_u32 {v(U+5)}, s6, {v(U+5)}')
    A(f's_lshl_b32 s6, 1, {s(sNE)}\ns_sub_u32 s6, s6, 1\ns_mul_i32 s7, s6, 0x01010101\ns_lshl_b32 s5, {s(sB2)}, 16')
    A('s_waitcnt lgkmcnt(0)\ns_barrier')
    if not P['ls']: stamp(8)
    A(f'ds_read_b128 {v(TT,4)}, {v(U+1)} offset:{RED}\nds_read_b128 {v(TT+4,4)}, {v(U+1)} offset:{RED+16}')
    A(f'v_add_f32 {v(U+2)}, s5, {v(U+2)}\ns_waitcnt lgkmcnt(0)')
    A(f'v_pk_add_f32 {v(TT,2)}, {v(TT,2)}, {v(TT+2,2)}\nv_pk_add_f32 {v(TT+4,2)}, {v(TT+4,2)}, {v(TT+6,2)}\nv_pk_add_f32 {v(TT,2)}, {v(TT,2)}, {v(TT+4,2)}')
    A(f'v_add_f32 {v(TT)}, {v(TT)}, {v(U+2)}\nv_add_f32 {v(TT)}, {v(TT)}, {v(TT+1)}')
    A(f's_cmp_lg_u32 {s(sLAY)}, 0\ns_cbranch_scc1 L_out')
    A('s_mov_b32 exec_lo, s7\ns_mov_b32 exec_hi, s7')
    A(f'buffer_store_dword {v(TT)}, {v(U+3)}, {s(rWS,4)}, {s(sXDst)} offen sc1\ns_mov_b64 exec, -1\ns_branch L_dpace')
    A('L_nofin:\ns_waitcnt lgkmcnt(0)\ns_barrier')
    if not P['ls']: cstamp(8)
    A(f's_cmp_lg_u32 {s(sLAY)}, 0\ns_cbranch_scc1 L_fin')
    A('L_dpace:')
    A(f's_load_dwordx2 {s(pX,2)}, s[0:1], 80')
    amp(4)
    A(f'v_lshl_add_u32 {v(xad)}, {v(vT4)}, 1, {s(sSM)}\nv_add_u32 {v(xad2)}, {s(sSM)}, {v(vT4)}\nv_lshlrev_b32 {v(T+22)}, 1, {v(vT4)}')
    A(f'v_mov_b32 {v(xs_)}, 0\nv_mov_b32 {v(xs_+1)}, 0')
    A(f'v_mov_b32 {v(T+23)}, {SM+TAGW}\nds_read_b64 {v(T+24,2)}, {v(T+23)}\ns_waitcnt lgkmcnt(0)\nv_readfirstlane_b32 {s(sTG12)}, {v(T+24)}')
    if P['fast']: A(f'v_readfirstlane_b32 {s(sFAST)}, {v(T+25)}')
    for r in (sQAst, sQAld): A(f's_add_u32 {s(r)}, {s(r)}, {LQ}')
    for r in (sOBst, sLSEst, sOBld, sLSEld, sPCst, sPCld, sPCld2): A(f's_add_u32 {s(r)}, {s(r)}, {LA}')
    A(f's_mov_b32 {s(sLAY)}, 1')
    if P['dpace'] < 0: A('s_waitcnt vmcnt(0)')
    elif P['dpace']: A(f's_sleep {P["dpace"]}')
    q_prep(vXA)
    if P['stamps'] == 1 and not P['ls']: cstamp(9)
    A('s_barrier')
    A(f's_cmp_gt_u32 {s(sW)}, 4\ns_cbranch_scc1 L_gd_done')
    A(f's_cmp_eq_u32 {s(sW)}, 4\ns_cselect_b32 exec_hi, 0, -1')
    A('L_gd:')
    for k in range(2):
        A(f'buffer_load_dword {v(xs_+k)}, {v(T+22)}, {s(rWS,4)}, {s(sXDld)} offen offset:{4*k} sc1')
    A('s_waitcnt vmcnt(0)')
    check_sentinel([xs_, xs_+1], g0+2, 'L_gd_f')
    A('s_mov_b64 exec, -1')
    partial_stats(xs_, g0, vSTW, [
        f'v_cvt_pk_bf16_f32 {v(g0+2)}, {v(xs_)}, {v(xs_+1)}', f'ds_write_b64 {v(xad)}, {v(xs_,2)} offset:{X32}',
        f'v_lshlrev_b32 {v(g0+4)}, 16, {v(g0+2)}', f'v_and_b32 {v(g0+5)}, 0xffff0000, {v(g0+2)}',
        f'ds_write_b32 {v(xad2)}, {v(g0+2)} offset:{XH}', f'v_sub_f32 {v(g0+4)}, {v(xs_)}, {v(g0+4)}',
        f'v_sub_f32 {v(g0+5)}, {v(xs_+1)}, {v(g0+5)}', f'v_cvt_pk_bf16_f32 {v(g0+4)}, {v(g0+4)}, {v(g0+5)}',
        f'ds_write_b32 {v(xad2)}, {v(g0+4)} offset:{XL}'])
    A('s_waitcnt lgkmcnt(0)')
    A('L_gd_done:\ns_barrier')
    if P['stamps'] == 1:
        A('s_waitcnt lgkmcnt(0)')
        emit_stamps(A, 0)
        stamp(0)
    A(f's_cmp_lt_u32 {s(sW)}, 4\ns_cbranch_scc1 L_attn')
    q_stage(vXA)
    stamp(2)
    o_addr()
    A('s_barrier\ns_barrier\ns_branch L_wo')
    A('L_gc_f:')
    tmo_check(2)
    A('s_branch L_gc')
    A('L_gd_f:')
    tmo_check(3)
    A('s_branch L_gd')
    A('L_out:')
    A(f's_mov_b32 exec_lo, s6\ns_mov_b32 exec_hi, 0\nv_cvt_pk_bf16_f32 {v(TT)}, {v(TT)}, {v(TT)}')
    A(f'global_store_short {v(U+5)}, {v(TT)}, {s(pX,2)}')
    if P['amp'] >= 0:
        amp(5)
        A('s_memrealtime s[86:87]\ns_waitcnt lgkmcnt(0)\ns_sub_u32 s84, s84, s82\ns_lshl_b32 s84, s84, 2\ns_add_u32 s86, s86, s84')
        A('L_amp:\ns_memrealtime s[88:89]\ns_waitcnt lgkmcnt(0)\ns_sub_u32 s88, s88, s86\ns_cmp_lt_i32 s88, 0\ns_cbranch_scc1 L_amp')
    A('L_fin:')
    if P['stamps']:
        A('s_mov_b64 exec, -1\ns_waitcnt vmcnt(0)')
        stamp(9, True)
        A('s_waitcnt lgkmcnt(0)')
        if P['stamps'] == 1:
            emit_stamps(A, 1)
    A('L_end:\ns_endpgm')
    A('L_centry:')
    if P['pure'] & 4:
        A(f's_cmp_lg_u32 {s(sW)}, 0\ns_cbranch_scc1 L_pp')
        A(f'v_mov_b32 {v(T+4)}, 0\nv_add_u32 {v(T+5)}, {SM}, {v(vL4)}\nds_write_b32 {v(T+5)}, {v(T+4)} offset:{FLAGS}')
        A('L_pp:\ns_waitcnt lgkmcnt(0)\ns_barrier'); emit_stamps(A, 0); A('s_endpgm')
    if P['prefetch']:
        A(f's_getpc_b64 s[4:5]\nL_pc:\ns_sub_u32 s4, s4, L_pc-{NAME}_kernel\ns_subb_u32 s5, s5, 0')
        A(f's_lshr_b32 s7, s2, 3\ns_lshl_b32 s7, s7, 2\ns_add_u32 s7, s7, {s(sW)}\ns_mul_i32 s7, s7, 192')
        A(f's_mov_b64 exec, 7\nv_lshl_add_u32 {v(T+15)}, {v(vl)}, 6, s7\nv_min_u32 {v(T+15)}, L_last-{NAME}_kernel, {v(T+15)}')
        A(f'global_load_dword {v(CB+70)}, {v(T+15)}, s[4:5]\ns_mov_b64 exec, -1')
    A(f's_cmp_lg_u32 {s(sW)}, 0\ns_cbranch_scc1 L_noinit')
    A(f'v_mov_b32 {v(T+4)}, 0\nv_add_u32 {v(T+5)}, {SM}, {v(vL4)}\nds_write_b32 {v(T+5)}, {v(T+4)} offset:{FLAGS}\nds_write_b32 {v(T+5)}, {v(T+4)} offset:{ZERO}')
    A(f'v_mov_b32 {v(T+4)}, 0x3f803f80\nds_write_b32 {v(T+5)}, {v(T+4)} offset:{ONES}\nds_write_b32 {v(T+5)}, {v(T+4)} offset:{ONES+256}')
    A('L_noinit:\ns_waitcnt lgkmcnt(0)')
    common_setup()
    if P['cprio']: A(f's_setprio {P["cprio"]}')
    A(f'v_bfe_u32 {v(T+4)}, {v(vj)}, 2, 1\nv_mul_u32_u24 {v(T+4)}, {HS}, {v(T+4)}')
    A(f'v_lshl_add_u32 {v(vQF)}, {v(vg)}, 4, {v(T+4)}\nv_add_u32 {v(vQF)}, {SM}, {v(vQF)}')
    A(f's_lshl_b32 s6, {s(sW)}, 7\ns_add_u32 s6, s6, {SM+PB}')
    A(f'v_mul_u32_u24 {v(vPW)}, {HS}, {v(T+6)}\nv_add3_u32 {v(vPW)}, {v(vPW)}, {v(T+7)}, s6')
    A(f'v_lshl_add_u32 {v(vOBS)}, {v(T+6)}, 11, {v(T+7)}')
    if not P['pure'] & 8: A(f's_cmp_eq_u32 {s(sW)}, 3\ns_cbranch_scc1 L_clr')
    A(f's_waitcnt vmcnt({1 if P["prefetch"] else 0})')
    A('s_branch L_cdone')
    A('L_clr:')
    for i in range(4): A(f'v_mov_b32 {v(T+8+i)}, -1')
    A(f's_mul_i32 s6, s2, 3328\ns_add_u32 s6, s6, {AR0}\nv_lshlrev_b32 {v(T+19)}, 2, {v(vL4)}')
    A(f'buffer_store_dwordx4 {v(T+8,4)}, {v(T+19)}, {s(rWS,4)}, s6 offen sc1\nbuffer_store_dwordx4 {v(T+8,4)}, {v(T+19)}, {s(rWS,4)}, s6 offen offset:1024 sc1')
    A(f'buffer_store_dwordx4 {v(T+8,4)}, {v(T+19)}, {s(rWS,4)}, s6 offen offset:2048 sc1')
    A(f's_mov_b64 exec, 0xffff\nbuffer_store_dwordx4 {v(T+8,4)}, {v(T+19)}, {s(rWS,4)}, s6 offen offset:3072 sc1\ns_mov_b64 exec, -1')
    A(f's_waitcnt vmcnt({5 if P["prefetch"] else 4})')
    A('L_cdone:')
    A(f'v_readfirstlane_b32 {s(sTAG)}, {v(T+14)}')
    xa = T + 4
    def x_pair(src, areg):
        A(f'v_lshlrev_b32 {v(xa)}, 16, {v(src)}\nv_and_b32 {v(xa+1)}, 0xffff0000, {v(src)}\nv_mov_b32 {v(xa+2)}, 0')
        A(f'v_lshl_add_u32 {v(xa+3)}, {v(areg)}, 1, {s(sSM)}\nv_add_u32 {v(xa+4)}, {s(sSM)}, {v(areg)}')
        A(f'ds_write_b64 {v(xa+3)}, {v(xa,2)} offset:{X32}\nds_write_b32 {v(xa+4)}, {v(src)} offset:{XH}\nds_write_b32 {v(xa+4)}, {v(xa+2)} offset:{XL}')
    x_pair(T+12, vT4)
    partial_stats(xa, xa+6, vSTW)
    A(f's_mul_i32 {s(sTAG)}, {s(sTAG)}, 0x9e3779b1\ns_add_u32 {s(sTAG)}, {s(sTAG)}, 0x7f4a7c15\ns_and_b32 {s(sTAG)}, {s(sTAG)}, 0x1fffffff\ns_and_b32 {s(sTG12)}, {s(sTAG)}, 0xfff')
    A(f's_cmp_lg_u32 {s(sW)}, 0\ns_cbranch_scc1 L_noextra')
    A(f'v_lshlrev_b32 {v(T+18)}, 2, {v(T+18)}\nv_add_u32 {v(T+18)}, 1024, {v(T+18)}')
    x_pair(T+13, T+18)
    A(f'v_cndmask_b32 {v(xa)}, {v(xa)}, {v(xa+2)}, {s(sMHI,2)}\nv_cndmask_b32 {v(xa+1)}, {v(xa+1)}, {v(xa+2)}, {s(sMHI,2)}')
    A(f'v_add_u32 {v(T+18)}, 32, {v(vSTW)}\nv_min_u32 {v(T+18)}, {SM+DUMMY}, {v(T+18)}')
    partial_stats(xa, xa+6, T+18)
    A(f'v_mov_b32 {v(xa)}, {s(sTG12)}\nv_mov_b32 {v(xa+1)}, {SM+TAGW}\nds_write_b32 {v(xa+1)}, {v(xa)}')
    A('L_noextra:')
    A('s_waitcnt lgkmcnt(0)')
    amp(1)
    xa_addr(CB, T)
    wq_addr(T)
    A('s_barrier')
    if P['pure'] & 1:
        A('s_waitcnt lgkmcnt(0)'); emit_stamps(A, 0); A('s_endpgm')
    wq_reads(T)
    A(f's_cmp_lg_u32 {s(sW)}, 3\ns_cbranch_scc1 L_noarr')
    A(f's_lshl_b32 s6, {s(sXCC)}, 29\ns_or_b32 s6, s6, {s(sTAG)}\nv_mov_b32 {v(T+8)}, s6')
    A(f's_lshl_b32 s6, {s(sX)}, 7\ns_lshr_b32 s7, s2, 3\ns_lshl_b32 s7, s7, 2\ns_add_u32 s6, s6, s7\ns_add_u32 s6, s6, {ARR}\nv_mov_b32 {v(T+9)}, s6')
    A(f's_waitcnt vmcnt(0)\ns_mov_b64 exec, 1\nbuffer_store_dword {v(T+8)}, {v(T+9)}, {s(rWS,4)}, 0 offen sc1\ns_mov_b64 exec, -1')
    A('L_noarr:\ns_waitcnt lgkmcnt(0)')
    signal(F_WQ)
    q_prep(CB)
    q_stage(CB, (lambda: None) if P['xp'] & 2 else raw_loads)
    stamp(9)
    ga, gc, pa, qw = T+8, T+12, T+36, T+35
    def ga_issue():
        for kq in range(4):
            A(f'buffer_load_dword {v(ga+kq)}, {v(vT4)}, {s(rWS,4)}, {s(sQC)} offen offset:{1024*kq} sc1')
    def gchk_issue():
        A(f'v_lshlrev_b32 {v(gc+4)}, 2, {v(vL4)}\nv_add_u32 {v(gc+4)}, {ARR}, {v(gc+4)}')
        A(f'buffer_load_dwordx4 {v(gc,4)}, {v(gc+4)}, {s(rWS,4)}, 0 offen sc1')
    def gchk_test(lfail):
        for k in range(4): A(f'v_xor_b32 {v(gc+k)}, {s(sTAG)}, {v(gc+k)}')
        A(f'v_or3_b32 {v(gc+5)}, {v(gc)}, {v(gc+1)}, {v(gc+2)}\nv_or_b32 {v(gc+5)}, {v(gc+5)}, {v(gc+3)}\nv_and_b32 {v(gc+6)}, 0x1fffffff, {v(gc+5)}')
        A(f'v_cmp_ne_u32 vcc, 0, {v(gc+6)}\ns_cbranch_vccnz {lfail}')
        if P['fast']:
            A(f's_lshl_b32 s6, {s(sXCC)}, 29')
            for k in range(4): A(f'v_xor_b32 {v(gc+k)}, s6, {v(gc+k)}')
            A(f'v_or3_b32 {v(gc+5)}, {v(gc)}, {v(gc+1)}, {v(gc+2)}\nv_or_b32 {v(gc+5)}, {v(gc+5)}, {v(gc+3)}')
            A(f'v_cmp_ne_u32 vcc, 0, {v(gc+5)}\ns_lshl_b32 s6, {s(sX)}, 3\ns_lshr_b64 vcc, vcc, s6')
            A(f's_and_b32 s6, vcc_lo, 0xff\ns_cselect_b32 {s(sFAST)}, 0, 1')
            A(f'v_mov_b32 {v(gc)}, {s(sFAST)}\nv_mov_b32 {v(gc+1)}, {SM+TAGW+4}\nds_write_b32 {v(gc+1)}, {v(gc)}')
        A(f's_mov_b32 {s(sGOK)}, 1')
    def q_copy():
        A(f's_add_u32 s7, {s(sQAst)}, {QAB}\ns_mov_b64 exec, 0xffff')
        A(f'buffer_load_dword {v(gc+7)}, {v(vL4)}, {s(rWS,4)}, {s(sQAst)} offen sc1\nbuffer_load_dword {v(gc+8)}, {v(vL4)}, {s(rWS,4)}, {s(sQAst)} offen offset:64 sc1')
        A(f's_waitcnt vmcnt(0)\nbuffer_store_dword {v(gc+7)}, {v(vL4)}, {s(rWS,4)}, s7 offen sc1\nbuffer_store_dword {v(gc+8)}, {v(vL4)}, {s(rWS,4)}, s7 offen offset:64 sc1')
        A('s_mov_b64 exec, -1')
    def attn_addr():
        A(f'v_bfe_u32 {v(T+6)}, {v(vL4)}, 2, 2\nv_lshrrev_b32 {v(T+7)}, 6, {v(vL4)}\nv_lshlrev_b32 {v(T+7)}, 4, {v(T+7)}\nv_add_u32 {v(T+7)}, {SM+ZERO}, {v(T+7)}')
        for k in range(4):
            A(f'v_cmp_eq_u32 vcc, {k}, {v(T+6)}\nv_add_u32 {v(T+5)}, {PB+128*k}, {v(vQF)}')
            nop(1)
            A(f'v_cndmask_b32 {v(pa+k)}, {v(T+7)}, {v(T+5)}, vcc')
        A(f'v_lshrrev_b32 {v(qw)}, 7, v0\nv_mul_u32_u24 {v(qw)}, {HS-256}, {v(qw)}\nv_lshl_add_u32 {v(qw)}, v0, 1, {v(qw)}\nv_add_u32 {v(qw)}, {SM+QB}, {v(qw)}')
    A(f's_mov_b32 {s(sQC)}, {s(sQAld)}\ns_mov_b32 {s(sKD)}, 0\ns_mov_b32 {s(sPOL)}, {P["npa"]}\ns_mov_b32 {s(sGOK)}, 0')
    A('s_waitcnt vmcnt(0)')
    if P['ega']: ga_issue()
    if P['egchk']: gchk_issue()
    for ins in coef_build(): A(ins)
    attn_addr()
    stamp(1)
    if not P['ega']: ga_issue()
    A('s_waitcnt vmcnt(0)')
    if P['egchk']: gchk_test('L_ga_w')
    A('s_branch L_ga_w')

    A('L_attn:')
    A(f's_mov_b32 {s(sQC)}, {s(sQAld)}\ns_mov_b32 {s(sKD)}, 1\ns_mov_b32 {s(sPOL)}, -1')
    A(f's_cmp_lg_u32 {s(sFAST)}, 0\ns_cbranch_scc1 L_ga0\ns_add_u32 {s(sQC)}, {s(sQC)}, {QAB}')
    A('L_ga0:')
    attn_addr()
    A('L_ga:')
    ga_issue()
    A('s_waitcnt vmcnt(0)')
    A('L_ga_w:')
    for k in range(4): A(f'v_xor_b32 {v(ga+k)}, {s(sTG12)}, {v(ga+k)}')
    A(f'v_or3_b32 {v(T+4)}, {v(ga)}, {v(ga+1)}, {v(ga+2)}\nv_or_b32 {v(T+4)}, {v(T+4)}, {v(ga+3)}\nv_and_b32 {v(T+4)}, 0xfff, {v(T+4)}')
    A(f'v_add_f32 {v(T)}, {v(ga)}, {v(ga+1)}\nv_add_f32 {v(T+2)}, {v(ga+2)}, {v(ga+3)}')
    A(f'v_cmp_ne_u32 vcc, 0, {v(T+4)}\nv_add_f32 {v(T)}, {v(T)}, {v(T+2)}\ns_cbranch_vccnz L_ga_f')
    A(f'v_cvt_pk_bf16_f32 {v(T)}, {v(T)}, {v(T)}\nds_write_b16 {v(qw)}, {v(T)}\ns_waitcnt lgkmcnt(0)')
    stamp(3)
    A(f's_cmp_lg_u32 {s(sLAY)}, 0\ns_cbranch_scc1 L_qbar')
    signal(F_Q)
    A(f's_cmp_lg_u32 {s(sKD)}, 0\ns_cbranch_scc1 L_kdone')
    wait_flag(F_K)
    A(f's_mov_b32 {s(sKD)}, 2')
    A('L_kread:')
    kt = T + 8
    A(f'v_bfe_u32 {v(kt)}, {v(vL4)}, 2, 4\nv_lshrrev_b32 {v(kt+1)}, 6, {v(vL4)}\ns_lshl_b32 s6, {s(sW)}, 14')
    A(f'v_lshl_add_u32 {v(kt+2)}, {v(kt)}, 8, s6')
    for ks in range(4):
        A(f'v_add_u32 {v(kt+3)}, {4*ks}, {v(kt+1)}\nv_xor_b32 {v(kt+3)}, {v(kt+3)}, {v(kt)}\nv_lshl_add_u32 {v(kt+4+ks)}, {v(kt+3)}, 4, {v(kt+2)}')
        for tt in range(4):
            A(f'ds_read_b128 {a(aK+16*tt+4*ks,4)}, {v(kt+4+ks)} offset:{KB+4096*tt}')
    A('s_waitcnt lgkmcnt(0)')
    signal(F_KR)
    A(f's_cmp_eq_u32 {s(sKD)}, 1\ns_cbranch_scc1 L_ga')
    A('L_kdone:')
    amp(6)
    A(f's_mov_b32 {s(sPOL)}, 48\nv_mov_b32 {v(FT+5)}, {SM+FLAGS}\nL_fq:')
    flag_test(F_Q)
    A('s_cbranch_vccnz L_qk')
    tmo_check()
    A(f's_sub_u32 {s(sPOL)}, {s(sPOL)}, 1\ns_cmp_lg_u32 {s(sPOL)}, 0\ns_cbranch_scc1 L_fq')
    q_copy()
    A('s_branch L_fq')
    A('L_ga_f:')
    tmo_check(0)
    A(f's_sub_u32 {s(sPOL)}, {s(sPOL)}, 1\ns_cmp_lg_u32 {s(sPOL)}, 0\ns_cbranch_scc1 L_ga_f2\ns_add_u32 {s(sQC)}, {s(sQC)}, {QAB}')
    q_copy()
    A(f'L_ga_f2:\ns_cmp_lg_u32 {s(sKD)}, 0\ns_cbranch_scc1 L_ga')
    A(f'v_mov_b32 {v(FT+5)}, {SM+FLAGS}')
    flag_test(F_K)
    A(f's_cbranch_vccz L_ga\ns_mov_b32 {s(sKD)}, 1\ns_branch L_kread')
    A('L_qbar:\ns_barrier')
    A('L_qk:')
    qf, DS = T, T+16
    for ks in range(4):
        A(f'ds_read_b128 {v(qf+4*ks,4)}, {v(vQF)} offset:{QB+64*ks}')
    for ks in range(4):
        A(f's_waitcnt lgkmcnt({3-ks})')
        for tt in range(4):
            A(f'v_mfma_f32_16x16x32_bf16 {v(DS+4*tt,4)}, {v(qf+4*ks,4)}, {a(aK+16*tt+4*ks,4)}, {v(DS+4*tt,4) if ks else 0}')
    sa, sb, mx, t0 = T+32, T+33, T+34, T+35
    A(f's_lshl_b32 s6, {s(sW)}, 3\nv_add_u32 {v(T)}, s6, {v(vMLR)}')
    nop(4)
    A(f'v_cndmask_b32 {v(sa)}, {v(DS)}, {v(DS+4)}, {s(sMHI,2)}')
    nop(2)
    A(f'v_cndmask_b32 {v(sb)}, {v(DS+8)}, {v(DS+12)}, {s(sMHI,2)}')
    A(f'v_max_f32 {v(mx)}, {v(sa)}, {v(sb)}')
    for k in (8, 4, 2, 1):
        nop(2); dpp('v_max_f32', mx, mx, mx, f'row_ror:{k}')
    A(f'v_mov_b32 {v(t0)}, {v(mx)}')
    nop(2)
    A(f'v_permlane32_swap_b32 {v(mx)}, {v(t0)}\nv_max_f32 {v(mx)}, {v(mx)}, {v(t0)}')
    A(f'v_sub_f32 {v(sa)}, {v(sa)}, {v(mx)}\nv_sub_f32 {v(sb)}, {v(sb)}, {v(mx)}\nv_exp_f32 {v(sa)}, {v(sa)}\nv_exp_f32 {v(sb)}, {v(sb)}')
    nop(1)
    A(f'v_cvt_pk_bf16_f32 {v(sa)}, {v(sa)}, {v(sb)}')
    A(f'v_lshlrev_b32 {v(sb)}, 16, {v(sa)}\nv_and_b32 {v(t0)}, 0xffff0000, {v(sa)}\nv_add_f32 {v(t0)}, {v(t0)}, {v(sb)}')
    A(f'ds_write_b16 {v(vPW)}, {v(sa)}\nds_write_b16_d16_hi {v(vPW)}, {v(sa)} offset:64')
    for k in (8, 4, 2, 1):
        dpp('v_add_f32', t0, t0, t0, f'row_ror:{k}')
        if k > 1: nop(2)
    A(f'v_mov_b32 {v(sb)}, {v(t0)}')
    nop(2)
    A(f'v_permlane32_swap_b32 {v(t0)}, {v(sb)}\nv_add_f32 {v(t0)}, {v(t0)}, {v(sb)}')
    A(f'ds_write_b64 {v(T)}, {v(mx,2)}\ns_waitcnt lgkmcnt(0)')
    stamp(4)
    A(f's_cmp_lg_u32 {s(sLAY)}, 0\ns_cbranch_scc1 L_pbar')
    signal(F_P)
    A(f's_cmp_lg_u32 {s(sGOK)}, 0\ns_cbranch_scc1 L_gchk_n')
    A('L_gchk:')
    gchk_issue()
    A('L_gchk_n:')
    for tt in range(2):
        A(f's_lshl_b32 s6, {s(sW)}, 1\ns_add_u32 s6, s6, {tt}')
        tr_addr(T+4+tt, 6, 3, 0, VB, T)
    vt = T + 4
    def v_reads(ks):
        return [f'ds_read_b64_tr_b16 {a(aV+32*tt+4*ks+2*hh,2)}, {v(vt+tt)} offset:{ks*8192+hh*1024}' for tt in range(2) for hh in range(2)]
    pf, DO, ml = T, T+20, T+28
    NB = 5
    M_, L_ = T+40, T+41
    def ml_chain():
        chain = [f'v_max3_f32 {v(M_)}, {v(ml)}, {v(ml+2)}, {v(ml+4)}', f'v_max_f32 {v(M_)}, {v(M_)}, {v(ml+6)}']
        chain += [f'v_sub_f32 {v(ml+2*k)}, {v(ml+2*k)}, {v(M_)}' for k in range(4)]
        chain += [f'v_exp_f32 {v(ml+2*k)}, {v(ml+2*k)}' for k in range(4)]
        chain += [f'v_mul_f32 {v(L_)}, {v(ml)}, {v(ml+1)}'] + [f'v_fmac_f32 {v(L_)}, {v(ml+2*k)}, {v(ml+2*k+1)}' for k in range(1, 4)]
        return chain + [f'v_rcp_f32 {v(ml+1)}, {v(L_)}', f'v_log_f32 {v(L_)}, {v(L_)}']
    def pv_mfma(ks, r, tt):
        D = DO + 4*tt
        A(f'v_mfma_f32_16x16x32_bf16 {v(D,4)}, {v(r,4)}, {a(aV+32*tt+4*ks,4)}, {v(D,4) if ks else 0}')
    if not P['vs1']:
        wait_flag(F_V)
        if P['ls']: stamp(2)
        for ks in range(8):
            for ins in v_reads(ks): A(ins)
    A(f's_cmp_lg_u32 {s(sGOK)}, 0\ns_cbranch_scc1 L_gchk_d\ns_waitcnt vmcnt(0)')
    gchk_test('L_gchk_f')
    A('L_gchk_d:')
    A(f's_cmp_lg_u32 {s(sFAST)}, 0\ns_cbranch_scc1 L_nocopy')
    q_copy()
    A('L_nocopy:')
    if P['touch0']:
        A(f'v_lshlrev_b32 {v(T+16)}, 4, {v(vL4)}\nv_and_b32 {v(T+16)}, 0x7c0, {v(T+16)}\nv_mov_b32 {v(T+17)}, 0')
        A(f'buffer_load_dword {v(T+16)}, {v(T+16)}, {s(rWS,4)}, {s(sOBld)} offen sc1\nbuffer_load_dword {v(T+17)}, {v(T+17)}, {s(rWS,4)}, {s(sLSEld)} offen sc1')
    if P['ls']: stamp(7)
    wait_flag(F_P, sleep=0)
    if P['ls']: stamp(8)
    if not P['vs1']:
        A('s_branch L_pv')
    elif P['upv']:
        assert P['vbar']
        n1 = P['vs1'] // 2
        wait_flag(F_V1)
        vt = T + 42
        A(f'v_mov_b32 {v(vt)}, {v(T+4)}\nv_mov_b32 {v(vt+1)}, {v(T+5)}')
        for ks in range(n1):
            for ins in v_reads(ks): A(ins)
        A('s_branch L_pv\nL_pv0:\ns_barrier')
        if P['ls']: stamp(2)
        for ks in range(n1, 8):
            for ins in v_reads(ks): A(ins)
        A('s_waitcnt lgkmcnt(0)\ns_branch L_pv1')
    else:
        n1 = P['vs1'] // 2
        A(f'v_mov_b32 {v(T+18)}, {v(T+4)}\nv_mov_b32 {v(T+19)}, {v(T+5)}')
        vt = T + 18
        wait_flag(F_V1)
        NB0 = 4
        q = []
        def rd(ins, key): A(ins); q.append(key)
        def need(keys):
            last = max(i_ for i_, k_ in enumerate(q) if k_ in keys)
            A(f's_waitcnt lgkmcnt({min(14, len(q) - 1 - last)})')
        def p_read(ks): rd(f'ds_read_b128 {v(pf+4*(ks % NB0),4)}, {v(pa+(ks >> 1))} offset:{64*(ks & 1)}', ('P', ks))
        rd(f'ds_read_b128 {v(ml,4)}, {v(vMLR)}', 'ml'); rd(f'ds_read_b128 {v(ml+4,4)}, {v(vMLR)} offset:16', 'ml')
        for ks in range(n1):
            if ks < NB0: p_read(ks)
            for ins in v_reads(ks): rd(ins, ('V', ks))
        for ks in range(n1):
            need([('P', ks), ('V', ks)])
            for tt in range(2): pv_mfma(ks, pf+4*(ks % NB0), tt)
            if ks + NB0 < 8: p_read(ks + NB0)
        if P['vbar']: A('s_waitcnt lgkmcnt(0)')
        chain = ml_chain()
        if P['vbar']:
            for ins in chain: A(ins)
            chain = []
            A('s_barrier')
        else:
            wait_flag(F_V, sleep=P['vsl'])
        if P['ls']: stamp(2)
        q = []
        for ks in range(n1, 8):
            for ins in v_reads(ks): rd(ins, ('V', ks))
        for ins in chain: A(ins)
        for ks in range(n1, 8):
            need([('V', ks)])
            for tt in range(2): pv_mfma(ks, pf+4*(ks % NB0), tt)
        A('s_branch L_pvt')
    A('L_gchk_f:')
    tmo_check()
    A('s_branch L_gchk')
    A('L_pbar:\ns_barrier')
    A('L_pv:')
    A(f'ds_read_b128 {v(ml,4)}, {v(vMLR)}\nds_read_b128 {v(ml+4,4)}, {v(vMLR)} offset:16')
    for ks in range(NB):
        A(f'ds_read_b128 {v(pf+4*ks,4)}, {v(pa+(ks >> 1))} offset:{64*(ks & 1)}')
    chain = ml_chain()
    for ks in range(8):
        r = pf + 4*(ks % NB)
        if P['vs1'] and P['upv'] and ks == P['vs1'] // 2:
            A(f's_cmp_eq_u32 {s(sLAY)}, 0\ns_cbranch_scc1 L_pv0\nL_pv1:')
        A(f's_waitcnt lgkmcnt({min(NB-1, 7-ks)})')
        for tt in range(2):
            D = DO + 4*tt
            A(f'v_mfma_f32_16x16x32_bf16 {v(D,4)}, {v(r,4)}, {a(aV+32*tt+4*ks,4)}, {v(D,4) if ks else 0}')
            A(chain.pop(0))
        if ks + NB < 8:
            A(f'ds_read_b128 {v(r,4)}, {v(pa+((ks+NB) >> 1))} offset:{64*((ks+NB) & 1)}')
    assert not chain
    A('L_pvt:')
    A(f'v_lshrrev_b32 {v(T)}, 1, {v(vL4)}\nv_add_f32 {v(L_)}, {v(L_)}, {v(M_)}')
    nop(5)
    for k in range(4): A(f'v_cndmask_b32 {v(DO+k)}, {v(DO+k)}, {v(DO+4+k)}, {s(sMHI,2)}')
    A(f'v_mul_f32 {v(DO)}, {v(DO)}, {v(ml)}')
    for k in range(1, 4): A(f'v_fmac_f32 {v(DO)}, {v(DO+k)}, {v(ml+2*k)}')
    A(f'v_mul_f32 {v(DO)}, {v(DO)}, {v(ml+1)}')
    nop(2)
    A(f'v_mov_b32_dpp {v(DO+1)}, {v(DO)} quad_perm:[1,0,3,2] row_mask:0xf bank_mask:0xf')
    A(f's_mov_b32 exec_lo, 0x55555555\ns_mov_b32 exec_hi, 0x55555555')
    A(f'v_cvt_pk_bf16_f32 {v(DO)}, {v(DO)}, {v(DO+1)}')
    def o_st(m):
        A(f'buffer_store_dword {v(DO)}, {v(vOBS)}, {s(rWS,4)}, {s(sOBst)} offen{m}')
        l = A.label('nolse')
        A(f's_cmp_lg_u32 {s(sW)}, 0\ns_cbranch_scc1 {l}\ns_mov_b64 exec, 0x10001')
        A(f'buffer_store_dword {v(L_)}, {v(T)}, {s(rWS,4)}, {s(sLSEst)} offen{m}')
        A(f'{l}:\ns_mov_b64 exec, -1')
    A(f's_cmp_eq_u32 {s(sFAST)}, 0\ns_cbranch_scc1 L_o_slow')
    o_st('')
    A('L_o_done:')
    stamp(5)
    A(f'v_and_b32 {v(T+9)}, 28, {v(vL4)}\nv_add_u32 {v(T+13)}, {s(sSM)}, {v(vT4)}')
    A('L_gb:')
    for k in range(8):
        A(f'buffer_load_dword {v(T+k)}, {v(vL4)}, {s(rWS,4)}, {s(sOBld)} offen offset:{256*k} sc1')
    A(f'buffer_load_dword {v(T+8)}, {v(T+9)}, {s(rWS,4)}, {s(sLSEld)} offen sc1')
    if P['hold']: A(f's_cmp_lg_u32 {s(sGOK)}, 1\ns_cbranch_scc1 L_gb_w\ns_mov_b32 {s(sGOK)}, 2\ns_barrier\nL_gb_w:')
    A('s_waitcnt vmcnt(0)')
    mm, ff = T+10, T+8
    check_sentinel(range(T, T+9), T+11, 'L_gb_f')
    dpp('v_max_f32', mm, ff, ff, 'row_ror:4')
    unp = [f'v_lshlrev_b32 {v(T+16+k)}, 16, {v(T+k)}\nv_and_b32 {v(T+k)}, 0xffff0000, {v(T+k)}' for k in range(8)]
    A(unp[0]); dpp('v_max_f32', mm, mm, mm, 'row_ror:2')
    A(unp[1]); dpp('v_max_f32', mm, mm, mm, 'row_ror:1')
    A(f'v_sub_f32 {v(ff)}, {v(ff)}, {v(mm)}\nv_exp_f32 {v(ff)}, {v(ff)}')
    A(unp[2]); dpp('v_add_f32', mm, ff, ff, 'row_ror:4')
    A(unp[3]); dpp('v_add_f32', mm, mm, mm, 'row_ror:2')
    A(unp[4]); dpp('v_add_f32', mm, mm, mm, 'row_ror:1')
    A(f'v_rcp_f32 {v(mm)}, {v(mm)}')
    A(unp[5])
    A(f'v_mul_f32 {v(ff)}, {v(ff)}, {v(mm)}')
    A(unp[6]); A(unp[7])
    lo, hi = T+11, T+12
    for k in range(8):
        op = 'v_mul_f32' if k == 0 else 'v_fmac_f32'
        dpp(op, lo, ff, T+16+k, f'row_newbcast:{k}')
        dpp(op, hi, ff, T+k, f'row_newbcast:{k}')
    A(f'v_cvt_pk_bf16_f32 {v(lo)}, {v(lo)}, {v(hi)}\nds_write_b32 {v(T+13)}, {v(lo)} offset:{OL}')
    A('s_waitcnt lgkmcnt(0)\ns_barrier')
    stamp(6)
    if P['amp'] == 3: A(f's_cmp_lg_u32 {s(sLAY)}, 0\ns_cbranch_scc1 L_amp3'); amp(3); A('L_amp3:')
    A(f's_or_b32 s6, s2, {s(sW)}\ns_or_b32 s6, s6, {s(sLAY)}\ns_cmp_lg_u32 s6, 0\ns_cbranch_scc1 L_cbar')
    A(f'v_mov_b32 {v(T)}, {s(sTAG)}\nv_mov_b32 {v(T+1)}, {EPO}\ns_mov_b64 exec, 1')
    A(f'buffer_store_dword {v(T)}, {v(T+1)}, {s(rWS,4)}, 0 offen sc1\ns_mov_b64 exec, -1\ns_branch L_cbar')
    A('L_o_slow:')
    o_st(' sc1')
    A('s_waitcnt vmcnt(0)\ns_branch L_o_done')
    A('L_gb_f:')
    tmo_check(1)
    A('s_branch L_gb')
    A('L_last:\ns_endpgm')
    hdr = open('cdna_kernels/' + NAME + '.s.ref').read().split('; Override launch')[0].rstrip('\n').split('\n')
    return wrap(A.text(), hdr, 256, 512, LDS_BYTES, 256, 128)


def emit_stamps(A, layer):
    A(f's_lshl_b32 s6, s2, 3\ns_add_u32 s6, s6, {s(sW)}\ns_lshl_b32 s6, s6, 7\ns_add_u32 s6, s6, {STAMP + 64*layer}')
    A(f'v_mov_b32 {v(T)}, s6')
    for i in range(10):
        A(f'v_mov_b32 {v(T+1)}, {s(sSTP+2*i)}\nglobal_store_dword {v(T)}, {v(T+1)}, {s(pWS,2)} offset:{4*i}')
    A(f'v_mov_b32 {v(T+1)}, {s(sCNT)}\nglobal_store_dword {v(T)}, {v(T+1)}, {s(pWS,2)} offset:40\ns_mov_b32 {s(sCNT)}, 0')


if __name__ == '__main__':
    out = sys.argv[1]
    kw = {}
    for x in sys.argv[2:]:
        k, val = x.split('='); kw[k] = val if k == 'order' else int(val, 0)
    open(out, 'w').write(gen(**kw))
```

```python
import sys, math, struct
from asmlib import *

def f2u(x):
    return struct.unpack('<I', struct.pack('<f', x))[0]

DEF = dict(stamps=0, throttle=5, fast=1, tmo=1 << 22, prefetch=1, cprio=3, npa=6, touch=1, xp=0, mnop=0, mprio=1, ms=0, amp=-1, order='V'*16+'X'+'W'*8, vlag=6, wfree=-1, ls=0, cpace=-1, dpace=-1, rot=1, ebar=1, egchk=0, ega=1, thv=0, wo2=1, pure=0, barl=0, lateb=0, wb=0, vs1=12, vbar=1, bend=12, vsl=0, nwo=1, wbar=1, ini=0, wrot=0, lpoll=0, touch0=0, upv=1, uwo=0, hold=0, rawl=0, rawc=0, bst=1, diag=0, d2=0, shs=0, spl=3)

LQ   = 0x20000
QA   = 0x0
QAB  = 0x40000
ARR  = 0x80000
EPO  = 0x81000
AR0  = 0x100000
LA   = 0x61000
OB   = AR0
PC   = AR0 + 0x20000
LSE  = AR0 + 0x60000
XD   = AR0 + 2*LA
XDS  = 2560
PCS  = 2048
WS_BYTES = 0x200000
STAMP = 0x300000
assert XD + 16*XDS <= AR0 + 256*3328
KB, VB, SP = 0, 65536, 131072
SM = 155648
WQB = SM - 36864
X32, QB, XH, PB, ML, ST, XL, RED, ONES, ZERO, FLAGS = 0, 2304, 3328, 4480, 5568, 5632, 5760, 6912, 7168, 7680, 7808
HS = 576
TAGW = FLAGS + 240
DUMMY = ST + 64
OL = QB
F_A, F_WQ, F_Q, F_K, F_KR, F_P, F_V, F_WO, F_V1, F_WQ2 = range(10)
LDS_BYTES = 163840
sW = 3
rK, rV, rWQ, rWO, rWS = 8, 12, 16, 20, 24
pX, pW1, pB1, pW2, pB2 = 28, 30, 32, 34, 36
sSEL, sCNT, sTG12, sTAG = 38, 39, 40, 41
pWS = 42
sX, sB, sHL, sSP, sHKV, sC, sU, sE0, sNE, sLAY, sFAST, sTMO = range(44, 56)
sQAst, sQAld, sOBst, sLSEst, sOBld, sLSEld, sPCst, sPCld, sPCld2, sXDld = range(56, 66)
sXDst, sB2 = 66, 67
sMHI, sMT, sMU = 68, 70, 72
sSM, sXCC = 74, 75
sKD, sPOL, sQC, sGOK = 76, 77, 78, 79
sSTP = 82
vTID, vL4, vT4, vR3, vQF, vR5, vMLR, vFL, vEA, vSTW = range(10)
vXA = vPW = vR3
vPCS = vOBS = vR5
CB = 10
T = 82
aK, aV = 0, 64
aWO, aWQ, aWQH, aSP = 0, 64, 96, 100

K1 = -2.0 * math.sqrt(2.0/math.pi) * math.log2(math.e)
K2 = K1 * 0.044715


def lane_masks():
    mt = mu = 0
    for l in range(64):
        i = l & 31
        if ((l >> 2) & 1) != (l >> 5):
            continue
        r = 4*(i >> 3) + (i & 3)
        if r <= 4: mt |= 1 << l
        if 6 <= r <= 10: mu |= 1 << l
    return mt, mu


def gen(**kw):
    P = dict(DEF); P.update(kw)
    A = Asm()
    amp_state = []
    def amp(k):
        if P['amp'] == k: A('s_memrealtime s[84:85]')
    nop = lambda n: A(f's_nop {n-1}') if n > 0 else None
    def stamp(i, final=False):
        if P['amp'] >= 0 and not P['stamps']:
            if i == 0 and not amp_state: A('s_memrealtime s[82:83]'); amp_state.append(1)
            return
        if P['stamps'] == 1 or (P['stamps'] == 2 and (i == 0 or final)):
            A(f's_memrealtime {s(sSTP+2*i,2)}')
        elif P['stamps'] == 2 and i != 9:
            l = A.label('st')
            A(f's_cmp_lg_u32 {s(sLAY)}, 0\ns_cbranch_scc1 {l}\ns_memrealtime {s(sSTP+2*i,2)}\n{l}:')
    def cstamp(i):
        if P['stamps']:
            l = A.label('cs')
            A(f's_cmp_gt_u32 {s(sW)}, 3\ns_cbranch_scc1 {l}'); stamp(i); A(f'{l}:')
    def tmo_check(cnt=None):
        if cnt is not None and P['stamps'] == 1:
            A(f's_add_u32 {s(sCNT)}, {s(sCNT)}, {1 << (8*cnt)}')
        A(f's_sub_u32 {s(sTMO)}, {s(sTMO)}, 1\ns_cbranch_scc1 L_end')
    FT = T + 40
    def signal(k):
        A(f'v_mov_b32 {v(FT+4)}, 1\nds_write_b32 {v(vFL)}, {v(FT+4)} offset:{16*k}')
    def flag_test(k):
        A(f'ds_read_b128 {v(FT,4)}, {v(FT+5)} offset:{16*k}\ns_waitcnt lgkmcnt(0)')
        A(f'v_and_b32 {v(FT)}, {v(FT)}, {v(FT+1)}\nv_and_b32 {v(FT+2)}, {v(FT+2)}, {v(FT+3)}\nv_and_b32 {v(FT)}, {v(FT)}, {v(FT+2)}')
        A(f'v_cmp_ne_u32 vcc, 0, {v(FT)}')
    def wait_flag(k, sleep=1):
        l = A.label('wf')
        A(f'v_mov_b32 {v(FT+5)}, {SM+FLAGS}\n{l}:')
        flag_test(k)
        A(f's_cbranch_vccnz {l}_d')
        tmo_check()
        if sleep: A(f's_sleep {sleep}')
        A(f's_branch {l}\n{l}_d:')
    def dpp(op, d, a_, b_, ctl, rm='0xf'):
        A(f'{op}_dpp {v(d)}, {v(a_)}, {v(b_)} {ctl} row_mask:{rm} bank_mask:0xf')
    def check_sentinel(regs, tmp, lfail):
        r = list(regs); cur = r.pop(0)
        while r:
            if len(r) >= 2:
                A(f'v_max3_u32 {v(tmp)}, {v(cur)}, {v(r[0])}, {v(r[1])}'); r = r[2:]
            else:
                A(f'v_max_u32 {v(tmp)}, {v(cur)}, {v(r[0])}'); r = r[1:]
            cur = tmp
        A(f'v_cmp_eq_u32 vcc, -1, {v(cur)}\ns_cbranch_vccnz {lfail}')
    def partial_stats(x, t, addr, fill=()):
        fill = list(fill)
        def gap():
            k = 0
            while fill and k < 2: A(fill.pop(0)); k += 1
            nop(2 - k)
        A(f'v_mul_f32 {v(t+1)}, {v(x)}, {v(x)}\nv_add_f32 {v(t)}, {v(x)}, {v(x+1)}\nv_fmac_f32 {v(t+1)}, {v(x+1)}, {v(x+1)}')
        gap()
        A(f'v_permlane32_swap_b32 {v(t)}, {v(t+1)}\nv_add_f32 {v(t)}, {v(t)}, {v(t+1)}')
        for k in (8, 4, 2, 1):
            gap(); dpp('v_add_f32', t, t, t, f'row_ror:{k}')
        gap(); dpp('v_add_f32', t, t, t, 'row_bcast:15', '0xa')
        A(f'ds_write_b32 {v(addr)}, {v(t)}')
        for x_ in fill: A(x_)
    EPS = hex(f2u(1e-5)); INV = hex(f2u(1.0/576))
    def stats_issue(t):
        A(f'ds_read_b64 {v(t,2)}, {v(t+24)} offset:{ST}')
    def stats_calc(t, twice=False):
        if twice:
            for k in (4, 2, 1):
                dpp('v_add_f32', t, t, t, f'row_ror:{k}'); dpp('v_add_f32', t+1, t+1, t+1, f'row_ror:{k}')
                if k > 1: nop(1)
        else:
            A(f'v_pk_add_f32 {v(t,2)}, {v(t,2)}, {v(t+2,2)}\nv_pk_add_f32 {v(t+4,2)}, {v(t+4,2)}, {v(t+6,2)}')
            A(f'v_pk_add_f32 {v(t,2)}, {v(t,2)}, {v(t+8,2)}\nv_pk_add_f32 {v(t,2)}, {v(t,2)}, {v(t+4,2)}')
        A(f'v_mul_f32 {v(t)}, {INV}, {v(t)}\nv_mul_f32 {v(t+1)}, {INV}, {v(t+1)}')
        A(f'v_fma_f32 {v(t+1)}, -{v(t)}, {v(t)}, {v(t+1)}\nv_max_f32 {v(t+1)}, 0, {v(t+1)}')
        if twice:
            A(f'v_mul_f32 {v(t+1)}, {hex(f2u(1+1e-5))}, {v(t+1)}\nv_add_f32 {v(t+2)}, {hex(f2u(1e-10))}, {v(t+1)}\nv_rsq_f32 {v(t+2)}, {v(t+2)}')
        else:
            A(f'v_add_f32 {v(t+2)}, {EPS}, {v(t+1)}\nv_rsq_f32 {v(t+2)}, {v(t+2)}')
    def tr_addr(dst, tile_sreg, gshift, gbit, base, t):
        A(f'v_bfe_u32 {v(t)}, {v(vL4)}, 4, 2\nv_bfe_u32 {v(t+1)}, {v(vL4)}, 2, 2\nv_lshrrev_b32 {v(t+2)}, 6, {v(vL4)}')
        A(f'v_bfe_u32 {v(t+3)}, {v(t+2)}, {gbit}, 1\nv_lshl_or_b32 {v(t+3)}, {v(t+3)}, 2, {v(t)}')
        A(f'v_xor_b32 {v(t+3)}, {s(tile_sreg)}, {v(t+3)}\nv_lshlrev_b32 {v(t+3)}, 5, {v(t+3)}\nv_lshl_add_u32 {v(t+3)}, {v(t+1)}, 3, {v(t+3)}')
        A(f'v_lshl_add_u32 {v(t+2)}, {v(t+2)}, {gshift}, {v(t)}\nv_lshl_add_u32 {v(dst)}, {v(t+2)}, 8, {v(t+3)}')
        A(f'v_add_u32 {v(dst)}, {base}, {v(dst)}')
    RAW = T + 20
    def raw_loads(dst=RAW, ptrs=(pW1, pB1, pW2), t=T+18):
        A(f'v_add_u32 {v(t)}, 4096, {v(vT4)}\nv_lshlrev_b32 {v(t+1)}, 1, {v(vTID)}\nv_add_u32 {v(t+1)}, 8192, {v(t+1)}')
        for k, p in enumerate(ptrs):
            for i in range(4):
                A(f'global_load_dword {v(dst+5*k+i)}, {v(vT4 if i < 2 else t)}, {s(p,2)} offset:{2048*(i & 1)}')
            A(f'global_load_ushort {v(dst+5*k+4)}, {v(t+1)}, {s(p,2)}')
    def coef_build():
        L = []
        w, b, w2, t0, t1, t2, t3, t4 = (T + i for i in range(8))
        for f in range(9):
            c = CB + 8*f
            srcs = [RAW + 5*k + (f >> 1) for k in range(3)]
            for d, sr in zip((w, b, w2), srcs):
                L.append(f'v_and_b32 {v(d)}, 0xffff0000, {v(sr)}' if f & 1 else f'v_lshlrev_b32 {v(d)}, 16, {v(sr)}')
            def split(x, dst):
                L.append(f'v_and_b32 {v(t4)}, 0xffff0000, {v(x)}')
                L.append(f'v_sub_f32 {v(dst)}, {v(x)}, {v(t4)}')
                L.append(f'v_cvt_pk_bf16_f32 {v(dst)}, {v(t4)}, {v(dst)}')
            L.append(f'v_mul_f32 {v(t0)}, {v(w)}, {v(w)}')
            L.append(f'v_mul_f32 {v(t0)}, {hex(f2u(K2))}, {v(t0)}')
            L.append(f'v_mul_f32 {v(t1)}, {v(t0)}, {v(w)}')
            L.append(f'v_mul_f32 {v(t2)}, {v(t0)}, {v(b)}')
            L.append(f'v_mul_f32 {v(t2)}, 0x40400000, {v(t2)}')
            split(t1, c); split(t2, c+1)
            L.append(f'v_perm_b32 {v(c+2)}, {v(t2)}, {v(t1)}, {s(sSEL)}')
            L.append(f'v_mul_f32 {v(t0)}, {v(b)}, {v(b)}')
            L.append(f'v_mul_f32 {v(t0)}, {hex(f2u(K2))}, {v(t0)}')
            L.append(f'v_add_f32 {v(t1)}, {hex(f2u(K1))}, {v(t0)}')
            L.append(f'v_mul_f32 {v(t2)}, {v(t1)}, {v(b)}')
            L.append(f'v_fmac_f32 {v(t1)}, 2.0, {v(t0)}')
            L.append(f'v_mul_f32 {v(t1)}, {v(t1)}, {v(w)}')
            split(t1, c+3); split(t2, c+4)
            L.append(f'v_mul_f32 {v(t1)}, {v(w)}, {v(w2)}')
            L.append(f'v_mul_f32 {v(t2)}, {v(b)}, {v(w2)}')
            split(t1, c+5); split(t2, c+6)
            L.append(f'v_mov_b32 {v(c+7)}, 0')
        return L

    def q_stage(vXA, hook=None):
        xf, st, D0, D1 = T, T+20, T+36, T+40
        for ks in range(4):
            A(f'ds_read_b128 {v(xf+4*ks,4)}, {v(vXA)} offset:{64*ks}')
        A(f'ds_read_b64 {v(xf+16,2)}, {v(T+44)} offset:256')
        for k in range(3): A(f'ds_read_b128 {v(st+4*k,4)}, {v(T+45)} offset:{ST+16*k}')
        for ks in range(4):
            A(f's_waitcnt lgkmcnt({7-ks})')
            for tt, D in enumerate((D0, D1)):
                A(f'v_mfma_f32_16x16x32_bf16 {v(D,4)}, {v(xf+4*ks,4)}, {a(aWQ+16*tt+4*ks,4)}, {v(D,4) if ks else 0}')
        A('s_waitcnt lgkmcnt(3)')
        for tt, D in enumerate((D0, D1)):
            A(f'v_mfma_f32_16x16x16_bf16 {v(D,4)}, {v(xf+16,2)}, {a(aWQH+2*tt,2)}, {v(D,4)}')
        A('s_waitcnt lgkmcnt(0)')
        stats_calc(st)
        qs = (128 ** -0.5) * math.log2(math.e)
        for D in (D0, D1):
            A(f'v_add_f32 {v(D)}, {v(D)}, {v(D+1)}\nv_fma_f32 {v(D)}, -{v(st)}, {v(D+2)}, {v(D)}')
        A(f'v_mul_f32 {v(st+2)}, {hex(f2u(qs))}, {v(st+2)}\ns_mov_b64 exec, 0xffff')
        for D in (D0, D1): A(f'v_mul_f32 {v(D)}, {v(D)}, {v(st+2)}')
        for D in (D0, D1): A(f'v_and_b32 {v(D)}, 0xfffff000, {v(D)}')
        for D in (D0, D1): A(f'v_or_b32 {v(D)}, {s(sTG12)}, {v(D)}')
        A(f'buffer_store_dword {v(D0)}, {v(vL4)}, {s(rWS,4)}, {s(sQAst)} offen')
        A(f'buffer_store_dword {v(D1)}, {v(vL4)}, {s(rWS,4)}, {s(sQAst)} offen offset:64')
        if hook:
            A('s_mov_b64 exec, -1'); hook()
        l = A.label('q1')
        if hook:
            return
        A(f's_cmp_lg_u32 {s(sFAST)}, 0\ns_cbranch_scc1 {l}\ns_add_u32 {s(sQC)}, {s(sQAst)}, {QAB}')
        A(f'buffer_store_dword {v(D0)}, {v(vL4)}, {s(rWS,4)}, {s(sQC)} offen sc1')
        A(f'buffer_store_dword {v(D1)}, {v(vL4)}, {s(rWS,4)}, {s(sQC)} offen offset:64 sc1')
        A(f'{l}:\ns_mov_b64 exec, -1')

    def q_prep(vXA):
        A(f'v_lshrrev_b32 {v(T+44)}, 6, {v(vL4)}\nv_lshlrev_b32 {v(T+44)}, 3, {v(T+44)}\nv_sub_u32 {v(T+44)}, {v(vXA)}, {v(T+44)}\nv_mov_b32 {v(T+45)}, {s(sSM)}')
    def xa_addr(dst, t):
        A(f's_lshr_b32 s5, {s(sSP)}, 1\ns_lshl_b32 s6, s5, 5\ns_add_u32 s6, s6, {SM+ONES+64}\ns_mul_i32 s5, s5, 288\ns_add_u32 s5, s5, {SM+XH}\nv_bfe_u32 {v(t+2)}, {v(vL4)}, 2, 4')
        A(f'v_mov_b32 {v(dst)}, s6\nv_mov_b32 {v(t)}, s5\nv_cmp_eq_u32 vcc, 0, {v(t+2)}\nv_add_u32 {v(t+1)}, {XL-XH}, {v(t)}\nv_lshrrev_b32 {v(t+3)}, 6, {v(vL4)}')
        A(f'v_cndmask_b32 {v(dst)}, {v(dst)}, {v(t)}, vcc\nv_cmp_eq_u32 vcc, 1, {v(t+2)}')
        nop(2)
        A(f'v_cndmask_b32 {v(dst)}, {v(dst)}, {v(t+1)}, vcc\nv_lshl_add_u32 {v(dst)}, {v(t+3)}, 4, {v(dst)}')
    def wq_addr(t):
        for tt in range(2):
            A(f's_and_b32 s5, {s(sW)}, 3\ns_lshl_b32 s5, s5, 1\ns_add_u32 s5, s5, {tt}')
            tr_addr(t+4+2*tt, 5, 3, 0, WQB, t)
            tr_addr(t+5+2*tt, 5, 2, 1, WQB + 128*256, t)
    def wq_reads(t):
        for tt in range(2):
            for ks in range(4):
                for hh in range(2):
                    A(f'ds_read_b64_tr_b16 {a(aWQ+16*tt+4*ks+2*hh,2)}, {v(t+4+2*tt)} offset:{ks*8192+hh*1024}')
            A(f'ds_read_b64_tr_b16 {a(aWQH+2*tt,2)}, {v(t+5+2*tt)}')

    vl, vj, vg = T+1, T+2, T+3
    def setup_a():
        A(f's_lshr_b32 s4, {s(sSP)}, 1\ns_lshl_b32 s5, {s(sB)}, 4\ns_add_u32 s5, s5, {s(sHKV)}\ns_and_b32 s7, {s(sW)}, 3')
        A(f's_lshl_b32 s6, s7, 2\ns_add_u32 s6, s6, {SM+FLAGS}\nv_mov_b32 {v(vFL)}, s6')
        A(f's_mov_b64 {s(pW1,2)}, s[68:69]\ns_mov_b64 {s(pB1,2)}, s[70:71]')
        A(f's_mov_b64 {s(pW2,2)}, s[72:73]\ns_mov_b64 {s(pB2,2)}, s[74:75]')
        A(f's_mul_i32 s6, {s(sX)}, {512*1152}')
        A(f's_add_u32 {s(rWO)}, s64, s6\ns_addc_u32 {s(rWO+1)}, s65, 0\ns_sub_u32 {s(rWO+2)}, 4718592, s6\ns_mov_b32 {s(rWO+3)}, 0x20000')
        A(f's_mov_b32 {s(rWS)}, s42\ns_mov_b32 {s(rWS+1)}, s43\ns_mov_b32 {s(rWS+2)}, {WS_BYTES}\ns_mov_b32 {s(rWS+3)}, 0x20000')
        A(f's_load_dword {s(sB2)}, {s(pB2,2)}, 0')
        A(f's_getreg_b32 {s(sXCC)}, hwreg(HW_REG_XCC_ID, 0, 4)')
        A(f's_mov_b32 {s(sLAY)}, 0\ns_mov_b32 {s(sFAST)}, 0\ns_mov_b32 {s(sTMO)}, {P["tmo"]}\ns_mov_b32 {s(sCNT)}, 0\ns_mov_b32 {s(sSM)}, {SM}')
        A(f's_lshl_b32 {s(sQAld)}, s5, 12')
        A(f's_lshl_b32 s6, s4, 10\ns_add_u32 {s(sQAst)}, {s(sQAld)}, s6\ns_and_b32 s6, {s(sSP)}, 1\ns_lshl_b32 s6, s6, 9\ns_add_u32 {s(sQAst)}, {s(sQAst)}, s6')
        A(f's_lshl_b32 s6, s7, 7\ns_add_u32 {s(sQAst)}, {s(sQAst)}, s6')
        A(f's_mov_b32 {s(sMHI)}, 0\ns_mov_b32 {s(sMHI+1)}, -1\ns_mov_b32 {s(sSEL)}, 0x07060302')
        A(f's_lshl_b32 s6, {s(sW)}, 3\ns_add_u32 s6, s6, {SM+ST}\nv_lshrrev_b32 {v(T+4)}, 1, {v(vg)}\nv_lshl_add_u32 {v(T+4)}, {v(T+4)}, 2, s6')
        A(f'v_mov_b32 {v(T+5)}, {SM+DUMMY}\nv_and_b32 {v(T+6)}, 1, {v(vg)}\nv_cmp_eq_u32 vcc, 1, {v(T+6)}')
        nop(2)
        A(f'v_cndmask_b32 {v(vSTW)}, {v(T+5)}, {v(T+4)}, vcc')
    def setup_b(ids=False):
        if ids:
            A(f'v_lshrrev_b32 {v(vl)}, 2, {v(vL4)}\ns_and_b32 s7, {s(sW)}, 3\nv_and_b32 {v(vj)}, 15, {v(vl)}\nv_lshrrev_b32 {v(vg)}, 4, {v(vl)}\nv_and_b32 {v(T+6)}, 1, {v(vg)}')
        A(f's_lshl_b32 {s(sU)}, {s(sX)}, 4\ns_add_u32 {s(sU)}, {s(sU)}, {s(sC)}')
        A(f's_mul_i32 s6, {s(sU)}, 5\ns_lshl_b32 {s(sKD)}, {s(sU)}, 2\ns_add_u32 {s(sKD)}, {s(sKD)}, 64')
        A(f's_cmp_lt_u32 {s(sU)}, 64\ns_cselect_b32 {s(sE0)}, s6, {s(sKD)}\ns_cselect_b32 {s(sNE)}, 5, 4')
        A(f's_lshl_b32 s5, {s(sB)}, 3\ns_add_u32 s5, s5, {s(sX)}')
        A(f's_lshl_b32 s6, s5, 13\ns_add_u32 s6, s6, {OB}\ns_lshl_b32 {s(sOBld)}, s7, 11\ns_add_u32 {s(sOBld)}, {s(sOBld)}, s6')
        A(f's_lshl_b32 {s(sOBst)}, {s(sC)}, 8\ns_add_u32 s6, s6, {s(sOBst)}\ns_lshl_b32 {s(sOBst)}, {s(sHL)}, 11\ns_add_u32 s6, s6, {s(sOBst)}')
        A(f's_lshl_b32 {s(sOBst)}, s7, 6\ns_add_u32 {s(sOBst)}, {s(sOBst)}, s6')
        A(f's_lshl_b32 s6, s5, 7\ns_add_u32 s6, s6, {LSE}\ns_lshl_b32 {s(sLSEld)}, s7, 5\ns_add_u32 {s(sLSEld)}, {s(sLSEld)}, s6')
        A(f's_lshl_b32 {s(sLSEst)}, {s(sHL)}, 6\ns_add_u32 s6, s6, {s(sLSEst)}\ns_lshl_b32 {s(sLSEst)}, {s(sSP)}, 2\ns_add_u32 {s(sLSEst)}, {s(sLSEst)}, s6')
        A(f's_mul_i32 {s(sPCld)}, s5, {8*PCS}\ns_add_u32 {s(sPCld)}, {s(sPCld)}, {PC}\ns_add_u32 {s(sPCld2)}, {s(sPCld)}, {2*PCS}')
        A(f's_and_b32 s6, {s(sC)}, 7\ns_lshl_b32 s6, s6, 5\ns_lshr_b32 {s(sKD)}, {s(sC)}, 3\ns_lshl_b32 {s(sKD)}, {s(sKD)}, 9\ns_add_u32 s6, s6, {s(sKD)}')
        A(f's_lshl_b32 {s(sKD)}, s7, 8\ns_add_u32 s6, s6, {s(sKD)}\ns_add_u32 s6, s6, 512')
        A(f's_lshl_b32 {s(sKD)}, {s(sC)}, 6\ns_lshl_b32 {s(sPCst)}, s7, 5\ns_add_u32 {s(sKD)}, {s(sKD)}, {s(sPCst)}\ns_bitcmp1_b32 s7, 1\ns_cselect_b32 s6, s6, {s(sKD)}')
        A(f's_mul_i32 {s(sKD)}, {s(sB)}, {64*PCS}\ns_add_u32 s6, s6, {s(sKD)}\ns_mul_i32 {s(sPCst)}, {s(sX)}, {PCS}\ns_add_u32 s6, s6, {s(sPCst)}\ns_add_u32 {s(sPCst)}, s6, {PC}')
        A(f's_mul_i32 {s(sXDld)}, s5, {XDS}\ns_add_u32 {s(sXDld)}, {s(sXDld)}, {XD}')
        A(f's_mul_i32 s6, {s(sB)}, {8*XDS}\ns_lshl_b32 {s(sXDst)}, {s(sE0)}, 2\ns_add_u32 {s(sXDst)}, {s(sXDst)}, s6\ns_add_u32 {s(sXDst)}, {s(sXDst)}, {XD}')
        mt, mu = lane_masks()
        A(f's_mov_b32 {s(sMT)}, {hex(mt & 0xffffffff)}\ns_mov_b32 {s(sMT+1)}, {hex(mt >> 32)}\ns_mov_b32 {s(sMU)}, {hex(mu & 0xffffffff)}\ns_mov_b32 {s(sMU+1)}, {hex(mu >> 32)}')
        A(f'v_bfe_u32 {v(T+4)}, {v(vl)}, 3, 2\nv_and_b32 {v(T+5)}, 3, {v(vl)}\nv_lshl_add_u32 {v(T+4)}, {v(T+4)}, 2, {v(T+5)}')
        A(f'v_subrev_u32 {v(T+5)}, 6, {v(T+4)}\nv_min_u32 {v(T+4)}, {v(T+4)}, {v(T+5)}\nv_min_u32 {v(T+4)}, 4, {v(T+4)}')
        A(f's_lshl_b32 s6, {s(sE0)}, 2\ns_add_u32 s6, s6, {SM+X32}\nv_lshl_add_u32 {v(vEA)}, {v(T+4)}, 2, s6')
        A(f'v_lshrrev_b32 {v(T+7)}, 1, {v(vg)}\nv_lshl_add_u32 {v(T+7)}, {v(T+7)}, 4, {v(vj)}\nv_lshlrev_b32 {v(T+7)}, 1, {v(T+7)}')
        A(f'v_lshlrev_b32 {v(vMLR)}, 5, {v(T+6)}\nv_add_u32 {v(vMLR)}, {SM+ML}, {v(vMLR)}')
    def common_setup():
        setup_a(); setup_b()
    A('s_load_dwordx16 s[56:71], s[0:1], 0\ns_load_dwordx4 s[72:75], s[0:1], 64\ns_load_dwordx2 s[42:43], s[0:1], 96')
    A('s_lshr_b32 s4, s2, 8\ns_cbranch_scc1 L_end')
    stamp(0)
    vKo2, vVo2, vWQo = CB+70, CB+71, T+8
    sDM, sDN = 80, 81
    def lane_ids():
        A(f'v_and_b32 {v(vl)}, 63, v0\nv_lshlrev_b32 {v(vT4)}, 2, v0\nv_lshlrev_b32 {v(vL4)}, 2, {v(vl)}')
        A(f'v_and_b32 {v(vj)}, 15, {v(vl)}\nv_lshrrev_b32 {v(vg)}, 4, {v(vl)}')
        A(f's_lshr_b32 {s(sB)}, s2, 7\ns_bfe_u32 {s(sC)}, s2, 0x40003')
    A(f'v_lshrrev_b32 {v(T)}, 6, v0\nv_lshrrev_b32 {v(T+4)}, 5, v0\ns_and_b32 {s(sX)}, s2, 7')
    A(f'v_readfirstlane_b32 {s(sW)}, {v(T)}')
    A(f's_bfe_u32 {s(sHL)}, s2, 0x10006\ns_bfe_u32 {s(sSP)}, s2, 0x30003\ns_lshl1_add_u32 {s(sHKV)}, {s(sX)}, {s(sHL)}')
    A(f's_cmp_lt_u32 {s(sW)}, 4\ns_cbranch_scc1 L_centry')
    A(f'v_bfe_u32 {v(T+5)}, v0, 4, 4\nv_and_b32 {v(T+4)}, 4, {v(T+4)}\nv_and_or_b32 {v(T+4)}, {v(T+5)}, 3, {v(T+4)}\nv_lshlrev_b32 {v(T+4)}, 1, {v(T+4)}')
    A(f'v_xor_b32 {v(T+4)}, {v(T+4)}, v0\nv_and_b32 {v(T+4)}, 15, {v(T+4)}\nv_lshlrev_b32 {v(T+4)}, 4, {v(T+4)}\nv_lshl_add_u32 {v(vWQo)}, {v(T+5)}, 13, {v(T+4)}')
    A(f's_lshr_b32 s4, {s(sSP)}, 1\ns_mul_i32 s6, s4, {144*8192}\ns_and_b32 s5, {s(sSP)}, 1\ns_lshl1_add_u32 s5, {s(sHKV)}, s5\ns_lshl_b32 s5, s5, 8\ns_add_u32 s6, s6, s5')
    A(f's_sub_u32 {s(rWQ+2)}, 4718592, s6\ns_mov_b32 {s(rWQ+3)}, 0x20000')
    A(f's_lshl_b32 {s(sDN)}, {s(sW)}, 10\ns_add_u32 m0, {s(sDN)}, {WQB-4096}\ns_mov_b32 s7, 0')
    if P['d2'] == 2: stamp(3)
    A('s_waitcnt lgkmcnt(0)')
    A(f's_add_u32 {s(rWQ)}, s62, s6\ns_addc_u32 {s(rWQ+1)}, s63, 0')
    if not P['diag']:
        A(f'L_wql:\nbuffer_load_dwordx4 {v(vWQo)}, {s(rWQ,4)}, s7 offen nt lds')
        A(f's_add_u32 m0, m0, 4096\ns_add_u32 s7, s7, {16*8192}\ns_cmp_lt_u32 s7, {9*16*8192}\ns_cbranch_scc1 L_wql')
    lane_ids()
    A(f'v_xor_b32 {v(vKo2)}, {v(T+5)}, {v(vj)}\nv_lshlrev_b32 {v(vKo2)}, 4, {v(vKo2)}\nv_lshl_add_u32 {v(vKo2)}, {v(vg)}, 8, {v(vKo2)}')
    A(f's_lshl4_add_u32 s5, {s(sB)}, {s(sHKV)}\ns_lshl_b32 s5, s5, 5\ns_add_u32 s5, s5, {s(sSP)}\ns_add_u32 s5, s5, 24\ns_lshl_b32 s5, s5, 16')
    A(f's_mov_b32 {s(rK+3)}, {s(rWQ+3)}\ns_mov_b32 {s(rK+2)}, 0x10000\ns_and_b32 {s(sDN)}, {s(sDN)}, 0xc00')
    A(f's_mul_i32 {s(sDM)}, s2, 0x9e3779b1\ns_lshr_b32 {s(sDM)}, {s(sDM)}, 28\ns_lshl_b32 {s(sDM)}, {s(sDM)}, 12\ns_add_u32 {s(sDM)}, {s(sDM)}, {s(sDN)}')
    if P['diag']:
        stamp(2)
        A(f's_add_u32 {s(rK)}, s58, s5\ns_addc_u32 {s(rK+1)}, s59, 0')
        NK = P['diag'] >> 2
        def dk():
            for i in range(NK):
                A(f's_add_u32 m0, {s(sDN)}, {4096*i}\nbuffer_load_dwordx4 {v(vKo2)}, {s(rK,4)}, {s(sDM)} offen nt lds\ns_add_u32 {s(sDM)}, {s(sDM)}, 4096\ns_and_b32 {s(sDM)}, {s(sDM)}, 0xffff')
        def dq():
            for i in range(9):
                A(f's_mov_b32 m0, s4\ns_add_u32 s4, s4, 4096')
                A(f'buffer_load_dwordx4 {v(vWQo)}, {s(rWQ,4)}, s7 offen nt lds\ns_add_u32 s7, s7, {4*32768}')
        m = P['diag'] & 3
        if m == 1: dk(); dq(); n1, n2 = NK, 9
        elif m == 2: dq(); dk(); n1, n2 = 9, NK
        elif m == 3: dk(); n1, n2 = NK, 0
        else: dq(); n1, n2 = 9, 0
        A(f's_waitcnt vmcnt({n1+n2-1})'); stamp(4)
        A(f's_waitcnt vmcnt({n2})'); stamp(5)
        A(f's_waitcnt vmcnt(0)'); stamp(6); stamp(1)
        common_setup()
        A('s_barrier\ns_waitcnt lgkmcnt(0)'); emit_stamps(A, 0); A('s_endpgm')
    A(f's_add_u32 {s(rK)}, s58, s5\ns_addc_u32 {s(rK+1)}, s59, 0')
    TH = P['throttle']
    def dma(vr, srd, base):
        A(f's_add_u32 m0, {s(sDN)}, {base}\ns_and_b32 {s(sDM)}, {s(sDM)}, 0xffff')
        A(f'buffer_load_dwordx4 {v(vr)}, {s(srd,4)}, {s(sDM)} offen nt lds\ns_add_u32 {s(sDM)}, {s(sDM)}, 4096')
    seq = []
    def issue(name): seq.append(name)
    def landed(name):
        last = max(i for i, n in enumerate(seq) if n == name)
        return len(seq) - 1 - last
    def thr():
        if not P['thv']:
            big = [i for i, n in enumerate(seq) if n != 'R']
            A(f's_waitcnt vmcnt({len(seq) - big[-TH] if P["lateb"] and len(big) >= TH else TH})'); return
        idx = [i for i, n in enumerate(seq) if n in 'KV']
        n = len(seq) - idx[-TH] if len(idx) >= TH else len(seq)
        A(f's_waitcnt vmcnt({min(n, 63)})')
    for i in range(16):
        if i == P['rawl']:
            assert i <= TH
            raw_loads(ptrs=(68, 70, 72))
            for _ in range(15): issue('R')
        dma(vKo2, rK, KB + 4096*i); issue('K')
        if i == TH - 2:
            A(f's_add_u32 {s(rV)}, s60, s5\ns_addc_u32 {s(rV+1)}, s61, 0\ns_mov_b32 {s(rV+2)}, {s(rK+2)}\ns_mov_b32 {s(rV+3)}, {s(rK+3)}')
            A(f'v_lshl_add_u32 {v(vVo2)}, {v(vg)}, 8, {v(T+4)}')
        if i == TH:
            if P['shs']: A(f's_mov_b32 {s(sGOK)}, 1\ns_branch L_setup\nL_setup_ret:')
            else: common_setup()
            A(f's_and_b32 s4, {s(sW)}, 3')
            xa_addr(vXA, T+4)
            A(f'v_lshlrev_b32 {v(vQF)}, 4, {v(vg)}\nv_add_u32 {v(vQF)}, {SM}, {v(vQF)}')
            A(f'v_and_b32 {v(T+4)}, 1, {v(vj)}\nv_lshl_add_u32 {v(T+4)}, {v(vg)}, 1, {v(T+4)}\nv_mul_u32_u24 {v(T+4)}, {8*PCS}, {v(T+4)}')
            A(f'v_lshrrev_b32 {v(T+5)}, 1, {v(vj)}\nv_lshl_add_u32 {v(vPCS)}, {v(T+5)}, 2, {v(T+4)}')
        if i == TH + 1: wq_addr(T+8)
        INI = max(P['ini'], TH)
        if i == INI - 1: A(f's_waitcnt vmcnt({len(seq)})')
        elif i >= INI: thr()
        if i == INI - 1 and P['d2'] == 3: stamp(3)
        if i == TH + 2 and P['d2'] == 3: stamp(5)
        if i == INI - 1 + P['barl']: A('s_barrier'); stamp(1)
        if i == 13: wq_reads(T+8)
        if i == 15:
            A('s_waitcnt lgkmcnt(0)'); signal(F_WQ2)
    build = coef_build()
    if P['pure'] & 2 or P['xp'] & 4:
        build = ['s_nop 0']; NR = 0
    elif P['lateb'] or P['rawl'] >= 0:
        NR = 0
    else:
        raw_loads(); NR = 15
    for _ in range(NR): issue('R')
    vWO = T + 8
    wo_pat = [f'v_lshrrev_b32 {v(vWO)}, 4, {v(vL4)}\nv_mul_u32_u24 {v(vWO)}, 1152, {v(vWO)}\nv_lshrrev_b32 {v(vWO+1)}, 7, {v(vL4)}',
              f'v_lshlrev_b32 {v(vWO+1)}, 3, {v(vWO+1)}\nv_xor_b32 {v(vWO+1)}, {v(vWO+1)}, {v(vL4)}\nv_and_b32 {v(vWO+1)}, 12, {v(vWO+1)}\nv_lshl_add_u32 {v(vWO)}, {v(vWO+1)}, 2, {v(vWO)}']
    order = P['order']
    assert order.count('V') == 16 and order.count('W') == 8 and order.count('X') == 1
    ksig = False
    sM0W, sOFW = sKD, sPOL
    A(f's_lshl_b32 {s(sM0W)}, s4, 12\ns_add_u32 {s(sM0W)}, {s(sM0W)}, {SP}\ns_mul_i32 {s(sOFW)}, s4, {128*1152}\ns_lshl_b32 s6, {s(sC)}, 6\ns_add_u32 {s(sOFW)}, {s(sOFW)}, s6')
    if P['wrot'] & 1: A(f's_mul_i32 s6, {s(sB)}, {64*1152}\ns_add_u32 {s(sOFW)}, {s(sOFW)}, s6')
    lastV = order.rindex('V')
    BST = TH + 1 if P['bst'] < 0 else P['bst']
    assert BST == TH + 1 or not NR
    nslots = (len(order) if P['bend'] < 0 else P['bend'] + 1) - BST
    v1sig = not P['vs1']
    per = -(-len(build) // nslots)
    nv = nw = 0
    wq_waited = False
    for i, op in enumerate(order):
        if op == 'V':
            if nv == 13 and not wq_waited: (P['pure'] & 1 or wait_flag(F_WQ)); wait_flag(F_WQ2); wq_waited = True
            dma(vVo2, rV, VB + 4096*nv); issue('V'); nv += 1
        else:
            if not wq_waited: (P['pure'] & 1 or wait_flag(F_WQ)); wait_flag(F_WQ2); wq_waited = True
            if op == 'X':
                A(f's_and_b32 s6, {s(sC)}, 7\ns_lshl_b32 s6, s6, 2\ns_add_u32 s6, s6, s4\ns_mul_i32 s6, s6, {16*1152}\ns_lshr_b32 s7, {s(sC)}, 3\ns_lshl_b32 s7, s7, 6\ns_add_u32 s6, s6, s7')
                A(f's_add_u32 m0, {s(sDN)}, {SP+16384}\ns_add_u32 s6, s6, 1024')
                A(f'buffer_load_dwordx4 {v(vWO)}, {s(rWO,4)}, s6 offen nt lds'); issue('A')
            else:
                if nw == 4:
                    assert ksig
                    if P['wrot'] & 1: A(f's_mul_i32 s6, {s(sB)}, {128*1152}\ns_sub_u32 {s(sOFW)}, {s(sOFW)}, s6')
                    A(f's_lshl_b32 {s(sM0W)}, s4, 12')
                    if not P['pure'] & 1: wait_flag(F_KR)
                A(f's_mov_b32 m0, {s(sM0W)}\ns_add_u32 {s(sM0W)}, {s(sM0W)}, 1024')
                A(f'buffer_load_dwordx4 {v(vWO)}, {s(rWO,4)}, {s(sOFW)} offen nt lds\ns_add_u32 {s(sOFW)}, {s(sOFW)}, {16*1152}'); issue('A' if nw < 4 else 'W'); nw += 1
        if i == 0:
            for ins in wo_pat: A(ins)
        if P['lateb'] and i == lastV + P['lateb'] - 1:
            raw_loads()
            for _ in range(15): issue('R')
        if not P['lateb'] and i >= BST and (P['wfree'] < 0 or i < lastV - P['wfree']):
            if i == TH + 1 and NR: A(f's_waitcnt vmcnt({landed("R")})')
            n = per
            if any(f'v{vVo2}' in x for x in build[:n]) and i < lastV: n = 0
            for ins in build[:n]: A(ins)
            build = build[n:]
        if not ksig and landed('K') - NR >= min(TH, 4):
            A(f's_waitcnt vmcnt({landed("K")})'); signal(F_K); stamp(2); ksig = True
        if i == lastV and P['d2'] != 3: stamp(3)
        vs = min(lastV + P['vlag'], len(order) - 1)
        if i == vs:
            if not v1sig:
                vi = [k for k, n in enumerate(seq) if n == 'V']
                A(f's_waitcnt vmcnt({len(seq) - 1 - vi[P["vs1"] - 1]})'); signal(F_V1); v1sig = True
            A(f's_waitcnt vmcnt({landed("V")})')
            if P['vbar']: A('s_barrier')
            else: signal(F_V)
            stamp(4)
            if P['hold']: A('s_barrier')
        elif TH - 1 <= i < vs and (i < lastV - P['wfree'] or P['wfree'] < 0):
            thr()
            vi = [k for k, n in enumerate(seq) if n == 'V']
            if not v1sig and len(vi) >= P['vs1'] and len(seq) - 1 - vi[P['vs1'] - 1] >= TH:
                signal(F_V1); v1sig = True
    if P['lateb']: stamp(5); A(f's_waitcnt vmcnt({landed("R")})')
    for ins in build: A(ins)
    if not P['lateb'] and P['d2'] != 3: stamp(5)
    A(f'v_bfe_u32 {v(T)}, {v(vL4)}, 4, 2\nv_lshrrev_b32 {v(T+2)}, 6, {v(vL4)}\nv_lshl_add_u32 {v(T)}, {v(T+2)}, 3, {v(T)}\nv_xor_b32 {v(T+2)}, s4, {v(T+2)}')
    A(f'v_and_b32 {v(T+2)}, 1, {v(T+2)}\nv_lshlrev_b32 {v(T+2)}, 5, {v(T+2)}\nv_lshl_add_u32 {v(T)}, {v(T)}, 6, {v(T+2)}')
    A(f'v_and_b32 {v(T+1)}, 12, {v(vL4)}\nv_lshl_add_u32 {v(T)}, {v(T+1)}, 1, {v(T)}\nv_add_u32 {v(T+1)}, {SP}, {v(T)}')
    def wo_read(ks, hh):
        A(f'ds_read_b64_tr_b16 {a(aWO+4*ks+2*hh,2)}, {v(T if ks & 2 else T+1)} offset:{4096*(ks >> 2)+2048*(ks & 1)+256*hh}')
    OA, OD, WA = T + 2, T + 8, T + 24
    DW = T + 36
    def o_addr():
        A(f'v_bfe_u32 {v(OD)}, {v(vL4)}, 2, 4')
        if P['wrot'] & 1: A(f's_lshl_b32 s6, {s(sB)}, 1\nv_xor_b32 {v(OD+1)}, s6, {v(OD)}')
        A(f'v_lshl_add_u32 {v(OD+1)}, {v(OD+(P["wrot"] & 1))}, 6, {v(vQF)}\nv_add_u32 {v(OD+1)}, {OL}, {v(OD+1)}')
        A(f'v_add_u32 {v(OD+2)}, {ZERO}, {v(vQF)}\nv_lshrrev_b32 {v(OD)}, 2, {v(OD)}')
        for k in range(4):
            A(f'v_cmp_eq_u32 vcc, {k}, {v(OD)}'); nop(2)
            A(f'v_cndmask_b32 {v(OA+k)}, {v(OD+2)}, {v(OD+1)}, vcc')
        A(f's_and_b32 s6, {s(sC)}, 7\ns_lshl_b32 s6, s6, 7\nv_add_u32 {v(OA+4)}, s6, {v(vQF)}')
    def wo_mfma(q_, r_):
        A(f'v_mfma_f32_16x16x32_bf16 {v(WA+4*r_,4)}, {v(OD+4*q_,4)}, {a(aWO+4*(4*q_+r_),4)}, {v(WA+4*r_,4) if q_ else 0}')
    if P['pure'] & 1:
        A('s_waitcnt vmcnt(0)'); stamp(6); A('s_waitcnt lgkmcnt(0)'); emit_stamps(A, 0); A('s_endpgm')
    A(f's_waitcnt vmcnt({landed("A")})')
    signal(F_A)
    o_addr()
    wait_flag(F_A, sleep=0)
    A(f's_cmp_gt_u32 {s(sW)}, 5\ns_cbranch_scc1 L_wx')
    for ks in range(16):
        if not ks & 2:
            for hh in range(2): wo_read(ks, hh)
    A('s_waitcnt vmcnt(0) lgkmcnt(0)')
    stamp(6)
    order2 = [ks for ks in range(16) if ks & 2]
    if P['uwo']:
        A('s_branch L_wo\nL_wm0:')
        for ks in order2:
            for hh in range(2): wo_read(ks, hh)
        A('s_waitcnt lgkmcnt(0)\ns_branch L_wm1')
    else:
        A('s_barrier')
        for k in range(4): A(f'ds_read_b128 {v(OD+4*k,4)}, {v(OA+k)}')
        for ks in order2:
            for hh in range(2): wo_read(ks, hh)
        A('s_waitcnt lgkmcnt(14)')
        for q_ in range(4):
            for r_ in range(2): wo_mfma(q_, r_)
        for n_, ks in enumerate(order2):
            A(f's_waitcnt lgkmcnt({14 - 2*n_})')
            wo_mfma(ks >> 2, ks & 3)
        A('s_branch L_wot')
    A('L_wx:')
    for kx in range(2):
        for hh in range(2):
            A(f'ds_read_b64_tr_b16 {a(aWO+4*kx+2*hh,2)}, {v(T+1)} offset:{16384+2048*kx+256*hh}')
    A('s_waitcnt vmcnt(0) lgkmcnt(0)')
    stamp(6)
    A('L_wo:\ns_barrier')
    A(f's_cmp_lt_u32 {s(sW)}, 6\ns_cbranch_scc1 L_wm')
    for kx in range(2): A(f'ds_read_b128 {v(OD+4*kx,4)}, {v(OA+4)} offset:{OL+64*kx}')
    for kx in range(2):
        A(f's_waitcnt lgkmcnt({1-kx})')
        A(f'v_mfma_f32_16x16x32_bf16 {v(DW,4)}, {v(OD+4*kx,4)}, {a(aWO+4*kx,4)}, {v(DW,4) if kx else 0}')
    nop(7)
    A('s_branch L_wos\nL_wm:')
    for k in range(4): A(f'ds_read_b128 {v(OD+4*k,4)}, {v(OA+k)}')
    if P['uwo']: A(f's_cmp_eq_u32 {s(sLAY)}, 0\ns_cbranch_scc1 L_wm0\nL_wm1:')
    for q_ in range(4):
        A(f's_waitcnt lgkmcnt({3-q_})')
        for r_ in range(4): wo_mfma(q_, r_)
    A('L_wot:')
    nop(5)
    A(f'v_add_f32 {v(WA)}, {v(WA)}, {v(WA+5)}')
    nop(2)
    A(f'v_add_f32 {v(WA+1)}, {v(WA+10)}, {v(WA+15)}\nv_add_f32 {v(WA)}, {v(WA)}, {v(WA+1)}\nv_mov_b32 {v(WA+1)}, {v(WA)}')
    nop(2)
    A(f'v_permlane32_swap_b32 {v(WA)}, {v(WA+1)}\nv_add_f32 {v(WA)}, {v(WA)}, {v(WA+1)}\nv_mov_b32 {v(WA+1)}, {v(WA)}')
    nop(2)
    A(f'v_permlane16_swap_b32 {v(WA)}, {v(WA+1)}\nv_add_f32 {v(DW)}, {v(WA)}, {v(WA+1)}')
    nop(2)
    A('L_wos:')
    A(f'v_mov_b32_dpp {v(DW+4)}, {v(DW)} quad_perm:[0,0,2,2] row_mask:0xf bank_mask:0xf')
    A(f'v_mov_b32_dpp {v(DW+5)}, {v(DW)} quad_perm:[1,1,3,3] row_mask:0xf bank_mask:0xf')
    A(f'v_cvt_pk_bf16_f32 {v(DW)}, {v(DW+4)}, {v(DW+5)}')
    A(f'buffer_store_dword {v(DW)}, {v(vPCS)}, {s(rWS,4)}, {s(sPCst)} offen sc1')
    stamp(7)

    A('L_cbar:')
    g0 = T
    xs_, xad, xad2 = T+18, T+20, T+21
    ga_, gb_ = vT4, T+23
    A(f'v_lshl_add_u32 {v(xad)}, {v(vT4)}, 1, {s(sSM)}\nv_add_u32 {v(gb_)}, {4*PCS}, {v(ga_)}')
    A(f's_cmp_lt_u32 {s(sW)}, 4\ns_cbranch_scc1 L_cy')
    A(f's_lshl_b32 s6, {s(sW)}, 6\ns_add_u32 s6, s6, {SM+2048-256}\nv_and_b32 {v(xad)}, 28, {v(vL4)}\nv_lshrrev_b32 {v(xad2)}, 7, {v(vL4)}')
    A(f'v_lshl_add_u32 {v(xad)}, {v(xad)}, 1, s6\nv_lshl_add_u32 {v(xad)}, {v(xad2)}, 2, {v(xad)}\nL_cy:')
    A1, A2, ACC = T+32, T+36, T+40
    A(f's_mov_b32 s4, 0x3f80\ns_mov_b32 s5, 0x3f800000')
    A(f'v_and_b32 {v(T+24)}, 28, {v(vL4)}\nv_lshl_add_u32 {v(T+24)}, {v(T+24)}, 1, {s(sSM)}')
    A('s_waitcnt vmcnt(0)')
    if not P['ls']: stamp(8)
    A(f'v_mov_b32 {v(A2+3)}, 0\nv_mov_b32 {v(A2+1)}, 0x3f803f80')
    A('s_barrier')
    if P['stamps'] == 1 and not P['ls']: cstamp(1)
    A('L_gc:')
    for k in range(8):
        A(f'buffer_load_dword {v(g0+k)}, {v(gb_ if k & 4 else ga_)}, {s(rWS,4)}, {s(sPCld2 if k & 2 else sPCld)} offen offset:{PCS*(k & 1)} sc1')
    A(f'v_cndmask_b32 {v(A2)}, {v(A2+3)}, {v(A2+1)}, {s(sMT,2)}\nv_cndmask_b32 {v(A2+2)}, {v(A2+3)}, {v(A2+1)}, {s(sMU,2)}')
    A(f's_cmp_gt_u32 {s(sW)}, 3\ns_cbranch_scc1 L_gx')
    A(f'ds_read_b64 {v(xs_,2)}, {v(xad)} offset:{X32}')
    A('s_waitcnt vmcnt(0) lgkmcnt(0)')
    check_sentinel(range(g0, g0+8), g0+8, 'L_gc_f')
    for k in range(8):
        A(f'v_dot2c_f32_bf16 {v(xs_)}, s4, {v(g0+k)}\nv_dot2c_f32_bf16 {v(xs_+1)}, s5, {v(g0+k)}')
    nop(3)
    partial_stats(xs_, g0, vSTW, [f'ds_write_b64 {v(xad)}, {v(xs_,2)} offset:{X32}'])
    A('s_branch L_gc_done\nL_gx:')
    A(f'ds_read_b32 {v(g0+9)}, {v(xad)} offset:{X32}\nv_mov_b32 {v(xs_)}, 0\nv_mov_b32 {v(xs_+1)}, 0')
    A(f's_mov_b32 s6, 0xff\ns_mov_b32 s7, 0xff')
    A('s_waitcnt vmcnt(0) lgkmcnt(0)')
    check_sentinel(range(g0, g0+8), g0+8, 'L_gc_f')
    for k in range(8):
        A(f'v_dot2c_f32_bf16 {v(xs_)}, s4, {v(g0+k)}\nv_dot2c_f32_bf16 {v(xs_+1)}, s5, {v(g0+k)}')
    nop(3)
    A(f'v_permlane32_swap_b32 {v(xs_)}, {v(xs_+1)}\nv_add_f32 {v(xs_)}, {v(xs_)}, {v(xs_+1)}\nv_mov_b32 {v(xs_+1)}, {v(xs_)}')
    nop(2)
    A(f'v_permlane16_swap_b32 {v(xs_)}, {v(xs_+1)}\nv_add_f32 {v(xs_)}, {v(xs_)}, {v(xs_+1)}\nv_mov_b32 {v(xs_+1)}, 0')
    nop(1)
    dpp('v_add_f32', xs_, xs_, xs_, 'row_ror:8')
    A(f'v_add_f32 {v(g0+9)}, {v(xs_)}, {v(g0+9)}\nv_cndmask_b32 {v(xs_)}, {v(xs_+1)}, {v(g0+9)}, s[6:7]')
    partial_stats(xs_, g0, vSTW, [f'ds_write_b32 {v(xad)}, {v(g0+9)} offset:{X32}'])
    A('L_gc_done:')
    A('s_waitcnt lgkmcnt(0)\ns_barrier')
    if not P['ls']: cstamp(7)
    if P['ms']: stamp(3)
    st = T
    stats_issue(st)
    A(f'ds_read_b32 {v(st+17)}, {v(vEA)}')
    if P['wb']:
        A(f's_cmp_lg_u32 {s(sW)}, 7\ns_cbranch_scc1 L_nowb')
        if P['wb'] & 1: A('s_cmp_gt_u32 s2, 7\ns_cbranch_scc1 L_nowb')
        if P['wb'] & 4: A(f's_cmp_eq_u32 {s(sLAY)}, 0\ns_cbranch_scc1 L_nowb')
        A('buffer_wbl2 sc1\nL_nowb:')
    if P['touch']:
        A(f's_cmp_lg_u32 {s(sLAY)}, 0\ns_cbranch_scc1 L_notouch\ns_cmp_gt_u32 {s(sW)}, 3\ns_cbranch_scc1 L_notouch')
        A(f'v_lshlrev_b32 {v(st+18)}, 4, {v(vL4)}\ns_add_u32 s6, {s(sQAld)}, {LQ}\ns_add_u32 s7, {s(sOBld)}, {LA}')
        A(f'v_and_b32 {v(st+19)}, 0x7c0, {v(st+18)}')
        A(f'buffer_load_dword {v(ACC+5)}, {v(st+18)}, {s(rWS,4)}, s6 offen sc1\nbuffer_load_dword {v(ACC+5)}, {v(st+19)}, {s(rWS,4)}, s7 offen sc1')
        A(f's_add_u32 s7, {s(sLSEld)}, {LA}\nv_mov_b32 {v(st+19)}, 0\nbuffer_load_dword {v(ACC+5)}, {v(st+19)}, {s(rWS,4)}, s7 offen sc1')
        A('L_notouch:')
    A('s_waitcnt lgkmcnt(0)')
    stats_calc(st, twice=True)
    h = st + 17
    A(f'v_sub_f32 {v(h)}, {v(h)}, {v(st)}\nv_mul_f32 {v(h)}, {v(h)}, {v(st+2)}')
    A(f'v_cvt_pk_bf16_f32 {v(h)}, {v(h)}, {v(h)}')
    A(f'v_cndmask_b32 {v(A1+3)}, {v(A2+3)}, {v(h)}, {s(sMT,2)}\nv_cndmask_b32 {v(A2+1)}, {v(A2+3)}, {v(h)}, {s(sMU,2)}')
    A(f'v_and_b32 {v(st)}, 0xffff0000, {v(A1+3)}\nv_mul_f32 {v(st+1)}, {v(st)}, {v(st)}\nv_mul_f32 {v(st+2)}, {v(st+1)}, {v(st)}')
    A(f'v_and_b32 {v(st+3)}, 0xffff0000, {v(st+1)}\nv_perm_b32 {v(A1+1)}, {v(st+1)}, {v(st+1)}, {s(sSEL)}\nv_and_b32 {v(st+4)}, 0xffff0000, {v(st+2)}')
    A(f'v_sub_f32 {v(st+3)}, {v(st+1)}, {v(st+3)}\nv_sub_f32 {v(st+4)}, {v(st+2)}, {v(st+4)}\nv_perm_b32 {v(A1)}, {v(st+2)}, {v(st+2)}, {s(sSEL)}')
    A(f'v_cvt_pk_bf16_f32 {v(A1+2)}, {v(st+4)}, {v(st+3)}')
    nop(2)
    def mm2(f):
        D = T + 16*(f & 1)
        A(f'v_mfma_f32_32x32x16_bf16 {v(D,16)}, {v(A1,4)}, {v(CB+8*f,4)}, 0')
        A(f'v_mfma_f32_32x32x16_bf16 {v(D,16)}, {v(A2,4)}, {v(CB+8*f+4,4)}, {v(D,16)}')
    def m1(f): A(f'v_mfma_f32_32x32x16_bf16 {v(T+16*(f & 1),16)}, {v(A1,4)}, {v(CB+8*f,4)}, 0')
    def m2(f): A(f'v_mfma_f32_32x32x16_bf16 {v(T+16*(f & 1),16)}, {v(A2,4)}, {v(CB+8*f+4,4)}, {v(T+16*(f & 1),16)}')
    if P['mprio']: A('s_setprio 0')
    if P['ms']: stamp(4)
    mm2(0)
    for f in range(9):
        D = T + 16*(f & 1)
        nx = f + 1 < 9
        if f == 0: m1(1); nop(11)
        elif nx: nop(P['mnop']); m1(f+1)
        else: nop(P['mnop'] + 1)
        for e in range(5): A(f'v_exp_f32 {v(D+e)}, {v(D+e)}')
        A(f'v_pk_add_f32 {v(D,2)}, {v(D,2)}, 1.0 op_sel_hi:[1,0]\nv_pk_add_f32 {v(D+2,2)}, {v(D+2,2)}, 1.0 op_sel_hi:[1,0]\nv_add_f32 {v(D+4)}, 1.0, {v(D+4)}')
        if nx: m2(f+1)
        for e in range(5): A(f'v_rcp_f32 {v(D+e)}, {v(D+e)}')
        if f == 0:
            A(f'v_pk_mul_f32 {v(ACC,2)}, {v(D,2)}, {v(D+6,2)}\nv_pk_mul_f32 {v(ACC+2,2)}, {v(D+2,2)}, {v(D+8,2)}\nv_mul_f32 {v(ACC+4)}, {v(D+4)}, {v(D+10)}')
        else:
            A(f'v_pk_fma_f32 {v(ACC,2)}, {v(D,2)}, {v(D+6,2)}, {v(ACC,2)}\nv_pk_fma_f32 {v(ACC+2,2)}, {v(D+2,2)}, {v(D+8,2)}, {v(ACC+2,2)}\nv_fmac_f32 {v(ACC+4)}, {v(D+4)}, {v(D+10)}')
    if P['ms']: stamp(5)
    U = T + 16
    A(f'v_mov_b32 {v(U+4)}, {v(ACC+4)}')
    A(f'v_lshrrev_b32 {v(U)}, 6, {v(vL4)}\nv_and_b32 {v(U+1)}, 1, {v(U)}')
    A(f'v_permlane32_swap_b32 {v(ACC)}, {v(ACC+1)}\nv_permlane32_swap_b32 {v(ACC+2)}, {v(ACC+3)}\nv_permlane32_swap_b32 {v(ACC+4)}, {v(U+4)}')
    A(f'v_add_f32 {v(ACC)}, {v(ACC)}, {v(ACC+1)}\nv_add_f32 {v(ACC+2)}, {v(ACC+2)}, {v(ACC+3)}\nv_add_f32 {v(ACC+4)}, {v(ACC+4)}, {v(U+4)}')
    A(f'v_mov_b32 {v(U+4)}, {v(ACC+4)}')
    A(f'v_lshrrev_b32 {v(U)}, 1, {v(U)}\nv_lshl_add_u32 {v(U)}, {v(U+1)}, 1, {v(U)}')
    A(f'v_permlane16_swap_b32 {v(ACC)}, {v(ACC+2)}\nv_permlane16_swap_b32 {v(ACC+4)}, {v(U+4)}')
    A(f'v_add_f32 {v(ACC)}, {v(ACC)}, {v(ACC+2)}\nv_add_f32 {v(ACC+4)}, {v(ACC+4)}, {v(U+4)}')
    fill = [f's_lshl_b32 s6, {s(sW)}, 2', f's_add_u32 s6, s6, {SM+RED}', f'v_lshl_add_u32 {v(U)}, {v(U)}, 5, s6', f'v_mov_b32 {v(U+1)}, s6']
    for k, fi in zip((8, 4, 2, 1), fill):
        A(fi)
        dpp('v_add_f32', ACC, ACC, ACC, f'row_ror:{k}')
        dpp('v_add_f32', ACC+4, ACC+4, ACC+4, f'row_ror:{k}')
    A(f'ds_write_b32 {v(U)}, {v(ACC)}\nds_write_b32 {v(U+1)}, {v(ACC+4)} offset:128')
    if P['ms']: stamp(6)
    TT = T
    A(f's_cmp_lg_u32 {s(sW)}, 0\ns_cbranch_scc1 L_nofin')
    A(f'v_and_b32 {v(U)}, 28, {v(vL4)}\nv_lshl_add_u32 {v(U+1)}, {v(U)}, 3, {s(sSM)}')
    A(f's_lshl_b32 s6, {s(sE0)}, 2\ns_add_u32 s6, s6, {SM+X32}\nv_add_u32 {v(U+2)}, s6, {v(U)}\nds_read_b32 {v(U+2)}, {v(U+2)}')
    A(f'v_lshrrev_b32 {v(U+3)}, 5, {v(vL4)}\nv_mul_u32_u24 {v(U+3)}, {XDS}, {v(U+3)}\nv_add_u32 {v(U+3)}, {v(U+3)}, {v(U)}')
    A(f's_mul_i32 s6, {s(sB)}, 576\ns_add_u32 s6, s6, {s(sE0)}\ns_lshl_b32 s6, s6, 1\nv_lshrrev_b32 {v(U+5)}, 1, {v(vL4)}\nv_add_u32 {v(U+5)}, s6, {v(U+5)}')
    A(f's_lshl_b32 s6, 1, {s(sNE)}\ns_sub_u32 s6, s6, 1\ns_mul_i32 s7, s6, 0x01010101\ns_lshl_b32 s5, {s(sB2)}, 16')
    A('s_waitcnt lgkmcnt(0)\ns_barrier')
    if not P['ls']: stamp(8)
    A(f'ds_read_b128 {v(TT,4)}, {v(U+1)} offset:{RED}\nds_read_b128 {v(TT+4,4)}, {v(U+1)} offset:{RED+16}')
    A(f'v_add_f32 {v(U+2)}, s5, {v(U+2)}\ns_waitcnt lgkmcnt(0)')
    A(f'v_pk_add_f32 {v(TT,2)}, {v(TT,2)}, {v(TT+2,2)}\nv_pk_add_f32 {v(TT+4,2)}, {v(TT+4,2)}, {v(TT+6,2)}\nv_pk_add_f32 {v(TT,2)}, {v(TT,2)}, {v(TT+4,2)}')
    A(f'v_add_f32 {v(TT)}, {v(TT)}, {v(U+2)}\nv_add_f32 {v(TT)}, {v(TT)}, {v(TT+1)}')
    A(f's_cmp_lg_u32 {s(sLAY)}, 0\ns_cbranch_scc1 L_out')
    A('s_mov_b32 exec_lo, s7\ns_mov_b32 exec_hi, s7')
    A(f'buffer_store_dword {v(TT)}, {v(U+3)}, {s(rWS,4)}, {s(sXDst)} offen sc1\ns_mov_b64 exec, -1\ns_branch L_dpace')
    A('L_nofin:\ns_waitcnt lgkmcnt(0)\ns_barrier')
    if not P['ls']: cstamp(8)
    A(f's_cmp_lg_u32 {s(sLAY)}, 0\ns_cbranch_scc1 L_fin')
    A('L_dpace:')
    A(f's_load_dwordx2 {s(pX,2)}, s[0:1], 80')
    amp(4)
    A(f'v_lshl_add_u32 {v(xad)}, {v(vT4)}, 1, {s(sSM)}\nv_add_u32 {v(xad2)}, {s(sSM)}, {v(vT4)}\nv_lshlrev_b32 {v(T+22)}, 1, {v(vT4)}')
    A(f'v_mov_b32 {v(xs_)}, 0\nv_mov_b32 {v(xs_+1)}, 0')
    A(f'v_mov_b32 {v(T+23)}, {SM+TAGW}\nds_read_b64 {v(T+24,2)}, {v(T+23)}\ns_waitcnt lgkmcnt(0)\nv_readfirstlane_b32 {s(sTG12)}, {v(T+24)}')
    if P['fast']: A(f'v_readfirstlane_b32 {s(sFAST)}, {v(T+25)}')
    for r in (sQAst, sQAld): A(f's_add_u32 {s(r)}, {s(r)}, {LQ}')
    for r in (sOBst, sLSEst, sOBld, sLSEld, sPCst, sPCld, sPCld2): A(f's_add_u32 {s(r)}, {s(r)}, {LA}')
    A(f's_mov_b32 {s(sLAY)}, 1')
    if P['dpace'] < 0: A('s_waitcnt vmcnt(0)')
    elif P['dpace']: A(f's_sleep {P["dpace"]}')
    q_prep(vXA)
    if P['stamps'] == 1 and not P['ls']: cstamp(9)
    A('s_barrier')
    A(f's_cmp_gt_u32 {s(sW)}, 4\ns_cbranch_scc1 L_gd_done')
    A(f's_cmp_eq_u32 {s(sW)}, 4\ns_cselect_b32 exec_hi, 0, -1')
    A('L_gd:')
    for k in range(2):
        A(f'buffer_load_dword {v(xs_+k)}, {v(T+22)}, {s(rWS,4)}, {s(sXDld)} offen offset:{4*k} sc1')
    A('s_waitcnt vmcnt(0)')
    check_sentinel([xs_, xs_+1], g0+2, 'L_gd_f')
    A('s_mov_b64 exec, -1')
    partial_stats(xs_, g0, vSTW, [
        f'v_cvt_pk_bf16_f32 {v(g0+2)}, {v(xs_)}, {v(xs_+1)}', f'ds_write_b64 {v(xad)}, {v(xs_,2)} offset:{X32}',
        f'v_lshlrev_b32 {v(g0+4)}, 16, {v(g0+2)}', f'v_and_b32 {v(g0+5)}, 0xffff0000, {v(g0+2)}',
        f'ds_write_b32 {v(xad2)}, {v(g0+2)} offset:{XH}', f'v_sub_f32 {v(g0+4)}, {v(xs_)}, {v(g0+4)}',
        f'v_sub_f32 {v(g0+5)}, {v(xs_+1)}, {v(g0+5)}', f'v_cvt_pk_bf16_f32 {v(g0+4)}, {v(g0+4)}, {v(g0+5)}',
        f'ds_write_b32 {v(xad2)}, {v(g0+4)} offset:{XL}'])
    A('s_waitcnt lgkmcnt(0)')
    A('L_gd_done:\ns_barrier')
    if P['stamps'] == 1:
        A('s_waitcnt lgkmcnt(0)')
        emit_stamps(A, 0)
        stamp(0)
    A(f's_cmp_lt_u32 {s(sW)}, 4\ns_cbranch_scc1 L_attn')
    q_stage(vXA)
    stamp(2)
    o_addr()
    A('s_barrier\ns_barrier\ns_branch L_wo')
    A('L_gc_f:')
    tmo_check(2)
    A('s_branch L_gc')
    A('L_gd_f:')
    tmo_check(3)
    A('s_branch L_gd')
    A('L_out:')
    A(f's_mov_b32 exec_lo, s6\ns_mov_b32 exec_hi, 0\nv_cvt_pk_bf16_f32 {v(TT)}, {v(TT)}, {v(TT)}')
    A(f'global_store_short {v(U+5)}, {v(TT)}, {s(pX,2)}')
    if P['amp'] >= 0:
        amp(5)
        A('s_memrealtime s[86:87]\ns_waitcnt lgkmcnt(0)\ns_sub_u32 s84, s84, s82\ns_lshl_b32 s84, s84, 2\ns_add_u32 s86, s86, s84')
        A('L_amp:\ns_memrealtime s[88:89]\ns_waitcnt lgkmcnt(0)\ns_sub_u32 s88, s88, s86\ns_cmp_lt_i32 s88, 0\ns_cbranch_scc1 L_amp')
    A('L_fin:')
    if P['stamps']:
        A('s_mov_b64 exec, -1\ns_waitcnt vmcnt(0)')
        stamp(9, True)
        A('s_waitcnt lgkmcnt(0)')
        if P['stamps'] == 1:
            emit_stamps(A, 1)
    A('L_end:\ns_endpgm')
    A('L_centry:')
    lane_ids()
    A(f's_mul_i32 s6, {s(sB)}, 1152\nv_add_u32 {v(T+16)}, s6, {v(vT4)}')
    A(f'v_and_b32 {v(T+18)}, 31, {v(vl)}\nv_lshl_add_u32 {v(T+17)}, {v(T+18)}, 2, s6\nv_mov_b32 {v(T+19)}, {EPO}\ns_waitcnt lgkmcnt(0)')
    A(f'global_load_dword {v(T+12)}, {v(T+16)}, s[56:57]\nglobal_load_dword {v(T+13)}, {v(T+17)}, s[56:57] offset:1024')
    A(f'global_load_dword {v(T+14)}, {v(T+19)}, {s(pWS,2)} sc1')
    if P['pure'] & 4:
        A(f's_cmp_lg_u32 {s(sW)}, 0\ns_cbranch_scc1 L_pp')
        A(f'v_mov_b32 {v(T+4)}, 0\nv_add_u32 {v(T+5)}, {SM}, {v(vL4)}\nds_write_b32 {v(T+5)}, {v(T+4)} offset:{FLAGS}')
        A('L_pp:\ns_waitcnt lgkmcnt(0)\ns_barrier'); emit_stamps(A, 0); A('s_endpgm')
    if P['prefetch']:
        A(f's_getpc_b64 s[4:5]\nL_pc:\ns_sub_u32 s4, s4, L_pc-{NAME}_kernel\ns_subb_u32 s5, s5, 0')
        A(f's_lshr_b32 s7, s2, 3\ns_lshl_b32 s7, s7, 2\ns_add_u32 s7, s7, {s(sW)}\ns_mul_i32 s7, s7, 192')
        A(f's_mov_b64 exec, 7\nv_lshl_add_u32 {v(T+15)}, {v(vl)}, 6, s7\nv_min_u32 {v(T+15)}, L_last-{NAME}_kernel, {v(T+15)}')
        A(f'global_load_dword {v(CB+70)}, {v(T+15)}, s[4:5]\ns_mov_b64 exec, -1')
    NRC = 0
    if P['rawc'] == 1:
        raw_loads(dst=CB+50, ptrs=(68, 70, 72), t=T+20); NRC = 15
    A(f's_cmp_lg_u32 {s(sW)}, 0\ns_cbranch_scc1 L_noinit')
    A(f'v_mov_b32 {v(T+4)}, 0\nv_add_u32 {v(T+5)}, {SM}, {v(vL4)}\nds_write_b32 {v(T+5)}, {v(T+4)} offset:{FLAGS}\nds_write_b32 {v(T+5)}, {v(T+4)} offset:{ZERO}')
    A(f'v_mov_b32 {v(T+4)}, 0x3f803f80\nds_write_b32 {v(T+5)}, {v(T+4)} offset:{ONES}\nds_write_b32 {v(T+5)}, {v(T+4)} offset:{ONES+256}')
    A('L_noinit:\ns_waitcnt lgkmcnt(0)')
    def c_setup():
        A(f'v_bfe_u32 {v(T+4)}, {v(vj)}, 2, 1\nv_mul_u32_u24 {v(T+4)}, {HS}, {v(T+4)}')
        A(f'v_lshl_add_u32 {v(vQF)}, {v(vg)}, 4, {v(T+4)}\nv_add_u32 {v(vQF)}, {SM}, {v(vQF)}')
        A(f's_lshl_b32 s6, {s(sW)}, 7\ns_add_u32 s6, s6, {SM+PB}')
        A(f'v_mul_u32_u24 {v(vPW)}, {HS}, {v(T+6)}\nv_add3_u32 {v(vPW)}, {v(vPW)}, {v(T+7)}, s6')
        A(f'v_lshl_add_u32 {v(vOBS)}, {v(T+6)}, 11, {v(T+7)}')
    if P['spl']:
        assert not P['shs']
        setup_a()
    else:
        A(f's_mov_b32 {s(sGOK)}, 0\nL_setup:')
        common_setup()
        if P['shs']: A(f's_cmp_lg_u32 {s(sGOK)}, 0\ns_cbranch_scc1 L_setup_ret')
    if P['cprio']: A(f's_setprio {P["cprio"]}')
    if not P['spl']: c_setup()
    if P['spl'] & 2:
        xa_addr(CB, T+20); wq_addr(T+20)
    if not P['pure'] & 8: A(f's_cmp_eq_u32 {s(sW)}, 3\ns_cbranch_scc1 L_clr')
    A(f's_waitcnt vmcnt({NRC + (1 if P["prefetch"] else 0)})')
    A('s_branch L_cdone')
    A('L_clr:')
    for i in range(4): A(f'v_mov_b32 {v(T+8+i)}, -1')
    A(f's_mul_i32 s6, s2, 3328\ns_add_u32 s6, s6, {AR0}\nv_lshlrev_b32 {v(T+19)}, 2, {v(vL4)}')
    A(f'buffer_store_dwordx4 {v(T+8,4)}, {v(T+19)}, {s(rWS,4)}, s6 offen sc1\nbuffer_store_dwordx4 {v(T+8,4)}, {v(T+19)}, {s(rWS,4)}, s6 offen offset:1024 sc1')
    A(f'buffer_store_dwordx4 {v(T+8,4)}, {v(T+19)}, {s(rWS,4)}, s6 offen offset:2048 sc1')
    A(f's_mov_b64 exec, 0xffff\nbuffer_store_dwordx4 {v(T+8,4)}, {v(T+19)}, {s(rWS,4)}, s6 offen offset:3072 sc1\ns_mov_b64 exec, -1')
    A(f's_waitcnt vmcnt({NRC + (5 if P["prefetch"] else 4)})')
    A('L_cdone:')
    if P['d2'] == 3: stamp(7)
    A(f'v_readfirstlane_b32 {s(sTAG)}, {v(T+14)}')
    xa = T + 4
    def x_pair(src, areg):
        A(f'v_lshlrev_b32 {v(xa)}, 16, {v(src)}\nv_and_b32 {v(xa+1)}, 0xffff0000, {v(src)}\nv_mov_b32 {v(xa+2)}, 0')
        A(f'v_lshl_add_u32 {v(xa+3)}, {v(areg)}, 1, {s(sSM)}\nv_add_u32 {v(xa+4)}, {s(sSM)}, {v(areg)}')
        A(f'ds_write_b64 {v(xa+3)}, {v(xa,2)} offset:{X32}\nds_write_b32 {v(xa+4)}, {v(src)} offset:{XH}\nds_write_b32 {v(xa+4)}, {v(xa+2)} offset:{XL}')
    x_pair(T+12, vT4)
    partial_stats(xa, xa+6, vSTW)
    A(f's_mul_i32 {s(sTAG)}, {s(sTAG)}, 0x9e3779b1\ns_add_u32 {s(sTAG)}, {s(sTAG)}, 0x7f4a7c15\ns_and_b32 {s(sTAG)}, {s(sTAG)}, 0x1fffffff\ns_and_b32 {s(sTG12)}, {s(sTAG)}, 0xfff')
    A(f's_cmp_lg_u32 {s(sW)}, 0\ns_cbranch_scc1 L_noextra')
    A(f'v_lshlrev_b32 {v(T+18)}, 2, {v(T+18)}\nv_add_u32 {v(T+18)}, 1024, {v(T+18)}')
    x_pair(T+13, T+18)
    A(f'v_cndmask_b32 {v(xa)}, {v(xa)}, {v(xa+2)}, {s(sMHI,2)}\nv_cndmask_b32 {v(xa+1)}, {v(xa+1)}, {v(xa+2)}, {s(sMHI,2)}')
    A(f'v_add_u32 {v(T+18)}, 32, {v(vSTW)}\nv_min_u32 {v(T+18)}, {SM+DUMMY}, {v(T+18)}')
    partial_stats(xa, xa+6, T+18)
    A(f'v_mov_b32 {v(xa)}, {s(sTG12)}\nv_mov_b32 {v(xa+1)}, {SM+TAGW}\nds_write_b32 {v(xa+1)}, {v(xa)}')
    A('L_noextra:')
    A('s_waitcnt lgkmcnt(0)')
    amp(1)
    if not P['spl'] & 2:
        xa_addr(CB, T); wq_addr(T)
    if P['rawc'] == 2: raw_loads(dst=CB+50, t=T+20)
    if P['d2'] == 3: stamp(8)
    A('s_barrier')
    if P['rawc'] == 3: raw_loads(dst=CB+50, t=T+20)
    if P['pure'] & 1:
        A('s_waitcnt lgkmcnt(0)'); emit_stamps(A, 0); A('s_endpgm')
    wq_reads(T+20 if P['spl'] & 2 else T)
    A(f's_cmp_lg_u32 {s(sW)}, 3\ns_cbranch_scc1 L_noarr')
    A(f's_lshl_b32 s6, {s(sXCC)}, 29\ns_or_b32 s6, s6, {s(sTAG)}\nv_mov_b32 {v(T+8)}, s6')
    A(f's_lshl_b32 s6, {s(sX)}, 7\ns_lshr_b32 s7, s2, 3\ns_lshl_b32 s7, s7, 2\ns_add_u32 s6, s6, s7\ns_add_u32 s6, s6, {ARR}\nv_mov_b32 {v(T+9)}, s6')
    A(f's_waitcnt vmcnt({15 if P["rawc"] >= 2 else 0})\ns_mov_b64 exec, 1\nbuffer_store_dword {v(T+8)}, {v(T+9)}, {s(rWS,4)}, 0 offen sc1\ns_mov_b64 exec, -1')
    A('L_noarr:\ns_waitcnt lgkmcnt(0)')
    signal(F_WQ)
    q_prep(CB)
    q_stage(CB, (lambda: None) if P['xp'] & 2 or P['rawc'] else raw_loads)
    stamp(9)
    if P['spl']:
        setup_b(True); c_setup()
    ga, gc, pa, qw = T+8, T+12, T+36, T+35
    def ga_issue():
        for kq in range(4):
            A(f'buffer_load_dword {v(ga+kq)}, {v(vT4)}, {s(rWS,4)}, {s(sQC)} offen offset:{1024*kq} sc1')
    def gchk_issue():
        A(f'v_lshlrev_b32 {v(gc+4)}, 2, {v(vL4)}\nv_add_u32 {v(gc+4)}, {ARR}, {v(gc+4)}')
        A(f'buffer_load_dwordx4 {v(gc,4)}, {v(gc+4)}, {s(rWS,4)}, 0 offen sc1')
    def gchk_test(lfail):
        for k in range(4): A(f'v_xor_b32 {v(gc+k)}, {s(sTAG)}, {v(gc+k)}')
        A(f'v_or3_b32 {v(gc+5)}, {v(gc)}, {v(gc+1)}, {v(gc+2)}\nv_or_b32 {v(gc+5)}, {v(gc+5)}, {v(gc+3)}\nv_and_b32 {v(gc+6)}, 0x1fffffff, {v(gc+5)}')
        A(f'v_cmp_ne_u32 vcc, 0, {v(gc+6)}\ns_cbranch_vccnz {lfail}')
        if P['fast']:
            A(f's_lshl_b32 s6, {s(sXCC)}, 29')
            for k in range(4): A(f'v_xor_b32 {v(gc+k)}, s6, {v(gc+k)}')
            A(f'v_or3_b32 {v(gc+5)}, {v(gc)}, {v(gc+1)}, {v(gc+2)}\nv_or_b32 {v(gc+5)}, {v(gc+5)}, {v(gc+3)}')
            A(f'v_cmp_ne_u32 vcc, 0, {v(gc+5)}\ns_lshl_b32 s6, {s(sX)}, 3\ns_lshr_b64 vcc, vcc, s6')
            A(f's_and_b32 s6, vcc_lo, 0xff\ns_cselect_b32 {s(sFAST)}, 0, 1')
            A(f'v_mov_b32 {v(gc)}, {s(sFAST)}\nv_mov_b32 {v(gc+1)}, {SM+TAGW+4}\nds_write_b32 {v(gc+1)}, {v(gc)}')
        A(f's_mov_b32 {s(sGOK)}, 1')
    def q_copy():
        A(f's_add_u32 s7, {s(sQAst)}, {QAB}\ns_mov_b64 exec, 0xffff')
        A(f'buffer_load_dword {v(gc+7)}, {v(vL4)}, {s(rWS,4)}, {s(sQAst)} offen sc1\nbuffer_load_dword {v(gc+8)}, {v(vL4)}, {s(rWS,4)}, {s(sQAst)} offen offset:64 sc1')
        A(f's_waitcnt vmcnt(0)\nbuffer_store_dword {v(gc+7)}, {v(vL4)}, {s(rWS,4)}, s7 offen sc1\nbuffer_store_dword {v(gc+8)}, {v(vL4)}, {s(rWS,4)}, s7 offen offset:64 sc1')
        A('s_mov_b64 exec, -1')
    def attn_addr():
        A(f'v_bfe_u32 {v(T+6)}, {v(vL4)}, 2, 2\nv_lshrrev_b32 {v(T+7)}, 6, {v(vL4)}\nv_lshlrev_b32 {v(T+7)}, 4, {v(T+7)}\nv_add_u32 {v(T+7)}, {SM+ZERO}, {v(T+7)}')
        for k in range(4):
            A(f'v_cmp_eq_u32 vcc, {k}, {v(T+6)}\nv_add_u32 {v(T+5)}, {PB+128*k}, {v(vQF)}')
            nop(1)
            A(f'v_cndmask_b32 {v(pa+k)}, {v(T+7)}, {v(T+5)}, vcc')
        A(f'v_lshrrev_b32 {v(qw)}, 7, v0\nv_mul_u32_u24 {v(qw)}, {HS-256}, {v(qw)}\nv_lshl_add_u32 {v(qw)}, v0, 1, {v(qw)}\nv_add_u32 {v(qw)}, {SM+QB}, {v(qw)}')
    A(f's_mov_b32 {s(sQC)}, {s(sQAld)}\ns_mov_b32 {s(sKD)}, 0\ns_mov_b32 {s(sPOL)}, {P["npa"]}\ns_mov_b32 {s(sGOK)}, 0')
    A('s_waitcnt vmcnt(0)')
    if P['ega']: ga_issue()
    if P['egchk']: gchk_issue()
    if P['rawc']:
        for k in range(15): A(f'v_mov_b32 {v(RAW+k)}, {v(CB+50+k)}')
    for ins in coef_build(): A(ins)
    attn_addr()
    stamp(1)
    if not P['ega']: ga_issue()
    A('s_waitcnt vmcnt(0)')
    if P['egchk']: gchk_test('L_ga_w')
    A('s_branch L_ga_w')

    A('L_attn:')
    A(f's_mov_b32 {s(sQC)}, {s(sQAld)}\ns_mov_b32 {s(sKD)}, 1\ns_mov_b32 {s(sPOL)}, -1')
    A(f's_cmp_lg_u32 {s(sFAST)}, 0\ns_cbranch_scc1 L_ga0\ns_add_u32 {s(sQC)}, {s(sQC)}, {QAB}')
    A('L_ga0:')
    attn_addr()
    A('L_ga:')
    ga_issue()
    A('s_waitcnt vmcnt(0)')
    A('L_ga_w:')
    for k in range(4): A(f'v_xor_b32 {v(ga+k)}, {s(sTG12)}, {v(ga+k)}')
    A(f'v_or3_b32 {v(T+4)}, {v(ga)}, {v(ga+1)}, {v(ga+2)}\nv_or_b32 {v(T+4)}, {v(T+4)}, {v(ga+3)}\nv_and_b32 {v(T+4)}, 0xfff, {v(T+4)}')
    A(f'v_add_f32 {v(T)}, {v(ga)}, {v(ga+1)}\nv_add_f32 {v(T+2)}, {v(ga+2)}, {v(ga+3)}')
    A(f'v_cmp_ne_u32 vcc, 0, {v(T+4)}\nv_add_f32 {v(T)}, {v(T)}, {v(T+2)}\ns_cbranch_vccnz L_ga_f')
    A(f'v_cvt_pk_bf16_f32 {v(T)}, {v(T)}, {v(T)}\nds_write_b16 {v(qw)}, {v(T)}\ns_waitcnt lgkmcnt(0)')
    stamp(3)
    A(f's_cmp_lg_u32 {s(sLAY)}, 0\ns_cbranch_scc1 L_qbar')
    signal(F_Q)
    A(f's_cmp_lg_u32 {s(sKD)}, 0\ns_cbranch_scc1 L_kdone')
    wait_flag(F_K)
    A(f's_mov_b32 {s(sKD)}, 2')
    A('L_kread:')
    kt = T + 8
    A(f'v_bfe_u32 {v(kt)}, {v(vL4)}, 2, 4\nv_lshrrev_b32 {v(kt+1)}, 6, {v(vL4)}\ns_lshl_b32 s6, {s(sW)}, 14')
    A(f'v_lshl_add_u32 {v(kt+2)}, {v(kt)}, 8, s6')
    for ks in range(4):
        A(f'v_add_u32 {v(kt+3)}, {4*ks}, {v(kt+1)}\nv_xor_b32 {v(kt+3)}, {v(kt+3)}, {v(kt)}\nv_lshl_add_u32 {v(kt+4+ks)}, {v(kt+3)}, 4, {v(kt+2)}')
        for tt in range(4):
            A(f'ds_read_b128 {a(aK+16*tt+4*ks,4)}, {v(kt+4+ks)} offset:{KB+4096*tt}')
    A('s_waitcnt lgkmcnt(0)')
    signal(F_KR)
    A(f's_cmp_eq_u32 {s(sKD)}, 1\ns_cbranch_scc1 L_ga')
    A('L_kdone:')
    amp(6)
    A(f's_mov_b32 {s(sPOL)}, 48\nv_mov_b32 {v(FT+5)}, {SM+FLAGS}\nL_fq:')
    flag_test(F_Q)
    A('s_cbranch_vccnz L_qk')
    tmo_check()
    A(f's_sub_u32 {s(sPOL)}, {s(sPOL)}, 1\ns_cmp_lg_u32 {s(sPOL)}, 0\ns_cbranch_scc1 L_fq')
    q_copy()
    A('s_branch L_fq')
    A('L_ga_f:')
    tmo_check(0)
    A(f's_sub_u32 {s(sPOL)}, {s(sPOL)}, 1\ns_cmp_lg_u32 {s(sPOL)}, 0\ns_cbranch_scc1 L_ga_f2\ns_add_u32 {s(sQC)}, {s(sQC)}, {QAB}')
    q_copy()
    A(f'L_ga_f2:\ns_cmp_lg_u32 {s(sKD)}, 0\ns_cbranch_scc1 L_ga')
    A(f'v_mov_b32 {v(FT+5)}, {SM+FLAGS}')
    flag_test(F_K)
    A(f's_cbranch_vccz L_ga\ns_mov_b32 {s(sKD)}, 1\ns_branch L_kread')
    A('L_qbar:\ns_barrier')
    A('L_qk:')
    qf, DS = T, T+16
    for ks in range(4):
        A(f'ds_read_b128 {v(qf+4*ks,4)}, {v(vQF)} offset:{QB+64*ks}')
    for ks in range(4):
        A(f's_waitcnt lgkmcnt({3-ks})')
        for tt in range(4):
            A(f'v_mfma_f32_16x16x32_bf16 {v(DS+4*tt,4)}, {v(qf+4*ks,4)}, {a(aK+16*tt+4*ks,4)}, {v(DS+4*tt,4) if ks else 0}')
    sa, sb, mx, t0 = T+32, T+33, T+34, T+35
    A(f's_lshl_b32 s6, {s(sW)}, 3\nv_add_u32 {v(T)}, s6, {v(vMLR)}')
    nop(4)
    A(f'v_cndmask_b32 {v(sa)}, {v(DS)}, {v(DS+4)}, {s(sMHI,2)}')
    nop(2)
    A(f'v_cndmask_b32 {v(sb)}, {v(DS+8)}, {v(DS+12)}, {s(sMHI,2)}')
    A(f'v_max_f32 {v(mx)}, {v(sa)}, {v(sb)}')
    for k in (8, 4, 2, 1):
        nop(2); dpp('v_max_f32', mx, mx, mx, f'row_ror:{k}')
    A(f'v_mov_b32 {v(t0)}, {v(mx)}')
    nop(2)
    A(f'v_permlane32_swap_b32 {v(mx)}, {v(t0)}\nv_max_f32 {v(mx)}, {v(mx)}, {v(t0)}')
    A(f'v_sub_f32 {v(sa)}, {v(sa)}, {v(mx)}\nv_sub_f32 {v(sb)}, {v(sb)}, {v(mx)}\nv_exp_f32 {v(sa)}, {v(sa)}\nv_exp_f32 {v(sb)}, {v(sb)}')
    nop(1)
    A(f'v_cvt_pk_bf16_f32 {v(sa)}, {v(sa)}, {v(sb)}')
    A(f'v_lshlrev_b32 {v(sb)}, 16, {v(sa)}\nv_and_b32 {v(t0)}, 0xffff0000, {v(sa)}\nv_add_f32 {v(t0)}, {v(t0)}, {v(sb)}')
    A(f'ds_write_b16 {v(vPW)}, {v(sa)}\nds_write_b16_d16_hi {v(vPW)}, {v(sa)} offset:64')
    for k in (8, 4, 2, 1):
        dpp('v_add_f32', t0, t0, t0, f'row_ror:{k}')
        if k > 1: nop(2)
    A(f'v_mov_b32 {v(sb)}, {v(t0)}')
    nop(2)
    A(f'v_permlane32_swap_b32 {v(t0)}, {v(sb)}\nv_add_f32 {v(t0)}, {v(t0)}, {v(sb)}')
    A(f'ds_write_b64 {v(T)}, {v(mx,2)}\ns_waitcnt lgkmcnt(0)')
    stamp(4)
    A(f's_cmp_lg_u32 {s(sLAY)}, 0\ns_cbranch_scc1 L_pbar')
    signal(F_P)
    A(f's_cmp_lg_u32 {s(sGOK)}, 0\ns_cbranch_scc1 L_gchk_n')
    A('L_gchk:')
    gchk_issue()
    A('L_gchk_n:')
    for tt in range(2):
        A(f's_lshl_b32 s6, {s(sW)}, 1\ns_add_u32 s6, s6, {tt}')
        tr_addr(T+4+tt, 6, 3, 0, VB, T)
    vt = T + 4
    def v_reads(ks):
        return [f'ds_read_b64_tr_b16 {a(aV+32*tt+4*ks+2*hh,2)}, {v(vt+tt)} offset:{ks*8192+hh*1024}' for tt in range(2) for hh in range(2)]
    pf, DO, ml = T, T+20, T+28
    NB = 5
    M_, L_ = T+40, T+41
    def ml_chain():
        chain = [f'v_max3_f32 {v(M_)}, {v(ml)}, {v(ml+2)}, {v(ml+4)}', f'v_max_f32 {v(M_)}, {v(M_)}, {v(ml+6)}']
        chain += [f'v_sub_f32 {v(ml+2*k)}, {v(ml+2*k)}, {v(M_)}' for k in range(4)]
        chain += [f'v_exp_f32 {v(ml+2*k)}, {v(ml+2*k)}' for k in range(4)]
        chain += [f'v_mul_f32 {v(L_)}, {v(ml)}, {v(ml+1)}'] + [f'v_fmac_f32 {v(L_)}, {v(ml+2*k)}, {v(ml+2*k+1)}' for k in range(1, 4)]
        return chain + [f'v_rcp_f32 {v(ml+1)}, {v(L_)}', f'v_log_f32 {v(L_)}, {v(L_)}']
    def pv_mfma(ks, r, tt):
        D = DO + 4*tt
        A(f'v_mfma_f32_16x16x32_bf16 {v(D,4)}, {v(r,4)}, {a(aV+32*tt+4*ks,4)}, {v(D,4) if ks else 0}')
    if not P['vs1']:
        wait_flag(F_V)
        if P['ls']: stamp(2)
        for ks in range(8):
            for ins in v_reads(ks): A(ins)
    A(f's_cmp_lg_u32 {s(sGOK)}, 0\ns_cbranch_scc1 L_gchk_d\ns_waitcnt vmcnt(0)')
    gchk_test('L_gchk_f')
    A('L_gchk_d:')
    A(f's_cmp_lg_u32 {s(sFAST)}, 0\ns_cbranch_scc1 L_nocopy')
    q_copy()
    A('L_nocopy:')
    if P['touch0']:
        A(f'v_lshlrev_b32 {v(T+16)}, 4, {v(vL4)}\nv_and_b32 {v(T+16)}, 0x7c0, {v(T+16)}\nv_mov_b32 {v(T+17)}, 0')
        A(f'buffer_load_dword {v(T+16)}, {v(T+16)}, {s(rWS,4)}, {s(sOBld)} offen sc1\nbuffer_load_dword {v(T+17)}, {v(T+17)}, {s(rWS,4)}, {s(sLSEld)} offen sc1')
    if P['ls'] and P['d2'] != 3: stamp(7)
    wait_flag(F_P, sleep=0)
    if P['ls'] and P['d2'] != 3: stamp(8)
    if not P['vs1']:
        A('s_branch L_pv')
    elif P['upv']:
        assert P['vbar']
        n1 = P['vs1'] // 2
        wait_flag(F_V1)
        vt = T + 42
        A(f'v_mov_b32 {v(vt)}, {v(T+4)}\nv_mov_b32 {v(vt+1)}, {v(T+5)}')
        for ks in range(n1):
            for ins in v_reads(ks): A(ins)
        A('s_branch L_pv\nL_pv0:\ns_barrier')
        if P['ls']: stamp(2)
        for ks in range(n1, 8):
            for ins in v_reads(ks): A(ins)
        A('s_waitcnt lgkmcnt(0)\ns_branch L_pv1')
    else:
        n1 = P['vs1'] // 2
        A(f'v_mov_b32 {v(T+18)}, {v(T+4)}\nv_mov_b32 {v(T+19)}, {v(T+5)}')
        vt = T + 18
        wait_flag(F_V1)
        NB0 = 4
        q = []
        def rd(ins, key): A(ins); q.append(key)
        def need(keys):
            last = max(i_ for i_, k_ in enumerate(q) if k_ in keys)
            A(f's_waitcnt lgkmcnt({min(14, len(q) - 1 - last)})')
        def p_read(ks): rd(f'ds_read_b128 {v(pf+4*(ks % NB0),4)}, {v(pa+(ks >> 1))} offset:{64*(ks & 1)}', ('P', ks))
        rd(f'ds_read_b128 {v(ml,4)}, {v(vMLR)}', 'ml'); rd(f'ds_read_b128 {v(ml+4,4)}, {v(vMLR)} offset:16', 'ml')
        for ks in range(n1):
            if ks < NB0: p_read(ks)
            for ins in v_reads(ks): rd(ins, ('V', ks))
        for ks in range(n1):
            need([('P', ks), ('V', ks)])
            for tt in range(2): pv_mfma(ks, pf+4*(ks % NB0), tt)
            if ks + NB0 < 8: p_read(ks + NB0)
        if P['vbar']: A('s_waitcnt lgkmcnt(0)')
        chain = ml_chain()
        if P['vbar']:
            for ins in chain: A(ins)
            chain = []
            A('s_barrier')
        else:
            wait_flag(F_V, sleep=P['vsl'])
        if P['ls']: stamp(2)
        q = []
        for ks in range(n1, 8):
            for ins in v_reads(ks): rd(ins, ('V', ks))
        for ins in chain: A(ins)
        for ks in range(n1, 8):
            need([('V', ks)])
            for tt in range(2): pv_mfma(ks, pf+4*(ks % NB0), tt)
        A('s_branch L_pvt')
    A('L_gchk_f:')
    tmo_check()
    A('s_branch L_gchk')
    A('L_pbar:\ns_barrier')
    A('L_pv:')
    A(f'ds_read_b128 {v(ml,4)}, {v(vMLR)}\nds_read_b128 {v(ml+4,4)}, {v(vMLR)} offset:16')
    for ks in range(NB):
        A(f'ds_read_b128 {v(pf+4*ks,4)}, {v(pa+(ks >> 1))} offset:{64*(ks & 1)}')
    chain = ml_chain()
    for ks in range(8):
        r = pf + 4*(ks % NB)
        if P['vs1'] and P['upv'] and ks == P['vs1'] // 2:
            A(f's_cmp_eq_u32 {s(sLAY)}, 0\ns_cbranch_scc1 L_pv0\nL_pv1:')
        A(f's_waitcnt lgkmcnt({min(NB-1, 7-ks)})')
        for tt in range(2):
            D = DO + 4*tt
            A(f'v_mfma_f32_16x16x32_bf16 {v(D,4)}, {v(r,4)}, {a(aV+32*tt+4*ks,4)}, {v(D,4) if ks else 0}')
            A(chain.pop(0))
        if ks + NB < 8:
            A(f'ds_read_b128 {v(r,4)}, {v(pa+((ks+NB) >> 1))} offset:{64*((ks+NB) & 1)}')
    assert not chain
    A('L_pvt:')
    A(f'v_lshrrev_b32 {v(T)}, 1, {v(vL4)}\nv_add_f32 {v(L_)}, {v(L_)}, {v(M_)}')
    nop(5)
    for k in range(4): A(f'v_cndmask_b32 {v(DO+k)}, {v(DO+k)}, {v(DO+4+k)}, {s(sMHI,2)}')
    A(f'v_mul_f32 {v(DO)}, {v(DO)}, {v(ml)}')
    for k in range(1, 4): A(f'v_fmac_f32 {v(DO)}, {v(DO+k)}, {v(ml+2*k)}')
    A(f'v_mul_f32 {v(DO)}, {v(DO)}, {v(ml+1)}')
    nop(2)
    A(f'v_mov_b32_dpp {v(DO+1)}, {v(DO)} quad_perm:[1,0,3,2] row_mask:0xf bank_mask:0xf')
    A(f's_mov_b32 exec_lo, 0x55555555\ns_mov_b32 exec_hi, 0x55555555')
    A(f'v_cvt_pk_bf16_f32 {v(DO)}, {v(DO)}, {v(DO+1)}')
    def o_st(m):
        A(f'buffer_store_dword {v(DO)}, {v(vOBS)}, {s(rWS,4)}, {s(sOBst)} offen{m}')
        l = A.label('nolse')
        A(f's_cmp_lg_u32 {s(sW)}, 0\ns_cbranch_scc1 {l}\ns_mov_b64 exec, 0x10001')
        A(f'buffer_store_dword {v(L_)}, {v(T)}, {s(rWS,4)}, {s(sLSEst)} offen{m}')
        A(f'{l}:\ns_mov_b64 exec, -1')
    A(f's_cmp_eq_u32 {s(sFAST)}, 0\ns_cbranch_scc1 L_o_slow')
    o_st('')
    A('L_o_done:')
    stamp(5)
    A(f'v_and_b32 {v(T+9)}, 28, {v(vL4)}\nv_add_u32 {v(T+13)}, {s(sSM)}, {v(vT4)}')
    A('L_gb:')
    for k in range(8):
        A(f'buffer_load_dword {v(T+k)}, {v(vL4)}, {s(rWS,4)}, {s(sOBld)} offen offset:{256*k} sc1')
    A(f'buffer_load_dword {v(T+8)}, {v(T+9)}, {s(rWS,4)}, {s(sLSEld)} offen sc1')
    if P['hold']: A(f's_cmp_lg_u32 {s(sGOK)}, 1\ns_cbranch_scc1 L_gb_w\ns_mov_b32 {s(sGOK)}, 2\ns_barrier\nL_gb_w:')
    A('s_waitcnt vmcnt(0)')
    mm, ff = T+10, T+8
    check_sentinel(range(T, T+9), T+11, 'L_gb_f')
    dpp('v_max_f32', mm, ff, ff, 'row_ror:4')
    unp = [f'v_lshlrev_b32 {v(T+16+k)}, 16, {v(T+k)}\nv_and_b32 {v(T+k)}, 0xffff0000, {v(T+k)}' for k in range(8)]
    A(unp[0]); dpp('v_max_f32', mm, mm, mm, 'row_ror:2')
    A(unp[1]); dpp('v_max_f32', mm, mm, mm, 'row_ror:1')
    A(f'v_sub_f32 {v(ff)}, {v(ff)}, {v(mm)}\nv_exp_f32 {v(ff)}, {v(ff)}')
    A(unp[2]); dpp('v_add_f32', mm, ff, ff, 'row_ror:4')
    A(unp[3]); dpp('v_add_f32', mm, mm, mm, 'row_ror:2')
    A(unp[4]); dpp('v_add_f32', mm, mm, mm, 'row_ror:1')
    A(f'v_rcp_f32 {v(mm)}, {v(mm)}')
    A(unp[5])
    A(f'v_mul_f32 {v(ff)}, {v(ff)}, {v(mm)}')
    A(unp[6]); A(unp[7])
    lo, hi = T+11, T+12
    for k in range(8):
        op = 'v_mul_f32' if k == 0 else 'v_fmac_f32'
        dpp(op, lo, ff, T+16+k, f'row_newbcast:{k}')
        dpp(op, hi, ff, T+k, f'row_newbcast:{k}')
    A(f'v_cvt_pk_bf16_f32 {v(lo)}, {v(lo)}, {v(hi)}\nds_write_b32 {v(T+13)}, {v(lo)} offset:{OL}')
    A('s_waitcnt lgkmcnt(0)\ns_barrier')
    stamp(6)
    if P['amp'] == 3: A(f's_cmp_lg_u32 {s(sLAY)}, 0\ns_cbranch_scc1 L_amp3'); amp(3); A('L_amp3:')
    A(f's_or_b32 s6, s2, {s(sW)}\ns_or_b32 s6, s6, {s(sLAY)}\ns_cmp_lg_u32 s6, 0\ns_cbranch_scc1 L_cbar')
    A(f'v_mov_b32 {v(T)}, {s(sTAG)}\nv_mov_b32 {v(T+1)}, {EPO}\ns_mov_b64 exec, 1')
    A(f'buffer_store_dword {v(T)}, {v(T+1)}, {s(rWS,4)}, 0 offen sc1\ns_mov_b64 exec, -1\ns_branch L_cbar')
    A('L_o_slow:')
    o_st(' sc1')
    A('s_waitcnt vmcnt(0)\ns_branch L_o_done')
    A('L_gb_f:')
    tmo_check(1)
    A('s_branch L_gb')
    A('L_last:\ns_endpgm')
    hdr = open('cdna_kernels/' + NAME + '.s.ref').read().split('; Override launch')[0].rstrip('\n').split('\n')
    return wrap(A.text(), hdr, 256, 512, LDS_BYTES, 256, 128)


def emit_stamps(A, layer):
    A(f's_lshl_b32 s6, s2, 3\ns_add_u32 s6, s6, {s(sW)}\ns_lshl_b32 s6, s6, 7\ns_add_u32 s6, s6, {STAMP + 64*layer}')
    A(f'v_mov_b32 {v(T)}, s6')
    for i in range(10):
        A(f'v_mov_b32 {v(T+1)}, {s(sSTP+2*i)}\nglobal_store_dword {v(T)}, {v(T+1)}, {s(pWS,2)} offset:{4*i}')
    A(f'v_mov_b32 {v(T+1)}, {s(sCNT)}\nglobal_store_dword {v(T)}, {v(T+1)}, {s(pWS,2)} offset:40\ns_mov_b32 {s(sCNT)}, 0')


if __name__ == '__main__':
    out = sys.argv[1]
    kw = {}
    for x in sys.argv[2:]:
        k, val = x.split('='); kw[k] = val if k == 'order' else int(val, 0)
    open(out, 'w').write(gen(**kw))
```

```python
import sys, math, struct
from asmlib import *

def f2u(x):
    return struct.unpack('<I', struct.pack('<f', x))[0]

DEF = dict(stamps=0, throttle=6, fast=1, tmo=1 << 22, prefetch=1, cprio=3, npa=6, touch=1, xp=0, mnop=0, mprio=1, ms=0, amp=-1, order='V'*16+'X'+'W'*8, vlag=7, wfree=-1, ls=0, cpace=-1, dpace=-1, rot=1, ebar=1, egchk=0, ega=1, thv=0, wo2=1, pure=0, barl=0, lateb=0, wb=0, vs1=12, vbar=1, bend=12, vsl=0, nwo=1, wbar=1, ini=0, wrot=0, lpoll=0, touch0=0, upv=1, uwo=0, hold=0, rawl=0, rawc=0, bst=1, diag=0, d2=0, shs=0, spl=3, cpr=-1, agx=-1, awx=-1, aat=-1, aqb=-1, apb=-1, bpace=2, agb=-1, anf=-1)

LQ   = 0x20000
QA   = 0x0
QAB  = 0x40000
ARR  = 0x80000
EPO  = 0x81000
AR0  = 0x100000
LA   = 0x61000
OB   = AR0
PC   = AR0 + 0x20000
LSE  = AR0 + 0x60000
XD   = AR0 + 2*LA
XDS  = 2560
PCS  = 2048
WS_BYTES = 0x200000
STAMP = 0x300000
assert XD + 16*XDS <= AR0 + 256*3328
KB, VB, SP = 0, 65536, 131072
SM = 155648
WQB = SM - 36864
X32, QB, XH, PB, ML, ST, XL, RED, ONES, ZERO, FLAGS = 0, 2304, 3328, 4480, 5568, 5632, 5760, 6912, 7168, 7680, 7808
HS = 576
TAGW = FLAGS + 240
DUMMY = ST + 64
OL = QB
F_A, F_WQ, F_Q, F_K, F_KR, F_P, F_V, F_WO, F_V1, F_WQ2 = range(10)
LDS_BYTES = 163840
sW = 3
rK, rV, rWQ, rWO, rWS = 8, 12, 16, 20, 24
pX, pW1, pB1, pW2, pB2 = 28, 30, 32, 34, 36
sSEL, sCNT, sTG12, sTAG = 38, 39, 40, 41
pWS = 42
sX, sB, sHL, sSP, sHKV, sC, sU, sE0, sNE, sLAY, sFAST, sTMO = range(44, 56)
sQAst, sQAld, sOBst, sLSEst, sOBld, sLSEld, sPCst, sPCld, sPCld2, sXDld = range(56, 66)
sXDst, sB2 = 66, 67
sMHI, sMT, sMU = 68, 70, 72
sSM, sXCC = 74, 75
sKD, sPOL, sQC, sGOK = 76, 77, 78, 79
sSTP = 82
vTID, vL4, vT4, vR3, vQF, vR5, vMLR, vFL, vEA, vSTW = range(10)
vXA = vPW = vR3
vPCS = vOBS = vR5
CB = 10
T = 82
aK, aV = 0, 64
aWO, aWQ, aWQH, aSP = 0, 64, 96, 100

K1 = -2.0 * math.sqrt(2.0/math.pi) * math.log2(math.e)
K2 = K1 * 0.044715


def lane_masks():
    mt = mu = 0
    for l in range(64):
        i = l & 31
        if ((l >> 2) & 1) != (l >> 5):
            continue
        r = 4*(i >> 3) + (i & 3)
        if r <= 4: mt |= 1 << l
        if 6 <= r <= 10: mu |= 1 << l
    return mt, mu


def gen(**kw):
    P = dict(DEF); P.update(kw)
    A = Asm()
    amp_state = []
    def amp(k):
        if P['amp'] == k: A('s_memrealtime s[84:85]')
    nop = lambda n: A(f's_nop {n-1}') if n > 0 else None
    def anchor(k):
        if P[k] >= 0:
            A('.p2align 6')
            for _ in range(P[k]): A('s_nop 0')
    def stamp(i, final=False):
        if P['stamps'] == 3:
            if final or (i == 0 and not amp_state): A(f's_memrealtime {s(sSTP+2*i,2)}'); amp_state.append(1)
            elif i == 7:
                l = A.label('st')
                A(f's_cmp_lg_u32 {s(sLAY)}, 0\ns_cbranch_scc1 {l}\ns_memrealtime {s(sSTP+2*i,2)}\n{l}:')
            return
        if P['amp'] >= 0 and not P['stamps']:
            if i == 0 and not amp_state: A('s_memrealtime s[82:83]'); amp_state.append(1)
            return
        if P['stamps'] == 1 or (P['stamps'] == 2 and (i == 0 or final)):
            A(f's_memrealtime {s(sSTP+2*i,2)}')
        elif P['stamps'] == 2 and i != 9:
            l = A.label('st')
            A(f's_cmp_lg_u32 {s(sLAY)}, 0\ns_cbranch_scc1 {l}\ns_memrealtime {s(sSTP+2*i,2)}\n{l}:')
    def cstamp(i):
        if P['stamps'] and P['stamps'] != 3:
            l = A.label('cs')
            A(f's_cmp_gt_u32 {s(sW)}, 3\ns_cbranch_scc1 {l}'); stamp(i); A(f'{l}:')
    def tmo_check(cnt=None):
        if cnt is not None and P['stamps'] == 1:
            A(f's_add_u32 {s(sCNT)}, {s(sCNT)}, {1 << (8*cnt)}')
        A(f's_sub_u32 {s(sTMO)}, {s(sTMO)}, 1\ns_cbranch_scc1 L_end')
    FT = T + 40
    def signal(k):
        A(f'v_mov_b32 {v(FT+4)}, 1\nds_write_b32 {v(vFL)}, {v(FT+4)} offset:{16*k}')
    def flag_test(k):
        A(f'ds_read_b128 {v(FT,4)}, {v(FT+5)} offset:{16*k}\ns_waitcnt lgkmcnt(0)')
        A(f'v_and_b32 {v(FT)}, {v(FT)}, {v(FT+1)}\nv_and_b32 {v(FT+2)}, {v(FT+2)}, {v(FT+3)}\nv_and_b32 {v(FT)}, {v(FT)}, {v(FT+2)}')
        A(f'v_cmp_ne_u32 vcc, 0, {v(FT)}')
    def wait_flag(k, sleep=1):
        l = A.label('wf')
        A(f'v_mov_b32 {v(FT+5)}, {SM+FLAGS}\n{l}:')
        flag_test(k)
        A(f's_cbranch_vccnz {l}_d')
        tmo_check()
        if sleep: A(f's_sleep {sleep}')
        A(f's_branch {l}\n{l}_d:')
    def dpp(op, d, a_, b_, ctl, rm='0xf'):
        A(f'{op}_dpp {v(d)}, {v(a_)}, {v(b_)} {ctl} row_mask:{rm} bank_mask:0xf')
    def check_sentinel(regs, tmp, lfail):
        r = list(regs); cur = r.pop(0)
        while r:
            if len(r) >= 2:
                A(f'v_max3_u32 {v(tmp)}, {v(cur)}, {v(r[0])}, {v(r[1])}'); r = r[2:]
            else:
                A(f'v_max_u32 {v(tmp)}, {v(cur)}, {v(r[0])}'); r = r[1:]
            cur = tmp
        A(f'v_cmp_eq_u32 vcc, -1, {v(cur)}\ns_cbranch_vccnz {lfail}')
    def partial_stats(x, t, addr, fill=()):
        fill = list(fill)
        def gap():
            k = 0
            while fill and k < 2: A(fill.pop(0)); k += 1
            nop(2 - k)
        A(f'v_mul_f32 {v(t+1)}, {v(x)}, {v(x)}\nv_add_f32 {v(t)}, {v(x)}, {v(x+1)}\nv_fmac_f32 {v(t+1)}, {v(x+1)}, {v(x+1)}')
        gap()
        A(f'v_permlane32_swap_b32 {v(t)}, {v(t+1)}\nv_add_f32 {v(t)}, {v(t)}, {v(t+1)}')
        for k in (8, 4, 2, 1):
            gap(); dpp('v_add_f32', t, t, t, f'row_ror:{k}')
        gap(); dpp('v_add_f32', t, t, t, 'row_bcast:15', '0xa')
        A(f'ds_write_b32 {v(addr)}, {v(t)}')
        for x_ in fill: A(x_)
    EPS = hex(f2u(1e-5)); INV = hex(f2u(1.0/576))
    def stats_issue(t):
        A(f'ds_read_b64 {v(t,2)}, {v(t+24)} offset:{ST}')
    def stats_calc(t, twice=False):
        if twice:
            for k in (4, 2, 1):
                dpp('v_add_f32', t, t, t, f'row_ror:{k}'); dpp('v_add_f32', t+1, t+1, t+1, f'row_ror:{k}')
                if k > 1: nop(1)
        else:
            A(f'v_pk_add_f32 {v(t,2)}, {v(t,2)}, {v(t+2,2)}\nv_pk_add_f32 {v(t+4,2)}, {v(t+4,2)}, {v(t+6,2)}')
            A(f'v_pk_add_f32 {v(t,2)}, {v(t,2)}, {v(t+8,2)}\nv_pk_add_f32 {v(t,2)}, {v(t,2)}, {v(t+4,2)}')
        A(f'v_mul_f32 {v(t)}, {INV}, {v(t)}\nv_mul_f32 {v(t+1)}, {INV}, {v(t+1)}')
        A(f'v_fma_f32 {v(t+1)}, -{v(t)}, {v(t)}, {v(t+1)}\nv_max_f32 {v(t+1)}, 0, {v(t+1)}')
        if twice:
            A(f'v_mul_f32 {v(t+1)}, {hex(f2u(1+1e-5))}, {v(t+1)}\nv_add_f32 {v(t+2)}, {hex(f2u(1e-10))}, {v(t+1)}\nv_rsq_f32 {v(t+2)}, {v(t+2)}')
        else:
            A(f'v_add_f32 {v(t+2)}, {EPS}, {v(t+1)}\nv_rsq_f32 {v(t+2)}, {v(t+2)}')
    def tr_addr(dst, tile_sreg, gshift, gbit, base, t):
        A(f'v_bfe_u32 {v(t)}, {v(vL4)}, 4, 2\nv_bfe_u32 {v(t+1)}, {v(vL4)}, 2, 2\nv_lshrrev_b32 {v(t+2)}, 6, {v(vL4)}')
        A(f'v_bfe_u32 {v(t+3)}, {v(t+2)}, {gbit}, 1\nv_lshl_or_b32 {v(t+3)}, {v(t+3)}, 2, {v(t)}')
        A(f'v_xor_b32 {v(t+3)}, {s(tile_sreg)}, {v(t+3)}\nv_lshlrev_b32 {v(t+3)}, 5, {v(t+3)}\nv_lshl_add_u32 {v(t+3)}, {v(t+1)}, 3, {v(t+3)}')
        A(f'v_lshl_add_u32 {v(t+2)}, {v(t+2)}, {gshift}, {v(t)}\nv_lshl_add_u32 {v(dst)}, {v(t+2)}, 8, {v(t+3)}')
        A(f'v_add_u32 {v(dst)}, {base}, {v(dst)}')
    RAW = T + 20
    def raw_loads(dst=RAW, ptrs=(pW1, pB1, pW2), t=T+18):
        A(f'v_add_u32 {v(t)}, 4096, {v(vT4)}\nv_lshlrev_b32 {v(t+1)}, 1, {v(vTID)}\nv_add_u32 {v(t+1)}, 8192, {v(t+1)}')
        for k, p in enumerate(ptrs):
            for i in range(4):
                A(f'global_load_dword {v(dst+5*k+i)}, {v(vT4 if i < 2 else t)}, {s(p,2)} offset:{2048*(i & 1)}')
            A(f'global_load_ushort {v(dst+5*k+4)}, {v(t+1)}, {s(p,2)}')
    def coef_build():
        L = []
        w, b, w2, t0, t1, t2, t3, t4 = (T + i for i in range(8))
        for f in range(9):
            c = CB + 8*f
            srcs = [RAW + 5*k + (f >> 1) for k in range(3)]
            for d, sr in zip((w, b, w2), srcs):
                L.append(f'v_and_b32 {v(d)}, 0xffff0000, {v(sr)}' if f & 1 else f'v_lshlrev_b32 {v(d)}, 16, {v(sr)}')
            def split(x, dst):
                L.append(f'v_and_b32 {v(t4)}, 0xffff0000, {v(x)}')
                L.append(f'v_sub_f32 {v(dst)}, {v(x)}, {v(t4)}')
                L.append(f'v_cvt_pk_bf16_f32 {v(dst)}, {v(t4)}, {v(dst)}')
            L.append(f'v_mul_f32 {v(t0)}, {v(w)}, {v(w)}')
            L.append(f'v_mul_f32 {v(t0)}, {hex(f2u(K2))}, {v(t0)}')
            L.append(f'v_mul_f32 {v(t1)}, {v(t0)}, {v(w)}')
            L.append(f'v_mul_f32 {v(t2)}, {v(t0)}, {v(b)}')
            L.append(f'v_mul_f32 {v(t2)}, 0x40400000, {v(t2)}')
            split(t1, c); split(t2, c+1)
            L.append(f'v_perm_b32 {v(c+2)}, {v(t2)}, {v(t1)}, {s(sSEL)}')
            L.append(f'v_mul_f32 {v(t0)}, {v(b)}, {v(b)}')
            L.append(f'v_mul_f32 {v(t0)}, {hex(f2u(K2))}, {v(t0)}')
            L.append(f'v_add_f32 {v(t1)}, {hex(f2u(K1))}, {v(t0)}')
            L.append(f'v_mul_f32 {v(t2)}, {v(t1)}, {v(b)}')
            L.append(f'v_fmac_f32 {v(t1)}, 2.0, {v(t0)}')
            L.append(f'v_mul_f32 {v(t1)}, {v(t1)}, {v(w)}')
            split(t1, c+3); split(t2, c+4)
            L.append(f'v_mul_f32 {v(t1)}, {v(w)}, {v(w2)}')
            L.append(f'v_mul_f32 {v(t2)}, {v(b)}, {v(w2)}')
            split(t1, c+5); split(t2, c+6)
            L.append(f'v_mov_b32 {v(c+7)}, 0')
        return L

    def q_stage(vXA, hook=None):
        xf, st, D0, D1 = T, T+20, T+36, T+40
        for ks in range(4):
            A(f'ds_read_b128 {v(xf+4*ks,4)}, {v(vXA)} offset:{64*ks}')
        A(f'ds_read_b64 {v(xf+16,2)}, {v(T+44)} offset:256')
        for k in range(3): A(f'ds_read_b128 {v(st+4*k,4)}, {v(T+45)} offset:{ST+16*k}')
        for ks in range(4):
            A(f's_waitcnt lgkmcnt({7-ks})')
            for tt, D in enumerate((D0, D1)):
                A(f'v_mfma_f32_16x16x32_bf16 {v(D,4)}, {v(xf+4*ks,4)}, {a(aWQ+16*tt+4*ks,4)}, {v(D,4) if ks else 0}')
        A('s_waitcnt lgkmcnt(3)')
        for tt, D in enumerate((D0, D1)):
            A(f'v_mfma_f32_16x16x16_bf16 {v(D,4)}, {v(xf+16,2)}, {a(aWQH+2*tt,2)}, {v(D,4)}')
        A('s_waitcnt lgkmcnt(0)')
        stats_calc(st)
        qs = (128 ** -0.5) * math.log2(math.e)
        for D in (D0, D1):
            A(f'v_add_f32 {v(D)}, {v(D)}, {v(D+1)}\nv_fma_f32 {v(D)}, -{v(st)}, {v(D+2)}, {v(D)}')
        A(f'v_mul_f32 {v(st+2)}, {hex(f2u(qs))}, {v(st+2)}\ns_mov_b64 exec, 0xffff')
        for D in (D0, D1): A(f'v_mul_f32 {v(D)}, {v(D)}, {v(st+2)}')
        for D in (D0, D1): A(f'v_and_b32 {v(D)}, 0xfffff000, {v(D)}')
        for D in (D0, D1): A(f'v_or_b32 {v(D)}, {s(sTG12)}, {v(D)}')
        A(f'buffer_store_dword {v(D0)}, {v(vL4)}, {s(rWS,4)}, {s(sQAst)} offen')
        A(f'buffer_store_dword {v(D1)}, {v(vL4)}, {s(rWS,4)}, {s(sQAst)} offen offset:64')
        if hook:
            A('s_mov_b64 exec, -1'); hook()
        l = A.label('q1')
        if hook:
            return
        A(f's_cmp_lg_u32 {s(sFAST)}, 0\ns_cbranch_scc1 {l}\ns_add_u32 {s(sQC)}, {s(sQAst)}, {QAB}')
        A(f'buffer_store_dword {v(D0)}, {v(vL4)}, {s(rWS,4)}, {s(sQC)} offen sc1')
        A(f'buffer_store_dword {v(D1)}, {v(vL4)}, {s(rWS,4)}, {s(sQC)} offen offset:64 sc1')
        A(f'{l}:\ns_mov_b64 exec, -1')

    def q_prep(vXA):
        A(f'v_lshrrev_b32 {v(T+44)}, 6, {v(vL4)}\nv_lshlrev_b32 {v(T+44)}, 3, {v(T+44)}\nv_sub_u32 {v(T+44)}, {v(vXA)}, {v(T+44)}\nv_mov_b32 {v(T+45)}, {s(sSM)}')
    def xa_addr(dst, t):
        A(f's_lshr_b32 s5, {s(sSP)}, 1\ns_lshl_b32 s6, s5, 5\ns_add_u32 s6, s6, {SM+ONES+64}\ns_mul_i32 s5, s5, 288\ns_add_u32 s5, s5, {SM+XH}\nv_bfe_u32 {v(t+2)}, {v(vL4)}, 2, 4')
        A(f'v_mov_b32 {v(dst)}, s6\nv_mov_b32 {v(t)}, s5\nv_cmp_eq_u32 vcc, 0, {v(t+2)}\nv_add_u32 {v(t+1)}, {XL-XH}, {v(t)}\nv_lshrrev_b32 {v(t+3)}, 6, {v(vL4)}')
        A(f'v_cndmask_b32 {v(dst)}, {v(dst)}, {v(t)}, vcc\nv_cmp_eq_u32 vcc, 1, {v(t+2)}')
        nop(2)
        A(f'v_cndmask_b32 {v(dst)}, {v(dst)}, {v(t+1)}, vcc\nv_lshl_add_u32 {v(dst)}, {v(t+3)}, 4, {v(dst)}')
    def wq_addr(t):
        for tt in range(2):
            A(f's_and_b32 s5, {s(sW)}, 3\ns_lshl_b32 s5, s5, 1\ns_add_u32 s5, s5, {tt}')
            tr_addr(t+4+2*tt, 5, 3, 0, WQB, t)
            tr_addr(t+5+2*tt, 5, 2, 1, WQB + 128*256, t)
    def wq_reads(t):
        for tt in range(2):
            for ks in range(4):
                for hh in range(2):
                    A(f'ds_read_b64_tr_b16 {a(aWQ+16*tt+4*ks+2*hh,2)}, {v(t+4+2*tt)} offset:{ks*8192+hh*1024}')
            A(f'ds_read_b64_tr_b16 {a(aWQH+2*tt,2)}, {v(t+5+2*tt)}')

    vl, vj, vg = T+1, T+2, T+3
    def setup_a():
        A(f's_lshr_b32 s4, {s(sSP)}, 1\ns_lshl_b32 s5, {s(sB)}, 4\ns_add_u32 s5, s5, {s(sHKV)}\ns_and_b32 s7, {s(sW)}, 3')
        A(f's_lshl_b32 s6, s7, 2\ns_add_u32 s6, s6, {SM+FLAGS}\nv_mov_b32 {v(vFL)}, s6')
        A(f's_mov_b64 {s(pW1,2)}, s[68:69]\ns_mov_b64 {s(pB1,2)}, s[70:71]')
        A(f's_mov_b64 {s(pW2,2)}, s[72:73]\ns_mov_b64 {s(pB2,2)}, s[74:75]')
        A(f's_mul_i32 s6, {s(sX)}, {512*1152}')
        A(f's_add_u32 {s(rWO)}, s64, s6\ns_addc_u32 {s(rWO+1)}, s65, 0\ns_sub_u32 {s(rWO+2)}, 4718592, s6\ns_mov_b32 {s(rWO+3)}, 0x20000')
        A(f's_mov_b32 {s(rWS)}, s42\ns_mov_b32 {s(rWS+1)}, s43\ns_mov_b32 {s(rWS+2)}, {WS_BYTES}\ns_mov_b32 {s(rWS+3)}, 0x20000')
        A(f's_load_dword {s(sB2)}, {s(pB2,2)}, 0')
        A(f's_getreg_b32 {s(sXCC)}, hwreg(HW_REG_XCC_ID, 0, 4)')
        A(f's_mov_b32 {s(sLAY)}, 0\ns_mov_b32 {s(sFAST)}, 0\ns_mov_b32 {s(sTMO)}, {P["tmo"]}\ns_mov_b32 {s(sCNT)}, 0\ns_mov_b32 {s(sSM)}, {SM}')
        A(f's_lshl_b32 {s(sQAld)}, s5, 12')
        A(f's_lshl_b32 s6, s4, 10\ns_add_u32 {s(sQAst)}, {s(sQAld)}, s6\ns_and_b32 s6, {s(sSP)}, 1\ns_lshl_b32 s6, s6, 9\ns_add_u32 {s(sQAst)}, {s(sQAst)}, s6')
        A(f's_lshl_b32 s6, s7, 7\ns_add_u32 {s(sQAst)}, {s(sQAst)}, s6')
        A(f's_mov_b32 {s(sMHI)}, 0\ns_mov_b32 {s(sMHI+1)}, -1\ns_mov_b32 {s(sSEL)}, 0x07060302')
        A(f's_lshl_b32 s6, {s(sW)}, 3\ns_add_u32 s6, s6, {SM+ST}\nv_lshrrev_b32 {v(T+4)}, 1, {v(vg)}\nv_lshl_add_u32 {v(T+4)}, {v(T+4)}, 2, s6')
        A(f'v_mov_b32 {v(T+5)}, {SM+DUMMY}\nv_and_b32 {v(T+6)}, 1, {v(vg)}\nv_cmp_eq_u32 vcc, 1, {v(T+6)}')
        nop(2)
        A(f'v_cndmask_b32 {v(vSTW)}, {v(T+5)}, {v(T+4)}, vcc')
    def setup_b(ids=False):
        if ids:
            A(f'v_lshrrev_b32 {v(vl)}, 2, {v(vL4)}\ns_and_b32 s7, {s(sW)}, 3\nv_and_b32 {v(vj)}, 15, {v(vl)}\nv_lshrrev_b32 {v(vg)}, 4, {v(vl)}\nv_and_b32 {v(T+6)}, 1, {v(vg)}')
        A(f's_lshl_b32 {s(sU)}, {s(sX)}, 4\ns_add_u32 {s(sU)}, {s(sU)}, {s(sC)}')
        A(f's_mul_i32 s6, {s(sU)}, 5\ns_lshl_b32 {s(sKD)}, {s(sU)}, 2\ns_add_u32 {s(sKD)}, {s(sKD)}, 64')
        A(f's_cmp_lt_u32 {s(sU)}, 64\ns_cselect_b32 {s(sE0)}, s6, {s(sKD)}\ns_cselect_b32 {s(sNE)}, 5, 4')
        A(f's_lshl_b32 s5, {s(sB)}, 3\ns_add_u32 s5, s5, {s(sX)}')
        A(f's_lshl_b32 s6, s5, 13\ns_add_u32 s6, s6, {OB}\ns_lshl_b32 {s(sOBld)}, s7, 11\ns_add_u32 {s(sOBld)}, {s(sOBld)}, s6')
        A(f's_lshl_b32 {s(sOBst)}, {s(sC)}, 8\ns_add_u32 s6, s6, {s(sOBst)}\ns_lshl_b32 {s(sOBst)}, {s(sHL)}, 11\ns_add_u32 s6, s6, {s(sOBst)}')
        A(f's_lshl_b32 {s(sOBst)}, s7, 6\ns_add_u32 {s(sOBst)}, {s(sOBst)}, s6')
        A(f's_lshl_b32 s6, s5, 7\ns_add_u32 s6, s6, {LSE}\ns_lshl_b32 {s(sLSEld)}, s7, 5\ns_add_u32 {s(sLSEld)}, {s(sLSEld)}, s6')
        A(f's_lshl_b32 {s(sLSEst)}, {s(sHL)}, 6\ns_add_u32 s6, s6, {s(sLSEst)}\ns_lshl_b32 {s(sLSEst)}, {s(sSP)}, 2\ns_add_u32 {s(sLSEst)}, {s(sLSEst)}, s6')
        A(f's_mul_i32 {s(sPCld)}, s5, {8*PCS}\ns_add_u32 {s(sPCld)}, {s(sPCld)}, {PC}\ns_add_u32 {s(sPCld2)}, {s(sPCld)}, {2*PCS}')
        A(f's_and_b32 s6, {s(sC)}, 7\ns_lshl_b32 s6, s6, 5\ns_lshr_b32 {s(sKD)}, {s(sC)}, 3\ns_lshl_b32 {s(sKD)}, {s(sKD)}, 9\ns_add_u32 s6, s6, {s(sKD)}')
        A(f's_lshl_b32 {s(sKD)}, s7, 8\ns_add_u32 s6, s6, {s(sKD)}\ns_add_u32 s6, s6, 512')
        A(f's_lshl_b32 {s(sKD)}, {s(sC)}, 6\ns_lshl_b32 {s(sPCst)}, s7, 5\ns_add_u32 {s(sKD)}, {s(sKD)}, {s(sPCst)}\ns_bitcmp1_b32 s7, 1\ns_cselect_b32 s6, s6, {s(sKD)}')
        A(f's_mul_i32 {s(sKD)}, {s(sB)}, {64*PCS}\ns_add_u32 s6, s6, {s(sKD)}\ns_mul_i32 {s(sPCst)}, {s(sX)}, {PCS}\ns_add_u32 s6, s6, {s(sPCst)}\ns_add_u32 {s(sPCst)}, s6, {PC}')
        A(f's_mul_i32 {s(sXDld)}, s5, {XDS}\ns_add_u32 {s(sXDld)}, {s(sXDld)}, {XD}')
        A(f's_mul_i32 s6, {s(sB)}, {8*XDS}\ns_lshl_b32 {s(sXDst)}, {s(sE0)}, 2\ns_add_u32 {s(sXDst)}, {s(sXDst)}, s6\ns_add_u32 {s(sXDst)}, {s(sXDst)}, {XD}')
        mt, mu = lane_masks()
        A(f's_mov_b32 {s(sMT)}, {hex(mt & 0xffffffff)}\ns_mov_b32 {s(sMT+1)}, {hex(mt >> 32)}\ns_mov_b32 {s(sMU)}, {hex(mu & 0xffffffff)}\ns_mov_b32 {s(sMU+1)}, {hex(mu >> 32)}')
        A(f'v_bfe_u32 {v(T+4)}, {v(vl)}, 3, 2\nv_and_b32 {v(T+5)}, 3, {v(vl)}\nv_lshl_add_u32 {v(T+4)}, {v(T+4)}, 2, {v(T+5)}')
        A(f'v_subrev_u32 {v(T+5)}, 6, {v(T+4)}\nv_min_u32 {v(T+4)}, {v(T+4)}, {v(T+5)}\nv_min_u32 {v(T+4)}, 4, {v(T+4)}')
        A(f's_lshl_b32 s6, {s(sE0)}, 2\ns_add_u32 s6, s6, {SM+X32}\nv_lshl_add_u32 {v(vEA)}, {v(T+4)}, 2, s6')
        A(f'v_lshrrev_b32 {v(T+7)}, 1, {v(vg)}\nv_lshl_add_u32 {v(T+7)}, {v(T+7)}, 4, {v(vj)}\nv_lshlrev_b32 {v(T+7)}, 1, {v(T+7)}')
        A(f'v_lshlrev_b32 {v(vMLR)}, 5, {v(T+6)}\nv_add_u32 {v(vMLR)}, {SM+ML}, {v(vMLR)}')
    def common_setup():
        setup_a(); setup_b()
    A('s_load_dwordx16 s[56:71], s[0:1], 0\ns_load_dwordx4 s[72:75], s[0:1], 64\ns_load_dwordx2 s[42:43], s[0:1], 96')
    A('s_lshr_b32 s4, s2, 8\ns_cbranch_scc1 L_end')
    stamp(0)
    vKo2, vVo2, vWQo = CB+70, CB+71, T+8
    sDM, sDN = 80, 81
    def lane_ids():
        A(f'v_and_b32 {v(vl)}, 63, v0\nv_lshlrev_b32 {v(vT4)}, 2, v0\nv_lshlrev_b32 {v(vL4)}, 2, {v(vl)}')
        A(f'v_and_b32 {v(vj)}, 15, {v(vl)}\nv_lshrrev_b32 {v(vg)}, 4, {v(vl)}')
        A(f's_lshr_b32 {s(sB)}, s2, 7\ns_bfe_u32 {s(sC)}, s2, 0x40003')
    A(f'v_lshrrev_b32 {v(T)}, 6, v0\nv_lshrrev_b32 {v(T+4)}, 5, v0\ns_and_b32 {s(sX)}, s2, 7')
    A(f'v_readfirstlane_b32 {s(sW)}, {v(T)}')
    A(f's_bfe_u32 {s(sHL)}, s2, 0x10006\ns_bfe_u32 {s(sSP)}, s2, 0x30003\ns_lshl1_add_u32 {s(sHKV)}, {s(sX)}, {s(sHL)}')
    A(f's_cmp_lt_u32 {s(sW)}, 4\ns_cbranch_scc1 L_centry')
    A(f'v_bfe_u32 {v(T+5)}, v0, 4, 4\nv_and_b32 {v(T+4)}, 4, {v(T+4)}\nv_and_or_b32 {v(T+4)}, {v(T+5)}, 3, {v(T+4)}\nv_lshlrev_b32 {v(T+4)}, 1, {v(T+4)}')
    A(f'v_xor_b32 {v(T+4)}, {v(T+4)}, v0\nv_and_b32 {v(T+4)}, 15, {v(T+4)}\nv_lshlrev_b32 {v(T+4)}, 4, {v(T+4)}\nv_lshl_add_u32 {v(vWQo)}, {v(T+5)}, 13, {v(T+4)}')
    A(f's_lshr_b32 s4, {s(sSP)}, 1\ns_mul_i32 s6, s4, {144*8192}\ns_and_b32 s5, {s(sSP)}, 1\ns_lshl1_add_u32 s5, {s(sHKV)}, s5\ns_lshl_b32 s5, s5, 8\ns_add_u32 s6, s6, s5')
    A(f's_sub_u32 {s(rWQ+2)}, 4718592, s6\ns_mov_b32 {s(rWQ+3)}, 0x20000')
    A(f's_lshl_b32 {s(sDN)}, {s(sW)}, 10\ns_add_u32 m0, {s(sDN)}, {WQB-4096}\ns_mov_b32 s7, 0')
    if P['d2'] == 2: stamp(3)
    A('s_waitcnt lgkmcnt(0)')
    A(f's_add_u32 {s(rWQ)}, s62, s6\ns_addc_u32 {s(rWQ+1)}, s63, 0')
    if not P['diag']:
        A(f'L_wql:\nbuffer_load_dwordx4 {v(vWQo)}, {s(rWQ,4)}, s7 offen nt lds')
        A(f's_add_u32 m0, m0, 4096\ns_add_u32 s7, s7, {16*8192}\ns_cmp_lt_u32 s7, {9*16*8192}\ns_cbranch_scc1 L_wql')
    lane_ids()
    A(f'v_xor_b32 {v(vKo2)}, {v(T+5)}, {v(vj)}\nv_lshlrev_b32 {v(vKo2)}, 4, {v(vKo2)}\nv_lshl_add_u32 {v(vKo2)}, {v(vg)}, 8, {v(vKo2)}')
    A(f's_lshl4_add_u32 s5, {s(sB)}, {s(sHKV)}\ns_lshl_b32 s5, s5, 5\ns_add_u32 s5, s5, {s(sSP)}\ns_add_u32 s5, s5, 24\ns_lshl_b32 s5, s5, 16')
    A(f's_mov_b32 {s(rK+3)}, {s(rWQ+3)}\ns_mov_b32 {s(rK+2)}, 0x10000\ns_and_b32 {s(sDN)}, {s(sDN)}, 0xc00')
    A(f's_mul_i32 {s(sDM)}, s2, 0x9e3779b1\ns_lshr_b32 {s(sDM)}, {s(sDM)}, 28\ns_lshl_b32 {s(sDM)}, {s(sDM)}, 12\ns_add_u32 {s(sDM)}, {s(sDM)}, {s(sDN)}')
    if P['diag']:
        stamp(2)
        A(f's_add_u32 {s(rK)}, s58, s5\ns_addc_u32 {s(rK+1)}, s59, 0')
        NK = P['diag'] >> 2
        def dk():
            for i in range(NK):
                A(f's_add_u32 m0, {s(sDN)}, {4096*i}\nbuffer_load_dwordx4 {v(vKo2)}, {s(rK,4)}, {s(sDM)} offen nt lds\ns_add_u32 {s(sDM)}, {s(sDM)}, 4096\ns_and_b32 {s(sDM)}, {s(sDM)}, 0xffff')
        def dq():
            for i in range(9):
                A(f's_mov_b32 m0, s4\ns_add_u32 s4, s4, 4096')
                A(f'buffer_load_dwordx4 {v(vWQo)}, {s(rWQ,4)}, s7 offen nt lds\ns_add_u32 s7, s7, {4*32768}')
        m = P['diag'] & 3
        if m == 1: dk(); dq(); n1, n2 = NK, 9
        elif m == 2: dq(); dk(); n1, n2 = 9, NK
        elif m == 3: dk(); n1, n2 = NK, 0
        else: dq(); n1, n2 = 9, 0
        A(f's_waitcnt vmcnt({n1+n2-1})'); stamp(4)
        A(f's_waitcnt vmcnt({n2})'); stamp(5)
        A(f's_waitcnt vmcnt(0)'); stamp(6); stamp(1)
        common_setup()
        A('s_barrier\ns_waitcnt lgkmcnt(0)'); emit_stamps(A, 0); A('s_endpgm')
    A(f's_add_u32 {s(rK)}, s58, s5\ns_addc_u32 {s(rK+1)}, s59, 0')
    TH = P['throttle']
    def dma(vr, srd, base):
        A(f's_add_u32 m0, {s(sDN)}, {base}\ns_and_b32 {s(sDM)}, {s(sDM)}, 0xffff')
        A(f'buffer_load_dwordx4 {v(vr)}, {s(srd,4)}, {s(sDM)} offen nt lds\ns_add_u32 {s(sDM)}, {s(sDM)}, 4096')
    seq = []
    def issue(name): seq.append(name)
    def landed(name):
        last = max(i for i, n in enumerate(seq) if n == name)
        return len(seq) - 1 - last
    def thr():
        if not P['thv']:
            big = [i for i, n in enumerate(seq) if n != 'R']
            A(f's_waitcnt vmcnt({len(seq) - big[-TH] if P["lateb"] and len(big) >= TH else TH})'); return
        idx = [i for i, n in enumerate(seq) if n in 'KV']
        n = len(seq) - idx[-TH] if len(idx) >= TH else len(seq)
        A(f's_waitcnt vmcnt({min(n, 63)})')
    for i in range(16):
        if i == P['rawl']:
            assert i <= TH
            raw_loads(ptrs=(68, 70, 72))
            for _ in range(15): issue('R')
        dma(vKo2, rK, KB + 4096*i); issue('K')
        if i == TH - 2:
            A(f's_add_u32 {s(rV)}, s60, s5\ns_addc_u32 {s(rV+1)}, s61, 0\ns_mov_b32 {s(rV+2)}, {s(rK+2)}\ns_mov_b32 {s(rV+3)}, {s(rK+3)}')
            A(f'v_lshl_add_u32 {v(vVo2)}, {v(vg)}, 8, {v(T+4)}')
        if i == TH:
            if P['shs']: A(f's_mov_b32 {s(sGOK)}, 1\ns_branch L_setup\nL_setup_ret:')
            else: common_setup()
            A(f's_and_b32 s4, {s(sW)}, 3')
            xa_addr(vXA, T+4)
            A(f'v_lshlrev_b32 {v(vQF)}, 4, {v(vg)}\nv_add_u32 {v(vQF)}, {SM}, {v(vQF)}')
            A(f'v_and_b32 {v(T+4)}, 1, {v(vj)}\nv_lshl_add_u32 {v(T+4)}, {v(vg)}, 1, {v(T+4)}\nv_mul_u32_u24 {v(T+4)}, {8*PCS}, {v(T+4)}')
            A(f'v_lshrrev_b32 {v(T+5)}, 1, {v(vj)}\nv_lshl_add_u32 {v(vPCS)}, {v(T+5)}, 2, {v(T+4)}')
        if i == TH + 1: wq_addr(T+8)
        INI = max(P['ini'], TH)
        if i == INI - 1: A(f's_waitcnt vmcnt({len(seq)})')
        elif i >= INI: thr()
        if i == INI - 1 and P['d2'] == 3: stamp(3)
        if i == TH + 2 and P['d2'] == 3: stamp(5)
        if i == INI - 1 + P['barl']: A('s_barrier'); stamp(1)
        if i == 13: wq_reads(T+8)
        if i == 15:
            A('s_waitcnt lgkmcnt(0)'); signal(F_WQ2)
    build = coef_build()
    if P['pure'] & 2 or P['xp'] & 4:
        build = ['s_nop 0']; NR = 0
    elif P['lateb'] or P['rawl'] >= 0:
        NR = 0
    else:
        raw_loads(); NR = 15
    for _ in range(NR): issue('R')
    vWO = T + 8
    wo_pat = [f'v_lshrrev_b32 {v(vWO)}, 4, {v(vL4)}\nv_mul_u32_u24 {v(vWO)}, 1152, {v(vWO)}\nv_lshrrev_b32 {v(vWO+1)}, 7, {v(vL4)}',
              f'v_lshlrev_b32 {v(vWO+1)}, 3, {v(vWO+1)}\nv_xor_b32 {v(vWO+1)}, {v(vWO+1)}, {v(vL4)}\nv_and_b32 {v(vWO+1)}, 12, {v(vWO+1)}\nv_lshl_add_u32 {v(vWO)}, {v(vWO+1)}, 2, {v(vWO)}']
    order = P['order']
    assert order.count('V') == 16 and order.count('W') == 8 and order.count('X') == 1
    ksig = False
    sM0W, sOFW = sKD, sPOL
    A(f's_lshl_b32 {s(sM0W)}, s4, 12\ns_add_u32 {s(sM0W)}, {s(sM0W)}, {SP}\ns_mul_i32 {s(sOFW)}, s4, {128*1152}\ns_lshl_b32 s6, {s(sC)}, 6\ns_add_u32 {s(sOFW)}, {s(sOFW)}, s6')
    if P['wrot'] & 1: A(f's_mul_i32 s6, {s(sB)}, {64*1152}\ns_add_u32 {s(sOFW)}, {s(sOFW)}, s6')
    lastV = order.rindex('V')
    BST = TH + 1 if P['bst'] < 0 else P['bst']
    assert BST == TH + 1 or not NR
    nslots = (len(order) if P['bend'] < 0 else P['bend'] + 1) - BST
    v1sig = not P['vs1']
    per = -(-len(build) // nslots)
    nv = nw = 0
    wq_waited = False
    for i, op in enumerate(order):
        if op == 'V':
            if nv == 13 and not wq_waited: (P['pure'] & 1 or wait_flag(F_WQ)); wait_flag(F_WQ2); wq_waited = True
            dma(vVo2, rV, VB + 4096*nv); issue('V'); nv += 1
        else:
            if not wq_waited: (P['pure'] & 1 or wait_flag(F_WQ)); wait_flag(F_WQ2); wq_waited = True
            if op == 'X':
                A(f's_and_b32 s6, {s(sC)}, 7\ns_lshl_b32 s6, s6, 2\ns_add_u32 s6, s6, s4\ns_mul_i32 s6, s6, {16*1152}\ns_lshr_b32 s7, {s(sC)}, 3\ns_lshl_b32 s7, s7, 6\ns_add_u32 s6, s6, s7')
                A(f's_add_u32 m0, {s(sDN)}, {SP+16384}\ns_add_u32 s6, s6, 1024')
                A(f'buffer_load_dwordx4 {v(vWO)}, {s(rWO,4)}, s6 offen nt lds'); issue('A')
            else:
                if nw == 4:
                    assert ksig
                    if P['wrot'] & 1: A(f's_mul_i32 s6, {s(sB)}, {128*1152}\ns_sub_u32 {s(sOFW)}, {s(sOFW)}, s6')
                    A(f's_lshl_b32 {s(sM0W)}, s4, 12')
                    if not P['pure'] & 1: wait_flag(F_KR)
                A(f's_mov_b32 m0, {s(sM0W)}\ns_add_u32 {s(sM0W)}, {s(sM0W)}, 1024')
                A(f'buffer_load_dwordx4 {v(vWO)}, {s(rWO,4)}, {s(sOFW)} offen nt lds\ns_add_u32 {s(sOFW)}, {s(sOFW)}, {16*1152}'); issue('A' if nw < 4 else 'W'); nw += 1
        if i == 0:
            for ins in wo_pat: A(ins)
        if P['lateb'] and i == lastV + P['lateb'] - 1:
            raw_loads()
            for _ in range(15): issue('R')
        if not P['lateb'] and i >= BST and (P['wfree'] < 0 or i < lastV - P['wfree']):
            if i == TH + 1 and NR: A(f's_waitcnt vmcnt({landed("R")})')
            n = per
            if any(f'v{vVo2}' in x for x in build[:n]) and i < lastV: n = 0
            for ins in build[:n]: A(ins)
            build = build[n:]
        if not ksig and landed('K') - NR >= min(TH, 4):
            A(f's_waitcnt vmcnt({landed("K")})'); signal(F_K); stamp(2); ksig = True
        if i == lastV and P['d2'] != 3: stamp(3)
        vs = min(lastV + P['vlag'], len(order) - 1)
        if i == vs:
            if not v1sig:
                vi = [k for k, n in enumerate(seq) if n == 'V']
                A(f's_waitcnt vmcnt({len(seq) - 1 - vi[P["vs1"] - 1]})'); signal(F_V1); v1sig = True
            A(f's_waitcnt vmcnt({landed("V")})')
            if P['vbar']: A('s_barrier')
            else: signal(F_V)
            stamp(4)
            if P['hold']: A('s_barrier')
        elif TH - 1 <= i < vs and (i < lastV - P['wfree'] or P['wfree'] < 0):
            thr()
            vi = [k for k, n in enumerate(seq) if n == 'V']
            if not v1sig and len(vi) >= P['vs1'] and len(seq) - 1 - vi[P['vs1'] - 1] >= TH:
                signal(F_V1); v1sig = True
    if P['lateb']: stamp(5); A(f's_waitcnt vmcnt({landed("R")})')
    for ins in build: A(ins)
    if not P['lateb'] and P['d2'] != 3: stamp(5)
    A(f'v_bfe_u32 {v(T)}, {v(vL4)}, 4, 2\nv_lshrrev_b32 {v(T+2)}, 6, {v(vL4)}\nv_lshl_add_u32 {v(T)}, {v(T+2)}, 3, {v(T)}\nv_xor_b32 {v(T+2)}, s4, {v(T+2)}')
    A(f'v_and_b32 {v(T+2)}, 1, {v(T+2)}\nv_lshlrev_b32 {v(T+2)}, 5, {v(T+2)}\nv_lshl_add_u32 {v(T)}, {v(T)}, 6, {v(T+2)}')
    A(f'v_and_b32 {v(T+1)}, 12, {v(vL4)}\nv_lshl_add_u32 {v(T)}, {v(T+1)}, 1, {v(T)}\nv_add_u32 {v(T+1)}, {SP}, {v(T)}')
    def wo_read(ks, hh):
        A(f'ds_read_b64_tr_b16 {a(aWO+4*ks+2*hh,2)}, {v(T if ks & 2 else T+1)} offset:{4096*(ks >> 2)+2048*(ks & 1)+256*hh}')
    OA, OD, WA = T + 2, T + 8, T + 24
    DW = T + 36
    def o_addr():
        A(f'v_bfe_u32 {v(OD)}, {v(vL4)}, 2, 4')
        if P['wrot'] & 1: A(f's_lshl_b32 s6, {s(sB)}, 1\nv_xor_b32 {v(OD+1)}, s6, {v(OD)}')
        A(f'v_lshl_add_u32 {v(OD+1)}, {v(OD+(P["wrot"] & 1))}, 6, {v(vQF)}\nv_add_u32 {v(OD+1)}, {OL}, {v(OD+1)}')
        A(f'v_add_u32 {v(OD+2)}, {ZERO}, {v(vQF)}\nv_lshrrev_b32 {v(OD)}, 2, {v(OD)}')
        for k in range(4):
            A(f'v_cmp_eq_u32 vcc, {k}, {v(OD)}'); nop(2)
            A(f'v_cndmask_b32 {v(OA+k)}, {v(OD+2)}, {v(OD+1)}, vcc')
        A(f's_and_b32 s6, {s(sC)}, 7\ns_lshl_b32 s6, s6, 7\nv_add_u32 {v(OA+4)}, s6, {v(vQF)}')
    def wo_mfma(q_, r_):
        A(f'v_mfma_f32_16x16x32_bf16 {v(WA+4*r_,4)}, {v(OD+4*q_,4)}, {a(aWO+4*(4*q_+r_),4)}, {v(WA+4*r_,4) if q_ else 0}')
    if P['pure'] & 1:
        A('s_waitcnt vmcnt(0)'); stamp(6); A('s_waitcnt lgkmcnt(0)'); emit_stamps(A, 0); A('s_endpgm')
    A(f's_waitcnt vmcnt({landed("A")})')
    signal(F_A)
    o_addr()
    wait_flag(F_A, sleep=0)
    A(f's_cmp_gt_u32 {s(sW)}, 5\ns_cbranch_scc1 L_wx')
    for ks in range(16):
        if not ks & 2:
            for hh in range(2): wo_read(ks, hh)
    A('s_waitcnt vmcnt(0) lgkmcnt(0)')
    stamp(6)
    order2 = [ks for ks in range(16) if ks & 2]
    if P['uwo']:
        A('s_branch L_wo\nL_wm0:')
        for ks in order2:
            for hh in range(2): wo_read(ks, hh)
        A('s_waitcnt lgkmcnt(0)\ns_branch L_wm1')
    else:
        A('s_barrier')
        for k in range(4): A(f'ds_read_b128 {v(OD+4*k,4)}, {v(OA+k)}')
        for ks in order2:
            for hh in range(2): wo_read(ks, hh)
        A('s_waitcnt lgkmcnt(14)')
        for q_ in range(4):
            for r_ in range(2): wo_mfma(q_, r_)
        for n_, ks in enumerate(order2):
            A(f's_waitcnt lgkmcnt({14 - 2*n_})')
            wo_mfma(ks >> 2, ks & 3)
        A('s_branch L_wot')
    anchor('awx')
    A('L_wx:')
    for kx in range(2):
        for hh in range(2):
            A(f'ds_read_b64_tr_b16 {a(aWO+4*kx+2*hh,2)}, {v(T+1)} offset:{16384+2048*kx+256*hh}')
    A('s_waitcnt vmcnt(0) lgkmcnt(0)')
    stamp(6)
    A('L_wo:\ns_barrier')
    A(f's_cmp_lt_u32 {s(sW)}, 6\ns_cbranch_scc1 L_wm')
    for kx in range(2): A(f'ds_read_b128 {v(OD+4*kx,4)}, {v(OA+4)} offset:{OL+64*kx}')
    for kx in range(2):
        A(f's_waitcnt lgkmcnt({1-kx})')
        A(f'v_mfma_f32_16x16x32_bf16 {v(DW,4)}, {v(OD+4*kx,4)}, {a(aWO+4*kx,4)}, {v(DW,4) if kx else 0}')
    nop(7)
    A('s_branch L_wos\nL_wm:')
    for k in range(4): A(f'ds_read_b128 {v(OD+4*k,4)}, {v(OA+k)}')
    if P['uwo']: A(f's_cmp_eq_u32 {s(sLAY)}, 0\ns_cbranch_scc1 L_wm0\nL_wm1:')
    for q_ in range(4):
        A(f's_waitcnt lgkmcnt({3-q_})')
        for r_ in range(4): wo_mfma(q_, r_)
    A('L_wot:')
    nop(5)
    A(f'v_add_f32 {v(WA)}, {v(WA)}, {v(WA+5)}')
    nop(2)
    A(f'v_add_f32 {v(WA+1)}, {v(WA+10)}, {v(WA+15)}\nv_add_f32 {v(WA)}, {v(WA)}, {v(WA+1)}\nv_mov_b32 {v(WA+1)}, {v(WA)}')
    nop(2)
    A(f'v_permlane32_swap_b32 {v(WA)}, {v(WA+1)}\nv_add_f32 {v(WA)}, {v(WA)}, {v(WA+1)}\nv_mov_b32 {v(WA+1)}, {v(WA)}')
    nop(2)
    A(f'v_permlane16_swap_b32 {v(WA)}, {v(WA+1)}\nv_add_f32 {v(DW)}, {v(WA)}, {v(WA+1)}')
    nop(2)
    A('L_wos:')
    A(f'v_mov_b32_dpp {v(DW+4)}, {v(DW)} quad_perm:[0,0,2,2] row_mask:0xf bank_mask:0xf')
    A(f'v_mov_b32_dpp {v(DW+5)}, {v(DW)} quad_perm:[1,1,3,3] row_mask:0xf bank_mask:0xf')
    A(f'v_cvt_pk_bf16_f32 {v(DW)}, {v(DW+4)}, {v(DW+5)}')
    A(f'buffer_store_dword {v(DW)}, {v(vPCS)}, {s(rWS,4)}, {s(sPCst)} offen sc1')
    stamp(7)

    A('L_cbar:')
    if P['cpr'] >= 0: A(f's_setprio {P["cpr"]}')
    g0 = T
    xs_, xad, xad2 = T+18, T+20, T+21
    ga_, gb_ = vT4, T+23
    A(f'v_lshl_add_u32 {v(xad)}, {v(vT4)}, 1, {s(sSM)}\nv_add_u32 {v(gb_)}, {4*PCS}, {v(ga_)}')
    A(f's_cmp_lt_u32 {s(sW)}, 4\ns_cbranch_scc1 L_cy')
    A(f's_lshl_b32 s6, {s(sW)}, 6\ns_add_u32 s6, s6, {SM+2048-256}\nv_and_b32 {v(xad)}, 28, {v(vL4)}\nv_lshrrev_b32 {v(xad2)}, 7, {v(vL4)}')
    A(f'v_lshl_add_u32 {v(xad)}, {v(xad)}, 1, s6\nv_lshl_add_u32 {v(xad)}, {v(xad2)}, 2, {v(xad)}\nL_cy:')
    A1, A2, ACC = T+32, T+36, T+40
    A(f's_mov_b32 s4, 0x3f80\ns_mov_b32 s5, 0x3f800000')
    A(f'v_and_b32 {v(T+24)}, 28, {v(vL4)}\nv_lshl_add_u32 {v(T+24)}, {v(T+24)}, 1, {s(sSM)}')
    A('s_waitcnt vmcnt(0)')
    if not P['ls']: stamp(8)
    A(f'v_mov_b32 {v(A2+3)}, 0\nv_mov_b32 {v(A2+1)}, 0x3f803f80')
    A('s_barrier')
    if P['stamps'] == 1 and not P['ls']: cstamp(1)
    A('L_gc:')
    for k in range(8):
        A(f'buffer_load_dword {v(g0+k)}, {v(gb_ if k & 4 else ga_)}, {s(rWS,4)}, {s(sPCld2 if k & 2 else sPCld)} offen offset:{PCS*(k & 1)} sc1')
    A(f'v_cndmask_b32 {v(A2)}, {v(A2+3)}, {v(A2+1)}, {s(sMT,2)}\nv_cndmask_b32 {v(A2+2)}, {v(A2+3)}, {v(A2+1)}, {s(sMU,2)}')
    A(f's_cmp_gt_u32 {s(sW)}, 3\ns_cbranch_scc1 L_gx')
    A(f'ds_read_b64 {v(xs_,2)}, {v(xad)} offset:{X32}')
    A('s_waitcnt vmcnt(0) lgkmcnt(0)')
    check_sentinel(range(g0, g0+8), g0+8, 'L_gc_f')
    for k in range(8):
        A(f'v_dot2c_f32_bf16 {v(xs_)}, s4, {v(g0+k)}\nv_dot2c_f32_bf16 {v(xs_+1)}, s5, {v(g0+k)}')
    nop(3)
    partial_stats(xs_, g0, vSTW, [f'ds_write_b64 {v(xad)}, {v(xs_,2)} offset:{X32}'])
    A('s_branch L_gc_done'); anchor('agx'); A('L_gx:')
    A(f'ds_read_b32 {v(g0+9)}, {v(xad)} offset:{X32}\nv_mov_b32 {v(xs_)}, 0\nv_mov_b32 {v(xs_+1)}, 0')
    A('s_waitcnt vmcnt(0) lgkmcnt(0)')
    check_sentinel(range(g0, g0+8), g0+8, 'L_gc_f')
    for k in range(8):
        A(f'v_dot2c_f32_bf16 {v(xs_)}, s4, {v(g0+k)}\nv_dot2c_f32_bf16 {v(xs_+1)}, s5, {v(g0+k)}')
    nop(3)
    A(f'v_permlane32_swap_b32 {v(xs_)}, {v(xs_+1)}\nv_add_f32 {v(xs_)}, {v(xs_)}, {v(xs_+1)}\nv_mov_b32 {v(xs_+1)}, {v(xs_)}')
    nop(2)
    A(f'v_permlane16_swap_b32 {v(xs_)}, {v(xs_+1)}\nv_add_f32 {v(xs_)}, {v(xs_)}, {v(xs_+1)}')
    nop(2)
    dpp('v_add_f32', xs_, xs_, xs_, 'row_ror:8')
    A(f'v_add_f32 {v(xs_)}, {v(xs_)}, {v(g0+9)}\nv_mul_f32 {v(xs_+1)}, {v(xs_)}, {v(xs_)}\nds_write_b32 {v(xad)}, {v(xs_)} offset:{X32}\nv_mov_b32 {v(g0)}, {v(xs_)}')
    nop(2)
    A(f'v_permlane32_swap_b32 {v(g0)}, {v(xs_+1)}\nv_add_f32 {v(g0)}, {v(g0)}, {v(xs_+1)}')
    for k in (4, 2, 1):
        nop(2); dpp('v_add_f32', g0, g0, g0, f'row_ror:{k}')
    A(f'ds_write_b32 {v(vSTW)}, {v(g0)}')
    A('L_gc_done:')
    A('s_waitcnt lgkmcnt(0)\ns_barrier')
    if not P['ls']: cstamp(7)
    if P['ms']: stamp(3)
    st = T
    stats_issue(st)
    A(f'ds_read_b32 {v(st+17)}, {v(vEA)}')
    if P['wb']:
        A(f's_cmp_lg_u32 {s(sW)}, 7\ns_cbranch_scc1 L_nowb')
        if P['wb'] & 1: A('s_cmp_gt_u32 s2, 7\ns_cbranch_scc1 L_nowb')
        if P['wb'] & 4: A(f's_cmp_eq_u32 {s(sLAY)}, 0\ns_cbranch_scc1 L_nowb')
        A('buffer_wbl2 sc1\nL_nowb:')
    if P['touch']:
        A(f's_cmp_lg_u32 {s(sLAY)}, 0\ns_cbranch_scc1 L_notouch\ns_cmp_gt_u32 {s(sW)}, 3\ns_cbranch_scc1 L_notouch')
        A(f'v_lshlrev_b32 {v(st+18)}, 4, {v(vL4)}\ns_add_u32 s6, {s(sQAld)}, {LQ}\ns_add_u32 s7, {s(sOBld)}, {LA}')
        A(f'v_and_b32 {v(st+19)}, 0x7c0, {v(st+18)}')
        A(f'buffer_load_dword {v(ACC+5)}, {v(st+18)}, {s(rWS,4)}, s6 offen sc1\nbuffer_load_dword {v(ACC+5)}, {v(st+19)}, {s(rWS,4)}, s7 offen sc1')
        A(f's_add_u32 s7, {s(sLSEld)}, {LA}\nv_mov_b32 {v(st+19)}, 0\nbuffer_load_dword {v(ACC+5)}, {v(st+19)}, {s(rWS,4)}, s7 offen sc1')
        A('L_notouch:')
    A('s_waitcnt lgkmcnt(0)')
    stats_calc(st, twice=True)
    h = st + 17
    A(f'v_sub_f32 {v(h)}, {v(h)}, {v(st)}\nv_mul_f32 {v(h)}, {v(h)}, {v(st+2)}')
    A(f'v_cvt_pk_bf16_f32 {v(h)}, {v(h)}, {v(h)}')
    A(f'v_cndmask_b32 {v(A1+3)}, {v(A2+3)}, {v(h)}, {s(sMT,2)}\nv_cndmask_b32 {v(A2+1)}, {v(A2+3)}, {v(h)}, {s(sMU,2)}')
    A(f'v_and_b32 {v(st)}, 0xffff0000, {v(A1+3)}\nv_mul_f32 {v(st+1)}, {v(st)}, {v(st)}\nv_mul_f32 {v(st+2)}, {v(st+1)}, {v(st)}')
    A(f'v_and_b32 {v(st+3)}, 0xffff0000, {v(st+1)}\nv_perm_b32 {v(A1+1)}, {v(st+1)}, {v(st+1)}, {s(sSEL)}\nv_and_b32 {v(st+4)}, 0xffff0000, {v(st+2)}')
    A(f'v_sub_f32 {v(st+3)}, {v(st+1)}, {v(st+3)}\nv_sub_f32 {v(st+4)}, {v(st+2)}, {v(st+4)}\nv_perm_b32 {v(A1)}, {v(st+2)}, {v(st+2)}, {s(sSEL)}')
    A(f'v_cvt_pk_bf16_f32 {v(A1+2)}, {v(st+4)}, {v(st+3)}')
    nop(2)
    def mm2(f):
        D = T + 16*(f & 1)
        A(f'v_mfma_f32_32x32x16_bf16 {v(D,16)}, {v(A1,4)}, {v(CB+8*f,4)}, 0')
        A(f'v_mfma_f32_32x32x16_bf16 {v(D,16)}, {v(A2,4)}, {v(CB+8*f+4,4)}, {v(D,16)}')
    def m1(f): A(f'v_mfma_f32_32x32x16_bf16 {v(T+16*(f & 1),16)}, {v(A1,4)}, {v(CB+8*f,4)}, 0')
    def m2(f): A(f'v_mfma_f32_32x32x16_bf16 {v(T+16*(f & 1),16)}, {v(A2,4)}, {v(CB+8*f+4,4)}, {v(T+16*(f & 1),16)}')
    if P['mprio']: A('s_setprio 0')
    if P['ms']: stamp(4)
    mm2(0)
    for f in range(9):
        D = T + 16*(f & 1)
        nx = f + 1 < 9
        if f == 0: m1(1); nop(11)
        elif nx: nop(P['mnop']); m1(f+1)
        else: nop(P['mnop'] + 1)
        for e in range(5): A(f'v_exp_f32 {v(D+e)}, {v(D+e)}')
        A(f'v_pk_add_f32 {v(D,2)}, {v(D,2)}, 1.0 op_sel_hi:[1,0]\nv_pk_add_f32 {v(D+2,2)}, {v(D+2,2)}, 1.0 op_sel_hi:[1,0]\nv_add_f32 {v(D+4)}, 1.0, {v(D+4)}')
        if nx: m2(f+1)
        for e in range(5): A(f'v_rcp_f32 {v(D+e)}, {v(D+e)}')
        if f == 0:
            A(f'v_pk_mul_f32 {v(ACC,2)}, {v(D,2)}, {v(D+6,2)}\nv_pk_mul_f32 {v(ACC+2,2)}, {v(D+2,2)}, {v(D+8,2)}\nv_mul_f32 {v(ACC+4)}, {v(D+4)}, {v(D+10)}')
        else:
            A(f'v_pk_fma_f32 {v(ACC,2)}, {v(D,2)}, {v(D+6,2)}, {v(ACC,2)}\nv_pk_fma_f32 {v(ACC+2,2)}, {v(D+2,2)}, {v(D+8,2)}, {v(ACC+2,2)}\nv_fmac_f32 {v(ACC+4)}, {v(D+4)}, {v(D+10)}')
    if P['ms']: stamp(5)
    U = T + 16
    A(f'v_mov_b32 {v(U+4)}, {v(ACC+4)}')
    A(f'v_lshrrev_b32 {v(U)}, 6, {v(vL4)}\nv_and_b32 {v(U+1)}, 1, {v(U)}')
    A(f'v_permlane32_swap_b32 {v(ACC)}, {v(ACC+1)}\nv_permlane32_swap_b32 {v(ACC+2)}, {v(ACC+3)}\nv_permlane32_swap_b32 {v(ACC+4)}, {v(U+4)}')
    A(f'v_add_f32 {v(ACC)}, {v(ACC)}, {v(ACC+1)}\nv_add_f32 {v(ACC+2)}, {v(ACC+2)}, {v(ACC+3)}\nv_add_f32 {v(ACC+4)}, {v(ACC+4)}, {v(U+4)}')
    A(f'v_mov_b32 {v(U+4)}, {v(ACC+4)}')
    A(f'v_lshrrev_b32 {v(U)}, 1, {v(U)}\nv_lshl_add_u32 {v(U)}, {v(U+1)}, 1, {v(U)}')
    A(f'v_permlane16_swap_b32 {v(ACC)}, {v(ACC+2)}\nv_permlane16_swap_b32 {v(ACC+4)}, {v(U+4)}')
    A(f'v_add_f32 {v(ACC)}, {v(ACC)}, {v(ACC+2)}\nv_add_f32 {v(ACC+4)}, {v(ACC+4)}, {v(U+4)}')
    fill = [f's_lshl_b32 s6, {s(sW)}, 2', f's_add_u32 s6, s6, {SM+RED}', f'v_lshl_add_u32 {v(U)}, {v(U)}, 5, s6', f'v_mov_b32 {v(U+1)}, s6']
    for k, fi in zip((8, 4, 2, 1), fill):
        A(fi)
        dpp('v_add_f32', ACC, ACC, ACC, f'row_ror:{k}')
        dpp('v_add_f32', ACC+4, ACC+4, ACC+4, f'row_ror:{k}')
    A(f'ds_write_b32 {v(U)}, {v(ACC)}\nds_write_b32 {v(U+1)}, {v(ACC+4)} offset:128')
    if P['ms']: stamp(6)
    TT = T
    A(f's_cmp_lg_u32 {s(sW)}, 0\ns_cbranch_scc1 L_nofin')
    A(f'v_and_b32 {v(U)}, 28, {v(vL4)}\nv_lshl_add_u32 {v(U+1)}, {v(U)}, 3, {s(sSM)}')
    A(f's_lshl_b32 s6, {s(sE0)}, 2\ns_add_u32 s6, s6, {SM+X32}\nv_add_u32 {v(U+2)}, s6, {v(U)}\nds_read_b32 {v(U+2)}, {v(U+2)}')
    A(f'v_lshrrev_b32 {v(U+3)}, 5, {v(vL4)}\nv_mul_u32_u24 {v(U+3)}, {XDS}, {v(U+3)}\nv_add_u32 {v(U+3)}, {v(U+3)}, {v(U)}')
    A(f's_mul_i32 s6, {s(sB)}, 576\ns_add_u32 s6, s6, {s(sE0)}\ns_lshl_b32 s6, s6, 1\nv_lshrrev_b32 {v(U+5)}, 1, {v(vL4)}\nv_add_u32 {v(U+5)}, s6, {v(U+5)}')
    A(f's_lshl_b32 s6, 1, {s(sNE)}\ns_sub_u32 s6, s6, 1\ns_mul_i32 s7, s6, 0x01010101\ns_lshl_b32 s5, {s(sB2)}, 16')
    A('s_waitcnt lgkmcnt(0)\ns_barrier')
    if not P['ls']: stamp(8)
    A(f'ds_read_b128 {v(TT,4)}, {v(U+1)} offset:{RED}\nds_read_b128 {v(TT+4,4)}, {v(U+1)} offset:{RED+16}')
    A(f'v_add_f32 {v(U+2)}, s5, {v(U+2)}\ns_waitcnt lgkmcnt(0)')
    A(f'v_pk_add_f32 {v(TT,2)}, {v(TT,2)}, {v(TT+2,2)}\nv_pk_add_f32 {v(TT+4,2)}, {v(TT+4,2)}, {v(TT+6,2)}\nv_pk_add_f32 {v(TT,2)}, {v(TT,2)}, {v(TT+4,2)}')
    A(f'v_add_f32 {v(TT)}, {v(TT)}, {v(U+2)}\nv_add_f32 {v(TT)}, {v(TT)}, {v(TT+1)}')
    A(f's_cmp_lg_u32 {s(sLAY)}, 0\ns_cbranch_scc1 L_out')
    A('s_mov_b32 exec_lo, s7\ns_mov_b32 exec_hi, s7')
    A(f'buffer_store_dword {v(TT)}, {v(U+3)}, {s(rWS,4)}, {s(sXDst)} offen sc1\ns_mov_b64 exec, -1\ns_branch L_dpace')
    anchor('anf')
    A('L_nofin:\ns_waitcnt lgkmcnt(0)\ns_barrier')
    if not P['ls']: cstamp(8)
    A(f's_cmp_lg_u32 {s(sLAY)}, 0\ns_cbranch_scc1 L_fin')
    A('L_dpace:')
    A(f's_load_dwordx2 {s(pX,2)}, s[0:1], 80')
    amp(4)
    A(f'v_lshl_add_u32 {v(xad)}, {v(vT4)}, 1, {s(sSM)}\nv_add_u32 {v(xad2)}, {s(sSM)}, {v(vT4)}\nv_lshlrev_b32 {v(T+22)}, 1, {v(vT4)}')
    A(f'v_mov_b32 {v(xs_)}, 0\nv_mov_b32 {v(xs_+1)}, 0')
    A(f'v_mov_b32 {v(T+23)}, {SM+TAGW}\nds_read_b64 {v(T+24,2)}, {v(T+23)}\ns_waitcnt lgkmcnt(0)\nv_readfirstlane_b32 {s(sTG12)}, {v(T+24)}')
    if P['fast']: A(f'v_readfirstlane_b32 {s(sFAST)}, {v(T+25)}')
    for r in (sQAst, sQAld): A(f's_add_u32 {s(r)}, {s(r)}, {LQ}')
    for r in (sOBst, sLSEst, sOBld, sLSEld, sPCst, sPCld, sPCld2): A(f's_add_u32 {s(r)}, {s(r)}, {LA}')
    A(f's_mov_b32 {s(sLAY)}, 1')
    if P['dpace'] < 0: A('s_waitcnt vmcnt(0)')
    elif P['dpace']: A(f's_sleep {P["dpace"]}')
    q_prep(vXA)
    if P['stamps'] == 1 and not P['ls']: cstamp(9)
    A('s_barrier')
    A(f's_cmp_gt_u32 {s(sW)}, 4\ns_cbranch_scc1 L_gd_done')
    A(f's_cmp_eq_u32 {s(sW)}, 4\ns_cselect_b32 exec_hi, 0, -1')
    A('L_gd:')
    for k in range(2):
        A(f'buffer_load_dword {v(xs_+k)}, {v(T+22)}, {s(rWS,4)}, {s(sXDld)} offen offset:{4*k} sc1')
    A('s_waitcnt vmcnt(0)')
    check_sentinel([xs_, xs_+1], g0+2, 'L_gd_f')
    A('s_mov_b64 exec, -1')
    partial_stats(xs_, g0, vSTW, [
        f'v_cvt_pk_bf16_f32 {v(g0+2)}, {v(xs_)}, {v(xs_+1)}', f'ds_write_b64 {v(xad)}, {v(xs_,2)} offset:{X32}',
        f'v_lshlrev_b32 {v(g0+4)}, 16, {v(g0+2)}', f'v_and_b32 {v(g0+5)}, 0xffff0000, {v(g0+2)}',
        f'ds_write_b32 {v(xad2)}, {v(g0+2)} offset:{XH}', f'v_sub_f32 {v(g0+4)}, {v(xs_)}, {v(g0+4)}',
        f'v_sub_f32 {v(g0+5)}, {v(xs_+1)}, {v(g0+5)}', f'v_cvt_pk_bf16_f32 {v(g0+4)}, {v(g0+4)}, {v(g0+5)}',
        f'ds_write_b32 {v(xad2)}, {v(g0+4)} offset:{XL}'])
    A('s_waitcnt lgkmcnt(0)')
    A('L_gd_done:\ns_barrier')
    if P['stamps'] == 1:
        A('s_waitcnt lgkmcnt(0)')
        emit_stamps(A, 0)
        stamp(0)
    A(f's_cmp_lt_u32 {s(sW)}, 4\ns_cbranch_scc1 L_attn')
    q_stage(vXA)
    stamp(2)
    o_addr()
    A('s_barrier\ns_barrier\ns_branch L_wo')
    A('L_gc_f:')
    tmo_check(2)
    A('s_branch L_gc')
    A('L_gd_f:')
    tmo_check(3)
    A('s_branch L_gd')
    A('L_out:')
    A(f's_mov_b32 exec_lo, s6\ns_mov_b32 exec_hi, 0\nv_cvt_pk_bf16_f32 {v(TT)}, {v(TT)}, {v(TT)}')
    A(f'global_store_short {v(U+5)}, {v(TT)}, {s(pX,2)}')
    if P['amp'] >= 0:
        amp(5)
        A('s_memrealtime s[86:87]\ns_waitcnt lgkmcnt(0)\ns_sub_u32 s84, s84, s82\ns_lshl_b32 s84, s84, 2\ns_add_u32 s86, s86, s84')
        A('L_amp:\ns_memrealtime s[88:89]\ns_waitcnt lgkmcnt(0)\ns_sub_u32 s88, s88, s86\ns_cmp_lt_i32 s88, 0\ns_cbranch_scc1 L_amp')
    A('L_fin:')
    if P['stamps']:
        A('s_mov_b64 exec, -1\ns_waitcnt vmcnt(0)')
        stamp(9, True)
        A('s_waitcnt lgkmcnt(0)')
        if P['stamps'] in (1, 3):
            emit_stamps(A, 1)
    A('L_end:\ns_endpgm')
    A('L_centry:')
    lane_ids()
    A(f's_mul_i32 s6, {s(sB)}, 1152\nv_add_u32 {v(T+16)}, s6, {v(vT4)}')
    A(f'v_and_b32 {v(T+18)}, 31, {v(vl)}\nv_lshl_add_u32 {v(T+17)}, {v(T+18)}, 2, s6\nv_mov_b32 {v(T+19)}, {EPO}\ns_waitcnt lgkmcnt(0)')
    A(f'global_load_dword {v(T+12)}, {v(T+16)}, s[56:57]\nglobal_load_dword {v(T+13)}, {v(T+17)}, s[56:57] offset:1024')
    A(f'global_load_dword {v(T+14)}, {v(T+19)}, {s(pWS,2)} sc1')
    if P['pure'] & 4:
        A(f's_cmp_lg_u32 {s(sW)}, 0\ns_cbranch_scc1 L_pp')
        A(f'v_mov_b32 {v(T+4)}, 0\nv_add_u32 {v(T+5)}, {SM}, {v(vL4)}\nds_write_b32 {v(T+5)}, {v(T+4)} offset:{FLAGS}')
        A('L_pp:\ns_waitcnt lgkmcnt(0)\ns_barrier'); emit_stamps(A, 0); A('s_endpgm')
    if P['prefetch']:
        A(f's_getpc_b64 s[4:5]\nL_pc:\ns_sub_u32 s4, s4, L_pc-{NAME}_kernel\ns_subb_u32 s5, s5, 0')
        A(f's_lshr_b32 s7, s2, 3\ns_lshl_b32 s7, s7, 2\ns_add_u32 s7, s7, {s(sW)}\ns_mul_i32 s7, s7, 192')
        A(f's_mov_b64 exec, 7\nv_lshl_add_u32 {v(T+15)}, {v(vl)}, 6, s7\nv_min_u32 {v(T+15)}, L_last-{NAME}_kernel, {v(T+15)}')
        A(f'global_load_dword {v(CB+70)}, {v(T+15)}, s[4:5]\ns_mov_b64 exec, -1')
    NRC = 0
    if P['rawc'] == 1:
        raw_loads(dst=CB+50, ptrs=(68, 70, 72), t=T+20); NRC = 15
    A(f's_cmp_lg_u32 {s(sW)}, 0\ns_cbranch_scc1 L_noinit')
    A(f'v_mov_b32 {v(T+4)}, 0\nv_add_u32 {v(T+5)}, {SM}, {v(vL4)}\nds_write_b32 {v(T+5)}, {v(T+4)} offset:{FLAGS}\nds_write_b32 {v(T+5)}, {v(T+4)} offset:{ZERO}')
    A(f'v_mov_b32 {v(T+4)}, 0x3f803f80\nds_write_b32 {v(T+5)}, {v(T+4)} offset:{ONES}\nds_write_b32 {v(T+5)}, {v(T+4)} offset:{ONES+256}')
    A('L_noinit:\ns_waitcnt lgkmcnt(0)')
    def c_setup():
        A(f'v_bfe_u32 {v(T+4)}, {v(vj)}, 2, 1\nv_mul_u32_u24 {v(T+4)}, {HS}, {v(T+4)}')
        A(f'v_lshl_add_u32 {v(vQF)}, {v(vg)}, 4, {v(T+4)}\nv_add_u32 {v(vQF)}, {SM}, {v(vQF)}')
        A(f's_lshl_b32 s6, {s(sW)}, 7\ns_add_u32 s6, s6, {SM+PB}')
        A(f'v_mul_u32_u24 {v(vPW)}, {HS}, {v(T+6)}\nv_add3_u32 {v(vPW)}, {v(vPW)}, {v(T+7)}, s6')
        A(f'v_lshl_add_u32 {v(vOBS)}, {v(T+6)}, 11, {v(T+7)}')
    if P['spl']:
        assert not P['shs']
        setup_a()
    else:
        A(f's_mov_b32 {s(sGOK)}, 0\nL_setup:')
        common_setup()
        if P['shs']: A(f's_cmp_lg_u32 {s(sGOK)}, 0\ns_cbranch_scc1 L_setup_ret')
    if P['cprio']: A(f's_setprio {P["cprio"]}')
    if not P['spl']: c_setup()
    if P['spl'] & 2:
        xa_addr(CB, T+20); wq_addr(T+20)
    if not P['pure'] & 8: A(f's_cmp_eq_u32 {s(sW)}, 3\ns_cbranch_scc1 L_clr')
    A(f's_waitcnt vmcnt({NRC + (1 if P["prefetch"] else 0)})')
    A('s_branch L_cdone')
    A('L_clr:')
    for i in range(4): A(f'v_mov_b32 {v(T+8+i)}, -1')
    A(f's_mul_i32 s6, s2, 3328\ns_add_u32 s6, s6, {AR0}\nv_lshlrev_b32 {v(T+19)}, 2, {v(vL4)}')
    A(f'buffer_store_dwordx4 {v(T+8,4)}, {v(T+19)}, {s(rWS,4)}, s6 offen sc1\nbuffer_store_dwordx4 {v(T+8,4)}, {v(T+19)}, {s(rWS,4)}, s6 offen offset:1024 sc1')
    A(f'buffer_store_dwordx4 {v(T+8,4)}, {v(T+19)}, {s(rWS,4)}, s6 offen offset:2048 sc1')
    A(f's_mov_b64 exec, 0xffff\nbuffer_store_dwordx4 {v(T+8,4)}, {v(T+19)}, {s(rWS,4)}, s6 offen offset:3072 sc1\ns_mov_b64 exec, -1')
    A(f's_waitcnt vmcnt({NRC + (5 if P["prefetch"] else 4)})')
    A('L_cdone:')
    if P['d2'] == 3: stamp(7)
    A(f'v_readfirstlane_b32 {s(sTAG)}, {v(T+14)}')
    xa = T + 4
    def x_pair(src, areg):
        A(f'v_lshlrev_b32 {v(xa)}, 16, {v(src)}\nv_and_b32 {v(xa+1)}, 0xffff0000, {v(src)}\nv_mov_b32 {v(xa+2)}, 0')
        A(f'v_lshl_add_u32 {v(xa+3)}, {v(areg)}, 1, {s(sSM)}\nv_add_u32 {v(xa+4)}, {s(sSM)}, {v(areg)}')
        A(f'ds_write_b64 {v(xa+3)}, {v(xa,2)} offset:{X32}\nds_write_b32 {v(xa+4)}, {v(src)} offset:{XH}\nds_write_b32 {v(xa+4)}, {v(xa+2)} offset:{XL}')
    x_pair(T+12, vT4)
    partial_stats(xa, xa+6, vSTW)
    A(f's_mul_i32 {s(sTAG)}, {s(sTAG)}, 0x9e3779b1\ns_add_u32 {s(sTAG)}, {s(sTAG)}, 0x7f4a7c15\ns_and_b32 {s(sTAG)}, {s(sTAG)}, 0x1fffffff\ns_and_b32 {s(sTG12)}, {s(sTAG)}, 0xfff')
    A(f's_cmp_lg_u32 {s(sW)}, 0\ns_cbranch_scc1 L_noextra')
    A(f'v_lshlrev_b32 {v(T+18)}, 2, {v(T+18)}\nv_add_u32 {v(T+18)}, 1024, {v(T+18)}')
    x_pair(T+13, T+18)
    A(f'v_cndmask_b32 {v(xa)}, {v(xa)}, {v(xa+2)}, {s(sMHI,2)}\nv_cndmask_b32 {v(xa+1)}, {v(xa+1)}, {v(xa+2)}, {s(sMHI,2)}')
    A(f'v_add_u32 {v(T+18)}, 32, {v(vSTW)}\nv_min_u32 {v(T+18)}, {SM+DUMMY}, {v(T+18)}')
    partial_stats(xa, xa+6, T+18)
    A(f'v_mov_b32 {v(xa)}, {s(sTG12)}\nv_mov_b32 {v(xa+1)}, {SM+TAGW}\nds_write_b32 {v(xa+1)}, {v(xa)}')
    A('L_noextra:')
    A('s_waitcnt lgkmcnt(0)')
    amp(1)
    if not P['spl'] & 2:
        xa_addr(CB, T); wq_addr(T)
    if P['rawc'] == 2: raw_loads(dst=CB+50, t=T+20)
    if P['d2'] == 3: stamp(8)
    A('s_barrier')
    if P['rawc'] == 3: raw_loads(dst=CB+50, t=T+20)
    if P['pure'] & 1:
        A('s_waitcnt lgkmcnt(0)'); emit_stamps(A, 0); A('s_endpgm')
    wq_reads(T+20 if P['spl'] & 2 else T)
    A(f's_cmp_lg_u32 {s(sW)}, 3\ns_cbranch_scc1 L_noarr')
    A(f's_lshl_b32 s6, {s(sXCC)}, 29\ns_or_b32 s6, s6, {s(sTAG)}\nv_mov_b32 {v(T+8)}, s6')
    A(f's_lshl_b32 s6, {s(sX)}, 7\ns_lshr_b32 s7, s2, 3\ns_lshl_b32 s7, s7, 2\ns_add_u32 s6, s6, s7\ns_add_u32 s6, s6, {ARR}\nv_mov_b32 {v(T+9)}, s6')
    A(f's_waitcnt vmcnt({15 if P["rawc"] >= 2 else 0})\ns_mov_b64 exec, 1\nbuffer_store_dword {v(T+8)}, {v(T+9)}, {s(rWS,4)}, 0 offen sc1\ns_mov_b64 exec, -1')
    A('L_noarr:\ns_waitcnt lgkmcnt(0)')
    signal(F_WQ)
    q_prep(CB)
    q_stage(CB, (lambda: None) if P['xp'] & 2 or P['rawc'] else raw_loads)
    stamp(9)
    if P['spl']:
        setup_b(True); c_setup()
    ga, gc, pa, qw = T+8, T+12, T+36, T+35
    def ga_issue():
        for kq in range(4):
            A(f'buffer_load_dword {v(ga+kq)}, {v(vT4)}, {s(rWS,4)}, {s(sQC)} offen offset:{1024*kq} sc1')
    def gchk_issue():
        A(f'v_lshlrev_b32 {v(gc+4)}, 2, {v(vL4)}\nv_add_u32 {v(gc+4)}, {ARR}, {v(gc+4)}')
        A(f'buffer_load_dwordx4 {v(gc,4)}, {v(gc+4)}, {s(rWS,4)}, 0 offen sc1')
    def gchk_test(lfail):
        for k in range(4): A(f'v_xor_b32 {v(gc+k)}, {s(sTAG)}, {v(gc+k)}')
        A(f'v_or3_b32 {v(gc+5)}, {v(gc)}, {v(gc+1)}, {v(gc+2)}\nv_or_b32 {v(gc+5)}, {v(gc+5)}, {v(gc+3)}\nv_and_b32 {v(gc+6)}, 0x1fffffff, {v(gc+5)}')
        A(f'v_cmp_ne_u32 vcc, 0, {v(gc+6)}\ns_cbranch_vccnz {lfail}')
        if P['fast']:
            A(f's_lshl_b32 s6, {s(sXCC)}, 29')
            for k in range(4): A(f'v_xor_b32 {v(gc+k)}, s6, {v(gc+k)}')
            A(f'v_or3_b32 {v(gc+5)}, {v(gc)}, {v(gc+1)}, {v(gc+2)}\nv_or_b32 {v(gc+5)}, {v(gc+5)}, {v(gc+3)}')
            A(f'v_cmp_ne_u32 vcc, 0, {v(gc+5)}\ns_lshl_b32 s6, {s(sX)}, 3\ns_lshr_b64 vcc, vcc, s6')
            A(f's_and_b32 s6, vcc_lo, 0xff\ns_cselect_b32 {s(sFAST)}, 0, 1')
            A(f'v_mov_b32 {v(gc)}, {s(sFAST)}\nv_mov_b32 {v(gc+1)}, {SM+TAGW+4}\nds_write_b32 {v(gc+1)}, {v(gc)}')
        A(f's_mov_b32 {s(sGOK)}, 1')
    def q_copy():
        A(f's_add_u32 s7, {s(sQAst)}, {QAB}\ns_mov_b64 exec, 0xffff')
        A(f'buffer_load_dword {v(gc+7)}, {v(vL4)}, {s(rWS,4)}, {s(sQAst)} offen sc1\nbuffer_load_dword {v(gc+8)}, {v(vL4)}, {s(rWS,4)}, {s(sQAst)} offen offset:64 sc1')
        A(f's_waitcnt vmcnt(0)\nbuffer_store_dword {v(gc+7)}, {v(vL4)}, {s(rWS,4)}, s7 offen sc1\nbuffer_store_dword {v(gc+8)}, {v(vL4)}, {s(rWS,4)}, s7 offen offset:64 sc1')
        A('s_mov_b64 exec, -1')
    def attn_addr():
        A(f'v_bfe_u32 {v(T+6)}, {v(vL4)}, 2, 2\nv_lshrrev_b32 {v(T+7)}, 6, {v(vL4)}\nv_lshlrev_b32 {v(T+7)}, 4, {v(T+7)}\nv_add_u32 {v(T+7)}, {SM+ZERO}, {v(T+7)}')
        for k in range(4):
            A(f'v_cmp_eq_u32 vcc, {k}, {v(T+6)}\nv_add_u32 {v(T+5)}, {PB+128*k}, {v(vQF)}')
            nop(1)
            A(f'v_cndmask_b32 {v(pa+k)}, {v(T+7)}, {v(T+5)}, vcc')
        A(f'v_lshrrev_b32 {v(qw)}, 7, v0\nv_mul_u32_u24 {v(qw)}, {HS-256}, {v(qw)}\nv_lshl_add_u32 {v(qw)}, v0, 1, {v(qw)}\nv_add_u32 {v(qw)}, {SM+QB}, {v(qw)}')
    A(f's_mov_b32 {s(sQC)}, {s(sQAld)}\ns_mov_b32 {s(sKD)}, 0\ns_mov_b32 {s(sPOL)}, {P["npa"]}\ns_mov_b32 {s(sGOK)}, 0')
    A('s_waitcnt vmcnt(0)')
    if P['ega']: ga_issue()
    if P['egchk']: gchk_issue()
    if P['rawc']:
        for k in range(15): A(f'v_mov_b32 {v(RAW+k)}, {v(CB+50+k)}')
    for ins in coef_build(): A(ins)
    attn_addr()
    stamp(1)
    if not P['ega']: ga_issue()
    A('s_waitcnt vmcnt(0)')
    if P['egchk']: gchk_test('L_ga_w')
    A('s_branch L_ga_w')

    anchor('aat')
    A('L_attn:')
    A(f's_mov_b32 {s(sQC)}, {s(sQAld)}\ns_mov_b32 {s(sKD)}, 1\ns_mov_b32 {s(sPOL)}, -1')
    A(f's_cmp_lg_u32 {s(sFAST)}, 0\ns_cbranch_scc1 L_ga0\ns_add_u32 {s(sQC)}, {s(sQC)}, {QAB}')
    A('L_ga0:')
    attn_addr()
    A('L_ga:')
    ga_issue()
    A('s_waitcnt vmcnt(0)')
    A('L_ga_w:')
    for k in range(4): A(f'v_xor_b32 {v(ga+k)}, {s(sTG12)}, {v(ga+k)}')
    A(f'v_or3_b32 {v(T+4)}, {v(ga)}, {v(ga+1)}, {v(ga+2)}\nv_or_b32 {v(T+4)}, {v(T+4)}, {v(ga+3)}\nv_and_b32 {v(T+4)}, 0xfff, {v(T+4)}')
    A(f'v_add_f32 {v(T)}, {v(ga)}, {v(ga+1)}\nv_add_f32 {v(T+2)}, {v(ga+2)}, {v(ga+3)}')
    A(f'v_cmp_ne_u32 vcc, 0, {v(T+4)}\nv_add_f32 {v(T)}, {v(T)}, {v(T+2)}\ns_cbranch_vccnz L_ga_f')
    A(f'v_cvt_pk_bf16_f32 {v(T)}, {v(T)}, {v(T)}\nds_write_b16 {v(qw)}, {v(T)}\ns_waitcnt lgkmcnt(0)')
    stamp(3)
    A(f's_cmp_lg_u32 {s(sLAY)}, 0\ns_cbranch_scc1 L_qbar')
    signal(F_Q)
    A(f's_cmp_lg_u32 {s(sKD)}, 0\ns_cbranch_scc1 L_kdone')
    wait_flag(F_K)
    A(f's_mov_b32 {s(sKD)}, 2')
    A('L_kread:')
    kt = T + 8
    A(f'v_bfe_u32 {v(kt)}, {v(vL4)}, 2, 4\nv_lshrrev_b32 {v(kt+1)}, 6, {v(vL4)}\ns_lshl_b32 s6, {s(sW)}, 14')
    A(f'v_lshl_add_u32 {v(kt+2)}, {v(kt)}, 8, s6')
    for ks in range(4):
        A(f'v_add_u32 {v(kt+3)}, {4*ks}, {v(kt+1)}\nv_xor_b32 {v(kt+3)}, {v(kt+3)}, {v(kt)}\nv_lshl_add_u32 {v(kt+4+ks)}, {v(kt+3)}, 4, {v(kt+2)}')
        for tt in range(4):
            A(f'ds_read_b128 {a(aK+16*tt+4*ks,4)}, {v(kt+4+ks)} offset:{KB+4096*tt}')
    A('s_waitcnt lgkmcnt(0)')
    signal(F_KR)
    A(f's_cmp_eq_u32 {s(sKD)}, 1\ns_cbranch_scc1 L_ga')
    A('L_kdone:')
    amp(6)
    A(f's_mov_b32 {s(sPOL)}, 48\nv_mov_b32 {v(FT+5)}, {SM+FLAGS}\nL_fq:')
    flag_test(F_Q)
    A('s_cbranch_vccnz L_qk')
    tmo_check()
    A(f's_sub_u32 {s(sPOL)}, {s(sPOL)}, 1\ns_cmp_lg_u32 {s(sPOL)}, 0\ns_cbranch_scc1 L_fq')
    q_copy()
    A('s_branch L_fq')
    A('L_ga_f:')
    tmo_check(0)
    A(f's_sub_u32 {s(sPOL)}, {s(sPOL)}, 1\ns_cmp_lg_u32 {s(sPOL)}, 0\ns_cbranch_scc1 L_ga_f2\ns_add_u32 {s(sQC)}, {s(sQC)}, {QAB}')
    q_copy()
    A(f'L_ga_f2:\ns_cmp_lg_u32 {s(sKD)}, 0\ns_cbranch_scc1 L_ga')
    A(f'v_mov_b32 {v(FT+5)}, {SM+FLAGS}')
    flag_test(F_K)
    A(f's_cbranch_vccz L_ga\ns_mov_b32 {s(sKD)}, 1\ns_branch L_kread')
    anchor('aqb')
    A('L_qbar:\ns_barrier')
    A('L_qk:')
    qf, DS = T, T+16
    for ks in range(4):
        A(f'ds_read_b128 {v(qf+4*ks,4)}, {v(vQF)} offset:{QB+64*ks}')
    for ks in range(4):
        A(f's_waitcnt lgkmcnt({3-ks})')
        for tt in range(4):
            A(f'v_mfma_f32_16x16x32_bf16 {v(DS+4*tt,4)}, {v(qf+4*ks,4)}, {a(aK+16*tt+4*ks,4)}, {v(DS+4*tt,4) if ks else 0}')
    sa, sb, mx, t0 = T+32, T+33, T+34, T+35
    A(f's_lshl_b32 s6, {s(sW)}, 3\nv_add_u32 {v(T)}, s6, {v(vMLR)}')
    nop(4)
    A(f'v_cndmask_b32 {v(sa)}, {v(DS)}, {v(DS+4)}, {s(sMHI,2)}')
    nop(2)
    A(f'v_cndmask_b32 {v(sb)}, {v(DS+8)}, {v(DS+12)}, {s(sMHI,2)}')
    A(f'v_max_f32 {v(mx)}, {v(sa)}, {v(sb)}')
    for k in (8, 4, 2, 1):
        nop(2); dpp('v_max_f32', mx, mx, mx, f'row_ror:{k}')
    A(f'v_mov_b32 {v(t0)}, {v(mx)}')
    nop(2)
    A(f'v_permlane32_swap_b32 {v(mx)}, {v(t0)}\nv_max_f32 {v(mx)}, {v(mx)}, {v(t0)}')
    A(f'v_sub_f32 {v(sa)}, {v(sa)}, {v(mx)}\nv_sub_f32 {v(sb)}, {v(sb)}, {v(mx)}\nv_exp_f32 {v(sa)}, {v(sa)}\nv_exp_f32 {v(sb)}, {v(sb)}')
    nop(1)
    A(f'v_cvt_pk_bf16_f32 {v(sa)}, {v(sa)}, {v(sb)}')
    A(f'v_lshlrev_b32 {v(sb)}, 16, {v(sa)}\nv_and_b32 {v(t0)}, 0xffff0000, {v(sa)}\nv_add_f32 {v(t0)}, {v(t0)}, {v(sb)}')
    A(f'ds_write_b16 {v(vPW)}, {v(sa)}\nds_write_b16_d16_hi {v(vPW)}, {v(sa)} offset:64')
    for k in (8, 4, 2, 1):
        dpp('v_add_f32', t0, t0, t0, f'row_ror:{k}')
        if k > 1: nop(2)
    A(f'v_mov_b32 {v(sb)}, {v(t0)}')
    nop(2)
    A(f'v_permlane32_swap_b32 {v(t0)}, {v(sb)}\nv_add_f32 {v(t0)}, {v(t0)}, {v(sb)}')
    A(f'ds_write_b64 {v(T)}, {v(mx,2)}\ns_waitcnt lgkmcnt(0)')
    stamp(4)
    A(f's_cmp_lg_u32 {s(sLAY)}, 0\ns_cbranch_scc1 L_pbar')
    signal(F_P)
    A(f's_cmp_lg_u32 {s(sGOK)}, 0\ns_cbranch_scc1 L_gchk_n')
    A('L_gchk:')
    gchk_issue()
    A('L_gchk_n:')
    for tt in range(2):
        A(f's_lshl_b32 s6, {s(sW)}, 1\ns_add_u32 s6, s6, {tt}')
        tr_addr(T+4+tt, 6, 3, 0, VB, T)
    vt = T + 4
    def v_reads(ks):
        return [f'ds_read_b64_tr_b16 {a(aV+32*tt+4*ks+2*hh,2)}, {v(vt+tt)} offset:{ks*8192+hh*1024}' for tt in range(2) for hh in range(2)]
    pf, DO, ml = T, T+20, T+28
    NB = 5
    M_, L_ = T+40, T+41
    def ml_chain():
        chain = [f'v_max3_f32 {v(M_)}, {v(ml)}, {v(ml+2)}, {v(ml+4)}', f'v_max_f32 {v(M_)}, {v(M_)}, {v(ml+6)}']
        chain += [f'v_sub_f32 {v(ml+2*k)}, {v(ml+2*k)}, {v(M_)}' for k in range(4)]
        chain += [f'v_exp_f32 {v(ml+2*k)}, {v(ml+2*k)}' for k in range(4)]
        chain += [f'v_mul_f32 {v(L_)}, {v(ml)}, {v(ml+1)}'] + [f'v_fmac_f32 {v(L_)}, {v(ml+2*k)}, {v(ml+2*k+1)}' for k in range(1, 4)]
        return chain + [f'v_rcp_f32 {v(ml+1)}, {v(L_)}', f'v_log_f32 {v(L_)}, {v(L_)}']
    def pv_mfma(ks, r, tt):
        D = DO + 4*tt
        A(f'v_mfma_f32_16x16x32_bf16 {v(D,4)}, {v(r,4)}, {a(aV+32*tt+4*ks,4)}, {v(D,4) if ks else 0}')
    if not P['vs1']:
        wait_flag(F_V)
        if P['ls']: stamp(2)
        for ks in range(8):
            for ins in v_reads(ks): A(ins)
    A(f's_cmp_lg_u32 {s(sGOK)}, 0\ns_cbranch_scc1 L_gchk_d\ns_waitcnt vmcnt(0)')
    gchk_test('L_gchk_f')
    A('L_gchk_d:')
    A(f's_cmp_lg_u32 {s(sFAST)}, 0\ns_cbranch_scc1 L_nocopy')
    q_copy()
    A('L_nocopy:')
    if P['touch0']:
        A(f'v_lshlrev_b32 {v(T+16)}, 4, {v(vL4)}\nv_and_b32 {v(T+16)}, 0x7c0, {v(T+16)}\nv_mov_b32 {v(T+17)}, 0')
        A(f'buffer_load_dword {v(T+16)}, {v(T+16)}, {s(rWS,4)}, {s(sOBld)} offen sc1\nbuffer_load_dword {v(T+17)}, {v(T+17)}, {s(rWS,4)}, {s(sLSEld)} offen sc1')
    if P['ls'] and P['d2'] != 3: stamp(7)
    wait_flag(F_P, sleep=0)
    if P['ls'] and P['d2'] != 3: stamp(8)
    if not P['vs1']:
        A('s_branch L_pv')
    elif P['upv']:
        assert P['vbar']
        n1 = P['vs1'] // 2
        wait_flag(F_V1)
        vt = T + 42
        A(f'v_mov_b32 {v(vt)}, {v(T+4)}\nv_mov_b32 {v(vt+1)}, {v(T+5)}')
        for ks in range(n1):
            for ins in v_reads(ks): A(ins)
        A('s_branch L_pv\nL_pv0:\ns_barrier')
        if P['ls']: stamp(2)
        for ks in range(n1, 8):
            for ins in v_reads(ks): A(ins)
        A('s_waitcnt lgkmcnt(0)\ns_branch L_pv1')
    else:
        n1 = P['vs1'] // 2
        A(f'v_mov_b32 {v(T+18)}, {v(T+4)}\nv_mov_b32 {v(T+19)}, {v(T+5)}')
        vt = T + 18
        wait_flag(F_V1)
        NB0 = 4
        q = []
        def rd(ins, key): A(ins); q.append(key)
        def need(keys):
            last = max(i_ for i_, k_ in enumerate(q) if k_ in keys)
            A(f's_waitcnt lgkmcnt({min(14, len(q) - 1 - last)})')
        def p_read(ks): rd(f'ds_read_b128 {v(pf+4*(ks % NB0),4)}, {v(pa+(ks >> 1))} offset:{64*(ks & 1)}', ('P', ks))
        rd(f'ds_read_b128 {v(ml,4)}, {v(vMLR)}', 'ml'); rd(f'ds_read_b128 {v(ml+4,4)}, {v(vMLR)} offset:16', 'ml')
        for ks in range(n1):
            if ks < NB0: p_read(ks)
            for ins in v_reads(ks): rd(ins, ('V', ks))
        for ks in range(n1):
            need([('P', ks), ('V', ks)])
            for tt in range(2): pv_mfma(ks, pf+4*(ks % NB0), tt)
            if ks + NB0 < 8: p_read(ks + NB0)
        if P['vbar']: A('s_waitcnt lgkmcnt(0)')
        chain = ml_chain()
        if P['vbar']:
            for ins in chain: A(ins)
            chain = []
            A('s_barrier')
        else:
            wait_flag(F_V, sleep=P['vsl'])
        if P['ls']: stamp(2)
        q = []
        for ks in range(n1, 8):
            for ins in v_reads(ks): rd(ins, ('V', ks))
        for ins in chain: A(ins)
        for ks in range(n1, 8):
            need([('V', ks)])
            for tt in range(2): pv_mfma(ks, pf+4*(ks % NB0), tt)
        A('s_branch L_pvt')
    A('L_gchk_f:')
    tmo_check()
    A('s_branch L_gchk')
    anchor('apb')
    A('L_pbar:\ns_barrier')
    A('L_pv:')
    A(f'ds_read_b128 {v(ml,4)}, {v(vMLR)}\nds_read_b128 {v(ml+4,4)}, {v(vMLR)} offset:16')
    for ks in range(NB):
        A(f'ds_read_b128 {v(pf+4*ks,4)}, {v(pa+(ks >> 1))} offset:{64*(ks & 1)}')
    chain = ml_chain()
    for ks in range(8):
        r = pf + 4*(ks % NB)
        if P['vs1'] and P['upv'] and ks == P['vs1'] // 2:
            A(f's_cmp_eq_u32 {s(sLAY)}, 0\ns_cbranch_scc1 L_pv0\nL_pv1:')
        A(f's_waitcnt lgkmcnt({min(NB-1, 7-ks)})')
        for tt in range(2):
            D = DO + 4*tt
            A(f'v_mfma_f32_16x16x32_bf16 {v(D,4)}, {v(r,4)}, {a(aV+32*tt+4*ks,4)}, {v(D,4) if ks else 0}')
            A(chain.pop(0))
        if ks + NB < 8:
            A(f'ds_read_b128 {v(r,4)}, {v(pa+((ks+NB) >> 1))} offset:{64*((ks+NB) & 1)}')
    assert not chain
    A('L_pvt:')
    A(f'v_lshrrev_b32 {v(T)}, 1, {v(vL4)}\nv_add_f32 {v(L_)}, {v(L_)}, {v(M_)}')
    nop(5)
    for k in range(4): A(f'v_cndmask_b32 {v(DO+k)}, {v(DO+k)}, {v(DO+4+k)}, {s(sMHI,2)}')
    A(f'v_mul_f32 {v(DO)}, {v(DO)}, {v(ml)}')
    for k in range(1, 4): A(f'v_fmac_f32 {v(DO)}, {v(DO+k)}, {v(ml+2*k)}')
    A(f'v_mul_f32 {v(DO)}, {v(DO)}, {v(ml+1)}')
    nop(2)
    A(f'v_mov_b32_dpp {v(DO+1)}, {v(DO)} quad_perm:[1,0,3,2] row_mask:0xf bank_mask:0xf')
    A(f's_mov_b32 exec_lo, 0x55555555\ns_mov_b32 exec_hi, 0x55555555')
    A(f'v_cvt_pk_bf16_f32 {v(DO)}, {v(DO)}, {v(DO+1)}')
    def o_st(m):
        A(f'buffer_store_dword {v(DO)}, {v(vOBS)}, {s(rWS,4)}, {s(sOBst)} offen{m}')
        l = A.label('nolse')
        A(f's_cmp_lg_u32 {s(sW)}, 0\ns_cbranch_scc1 {l}\ns_mov_b64 exec, 0x10001')
        A(f'buffer_store_dword {v(L_)}, {v(T)}, {s(rWS,4)}, {s(sLSEst)} offen{m}')
        A(f'{l}:\ns_mov_b64 exec, -1')
    A(f's_cmp_eq_u32 {s(sFAST)}, 0\ns_cbranch_scc1 L_o_slow')
    o_st('')
    A('L_o_done:')
    stamp(5)
    A(f'v_and_b32 {v(T+9)}, 28, {v(vL4)}\nv_add_u32 {v(T+13)}, {s(sSM)}, {v(vT4)}')
    if P['bpace'] == 1: A('s_waitcnt vmcnt(0)')
    if P['bpace'] == 2: A(f's_cmp_eq_u32 {s(sLAY)}, 0\ns_cbranch_scc1 L_gb\ns_waitcnt vmcnt(0)')
    A('L_gb:')
    for k in range(8):
        A(f'buffer_load_dword {v(T+k)}, {v(vL4)}, {s(rWS,4)}, {s(sOBld)} offen offset:{256*k} sc1')
    A(f'buffer_load_dword {v(T+8)}, {v(T+9)}, {s(rWS,4)}, {s(sLSEld)} offen sc1')
    if P['hold']: A(f's_cmp_lg_u32 {s(sGOK)}, 1\ns_cbranch_scc1 L_gb_w\ns_mov_b32 {s(sGOK)}, 2\ns_barrier\nL_gb_w:')
    A('s_waitcnt vmcnt(0)')
    mm, ff = T+10, T+8
    check_sentinel(range(T, T+9), T+11, 'L_gb_f')
    dpp('v_max_f32', mm, ff, ff, 'row_ror:4')
    unp = [f'v_lshlrev_b32 {v(T+16+k)}, 16, {v(T+k)}\nv_and_b32 {v(T+k)}, 0xffff0000, {v(T+k)}' for k in range(8)]
    A(unp[0]); dpp('v_max_f32', mm, mm, mm, 'row_ror:2')
    A(unp[1]); dpp('v_max_f32', mm, mm, mm, 'row_ror:1')
    A(f'v_sub_f32 {v(ff)}, {v(ff)}, {v(mm)}\nv_exp_f32 {v(ff)}, {v(ff)}')
    A(unp[2]); dpp('v_add_f32', mm, ff, ff, 'row_ror:4')
    A(unp[3]); dpp('v_add_f32', mm, mm, mm, 'row_ror:2')
    A(unp[4]); dpp('v_add_f32', mm, mm, mm, 'row_ror:1')
    A(f'v_rcp_f32 {v(mm)}, {v(mm)}')
    A(unp[5])
    A(f'v_mul_f32 {v(ff)}, {v(ff)}, {v(mm)}')
    A(unp[6]); A(unp[7])
    lo, hi = T+11, T+12
    for k in range(8):
        op = 'v_mul_f32' if k == 0 else 'v_fmac_f32'
        dpp(op, lo, ff, T+16+k, f'row_newbcast:{k}')
        dpp(op, hi, ff, T+k, f'row_newbcast:{k}')
    A(f'v_cvt_pk_bf16_f32 {v(lo)}, {v(lo)}, {v(hi)}\nds_write_b32 {v(T+13)}, {v(lo)} offset:{OL}')
    A('s_waitcnt lgkmcnt(0)\ns_barrier')
    stamp(6)
    if P['amp'] == 3: A(f's_cmp_lg_u32 {s(sLAY)}, 0\ns_cbranch_scc1 L_amp3'); amp(3); A('L_amp3:')
    A(f's_or_b32 s6, s2, {s(sW)}\ns_or_b32 s6, s6, {s(sLAY)}\ns_cmp_lg_u32 s6, 0\ns_cbranch_scc1 L_cbar')
    A(f'v_mov_b32 {v(T)}, {s(sTAG)}\nv_mov_b32 {v(T+1)}, {EPO}\ns_mov_b64 exec, 1')
    A(f'buffer_store_dword {v(T)}, {v(T+1)}, {s(rWS,4)}, 0 offen sc1\ns_mov_b64 exec, -1\ns_branch L_cbar')
    A('L_o_slow:')
    o_st(' sc1')
    A('s_waitcnt vmcnt(0)\ns_branch L_o_done')
    A('L_gb_f:')
    tmo_check(1)
    A('s_branch L_gb')
    A('L_last:\ns_endpgm')
    hdr = open('cdna_kernels/' + NAME + '.s.ref').read().split('; Override launch')[0].rstrip('\n').split('\n')
    return wrap(A.text(), hdr, 256, 512, LDS_BYTES, 256, 128)


def emit_stamps(A, layer):
    A(f's_lshl_b32 s6, s2, 3\ns_add_u32 s6, s6, {s(sW)}\ns_lshl_b32 s6, s6, 7\ns_add_u32 s6, s6, {STAMP + 64*layer}')
    A(f'v_mov_b32 {v(T)}, s6')
    for i in range(10):
        A(f'v_mov_b32 {v(T+1)}, {s(sSTP+2*i)}\nglobal_store_dword {v(T)}, {v(T+1)}, {s(pWS,2)} offset:{4*i}')
    A(f'v_mov_b32 {v(T+1)}, {s(sCNT)}\nglobal_store_dword {v(T)}, {v(T+1)}, {s(pWS,2)} offset:40\ns_mov_b32 {s(sCNT)}, 0')


if __name__ == '__main__':
    out = sys.argv[1]
    kw = {}
    for x in sys.argv[2:]:
        k, val = x.split('='); kw[k] = val if k == 'order' else int(val, 0)
    open(out, 'w').write(gen(**kw))
```

```python
import sys, math, struct
from asmlib import *

def f2u(x):
    return struct.unpack('<I', struct.pack('<f', x))[0]

DEF = dict(stamps=0, throttle=6, fast=1, tmo=1 << 22, prefetch=1, cprio=3, npa=6, touch=1, xp=0, mnop=0, mprio=1, ms=0, amp=-1, order='V'*16+'X'+'W'*8, vlag=7, wfree=-1, ls=0, cpace=-1, dpace=-1, rot=1, ebar=1, egchk=0, ega=1, thv=0, wo2=1, pure=0, barl=0, lateb=0, wb=0, vs1=12, vbar=1, bend=12, vsl=0, nwo=1, wbar=1, ini=0, wrot=0, lpoll=0, touch0=0, upv=1, uwo=0, hold=0, rawl=0, rawc=0, bst=1, diag=0, d2=0, shs=0, spl=3, cpr=-1, agx=-1, awx=-1, aat=-1, aqb=-1, apb=-1, bpace=2, agb=-1, strm=0, oin=1, bal=0, dx2=1, anf=-1)

LQ   = 0x20000
QA   = 0x0
QAB  = 0x40000
ARR  = 0x80000
EPO  = 0x81000
AR0  = 0x100000
LA   = 0x61000
OB   = AR0
PC   = AR0 + 0x20000
LSE  = AR0 + 0x60000
XD   = AR0 + 2*LA
XDS  = 2560
PCS  = 2048
WS_BYTES = 0x200000
STAMP = 0x300000
assert XD + 16*XDS <= AR0 + 256*3328
KB, VB, SP = 0, 65536, 131072
SM = 155648
WQB = SM - 36864
X32, QB, XH, PB, ML, ST, XL, RED, ONES, ZERO, FLAGS = 0, 2304, 3328, 4480, 5568, 5632, 5760, 6912, 7168, 7680, 7808
HS = 576
TAGW = FLAGS + 240
DUMMY = ST + 64
OL = QB
F_A, F_WQ, F_Q, F_K, F_KR, F_P, F_V, F_WO, F_V1, F_WQ2 = range(10)
LDS_BYTES = 163840
sW = 3
rK, rV, rWQ, rWO, rWS = 8, 12, 16, 20, 24
pX, pW1, pB1, pW2, pB2 = 28, 30, 32, 34, 36
sSEL, sCNT, sTG12, sTAG = 38, 39, 40, 41
pWS = 42
sX, sB, sHL, sSP, sHKV, sC, sU, sE0, sNE, sLAY, sFAST, sTMO = range(44, 56)
sQAst, sQAld, sOBst, sLSEst, sOBld, sLSEld, sPCst, sPCld, sPCld2, sXDld = range(56, 66)
sXDst, sB2 = 66, 67
sMHI, sMT, sMU = 68, 70, 72
sSM, sXCC = 74, 75
sKD, sPOL, sQC, sGOK = 76, 77, 78, 79
sSTP = 82
vTID, vL4, vT4, vR3, vQF, vR5, vMLR, vFL, vEA, vSTW = range(10)
vXA = vPW = vR3
vPCS = vOBS = vR5
CB = 10
T = 82
aK, aV = 0, 64
aWO, aWQ, aWQH, aSP = 0, 64, 96, 100

K1 = -2.0 * math.sqrt(2.0/math.pi) * math.log2(math.e)
K2 = K1 * 0.044715


def lane_masks():
    mt = mu = 0
    for l in range(64):
        i = l & 31
        if ((l >> 2) & 1) != (l >> 5):
            continue
        r = 4*(i >> 3) + (i & 3)
        if r <= 4: mt |= 1 << l
        if 6 <= r <= 10: mu |= 1 << l
    return mt, mu


def gen(**kw):
    P = dict(DEF); P.update(kw)
    A = Asm()
    amp_state = []
    def amp(k):
        if P['amp'] == k: A('s_memrealtime s[84:85]')
    nop = lambda n: A(f's_nop {n-1}') if n > 0 else None
    def anchor(k):
        if P[k] >= 0:
            A('.p2align 6')
            for _ in range(P[k]): A('s_nop 0')
    def stamp(i, final=False):
        if P['stamps'] == 3:
            if final or (i == 0 and not amp_state): A(f's_memrealtime {s(sSTP+2*i,2)}'); amp_state.append(1)
            elif i == 7:
                l = A.label('st')
                A(f's_cmp_lg_u32 {s(sLAY)}, 0\ns_cbranch_scc1 {l}\ns_memrealtime {s(sSTP+2*i,2)}\n{l}:')
            return
        if P['amp'] >= 0 and not P['stamps']:
            if i == 0 and not amp_state: A('s_memrealtime s[82:83]'); amp_state.append(1)
            return
        if P['stamps'] == 1 or (P['stamps'] == 2 and (i == 0 or final)):
            A(f's_memrealtime {s(sSTP+2*i,2)}')
        elif P['stamps'] == 2 and i != 9:
            l = A.label('st')
            A(f's_cmp_lg_u32 {s(sLAY)}, 0\ns_cbranch_scc1 {l}\ns_memrealtime {s(sSTP+2*i,2)}\n{l}:')
    def cstamp(i):
        if P['stamps'] and P['stamps'] != 3:
            l = A.label('cs')
            A(f's_cmp_gt_u32 {s(sW)}, 3\ns_cbranch_scc1 {l}'); stamp(i); A(f'{l}:')
    def tmo_check(cnt=None):
        if cnt is not None and P['stamps'] == 1:
            A(f's_add_u32 {s(sCNT)}, {s(sCNT)}, {1 << (8*cnt)}')
        A(f's_sub_u32 {s(sTMO)}, {s(sTMO)}, 1\ns_cbranch_scc1 L_end')
    FT = T + 40
    def signal(k):
        A(f'v_mov_b32 {v(FT+4)}, 1\nds_write_b32 {v(vFL)}, {v(FT+4)} offset:{16*k}')
    def flag_test(k):
        A(f'ds_read_b128 {v(FT,4)}, {v(FT+5)} offset:{16*k}\ns_waitcnt lgkmcnt(0)')
        A(f'v_and_b32 {v(FT)}, {v(FT)}, {v(FT+1)}\nv_and_b32 {v(FT+2)}, {v(FT+2)}, {v(FT+3)}\nv_and_b32 {v(FT)}, {v(FT)}, {v(FT+2)}')
        A(f'v_cmp_ne_u32 vcc, 0, {v(FT)}')
    def wait_flag(k, sleep=1):
        l = A.label('wf')
        A(f'v_mov_b32 {v(FT+5)}, {SM+FLAGS}\n{l}:')
        flag_test(k)
        A(f's_cbranch_vccnz {l}_d')
        tmo_check()
        if sleep: A(f's_sleep {sleep}')
        A(f's_branch {l}\n{l}_d:')
    def dpp(op, d, a_, b_, ctl, rm='0xf'):
        A(f'{op}_dpp {v(d)}, {v(a_)}, {v(b_)} {ctl} row_mask:{rm} bank_mask:0xf')
    def check_sentinel(regs, tmp, lfail):
        r = list(regs); cur = r.pop(0)
        while r:
            if len(r) >= 2:
                A(f'v_max3_u32 {v(tmp)}, {v(cur)}, {v(r[0])}, {v(r[1])}'); r = r[2:]
            else:
                A(f'v_max_u32 {v(tmp)}, {v(cur)}, {v(r[0])}'); r = r[1:]
            cur = tmp
        A(f'v_cmp_eq_u32 vcc, -1, {v(cur)}\ns_cbranch_vccnz {lfail}')
    def partial_stats(x, t, addr, fill=()):
        fill = list(fill)
        def gap():
            k = 0
            while fill and k < 2: A(fill.pop(0)); k += 1
            nop(2 - k)
        A(f'v_mul_f32 {v(t+1)}, {v(x)}, {v(x)}\nv_add_f32 {v(t)}, {v(x)}, {v(x+1)}\nv_fmac_f32 {v(t+1)}, {v(x+1)}, {v(x+1)}')
        gap()
        A(f'v_permlane32_swap_b32 {v(t)}, {v(t+1)}\nv_add_f32 {v(t)}, {v(t)}, {v(t+1)}')
        for k in (8, 4, 2, 1):
            gap(); dpp('v_add_f32', t, t, t, f'row_ror:{k}')
        gap(); dpp('v_add_f32', t, t, t, 'row_bcast:15', '0xa')
        A(f'ds_write_b32 {v(addr)}, {v(t)}')
        for x_ in fill: A(x_)
    EPS = hex(f2u(1e-5)); INV = hex(f2u(1.0/576))
    def stats_issue(t):
        A(f'ds_read_b64 {v(t,2)}, {v(t+24)} offset:{ST}')
    def stats_calc(t, twice=False):
        if twice:
            for k in (4, 2, 1):
                dpp('v_add_f32', t, t, t, f'row_ror:{k}'); dpp('v_add_f32', t+1, t+1, t+1, f'row_ror:{k}')
                if k > 1: nop(1)
        else:
            A(f'v_pk_add_f32 {v(t,2)}, {v(t,2)}, {v(t+2,2)}\nv_pk_add_f32 {v(t+4,2)}, {v(t+4,2)}, {v(t+6,2)}')
            A(f'v_pk_add_f32 {v(t,2)}, {v(t,2)}, {v(t+8,2)}\nv_pk_add_f32 {v(t,2)}, {v(t,2)}, {v(t+4,2)}')
        A(f'v_mul_f32 {v(t)}, {INV}, {v(t)}\nv_mul_f32 {v(t+1)}, {INV}, {v(t+1)}')
        A(f'v_fma_f32 {v(t+1)}, -{v(t)}, {v(t)}, {v(t+1)}\nv_max_f32 {v(t+1)}, 0, {v(t+1)}')
        if twice:
            A(f'v_mul_f32 {v(t+1)}, {hex(f2u(1+1e-5))}, {v(t+1)}\nv_add_f32 {v(t+2)}, {hex(f2u(1e-10))}, {v(t+1)}\nv_rsq_f32 {v(t+2)}, {v(t+2)}')
        else:
            A(f'v_add_f32 {v(t+2)}, {EPS}, {v(t+1)}\nv_rsq_f32 {v(t+2)}, {v(t+2)}')
    def tr_addr(dst, tile_sreg, gshift, gbit, base, t):
        A(f'v_bfe_u32 {v(t)}, {v(vL4)}, 4, 2\nv_bfe_u32 {v(t+1)}, {v(vL4)}, 2, 2\nv_lshrrev_b32 {v(t+2)}, 6, {v(vL4)}')
        A(f'v_bfe_u32 {v(t+3)}, {v(t+2)}, {gbit}, 1\nv_lshl_or_b32 {v(t+3)}, {v(t+3)}, 2, {v(t)}')
        A(f'v_xor_b32 {v(t+3)}, {s(tile_sreg)}, {v(t+3)}\nv_lshlrev_b32 {v(t+3)}, 5, {v(t+3)}\nv_lshl_add_u32 {v(t+3)}, {v(t+1)}, 3, {v(t+3)}')
        A(f'v_lshl_add_u32 {v(t+2)}, {v(t+2)}, {gshift}, {v(t)}\nv_lshl_add_u32 {v(dst)}, {v(t+2)}, 8, {v(t+3)}')
        A(f'v_add_u32 {v(dst)}, {base}, {v(dst)}')
    RAW = T + 20
    def raw_loads(dst=RAW, ptrs=(pW1, pB1, pW2), t=T+18):
        a0 = vT4
        if P['bal']:
            a0 = t - 1
            A(f's_and_b32 s6, s2, 4\ns_lshl_b32 s6, s6, 10\nv_add_u32 {v(a0)}, s6, {v(vT4)}\nv_xor_b32 {v(t)}, 4096, {v(a0)}')
        else: A(f'v_add_u32 {v(t)}, 4096, {v(vT4)}')
        A(f'v_lshlrev_b32 {v(t+1)}, 1, {v(vTID)}\nv_add_u32 {v(t+1)}, 8192, {v(t+1)}')
        for k, p in enumerate(ptrs):
            for i in range(4):
                A(f'global_load_dword {v(dst+5*k+i)}, {v(a0 if i < 2 else t)}, {s(p,2)} offset:{2048*(i & 1)}')
            A(f'global_load_ushort {v(dst+5*k+4)}, {v(t+1)}, {s(p,2)}')
    def coef_build():
        L = []
        w, b, w2, t0, t1, t2, t3, t4 = (T + i for i in range(8))
        for f in range(9):
            c = CB + 8*f
            row, odd = (f >> 1, f & 1) if not P['bal'] or f < 4 else (4, 0) if f == 4 else (2 + ((f-5) >> 1), (f-5) & 1)
            srcs = [RAW + 5*k + row for k in range(3)]
            for d, sr in zip((w, b, w2), srcs):
                L.append(f'v_and_b32 {v(d)}, 0xffff0000, {v(sr)}' if odd else f'v_lshlrev_b32 {v(d)}, 16, {v(sr)}')
            def split(x, dst):
                L.append(f'v_and_b32 {v(t4)}, 0xffff0000, {v(x)}')
                L.append(f'v_sub_f32 {v(dst)}, {v(x)}, {v(t4)}')
                L.append(f'v_cvt_pk_bf16_f32 {v(dst)}, {v(t4)}, {v(dst)}')
            L.append(f'v_mul_f32 {v(t0)}, {v(w)}, {v(w)}')
            L.append(f'v_mul_f32 {v(t0)}, {hex(f2u(K2))}, {v(t0)}')
            L.append(f'v_mul_f32 {v(t1)}, {v(t0)}, {v(w)}')
            L.append(f'v_mul_f32 {v(t2)}, {v(t0)}, {v(b)}')
            L.append(f'v_mul_f32 {v(t2)}, 0x40400000, {v(t2)}')
            split(t1, c); split(t2, c+1)
            L.append(f'v_perm_b32 {v(c+2)}, {v(t2)}, {v(t1)}, {s(sSEL)}')
            L.append(f'v_mul_f32 {v(t0)}, {v(b)}, {v(b)}')
            L.append(f'v_mul_f32 {v(t0)}, {hex(f2u(K2))}, {v(t0)}')
            L.append(f'v_add_f32 {v(t1)}, {hex(f2u(K1))}, {v(t0)}')
            L.append(f'v_mul_f32 {v(t2)}, {v(t1)}, {v(b)}')
            L.append(f'v_fmac_f32 {v(t1)}, 2.0, {v(t0)}')
            L.append(f'v_mul_f32 {v(t1)}, {v(t1)}, {v(w)}')
            split(t1, c+3); split(t2, c+4)
            L.append(f'v_mul_f32 {v(t1)}, {v(w)}, {v(w2)}')
            L.append(f'v_mul_f32 {v(t2)}, {v(b)}, {v(w2)}')
            split(t1, c+5); split(t2, c+6)
            L.append(f'v_mov_b32 {v(c+7)}, 0')
        return L

    def q_stage(vXA, hook=None):
        xf, st, D0, D1 = T, T+20, T+36, T+40
        for ks in range(4):
            A(f'ds_read_b128 {v(xf+4*ks,4)}, {v(vXA)} offset:{64*ks}')
        A(f'ds_read_b64 {v(xf+16,2)}, {v(T+44)} offset:256')
        for k in range(3): A(f'ds_read_b128 {v(st+4*k,4)}, {v(T+45)} offset:{ST+16*k}')
        for ks in range(4):
            A(f's_waitcnt lgkmcnt({7-ks})')
            for tt, D in enumerate((D0, D1)):
                A(f'v_mfma_f32_16x16x32_bf16 {v(D,4)}, {v(xf+4*ks,4)}, {a(aWQ+16*tt+4*ks,4)}, {v(D,4) if ks else 0}')
        A('s_waitcnt lgkmcnt(3)')
        for tt, D in enumerate((D0, D1)):
            A(f'v_mfma_f32_16x16x16_bf16 {v(D,4)}, {v(xf+16,2)}, {a(aWQH+2*tt,2)}, {v(D,4)}')
        A('s_waitcnt lgkmcnt(0)')
        stats_calc(st)
        qs = (128 ** -0.5) * math.log2(math.e)
        for D in (D0, D1):
            A(f'v_add_f32 {v(D)}, {v(D)}, {v(D+1)}\nv_fma_f32 {v(D)}, -{v(st)}, {v(D+2)}, {v(D)}')
        A(f'v_mul_f32 {v(st+2)}, {hex(f2u(qs))}, {v(st+2)}\ns_mov_b64 exec, 0xffff')
        for D in (D0, D1): A(f'v_mul_f32 {v(D)}, {v(D)}, {v(st+2)}')
        for D in (D0, D1): A(f'v_and_b32 {v(D)}, 0xfffff000, {v(D)}')
        for D in (D0, D1): A(f'v_or_b32 {v(D)}, {s(sTG12)}, {v(D)}')
        A(f'buffer_store_dword {v(D0)}, {v(vL4)}, {s(rWS,4)}, {s(sQAst)} offen')
        A(f'buffer_store_dword {v(D1)}, {v(vL4)}, {s(rWS,4)}, {s(sQAst)} offen offset:64')
        if hook:
            A('s_mov_b64 exec, -1'); hook()
        l = A.label('q1')
        if hook:
            return
        A(f's_cmp_lg_u32 {s(sFAST)}, 0\ns_cbranch_scc1 {l}\ns_add_u32 {s(sQC)}, {s(sQAst)}, {QAB}')
        A(f'buffer_store_dword {v(D0)}, {v(vL4)}, {s(rWS,4)}, {s(sQC)} offen sc1')
        A(f'buffer_store_dword {v(D1)}, {v(vL4)}, {s(rWS,4)}, {s(sQC)} offen offset:64 sc1')
        A(f'{l}:\ns_mov_b64 exec, -1')

    def q_prep(vXA):
        A(f'v_lshrrev_b32 {v(T+44)}, 6, {v(vL4)}\nv_lshlrev_b32 {v(T+44)}, 3, {v(T+44)}\nv_sub_u32 {v(T+44)}, {v(vXA)}, {v(T+44)}\nv_mov_b32 {v(T+45)}, {s(sSM)}')
    def xa_addr(dst, t):
        A(f's_lshr_b32 s5, {s(sSP)}, 1\ns_lshl_b32 s6, s5, 5\ns_add_u32 s6, s6, {SM+ONES+64}\ns_mul_i32 s5, s5, 288\ns_add_u32 s5, s5, {SM+XH}\nv_bfe_u32 {v(t+2)}, {v(vL4)}, 2, 4')
        A(f'v_mov_b32 {v(dst)}, s6\nv_mov_b32 {v(t)}, s5\nv_cmp_eq_u32 vcc, 0, {v(t+2)}\nv_add_u32 {v(t+1)}, {XL-XH}, {v(t)}\nv_lshrrev_b32 {v(t+3)}, 6, {v(vL4)}')
        A(f'v_cndmask_b32 {v(dst)}, {v(dst)}, {v(t)}, vcc\nv_cmp_eq_u32 vcc, 1, {v(t+2)}')
        nop(2)
        A(f'v_cndmask_b32 {v(dst)}, {v(dst)}, {v(t+1)}, vcc\nv_lshl_add_u32 {v(dst)}, {v(t+3)}, 4, {v(dst)}')
    def wq_addr(t):
        for tt in range(2):
            A(f's_and_b32 s5, {s(sW)}, 3\ns_lshl_b32 s5, s5, 1\ns_add_u32 s5, s5, {tt}')
            tr_addr(t+4+2*tt, 5, 3, 0, WQB, t)
            tr_addr(t+5+2*tt, 5, 2, 1, WQB + 128*256, t)
    def wq_reads(t):
        for tt in range(2):
            for ks in range(4):
                for hh in range(2):
                    A(f'ds_read_b64_tr_b16 {a(aWQ+16*tt+4*ks+2*hh,2)}, {v(t+4+2*tt)} offset:{ks*8192+hh*1024}')
            A(f'ds_read_b64_tr_b16 {a(aWQH+2*tt,2)}, {v(t+5+2*tt)}')

    vl, vj, vg = T+1, T+2, T+3
    def setup_a():
        A(f's_lshr_b32 s4, {s(sSP)}, 1\ns_lshl_b32 s5, {s(sB)}, 4\ns_add_u32 s5, s5, {s(sHKV)}\ns_and_b32 s7, {s(sW)}, 3')
        A(f's_lshl_b32 s6, s7, 2\ns_add_u32 s6, s6, {SM+FLAGS}\nv_mov_b32 {v(vFL)}, s6')
        A(f's_mov_b64 {s(pW1,2)}, s[68:69]\ns_mov_b64 {s(pB1,2)}, s[70:71]')
        A(f's_mov_b64 {s(pW2,2)}, s[72:73]\ns_mov_b64 {s(pB2,2)}, s[74:75]')
        A(f's_mul_i32 s6, {s(sX)}, {512*1152}')
        A(f's_add_u32 {s(rWO)}, s64, s6\ns_addc_u32 {s(rWO+1)}, s65, 0\ns_sub_u32 {s(rWO+2)}, 4718592, s6\ns_mov_b32 {s(rWO+3)}, 0x20000')
        A(f's_mov_b32 {s(rWS)}, s42\ns_mov_b32 {s(rWS+1)}, s43\ns_mov_b32 {s(rWS+2)}, {WS_BYTES}\ns_mov_b32 {s(rWS+3)}, 0x20000')
        A(f's_load_dword {s(sB2)}, {s(pB2,2)}, 0')
        A(f's_getreg_b32 {s(sXCC)}, hwreg(HW_REG_XCC_ID, 0, 4)')
        A(f's_mov_b32 {s(sLAY)}, 0\ns_mov_b32 {s(sFAST)}, 0\ns_mov_b32 {s(sTMO)}, {P["tmo"]}\ns_mov_b32 {s(sCNT)}, 0\ns_mov_b32 {s(sSM)}, {SM}')
        A(f's_lshl_b32 {s(sQAld)}, s5, 12')
        A(f's_lshl_b32 s6, s4, 10\ns_add_u32 {s(sQAst)}, {s(sQAld)}, s6\ns_and_b32 s6, {s(sSP)}, 1\ns_lshl_b32 s6, s6, 9\ns_add_u32 {s(sQAst)}, {s(sQAst)}, s6')
        A(f's_lshl_b32 s6, s7, 7\ns_add_u32 {s(sQAst)}, {s(sQAst)}, s6')
        A(f's_mov_b32 {s(sMHI)}, 0\ns_mov_b32 {s(sMHI+1)}, -1\ns_mov_b32 {s(sSEL)}, 0x07060302')
        A(f's_lshl_b32 s6, {s(sW)}, 3\ns_add_u32 s6, s6, {SM+ST}\nv_lshrrev_b32 {v(T+4)}, 1, {v(vg)}\nv_lshl_add_u32 {v(T+4)}, {v(T+4)}, 2, s6')
        A(f'v_mov_b32 {v(T+5)}, {SM+DUMMY}\nv_and_b32 {v(T+6)}, 1, {v(vg)}\nv_cmp_eq_u32 vcc, 1, {v(T+6)}')
        nop(2)
        A(f'v_cndmask_b32 {v(vSTW)}, {v(T+5)}, {v(T+4)}, vcc')
    def setup_b(ids=False):
        if ids:
            A(f'v_lshrrev_b32 {v(vl)}, 2, {v(vL4)}\ns_and_b32 s7, {s(sW)}, 3\nv_and_b32 {v(vj)}, 15, {v(vl)}\nv_lshrrev_b32 {v(vg)}, 4, {v(vl)}\nv_and_b32 {v(T+6)}, 1, {v(vg)}')
        A(f's_lshl_b32 {s(sU)}, {s(sX)}, 4\ns_add_u32 {s(sU)}, {s(sU)}, {s(sC)}')
        A(f's_mul_i32 s6, {s(sU)}, 5\ns_lshl_b32 {s(sKD)}, {s(sU)}, 2\ns_add_u32 {s(sKD)}, {s(sKD)}, 64')
        A(f's_cmp_lt_u32 {s(sU)}, 64\ns_cselect_b32 {s(sE0)}, s6, {s(sKD)}\ns_cselect_b32 {s(sNE)}, 5, 4')
        A(f's_lshl_b32 s5, {s(sB)}, 3\ns_add_u32 s5, s5, {s(sX)}')
        A(f's_lshl_b32 s6, s5, 13\ns_add_u32 s6, s6, {OB}\ns_lshl_b32 {s(sOBld)}, s7, 11\ns_add_u32 {s(sOBld)}, {s(sOBld)}, s6')
        A(f's_lshl_b32 {s(sOBst)}, {s(sC)}, 8\ns_add_u32 s6, s6, {s(sOBst)}\ns_lshl_b32 {s(sOBst)}, {s(sHL)}, 11\ns_add_u32 s6, s6, {s(sOBst)}')
        A(f's_lshl_b32 {s(sOBst)}, s7, 6\ns_add_u32 {s(sOBst)}, {s(sOBst)}, s6')
        A(f's_lshl_b32 s6, s5, 7\ns_add_u32 s6, s6, {LSE}\ns_lshl_b32 {s(sLSEld)}, s7, 5\ns_add_u32 {s(sLSEld)}, {s(sLSEld)}, s6')
        A(f's_lshl_b32 {s(sLSEst)}, {s(sHL)}, 6\ns_add_u32 s6, s6, {s(sLSEst)}\ns_lshl_b32 {s(sLSEst)}, {s(sSP)}, 2\ns_add_u32 {s(sLSEst)}, {s(sLSEst)}, s6')
        A(f's_mul_i32 {s(sPCld)}, s5, {8*PCS}\ns_add_u32 {s(sPCld)}, {s(sPCld)}, {PC}\ns_add_u32 {s(sPCld2)}, {s(sPCld)}, {2*PCS}')
        A(f's_and_b32 s6, {s(sC)}, 7\ns_lshl_b32 s6, s6, 5\ns_lshr_b32 {s(sKD)}, {s(sC)}, 3\ns_lshl_b32 {s(sKD)}, {s(sKD)}, 9\ns_add_u32 s6, s6, {s(sKD)}')
        A(f's_lshl_b32 {s(sKD)}, s7, 8\ns_add_u32 s6, s6, {s(sKD)}\ns_add_u32 s6, s6, 512')
        A(f's_lshl_b32 {s(sKD)}, {s(sC)}, 6\ns_lshl_b32 {s(sPCst)}, s7, 5\ns_add_u32 {s(sKD)}, {s(sKD)}, {s(sPCst)}\ns_bitcmp1_b32 s7, 1\ns_cselect_b32 s6, s6, {s(sKD)}')
        A(f's_mul_i32 {s(sKD)}, {s(sB)}, {64*PCS}\ns_add_u32 s6, s6, {s(sKD)}\ns_mul_i32 {s(sPCst)}, {s(sX)}, {PCS}\ns_add_u32 s6, s6, {s(sPCst)}\ns_add_u32 {s(sPCst)}, s6, {PC}')
        A(f's_mul_i32 {s(sXDld)}, s5, {XDS}\ns_add_u32 {s(sXDld)}, {s(sXDld)}, {XD}')
        A(f's_mul_i32 s6, {s(sB)}, {8*XDS}\ns_lshl_b32 {s(sXDst)}, {s(sE0)}, 2\ns_add_u32 {s(sXDst)}, {s(sXDst)}, s6\ns_add_u32 {s(sXDst)}, {s(sXDst)}, {XD}')
        mt, mu = lane_masks()
        A(f's_mov_b32 {s(sMT)}, {hex(mt & 0xffffffff)}\ns_mov_b32 {s(sMT+1)}, {hex(mt >> 32)}\ns_mov_b32 {s(sMU)}, {hex(mu & 0xffffffff)}\ns_mov_b32 {s(sMU+1)}, {hex(mu >> 32)}')
        A(f'v_bfe_u32 {v(T+4)}, {v(vl)}, 3, 2\nv_and_b32 {v(T+5)}, 3, {v(vl)}\nv_lshl_add_u32 {v(T+4)}, {v(T+4)}, 2, {v(T+5)}')
        A(f'v_subrev_u32 {v(T+5)}, 6, {v(T+4)}\nv_min_u32 {v(T+4)}, {v(T+4)}, {v(T+5)}\nv_min_u32 {v(T+4)}, 4, {v(T+4)}')
        A(f's_lshl_b32 s6, {s(sE0)}, 2\ns_add_u32 s6, s6, {SM+X32}\nv_lshl_add_u32 {v(vEA)}, {v(T+4)}, 2, s6')
        if P['bal']:
            A(f's_mul_i32 {s(sKD)}, {s(sE0)}, 5\ns_add_u32 {s(sKD)}, {s(sKD)}, {SM+X32+16-1600}\ns_add_u32 s6, s6, 16\nv_cmp_eq_u32 vcc, 4, {v(T+4)}')
            A(f's_cmp_lt_u32 {s(sU)}, 64\ns_cselect_b32 s6, s6, {s(sKD)}\ns_cselect_b32 {s(sU)}, 1.0, 0\nv_mov_b32 {v(T+5)}, s6\nv_cndmask_b32 {v(vEA)}, {v(vEA)}, {v(T+5)}, vcc')
        A(f'v_lshrrev_b32 {v(T+7)}, 1, {v(vg)}\nv_lshl_add_u32 {v(T+7)}, {v(T+7)}, 4, {v(vj)}\nv_lshlrev_b32 {v(T+7)}, 1, {v(T+7)}')
        A(f'v_lshlrev_b32 {v(vMLR)}, 5, {v(T+6)}\nv_add_u32 {v(vMLR)}, {SM+ML}, {v(vMLR)}')
    def common_setup():
        setup_a(); setup_b()
    A('s_load_dwordx16 s[56:71], s[0:1], 0\ns_load_dwordx4 s[72:75], s[0:1], 64\ns_load_dwordx2 s[42:43], s[0:1], 96')
    A('s_lshr_b32 s4, s2, 8\ns_cbranch_scc1 L_end')
    stamp(0)
    vKo2, vVo2, vWQo = CB+70, CB+71, T+8
    sDM, sDN = 80, 81
    def lane_ids():
        A(f'v_and_b32 {v(vl)}, 63, v0\nv_lshlrev_b32 {v(vT4)}, 2, v0\nv_lshlrev_b32 {v(vL4)}, 2, {v(vl)}')
        A(f'v_and_b32 {v(vj)}, 15, {v(vl)}\nv_lshrrev_b32 {v(vg)}, 4, {v(vl)}')
        A(f's_lshr_b32 {s(sB)}, s2, 7\ns_bfe_u32 {s(sC)}, s2, 0x40003')
    A(f'v_lshrrev_b32 {v(T)}, 6, v0\nv_lshrrev_b32 {v(T+4)}, 5, v0\ns_and_b32 {s(sX)}, s2, 7')
    A(f'v_readfirstlane_b32 {s(sW)}, {v(T)}')
    A(f's_bfe_u32 {s(sHL)}, s2, 0x10006\ns_bfe_u32 {s(sSP)}, s2, 0x30003\ns_lshl1_add_u32 {s(sHKV)}, {s(sX)}, {s(sHL)}')
    A(f's_cmp_lt_u32 {s(sW)}, 4\ns_cbranch_scc1 L_centry')
    A(f'v_bfe_u32 {v(T+5)}, v0, 4, 4\nv_and_b32 {v(T+4)}, 4, {v(T+4)}\nv_and_or_b32 {v(T+4)}, {v(T+5)}, 3, {v(T+4)}\nv_lshlrev_b32 {v(T+4)}, 1, {v(T+4)}')
    A(f'v_xor_b32 {v(T+4)}, {v(T+4)}, v0\nv_and_b32 {v(T+4)}, 15, {v(T+4)}\nv_lshlrev_b32 {v(T+4)}, 4, {v(T+4)}\nv_lshl_add_u32 {v(vWQo)}, {v(T+5)}, 13, {v(T+4)}')
    A(f's_lshr_b32 s4, {s(sSP)}, 1\ns_mul_i32 s6, s4, {144*8192}\ns_and_b32 s5, {s(sSP)}, 1\ns_lshl1_add_u32 s5, {s(sHKV)}, s5\ns_lshl_b32 s5, s5, 8\ns_add_u32 s6, s6, s5')
    A(f's_sub_u32 {s(rWQ+2)}, 4718592, s6\ns_mov_b32 {s(rWQ+3)}, 0x20000')
    A(f's_lshl_b32 {s(sDN)}, {s(sW)}, 10\ns_add_u32 m0, {s(sDN)}, {WQB-4096}\ns_mov_b32 s7, 0')
    if P['d2'] == 2: stamp(3)
    A('s_waitcnt lgkmcnt(0)')
    A(f's_add_u32 {s(rWQ)}, s62, s6\ns_addc_u32 {s(rWQ+1)}, s63, 0')
    if not P['diag']:
        A(f'L_wql:\nbuffer_load_dwordx4 {v(vWQo)}, {s(rWQ,4)}, s7 offen nt lds')
        A(f's_add_u32 m0, m0, 4096\ns_add_u32 s7, s7, {16*8192}\ns_cmp_lt_u32 s7, {9*16*8192}\ns_cbranch_scc1 L_wql')
    lane_ids()
    A(f'v_xor_b32 {v(vKo2)}, {v(T+5)}, {v(vj)}\nv_lshlrev_b32 {v(vKo2)}, 4, {v(vKo2)}\nv_lshl_add_u32 {v(vKo2)}, {v(vg)}, 8, {v(vKo2)}')
    A(f's_lshl4_add_u32 s5, {s(sB)}, {s(sHKV)}\ns_lshl_b32 s5, s5, 5\ns_add_u32 s5, s5, {s(sSP)}\ns_add_u32 s5, s5, 24\ns_lshl_b32 s5, s5, 16')
    A(f's_mov_b32 {s(rK+3)}, {s(rWQ+3)}\ns_mov_b32 {s(rK+2)}, 0x10000\ns_and_b32 {s(sDN)}, {s(sDN)}, 0xc00')
    if P['rot'] == 1: A(f's_mul_i32 {s(sDM)}, s2, 0x9e3779b1\ns_lshr_b32 {s(sDM)}, {s(sDM)}, 28')
    elif P['rot'] == 2: A(f's_and_b32 {s(sDM)}, s2, 1\ns_lshl1_add_u32 {s(sDM)}, {s(sSP)}, {s(sDM)}')
    elif P['rot'] == 3: A(f's_mov_b32 {s(sDM)}, {s(sHKV)}')
    elif P['rot'] == 4: A(f's_mul_i32 {s(sDM)}, {s(sSP)}, 5\ns_add_u32 {s(sDM)}, {s(sDM)}, {s(sHKV)}\ns_lshl3_add_u32 {s(sDM)}, {s(sB)}, {s(sDM)}\ns_and_b32 {s(sDM)}, {s(sDM)}, 15')
    STP, STM = (1024, 0x3fff) if P['strm'] else (4096, 0xffff)
    if P['strm']:
        A(f's_lshl_b32 {s(sDM)}, {s(sDM)}, 10\ns_lshl_b32 s4, {s(sDN)}, 4\nv_add_u32 {v(vKo2)}, s4, {v(vKo2)}\nv_add_u32 {v(T+4)}, s4, {v(T+4)}')
    else:
        A(f's_lshl_b32 {s(sDM)}, {s(sDM)}, 12\ns_add_u32 {s(sDM)}, {s(sDM)}, {s(sDN)}')
    if P['diag']:
        stamp(2)
        A(f's_add_u32 {s(rK)}, s58, s5\ns_addc_u32 {s(rK+1)}, s59, 0')
        NK = P['diag'] >> 2
        def dk():
            for i in range(NK):
                A(f's_add_u32 m0, {s(sDN)}, {4096*i}\nbuffer_load_dwordx4 {v(vKo2)}, {s(rK,4)}, {s(sDM)} offen nt lds\ns_add_u32 {s(sDM)}, {s(sDM)}, 4096\ns_and_b32 {s(sDM)}, {s(sDM)}, 0xffff')
        def dq():
            for i in range(9):
                A(f's_mov_b32 m0, s4\ns_add_u32 s4, s4, 4096')
                A(f'buffer_load_dwordx4 {v(vWQo)}, {s(rWQ,4)}, s7 offen nt lds\ns_add_u32 s7, s7, {4*32768}')
        m = P['diag'] & 3
        if m == 1: dk(); dq(); n1, n2 = NK, 9
        elif m == 2: dq(); dk(); n1, n2 = 9, NK
        elif m == 3: dk(); n1, n2 = NK, 0
        else: dq(); n1, n2 = 9, 0
        A(f's_waitcnt vmcnt({n1+n2-1})'); stamp(4)
        A(f's_waitcnt vmcnt({n2})'); stamp(5)
        A(f's_waitcnt vmcnt(0)'); stamp(6); stamp(1)
        common_setup()
        A('s_barrier\ns_waitcnt lgkmcnt(0)'); emit_stamps(A, 0); A('s_endpgm')
    A(f's_add_u32 {s(rK)}, s58, s5\ns_addc_u32 {s(rK+1)}, s59, 0')
    TH = P['throttle']
    def dma(vr, srd, base):
        A(f's_add_u32 m0, {s(sDN)}, {base}\ns_and_b32 {s(sDM)}, {s(sDM)}, {STM}')
        A(f'buffer_load_dwordx4 {v(vr)}, {s(srd,4)}, {s(sDM)} offen nt lds\ns_add_u32 {s(sDM)}, {s(sDM)}, {STP}')
    seq = []
    def issue(name): seq.append(name)
    def landed(name):
        last = max(i for i, n in enumerate(seq) if n == name)
        return len(seq) - 1 - last
    def thr():
        if not P['thv']:
            big = [i for i, n in enumerate(seq) if n != 'R']
            A(f's_waitcnt vmcnt({len(seq) - big[-TH] if P["lateb"] and len(big) >= TH else TH})'); return
        idx = [i for i, n in enumerate(seq) if n in 'KV']
        n = len(seq) - idx[-TH] if len(idx) >= TH else len(seq)
        A(f's_waitcnt vmcnt({min(n, 63)})')
    for i in range(16):
        if i == P['rawl']:
            assert i <= TH
            raw_loads(ptrs=(68, 70, 72))
            for _ in range(15): issue('R')
        dma(vKo2, rK, KB + 4096*i); issue('K')
        if i == TH - 2:
            A(f's_add_u32 {s(rV)}, s60, s5\ns_addc_u32 {s(rV+1)}, s61, 0\ns_mov_b32 {s(rV+2)}, {s(rK+2)}\ns_mov_b32 {s(rV+3)}, {s(rK+3)}')
            A(f'v_lshl_add_u32 {v(vVo2)}, {v(vg)}, 8, {v(T+4)}')
        if i == TH:
            if P['shs']: A(f's_mov_b32 {s(sGOK)}, 1\ns_branch L_setup\nL_setup_ret:')
            else: common_setup()
            A(f's_and_b32 s4, {s(sW)}, 3')
            xa_addr(vXA, T+4)
            A(f'v_lshlrev_b32 {v(vQF)}, 4, {v(vg)}\nv_add_u32 {v(vQF)}, {SM}, {v(vQF)}')
            A(f'v_and_b32 {v(T+4)}, 1, {v(vj)}\nv_lshl_add_u32 {v(T+4)}, {v(vg)}, 1, {v(T+4)}\nv_mul_u32_u24 {v(T+4)}, {8*PCS}, {v(T+4)}')
            A(f'v_lshrrev_b32 {v(T+5)}, 1, {v(vj)}\nv_lshl_add_u32 {v(vPCS)}, {v(T+5)}, 2, {v(T+4)}')
        if i == TH + 1: wq_addr(T+8)
        INI = max(P['ini'], TH)
        if i == INI - 1: A(f's_waitcnt vmcnt({len(seq)})')
        elif i >= INI: thr()
        if i == INI - 1 and P['d2'] == 3: stamp(3)
        if i == TH + 2 and P['d2'] == 3: stamp(5)
        if i == INI - 1 + P['barl']: A('s_barrier'); stamp(1)
        if i == 13: wq_reads(T+8)
        if i == 15:
            A('s_waitcnt lgkmcnt(0)'); signal(F_WQ2)
    build = coef_build()
    if P['pure'] & 2 or P['xp'] & 4:
        build = ['s_nop 0']; NR = 0
    elif P['lateb'] or P['rawl'] >= 0:
        NR = 0
    else:
        raw_loads(); NR = 15
    for _ in range(NR): issue('R')
    vWO = T + 8
    wo_pat = [f'v_lshrrev_b32 {v(vWO)}, 4, {v(vL4)}\nv_mul_u32_u24 {v(vWO)}, 1152, {v(vWO)}\nv_lshrrev_b32 {v(vWO+1)}, 7, {v(vL4)}',
              f'v_lshlrev_b32 {v(vWO+1)}, 3, {v(vWO+1)}\nv_xor_b32 {v(vWO+1)}, {v(vWO+1)}, {v(vL4)}\nv_and_b32 {v(vWO+1)}, 12, {v(vWO+1)}\nv_lshl_add_u32 {v(vWO)}, {v(vWO+1)}, 2, {v(vWO)}']
    order = P['order']
    assert order.count('V') == 16 and order.count('W') == 8 and order.count('X') == 1
    ksig = False
    sM0W, sOFW = sKD, sPOL
    A(f's_lshl_b32 {s(sM0W)}, s4, 12\ns_add_u32 {s(sM0W)}, {s(sM0W)}, {SP}\ns_mul_i32 {s(sOFW)}, s4, {128*1152}\ns_lshl_b32 s6, {s(sC)}, 6\ns_add_u32 {s(sOFW)}, {s(sOFW)}, s6')
    if P['wrot'] & 1: A(f's_mul_i32 s6, {s(sB)}, {64*1152}\ns_add_u32 {s(sOFW)}, {s(sOFW)}, s6')
    lastV = order.rindex('V')
    BST = TH + 1 if P['bst'] < 0 else P['bst']
    assert BST == TH + 1 or not NR
    nslots = (len(order) if P['bend'] < 0 else P['bend'] + 1) - BST
    v1sig = not P['vs1']
    per = -(-len(build) // nslots)
    nv = nw = 0
    wq_waited = False
    for i, op in enumerate(order):
        if op == 'V':
            if nv == 13 and not wq_waited: (P['pure'] & 1 or wait_flag(F_WQ)); wait_flag(F_WQ2); wq_waited = True
            dma(vVo2, rV, VB + 4096*nv); issue('V'); nv += 1
        else:
            if not wq_waited: (P['pure'] & 1 or wait_flag(F_WQ)); wait_flag(F_WQ2); wq_waited = True
            if op == 'X':
                A(f's_and_b32 s6, {s(sC)}, 7\ns_lshl_b32 s6, s6, 2\ns_add_u32 s6, s6, s4\ns_mul_i32 s6, s6, {16*1152}\ns_lshr_b32 s7, {s(sC)}, 3\ns_lshl_b32 s7, s7, 6\ns_add_u32 s6, s6, s7')
                A(f's_add_u32 m0, {s(sDN)}, {SP+16384}\ns_add_u32 s6, s6, 1024')
                A(f'buffer_load_dwordx4 {v(vWO)}, {s(rWO,4)}, s6 offen nt lds'); issue('A')
            else:
                if nw == 4:
                    assert ksig
                    if P['wrot'] & 1: A(f's_mul_i32 s6, {s(sB)}, {128*1152}\ns_sub_u32 {s(sOFW)}, {s(sOFW)}, s6')
                    A(f's_lshl_b32 {s(sM0W)}, s4, 12')
                    if not P['pure'] & 1: wait_flag(F_KR)
                A(f's_mov_b32 m0, {s(sM0W)}\ns_add_u32 {s(sM0W)}, {s(sM0W)}, 1024')
                A(f'buffer_load_dwordx4 {v(vWO)}, {s(rWO,4)}, {s(sOFW)} offen nt lds\ns_add_u32 {s(sOFW)}, {s(sOFW)}, {16*1152}'); issue('A' if nw < 4 else 'W'); nw += 1
        if i == 0:
            for ins in wo_pat: A(ins)
        if P['lateb'] and i == lastV + P['lateb'] - 1:
            raw_loads()
            for _ in range(15): issue('R')
        if not P['lateb'] and i >= BST and (P['wfree'] < 0 or i < lastV - P['wfree']):
            if i == TH + 1 and NR: A(f's_waitcnt vmcnt({landed("R")})')
            n = per
            if any(f'v{vVo2}' in x for x in build[:n]) and i < lastV: n = 0
            for ins in build[:n]: A(ins)
            build = build[n:]
        if not ksig and landed('K') - NR >= min(TH, 4):
            A(f's_waitcnt vmcnt({landed("K")})'); signal(F_K); stamp(2); ksig = True
        if i == lastV and P['d2'] != 3: stamp(3)
        vs = min(lastV + P['vlag'], len(order) - 1)
        if i == vs:
            if not v1sig:
                vi = [k for k, n in enumerate(seq) if n == 'V']
                A(f's_waitcnt vmcnt({len(seq) - 1 - vi[P["vs1"] - 1]})'); signal(F_V1); v1sig = True
            A(f's_waitcnt vmcnt({landed("V")})')
            if P['vbar']: A('s_barrier')
            else: signal(F_V)
            stamp(4)
            if P['hold']: A('s_barrier')
        elif TH - 1 <= i < vs and (i < lastV - P['wfree'] or P['wfree'] < 0):
            thr()
            vi = [k for k, n in enumerate(seq) if n == 'V']
            if not v1sig and len(vi) >= P['vs1'] and len(seq) - 1 - vi[P['vs1'] - 1] >= TH:
                signal(F_V1); v1sig = True
    if P['lateb']: stamp(5); A(f's_waitcnt vmcnt({landed("R")})')
    for ins in build: A(ins)
    if not P['lateb'] and P['d2'] != 3: stamp(5)
    A(f'v_bfe_u32 {v(T)}, {v(vL4)}, 4, 2\nv_lshrrev_b32 {v(T+2)}, 6, {v(vL4)}\nv_lshl_add_u32 {v(T)}, {v(T+2)}, 3, {v(T)}\nv_xor_b32 {v(T+2)}, s4, {v(T+2)}')
    A(f'v_and_b32 {v(T+2)}, 1, {v(T+2)}\nv_lshlrev_b32 {v(T+2)}, 5, {v(T+2)}\nv_lshl_add_u32 {v(T)}, {v(T)}, 6, {v(T+2)}')
    A(f'v_and_b32 {v(T+1)}, 12, {v(vL4)}\nv_lshl_add_u32 {v(T)}, {v(T+1)}, 1, {v(T)}\nv_add_u32 {v(T+1)}, {SP}, {v(T)}')
    def wo_read(ks, hh):
        A(f'ds_read_b64_tr_b16 {a(aWO+4*ks+2*hh,2)}, {v(T if ks & 2 else T+1)} offset:{4096*(ks >> 2)+2048*(ks & 1)+256*hh}')
    OA, OD, WA = T + 2, T + 8, T + 24
    DW = T + 36
    def o_addr():
        A(f'v_bfe_u32 {v(OD)}, {v(vL4)}, 2, 4')
        if P['wrot'] & 1: A(f's_lshl_b32 s6, {s(sB)}, 1\nv_xor_b32 {v(OD+1)}, s6, {v(OD)}')
        A(f'v_lshl_add_u32 {v(OD+1)}, {v(OD+(P["wrot"] & 1))}, 6, {v(vQF)}\nv_add_u32 {v(OD+1)}, {OL}, {v(OD+1)}')
        A(f'v_add_u32 {v(OD+2)}, {ZERO}, {v(vQF)}\nv_lshrrev_b32 {v(OD)}, 2, {v(OD)}')
        for k in range(4):
            A(f'v_cmp_eq_u32 vcc, {k}, {v(OD)}'); nop(2)
            A(f'v_cndmask_b32 {v(OA+k)}, {v(OD+2)}, {v(OD+1)}, vcc')
        A(f's_and_b32 s6, {s(sC)}, 7\ns_lshl_b32 s6, s6, 7\nv_add_u32 {v(OA+4)}, s6, {v(vQF)}')
    def wo_mfma(q_, r_):
        A(f'v_mfma_f32_16x16x32_bf16 {v(WA+4*r_,4)}, {v(OD+4*q_,4)}, {a(aWO+4*(4*q_+r_),4)}, {v(WA+4*r_,4) if q_ else 0}')
    if P['pure'] & 1:
        A('s_waitcnt vmcnt(0)'); stamp(6); A('s_waitcnt lgkmcnt(0)'); emit_stamps(A, 0); A('s_endpgm')
    A(f's_waitcnt vmcnt({landed("A")})')
    signal(F_A)
    o_addr()
    wait_flag(F_A, sleep=0)
    A(f's_cmp_gt_u32 {s(sW)}, 5\ns_cbranch_scc1 L_wx')
    for ks in range(16):
        if not ks & 2:
            for hh in range(2): wo_read(ks, hh)
    A('s_waitcnt vmcnt(0) lgkmcnt(0)')
    stamp(6)
    order2 = [ks for ks in range(16) if ks & 2]
    if P['uwo']:
        A('s_branch L_wo\nL_wm0:')
        for ks in order2:
            for hh in range(2): wo_read(ks, hh)
        A('s_waitcnt lgkmcnt(0)\ns_branch L_wm1')
    else:
        A('s_barrier')
        for k in range(4): A(f'ds_read_b128 {v(OD+4*k,4)}, {v(OA+k)}')
        for ks in order2:
            for hh in range(2): wo_read(ks, hh)
        A('s_waitcnt lgkmcnt(14)')
        for q_ in range(4):
            for r_ in range(2): wo_mfma(q_, r_)
        for n_, ks in enumerate(order2):
            A(f's_waitcnt lgkmcnt({14 - 2*n_})')
            wo_mfma(ks >> 2, ks & 3)
        A('s_branch L_wot')
    anchor('awx')
    A('L_wx:')
    for kx in range(2):
        for hh in range(2):
            A(f'ds_read_b64_tr_b16 {a(aWO+4*kx+2*hh,2)}, {v(T+1)} offset:{16384+2048*kx+256*hh}')
    A('s_waitcnt vmcnt(0) lgkmcnt(0)')
    stamp(6)
    A('L_wo:\ns_barrier')
    A(f's_cmp_lt_u32 {s(sW)}, 6\ns_cbranch_scc1 L_wm')
    for kx in range(2): A(f'ds_read_b128 {v(OD+4*kx,4)}, {v(OA+4)} offset:{OL+64*kx}')
    for kx in range(2):
        A(f's_waitcnt lgkmcnt({1-kx})')
        A(f'v_mfma_f32_16x16x32_bf16 {v(DW,4)}, {v(OD+4*kx,4)}, {a(aWO+4*kx,4)}, {v(DW,4) if kx else 0}')
    nop(7)
    A('s_branch L_wos\nL_wm:')
    for k in range(4): A(f'ds_read_b128 {v(OD+4*k,4)}, {v(OA+k)}')
    if P['uwo']: A(f's_cmp_eq_u32 {s(sLAY)}, 0\ns_cbranch_scc1 L_wm0\nL_wm1:')
    for q_ in range(4):
        A(f's_waitcnt lgkmcnt({3-q_})')
        for r_ in range(4): wo_mfma(q_, r_)
    A('L_wot:')
    nop(5)
    A(f'v_add_f32 {v(WA)}, {v(WA)}, {v(WA+5)}')
    nop(2)
    A(f'v_add_f32 {v(WA+1)}, {v(WA+10)}, {v(WA+15)}\nv_add_f32 {v(WA)}, {v(WA)}, {v(WA+1)}\nv_mov_b32 {v(WA+1)}, {v(WA)}')
    nop(2)
    A(f'v_permlane32_swap_b32 {v(WA)}, {v(WA+1)}\nv_add_f32 {v(WA)}, {v(WA)}, {v(WA+1)}\nv_mov_b32 {v(WA+1)}, {v(WA)}')
    nop(2)
    A(f'v_permlane16_swap_b32 {v(WA)}, {v(WA+1)}\nv_add_f32 {v(DW)}, {v(WA)}, {v(WA+1)}')
    nop(2)
    A('L_wos:')
    A(f'v_mov_b32_dpp {v(DW+4)}, {v(DW)} quad_perm:[0,0,2,2] row_mask:0xf bank_mask:0xf')
    A(f'v_mov_b32_dpp {v(DW+5)}, {v(DW)} quad_perm:[1,1,3,3] row_mask:0xf bank_mask:0xf')
    A(f'v_cvt_pk_bf16_f32 {v(DW)}, {v(DW+4)}, {v(DW+5)}')
    A(f'buffer_store_dword {v(DW)}, {v(vPCS)}, {s(rWS,4)}, {s(sPCst)} offen sc1')
    stamp(7)

    A('L_cbar:')
    if P['cpr'] >= 0: A(f's_setprio {P["cpr"]}')
    g0 = T
    xs_, xad, xad2 = T+18, T+20, T+21
    ga_, gb_ = vT4, T+23
    A(f'v_lshl_add_u32 {v(xad)}, {v(vT4)}, 1, {s(sSM)}\nv_add_u32 {v(gb_)}, {4*PCS}, {v(ga_)}')
    A(f's_cmp_lt_u32 {s(sW)}, 4\ns_cbranch_scc1 L_cy')
    A(f's_lshl_b32 s6, {s(sW)}, 6\ns_add_u32 s6, s6, {SM+2048-256}\nv_and_b32 {v(xad)}, 28, {v(vL4)}\nv_lshrrev_b32 {v(xad2)}, 7, {v(vL4)}')
    A(f'v_lshl_add_u32 {v(xad)}, {v(xad)}, 1, s6\nv_lshl_add_u32 {v(xad)}, {v(xad2)}, 2, {v(xad)}\nL_cy:')
    A1, A2, ACC = T+32, T+36, T+40
    A(f's_mov_b32 s4, 0x3f80\ns_mov_b32 s5, 0x3f800000')
    A(f'v_and_b32 {v(T+24)}, 28, {v(vL4)}\nv_lshl_add_u32 {v(T+24)}, {v(T+24)}, 1, {s(sSM)}')
    A('s_waitcnt vmcnt(0)')
    if not P['ls']: stamp(8)
    A(f'v_mov_b32 {v(A2+3)}, 0\nv_mov_b32 {v(A2+1)}, 0x3f803f80')
    A('s_barrier')
    if P['stamps'] == 1 and not P['ls']: cstamp(1)
    A('L_gc:')
    for k in range(8):
        A(f'buffer_load_dword {v(g0+k)}, {v(gb_ if k & 4 else ga_)}, {s(rWS,4)}, {s(sPCld2 if k & 2 else sPCld)} offen offset:{PCS*(k & 1)} sc1')
    A(f'v_cndmask_b32 {v(A2)}, {v(A2+3)}, {v(A2+1)}, {s(sMT,2)}\nv_cndmask_b32 {v(A2+2)}, {v(A2+3)}, {v(A2+1)}, {s(sMU,2)}')
    A(f's_cmp_gt_u32 {s(sW)}, 3\ns_cbranch_scc1 L_gx')
    A(f'ds_read_b64 {v(xs_,2)}, {v(xad)} offset:{X32}')
    A('s_waitcnt vmcnt(0) lgkmcnt(0)')
    check_sentinel(range(g0, g0+8), g0+8, 'L_gc_f')
    for k in range(8):
        A(f'v_dot2c_f32_bf16 {v(xs_)}, s4, {v(g0+k)}\nv_dot2c_f32_bf16 {v(xs_+1)}, s5, {v(g0+k)}')
    nop(3)
    partial_stats(xs_, g0, vSTW, [f'ds_write_b64 {v(xad)}, {v(xs_,2)} offset:{X32}'])
    A('s_branch L_gc_done'); anchor('agx'); A('L_gx:')
    A(f'ds_read_b32 {v(g0+9)}, {v(xad)} offset:{X32}\nv_mov_b32 {v(xs_)}, 0\nv_mov_b32 {v(xs_+1)}, 0')
    A('s_waitcnt vmcnt(0) lgkmcnt(0)')
    check_sentinel(range(g0, g0+8), g0+8, 'L_gc_f')
    for k in range(8):
        A(f'v_dot2c_f32_bf16 {v(xs_)}, s4, {v(g0+k)}\nv_dot2c_f32_bf16 {v(xs_+1)}, s5, {v(g0+k)}')
    nop(3)
    A(f'v_permlane32_swap_b32 {v(xs_)}, {v(xs_+1)}\nv_add_f32 {v(xs_)}, {v(xs_)}, {v(xs_+1)}\nv_mov_b32 {v(xs_+1)}, {v(xs_)}')
    nop(2)
    A(f'v_permlane16_swap_b32 {v(xs_)}, {v(xs_+1)}\nv_add_f32 {v(xs_)}, {v(xs_)}, {v(xs_+1)}')
    nop(2)
    dpp('v_add_f32', xs_, xs_, xs_, 'row_ror:8')
    A(f'v_add_f32 {v(xs_)}, {v(xs_)}, {v(g0+9)}\nv_mul_f32 {v(xs_+1)}, {v(xs_)}, {v(xs_)}\nds_write_b32 {v(xad)}, {v(xs_)} offset:{X32}\nv_mov_b32 {v(g0)}, {v(xs_)}')
    nop(2)
    A(f'v_permlane32_swap_b32 {v(g0)}, {v(xs_+1)}\nv_add_f32 {v(g0)}, {v(g0)}, {v(xs_+1)}')
    for k in (4, 2, 1):
        nop(2); dpp('v_add_f32', g0, g0, g0, f'row_ror:{k}')
    A(f'ds_write_b32 {v(vSTW)}, {v(g0)}')
    A('L_gc_done:')
    A('s_waitcnt lgkmcnt(0)\ns_barrier')
    if not P['ls']: cstamp(7)
    if P['ms']: stamp(3)
    st = T
    stats_issue(st)
    A(f'ds_read_b32 {v(st+17)}, {v(vEA)}')
    if P['wb']:
        A(f's_cmp_lg_u32 {s(sW)}, 7\ns_cbranch_scc1 L_nowb')
        if P['wb'] & 1: A('s_cmp_gt_u32 s2, 7\ns_cbranch_scc1 L_nowb')
        if P['wb'] & 4: A(f's_cmp_eq_u32 {s(sLAY)}, 0\ns_cbranch_scc1 L_nowb')
        A('buffer_wbl2 sc1\nL_nowb:')
    if P['touch']:
        A(f's_cmp_lg_u32 {s(sLAY)}, 0\ns_cbranch_scc1 L_notouch\ns_cmp_gt_u32 {s(sW)}, 3\ns_cbranch_scc1 L_notouch')
        A(f'v_lshlrev_b32 {v(st+18)}, 4, {v(vL4)}\ns_add_u32 s6, {s(sQAld)}, {LQ}\ns_add_u32 s7, {s(sOBld)}, {LA}')
        A(f'v_and_b32 {v(st+19)}, 0x7c0, {v(st+18)}')
        A(f'buffer_load_dword {v(ACC+5)}, {v(st+18)}, {s(rWS,4)}, s6 offen sc1\nbuffer_load_dword {v(ACC+5)}, {v(st+19)}, {s(rWS,4)}, s7 offen sc1')
        A(f's_add_u32 s7, {s(sLSEld)}, {LA}\nv_mov_b32 {v(st+19)}, 0\nbuffer_load_dword {v(ACC+5)}, {v(st+19)}, {s(rWS,4)}, s7 offen sc1')
        A('L_notouch:')
    A('s_waitcnt lgkmcnt(0)')
    stats_calc(st, twice=True)
    h = st + 17
    A(f'v_sub_f32 {v(h)}, {v(h)}, {v(st)}\nv_mul_f32 {v(h)}, {v(h)}, {v(st+2)}')
    A(f'v_cvt_pk_bf16_f32 {v(h)}, {v(h)}, {v(h)}')
    A(f'v_cndmask_b32 {v(A1+3)}, {v(A2+3)}, {v(h)}, {s(sMT,2)}\nv_cndmask_b32 {v(A2+1)}, {v(A2+3)}, {v(h)}, {s(sMU,2)}')
    A(f'v_and_b32 {v(st)}, 0xffff0000, {v(A1+3)}\nv_mul_f32 {v(st+1)}, {v(st)}, {v(st)}\nv_mul_f32 {v(st+2)}, {v(st+1)}, {v(st)}')
    A(f'v_and_b32 {v(st+3)}, 0xffff0000, {v(st+1)}\nv_perm_b32 {v(A1+1)}, {v(st+1)}, {v(st+1)}, {s(sSEL)}\nv_and_b32 {v(st+4)}, 0xffff0000, {v(st+2)}')
    A(f'v_sub_f32 {v(st+3)}, {v(st+1)}, {v(st+3)}\nv_sub_f32 {v(st+4)}, {v(st+2)}, {v(st+4)}\nv_perm_b32 {v(A1)}, {v(st+2)}, {v(st+2)}, {s(sSEL)}')
    A(f'v_cvt_pk_bf16_f32 {v(A1+2)}, {v(st+4)}, {v(st+3)}')
    nop(2)
    def mm2(f):
        D = T + 16*(f & 1)
        A(f'v_mfma_f32_32x32x16_bf16 {v(D,16)}, {v(A1,4)}, {v(CB+8*f,4)}, 0')
        A(f'v_mfma_f32_32x32x16_bf16 {v(D,16)}, {v(A2,4)}, {v(CB+8*f+4,4)}, {v(D,16)}')
    def m1(f): A(f'v_mfma_f32_32x32x16_bf16 {v(T+16*(f & 1),16)}, {v(A1,4)}, {v(CB+8*f,4)}, 0')
    def m2(f): A(f'v_mfma_f32_32x32x16_bf16 {v(T+16*(f & 1),16)}, {v(A2,4)}, {v(CB+8*f+4,4)}, {v(T+16*(f & 1),16)}')
    if P['mprio']: A('s_setprio 0')
    if P['ms']: stamp(4)
    mm2(0)
    def mlp_iter(f, ne):
        D = T + 16*(f & 1)
        nx = f + 1 < 9
        if f == 0: m1(1); nop(11)
        elif nx: nop(P['mnop'] + (2 if ne == 4 and f > 5 else 0)); m1(f+1)
        else: nop(P['mnop'] + (3 if ne == 4 else 1))
        for e in range(ne): A(f'v_exp_f32 {v(D+e)}, {v(D+e)}')
        if P['bal'] and f == 4: A(f'v_mul_f32 {v(D+10)}, {s(sU)}, {v(D+10)}')
        A(f'v_pk_add_f32 {v(D,2)}, {v(D,2)}, 1.0 op_sel_hi:[1,0]\nv_pk_add_f32 {v(D+2,2)}, {v(D+2,2)}, 1.0 op_sel_hi:[1,0]')
        if ne == 5: A(f'v_add_f32 {v(D+4)}, 1.0, {v(D+4)}')
        if nx: m2(f+1)
        for e in range(ne): A(f'v_rcp_f32 {v(D+e)}, {v(D+e)}')
        if f == 0:
            A(f'v_pk_mul_f32 {v(ACC,2)}, {v(D,2)}, {v(D+6,2)}\nv_pk_mul_f32 {v(ACC+2,2)}, {v(D+2,2)}, {v(D+8,2)}\nv_mul_f32 {v(ACC+4)}, {v(D+4)}, {v(D+10)}')
        else:
            A(f'v_pk_fma_f32 {v(ACC,2)}, {v(D,2)}, {v(D+6,2)}, {v(ACC,2)}\nv_pk_fma_f32 {v(ACC+2,2)}, {v(D+2,2)}, {v(D+8,2)}, {v(ACC+2,2)}')
            if ne == 5: A(f'v_fmac_f32 {v(ACC+4)}, {v(D+4)}, {v(D+10)}')
    for f in range(5): mlp_iter(f, 5)
    if P['bal']:
        A(f's_cmp_lg_u32 {s(sLAY)}, 0\ns_cbranch_scc1 L_m5')
        for f in range(5, 9): mlp_iter(f, 4)
        A('s_branch L_mend\nL_m5:')
    for f in range(5, 9): mlp_iter(f, 5)
    A('L_mend:')
    if P['ms']: stamp(5)
    U = T + 16
    A(f'v_mov_b32 {v(U+4)}, {v(ACC+4)}')
    A(f'v_lshrrev_b32 {v(U)}, 6, {v(vL4)}\nv_and_b32 {v(U+1)}, 1, {v(U)}')
    A(f'v_permlane32_swap_b32 {v(ACC)}, {v(ACC+1)}\nv_permlane32_swap_b32 {v(ACC+2)}, {v(ACC+3)}\nv_permlane32_swap_b32 {v(ACC+4)}, {v(U+4)}')
    A(f'v_add_f32 {v(ACC)}, {v(ACC)}, {v(ACC+1)}\nv_add_f32 {v(ACC+2)}, {v(ACC+2)}, {v(ACC+3)}\nv_add_f32 {v(ACC+4)}, {v(ACC+4)}, {v(U+4)}')
    A(f'v_mov_b32 {v(U+4)}, {v(ACC+4)}')
    A(f'v_lshrrev_b32 {v(U)}, 1, {v(U)}\nv_lshl_add_u32 {v(U)}, {v(U+1)}, 1, {v(U)}')
    A(f'v_permlane16_swap_b32 {v(ACC)}, {v(ACC+2)}\nv_permlane16_swap_b32 {v(ACC+4)}, {v(U+4)}')
    A(f'v_add_f32 {v(ACC)}, {v(ACC)}, {v(ACC+2)}\nv_add_f32 {v(ACC+4)}, {v(ACC+4)}, {v(U+4)}')
    fill = [f's_lshl_b32 s6, {s(sW)}, 2', f's_add_u32 s6, s6, {SM+RED}', f'v_lshl_add_u32 {v(U)}, {v(U)}, 5, s6', f'v_mov_b32 {v(U+1)}, s6']
    for k, fi in zip((8, 4, 2, 1), fill):
        A(fi)
        dpp('v_add_f32', ACC, ACC, ACC, f'row_ror:{k}')
        dpp('v_add_f32', ACC+4, ACC+4, ACC+4, f'row_ror:{k}')
    A(f'ds_write_b32 {v(U)}, {v(ACC)}\nds_write_b32 {v(U+1)}, {v(ACC+4)} offset:128')
    if P['ms']: stamp(6)
    TT = T
    A(f's_cmp_lg_u32 {s(sW)}, 0\ns_cbranch_scc1 L_nofin')
    A(f'v_and_b32 {v(U)}, 28, {v(vL4)}\nv_lshl_add_u32 {v(U+1)}, {v(U)}, 3, {s(sSM)}')
    A(f's_lshl_b32 s6, {s(sE0)}, 2\ns_add_u32 s6, s6, {SM+X32}\nv_add_u32 {v(U+2)}, s6, {v(U)}\nds_read_b32 {v(U+2)}, {v(U+2)}')
    A(f'v_lshrrev_b32 {v(U+3)}, 5, {v(vL4)}\nv_mul_u32_u24 {v(U+3)}, {XDS}, {v(U+3)}\nv_add_u32 {v(U+3)}, {v(U+3)}, {v(U)}')
    A(f's_mul_i32 s6, {s(sB)}, 576\ns_add_u32 s6, s6, {s(sE0)}\ns_lshl_b32 s6, s6, 1\nv_lshrrev_b32 {v(U+5)}, 1, {v(vL4)}\nv_add_u32 {v(U+5)}, s6, {v(U+5)}')
    A(f's_lshl_b32 s6, 1, {s(sNE)}\ns_sub_u32 s6, s6, 1\ns_mul_i32 s7, s6, 0x01010101\ns_lshl_b32 s5, {s(sB2)}, 16')
    A(f's_waitcnt lgkmcnt(0)\nv_add_f32 {v(U+2)}, s5, {v(U+2)}')
    if P['bal']:
        A(f's_cmp_lg_u32 {s(sU)}, 0\ns_cbranch_scc1 L_nbal\nv_cmp_eq_u32 vcc, 16, {v(U)}')
        A(f's_mul_i32 s4, {s(sE0)}, 3\ns_sub_u32 s4, {1984-16}, s4\ns_mov_b32 s7, 0x1f1f1f1f\nv_add_u32 {v(U+4)}, s4, {v(U+3)}\nv_mov_b32 {v(U+6)}, 0')
        A(f'v_cndmask_b32 {v(U+3)}, {v(U+3)}, {v(U+4)}, vcc\nv_cndmask_b32 {v(U+2)}, {v(U+2)}, {v(U+6)}, vcc\nL_nbal:')
    A('s_barrier')
    if not P['ls']: stamp(8)
    A(f'ds_read_b128 {v(TT,4)}, {v(U+1)} offset:{RED}\nds_read_b128 {v(TT+4,4)}, {v(U+1)} offset:{RED+16}')
    A('s_waitcnt lgkmcnt(0)')
    A(f'v_pk_add_f32 {v(TT,2)}, {v(TT,2)}, {v(TT+2,2)}\nv_pk_add_f32 {v(TT+4,2)}, {v(TT+4,2)}, {v(TT+6,2)}\nv_pk_add_f32 {v(TT,2)}, {v(TT,2)}, {v(TT+4,2)}')
    A(f'v_add_f32 {v(TT)}, {v(TT)}, {v(U+2)}\nv_add_f32 {v(TT)}, {v(TT)}, {v(TT+1)}')
    if P['oin']:
        A(f's_cmp_eq_u32 {s(sLAY)}, 0\ns_cbranch_scc1 L_xd')
        A(f's_mov_b32 exec_lo, s6\ns_mov_b32 exec_hi, 0\nv_cvt_pk_bf16_f32 {v(TT)}, {v(TT)}, {v(TT)}')
        A(f'global_store_short {v(U+5)}, {v(TT)}, {s(pX,2)}')
        A('s_branch L_fin' if P['stamps'] else 's_endpgm')
        A('L_xd:')
    else:
        A(f's_cmp_lg_u32 {s(sLAY)}, 0\ns_cbranch_scc1 L_out')
    A('s_mov_b32 exec_lo, s7\ns_mov_b32 exec_hi, s7')
    A(f'buffer_store_dword {v(TT)}, {v(U+3)}, {s(rWS,4)}, {s(sXDst)} offen sc1\ns_mov_b64 exec, -1\ns_branch L_dpace')
    anchor('anf')
    A('L_nofin:\ns_waitcnt lgkmcnt(0)\ns_barrier')
    if not P['ls']: cstamp(8)
    A(f's_cmp_lg_u32 {s(sLAY)}, 0\ns_cbranch_scc1 L_fin')
    A('L_dpace:')
    A(f's_load_dwordx2 {s(pX,2)}, s[0:1], 80')
    amp(4)
    A(f'v_lshl_add_u32 {v(xad)}, {v(vT4)}, 1, {s(sSM)}\nv_add_u32 {v(xad2)}, {s(sSM)}, {v(vT4)}\nv_lshlrev_b32 {v(T+22)}, 1, {v(vT4)}')
    A(f'v_mov_b32 {v(xs_)}, 0\nv_mov_b32 {v(xs_+1)}, 0')
    A(f'v_mov_b32 {v(T+23)}, {SM+TAGW}\nds_read_b64 {v(T+24,2)}, {v(T+23)}\ns_waitcnt lgkmcnt(0)\nv_readfirstlane_b32 {s(sTG12)}, {v(T+24)}')
    if P['fast']: A(f'v_readfirstlane_b32 {s(sFAST)}, {v(T+25)}')
    for r in (sQAst, sQAld): A(f's_add_u32 {s(r)}, {s(r)}, {LQ}')
    for r in (sOBst, sLSEst, sOBld, sLSEld, sPCst, sPCld, sPCld2): A(f's_add_u32 {s(r)}, {s(r)}, {LA}')
    A(f's_mov_b32 {s(sLAY)}, 1')
    if P['bal']:
        A(f's_mov_b32 {s(sU)}, 1.0\nv_lshl_or_b32 {v(T+26)}, {v(vTID)}, 1, 1\nv_mul_u32_u24 {v(T+27)}, 13108, {v(T+26)}\nv_lshrrev_b32 {v(T+27)}, 16, {v(T+27)}')
        A(f'v_mul_u32_u24 {v(T+28)}, 5, {v(T+27)}\nv_sub_u32 {v(T+28)}, {v(T+26)}, {v(T+28)}\nv_cmp_gt_u32 vcc, 160, {v(vTID)}')
        A(f'v_cmp_eq_u32 s[4:5], 0, {v(T+28)}\nv_cmp_eq_u32 s[6:7], 4, {v(T+28)}\nv_lshlrev_b32 {v(T+27)}, 2, {v(T+27)}')
        A(f's_and_b64 s[4:5], s[4:5], vcc\ns_and_b64 s[6:7], s[6:7], vcc\nv_add_u32 {v(T+26)}, 2300, {v(T+27)}\nv_add_u32 {v(T+27)}, 2304, {v(T+27)}')
        A(f'v_cndmask_b32 {v(T+26)}, {v(T+22)}, {v(T+26)}, s[4:5]\nv_cndmask_b32 {v(T+26)}, {v(T+26)}, {v(T+27)}, s[6:7]\nv_mov_b32 {v(T+28)}, 0')
    if P['dpace'] < 0: A('s_waitcnt vmcnt(0)')
    elif P['dpace']: A(f's_sleep {P["dpace"]}')
    q_prep(vXA)
    if P['stamps'] == 1 and not P['ls']: cstamp(9)
    A('s_barrier')
    A(f's_cmp_gt_u32 {s(sW)}, 4\ns_cbranch_scc1 L_gd_done')
    A(f's_cmp_eq_u32 {s(sW)}, 4\ns_cselect_b32 exec_hi, 0, -1')
    A('L_gd:')
    if P['dx2']: A(f'buffer_load_dwordx2 {v(xs_,2)}, {v(T+22)}, {s(rWS,4)}, {s(sXDld)} offen sc1')
    else:
        for k in range(2):
            A(f'buffer_load_dword {v(xs_+k)}, {v(T+22)}, {s(rWS,4)}, {s(sXDld)} offen offset:{4*k} sc1')
    if P['bal']: A(f'buffer_load_dword {v(T+27)}, {v(T+26)}, {s(rWS,4)}, {s(sXDld)} offen sc1')
    A('s_waitcnt vmcnt(0)')
    check_sentinel([xs_, xs_+1] + ([T+27] if P['bal'] else []), g0+2, 'L_gd_f')
    if P['bal']:
        A(f'v_cndmask_b32 {v(g0)}, {v(T+28)}, {v(T+27)}, s[4:5]\nv_cndmask_b32 {v(g0+1)}, {v(T+28)}, {v(T+27)}, s[6:7]\nv_pk_add_f32 {v(xs_,2)}, {v(xs_,2)}, {v(g0,2)}')
    A('s_mov_b64 exec, -1')
    partial_stats(xs_, g0, vSTW, [
        f'v_cvt_pk_bf16_f32 {v(g0+2)}, {v(xs_)}, {v(xs_+1)}', f'ds_write_b64 {v(xad)}, {v(xs_,2)} offset:{X32}',
        f'v_lshlrev_b32 {v(g0+4)}, 16, {v(g0+2)}', f'v_and_b32 {v(g0+5)}, 0xffff0000, {v(g0+2)}',
        f'ds_write_b32 {v(xad2)}, {v(g0+2)} offset:{XH}', f'v_sub_f32 {v(g0+4)}, {v(xs_)}, {v(g0+4)}',
        f'v_sub_f32 {v(g0+5)}, {v(xs_+1)}, {v(g0+5)}', f'v_cvt_pk_bf16_f32 {v(g0+4)}, {v(g0+4)}, {v(g0+5)}',
        f'ds_write_b32 {v(xad2)}, {v(g0+4)} offset:{XL}'])
    A('s_waitcnt lgkmcnt(0)')
    A('L_gd_done:\ns_barrier')
    if P['stamps'] == 1:
        A('s_waitcnt lgkmcnt(0)')
        emit_stamps(A, 0)
        stamp(0)
    A(f's_cmp_lt_u32 {s(sW)}, 4\ns_cbranch_scc1 L_attn')
    q_stage(vXA)
    stamp(2)
    o_addr()
    A('s_barrier\ns_barrier\ns_branch L_wo')
    A('L_gc_f:')
    tmo_check(2)
    A('s_branch L_gc')
    A('L_gd_f:')
    tmo_check(3)
    A('s_branch L_gd')
    if not P['oin']:
        A('L_out:')
        A(f's_mov_b32 exec_lo, s6\ns_mov_b32 exec_hi, 0\nv_cvt_pk_bf16_f32 {v(TT)}, {v(TT)}, {v(TT)}')
        A(f'global_store_short {v(U+5)}, {v(TT)}, {s(pX,2)}')
    if P['amp'] >= 0:
        amp(5)
        A('s_memrealtime s[86:87]\ns_waitcnt lgkmcnt(0)\ns_sub_u32 s84, s84, s82\ns_lshl_b32 s84, s84, 2\ns_add_u32 s86, s86, s84')
        A('L_amp:\ns_memrealtime s[88:89]\ns_waitcnt lgkmcnt(0)\ns_sub_u32 s88, s88, s86\ns_cmp_lt_i32 s88, 0\ns_cbranch_scc1 L_amp')
    A('L_fin:')
    if P['stamps']:
        A('s_mov_b64 exec, -1\ns_waitcnt vmcnt(0)')
        stamp(9, True)
        A('s_waitcnt lgkmcnt(0)')
        if P['stamps'] in (1, 3):
            emit_stamps(A, 1)
    A('L_end:\ns_endpgm')
    A('L_centry:')
    lane_ids()
    A(f's_mul_i32 s6, {s(sB)}, 1152\nv_add_u32 {v(T+16)}, s6, {v(vT4)}')
    A(f'v_and_b32 {v(T+18)}, 31, {v(vl)}\nv_lshl_add_u32 {v(T+17)}, {v(T+18)}, 2, s6\nv_mov_b32 {v(T+19)}, {EPO}\ns_waitcnt lgkmcnt(0)')
    A(f'global_load_dword {v(T+12)}, {v(T+16)}, s[56:57]\nglobal_load_dword {v(T+13)}, {v(T+17)}, s[56:57] offset:1024')
    A(f'global_load_dword {v(T+14)}, {v(T+19)}, {s(pWS,2)} sc1')
    if P['pure'] & 4:
        A(f's_cmp_lg_u32 {s(sW)}, 0\ns_cbranch_scc1 L_pp')
        A(f'v_mov_b32 {v(T+4)}, 0\nv_add_u32 {v(T+5)}, {SM}, {v(vL4)}\nds_write_b32 {v(T+5)}, {v(T+4)} offset:{FLAGS}')
        A('L_pp:\ns_waitcnt lgkmcnt(0)\ns_barrier'); emit_stamps(A, 0); A('s_endpgm')
    if P['prefetch']:
        A(f's_getpc_b64 s[4:5]\nL_pc:\ns_sub_u32 s4, s4, L_pc-{NAME}_kernel\ns_subb_u32 s5, s5, 0')
        A(f's_lshr_b32 s7, s2, 3\ns_lshl_b32 s7, s7, 2\ns_add_u32 s7, s7, {s(sW)}\ns_mul_i32 s7, s7, 192')
        A(f's_mov_b64 exec, 7\nv_lshl_add_u32 {v(T+15)}, {v(vl)}, 6, s7\nv_min_u32 {v(T+15)}, L_last-{NAME}_kernel, {v(T+15)}')
        A(f'global_load_dword {v(CB+70)}, {v(T+15)}, s[4:5]\ns_mov_b64 exec, -1')
    NRC = 0
    if P['rawc'] == 1:
        raw_loads(dst=CB+50, ptrs=(68, 70, 72), t=T+20); NRC = 15
    A(f's_cmp_lg_u32 {s(sW)}, 0\ns_cbranch_scc1 L_noinit')
    A(f'v_mov_b32 {v(T+4)}, 0\nv_add_u32 {v(T+5)}, {SM}, {v(vL4)}\nds_write_b32 {v(T+5)}, {v(T+4)} offset:{FLAGS}\nds_write_b32 {v(T+5)}, {v(T+4)} offset:{ZERO}')
    A(f'v_mov_b32 {v(T+4)}, 0x3f803f80\nds_write_b32 {v(T+5)}, {v(T+4)} offset:{ONES}\nds_write_b32 {v(T+5)}, {v(T+4)} offset:{ONES+256}')
    A('L_noinit:\ns_waitcnt lgkmcnt(0)')
    def c_setup():
        A(f'v_bfe_u32 {v(T+4)}, {v(vj)}, 2, 1\nv_mul_u32_u24 {v(T+4)}, {HS}, {v(T+4)}')
        A(f'v_lshl_add_u32 {v(vQF)}, {v(vg)}, 4, {v(T+4)}\nv_add_u32 {v(vQF)}, {SM}, {v(vQF)}')
        A(f's_lshl_b32 s6, {s(sW)}, 7\ns_add_u32 s6, s6, {SM+PB}')
        A(f'v_mul_u32_u24 {v(vPW)}, {HS}, {v(T+6)}\nv_add3_u32 {v(vPW)}, {v(vPW)}, {v(T+7)}, s6')
        A(f'v_lshl_add_u32 {v(vOBS)}, {v(T+6)}, 11, {v(T+7)}')
    if P['spl']:
        assert not P['shs']
        setup_a()
    else:
        A(f's_mov_b32 {s(sGOK)}, 0\nL_setup:')
        common_setup()
        if P['shs']: A(f's_cmp_lg_u32 {s(sGOK)}, 0\ns_cbranch_scc1 L_setup_ret')
    if P['cprio']: A(f's_setprio {P["cprio"]}')
    if not P['spl']: c_setup()
    if P['spl'] & 2:
        xa_addr(CB, T+20); wq_addr(T+20)
    if not P['pure'] & 8: A(f's_cmp_eq_u32 {s(sW)}, 3\ns_cbranch_scc1 L_clr')
    A(f's_waitcnt vmcnt({NRC + (1 if P["prefetch"] else 0)})')
    A('s_branch L_cdone')
    A('L_clr:')
    for i in range(4): A(f'v_mov_b32 {v(T+8+i)}, -1')
    A(f's_mul_i32 s6, s2, 3328\ns_add_u32 s6, s6, {AR0}\nv_lshlrev_b32 {v(T+19)}, 2, {v(vL4)}')
    A(f'buffer_store_dwordx4 {v(T+8,4)}, {v(T+19)}, {s(rWS,4)}, s6 offen sc1\nbuffer_store_dwordx4 {v(T+8,4)}, {v(T+19)}, {s(rWS,4)}, s6 offen offset:1024 sc1')
    A(f'buffer_store_dwordx4 {v(T+8,4)}, {v(T+19)}, {s(rWS,4)}, s6 offen offset:2048 sc1')
    A(f's_mov_b64 exec, 0xffff\nbuffer_store_dwordx4 {v(T+8,4)}, {v(T+19)}, {s(rWS,4)}, s6 offen offset:3072 sc1\ns_mov_b64 exec, -1')
    A(f's_waitcnt vmcnt({NRC + (5 if P["prefetch"] else 4)})')
    A('L_cdone:')
    if P['d2'] == 3: stamp(7)
    A(f'v_readfirstlane_b32 {s(sTAG)}, {v(T+14)}')
    xa = T + 4
    def x_pair(src, areg):
        A(f'v_lshlrev_b32 {v(xa)}, 16, {v(src)}\nv_and_b32 {v(xa+1)}, 0xffff0000, {v(src)}\nv_mov_b32 {v(xa+2)}, 0')
        A(f'v_lshl_add_u32 {v(xa+3)}, {v(areg)}, 1, {s(sSM)}\nv_add_u32 {v(xa+4)}, {s(sSM)}, {v(areg)}')
        A(f'ds_write_b64 {v(xa+3)}, {v(xa,2)} offset:{X32}\nds_write_b32 {v(xa+4)}, {v(src)} offset:{XH}\nds_write_b32 {v(xa+4)}, {v(xa+2)} offset:{XL}')
    x_pair(T+12, vT4)
    partial_stats(xa, xa+6, vSTW)
    A(f's_mul_i32 {s(sTAG)}, {s(sTAG)}, 0x9e3779b1\ns_add_u32 {s(sTAG)}, {s(sTAG)}, 0x7f4a7c15\ns_and_b32 {s(sTAG)}, {s(sTAG)}, 0x1fffffff\ns_and_b32 {s(sTG12)}, {s(sTAG)}, 0xfff')
    A(f's_cmp_lg_u32 {s(sW)}, 0\ns_cbranch_scc1 L_noextra')
    A(f'v_lshlrev_b32 {v(T+18)}, 2, {v(T+18)}\nv_add_u32 {v(T+18)}, 1024, {v(T+18)}')
    x_pair(T+13, T+18)
    A(f'v_cndmask_b32 {v(xa)}, {v(xa)}, {v(xa+2)}, {s(sMHI,2)}\nv_cndmask_b32 {v(xa+1)}, {v(xa+1)}, {v(xa+2)}, {s(sMHI,2)}')
    A(f'v_add_u32 {v(T+18)}, 32, {v(vSTW)}\nv_min_u32 {v(T+18)}, {SM+DUMMY}, {v(T+18)}')
    partial_stats(xa, xa+6, T+18)
    A(f'v_mov_b32 {v(xa)}, {s(sTG12)}\nv_mov_b32 {v(xa+1)}, {SM+TAGW}\nds_write_b32 {v(xa+1)}, {v(xa)}')
    A('L_noextra:')
    A('s_waitcnt lgkmcnt(0)')
    amp(1)
    if not P['spl'] & 2:
        xa_addr(CB, T); wq_addr(T)
    if P['rawc'] == 2: raw_loads(dst=CB+50, t=T+20)
    if P['d2'] == 3: stamp(8)
    A('s_barrier')
    if P['rawc'] == 3: raw_loads(dst=CB+50, t=T+20)
    if P['pure'] & 1:
        A('s_waitcnt lgkmcnt(0)'); emit_stamps(A, 0); A('s_endpgm')
    wq_reads(T+20 if P['spl'] & 2 else T)
    A(f's_cmp_lg_u32 {s(sW)}, 3\ns_cbranch_scc1 L_noarr')
    A(f's_lshl_b32 s6, {s(sXCC)}, 29\ns_or_b32 s6, s6, {s(sTAG)}\nv_mov_b32 {v(T+8)}, s6')
    A(f's_lshl_b32 s6, {s(sX)}, 7\ns_lshr_b32 s7, s2, 3\ns_lshl_b32 s7, s7, 2\ns_add_u32 s6, s6, s7\ns_add_u32 s6, s6, {ARR}\nv_mov_b32 {v(T+9)}, s6')
    A(f's_waitcnt vmcnt({15 if P["rawc"] >= 2 else 0})\ns_mov_b64 exec, 1\nbuffer_store_dword {v(T+8)}, {v(T+9)}, {s(rWS,4)}, 0 offen sc1\ns_mov_b64 exec, -1')
    A('L_noarr:\ns_waitcnt lgkmcnt(0)')
    signal(F_WQ)
    q_prep(CB)
    q_stage(CB, (lambda: None) if P['xp'] & 2 or P['rawc'] else raw_loads)
    stamp(9)
    if P['spl']:
        setup_b(True); c_setup()
    ga, gc, pa, qw = T+8, T+12, T+36, T+35
    def ga_issue():
        for kq in range(4):
            A(f'buffer_load_dword {v(ga+kq)}, {v(vT4)}, {s(rWS,4)}, {s(sQC)} offen offset:{1024*kq} sc1')
    def gchk_issue():
        A(f'v_lshlrev_b32 {v(gc+4)}, 2, {v(vL4)}\nv_add_u32 {v(gc+4)}, {ARR}, {v(gc+4)}')
        A(f'buffer_load_dwordx4 {v(gc,4)}, {v(gc+4)}, {s(rWS,4)}, 0 offen sc1')
    def gchk_test(lfail):
        for k in range(4): A(f'v_xor_b32 {v(gc+k)}, {s(sTAG)}, {v(gc+k)}')
        A(f'v_or3_b32 {v(gc+5)}, {v(gc)}, {v(gc+1)}, {v(gc+2)}\nv_or_b32 {v(gc+5)}, {v(gc+5)}, {v(gc+3)}\nv_and_b32 {v(gc+6)}, 0x1fffffff, {v(gc+5)}')
        A(f'v_cmp_ne_u32 vcc, 0, {v(gc+6)}\ns_cbranch_vccnz {lfail}')
        if P['fast']:
            A(f's_lshl_b32 s6, {s(sXCC)}, 29')
            for k in range(4): A(f'v_xor_b32 {v(gc+k)}, s6, {v(gc+k)}')
            A(f'v_or3_b32 {v(gc+5)}, {v(gc)}, {v(gc+1)}, {v(gc+2)}\nv_or_b32 {v(gc+5)}, {v(gc+5)}, {v(gc+3)}')
            A(f'v_cmp_ne_u32 vcc, 0, {v(gc+5)}\ns_lshl_b32 s6, {s(sX)}, 3\ns_lshr_b64 vcc, vcc, s6')
            A(f's_and_b32 s6, vcc_lo, 0xff\ns_cselect_b32 {s(sFAST)}, 0, 1')
            A(f'v_mov_b32 {v(gc)}, {s(sFAST)}\nv_mov_b32 {v(gc+1)}, {SM+TAGW+4}\nds_write_b32 {v(gc+1)}, {v(gc)}')
        A(f's_mov_b32 {s(sGOK)}, 1')
    def q_copy():
        A(f's_add_u32 s7, {s(sQAst)}, {QAB}\ns_mov_b64 exec, 0xffff')
        A(f'buffer_load_dword {v(gc+7)}, {v(vL4)}, {s(rWS,4)}, {s(sQAst)} offen sc1\nbuffer_load_dword {v(gc+8)}, {v(vL4)}, {s(rWS,4)}, {s(sQAst)} offen offset:64 sc1')
        A(f's_waitcnt vmcnt(0)\nbuffer_store_dword {v(gc+7)}, {v(vL4)}, {s(rWS,4)}, s7 offen sc1\nbuffer_store_dword {v(gc+8)}, {v(vL4)}, {s(rWS,4)}, s7 offen offset:64 sc1')
        A('s_mov_b64 exec, -1')
    def attn_addr():
        A(f'v_bfe_u32 {v(T+6)}, {v(vL4)}, 2, 2\nv_lshrrev_b32 {v(T+7)}, 6, {v(vL4)}\nv_lshlrev_b32 {v(T+7)}, 4, {v(T+7)}\nv_add_u32 {v(T+7)}, {SM+ZERO}, {v(T+7)}')
        for k in range(4):
            A(f'v_cmp_eq_u32 vcc, {k}, {v(T+6)}\nv_add_u32 {v(T+5)}, {PB+128*k}, {v(vQF)}')
            nop(1)
            A(f'v_cndmask_b32 {v(pa+k)}, {v(T+7)}, {v(T+5)}, vcc')
        A(f'v_lshrrev_b32 {v(qw)}, 7, v0\nv_mul_u32_u24 {v(qw)}, {HS-256}, {v(qw)}\nv_lshl_add_u32 {v(qw)}, v0, 1, {v(qw)}\nv_add_u32 {v(qw)}, {SM+QB}, {v(qw)}')
    A(f's_mov_b32 {s(sQC)}, {s(sQAld)}\ns_mov_b32 {s(sKD)}, 0\ns_mov_b32 {s(sPOL)}, {P["npa"]}\ns_mov_b32 {s(sGOK)}, 0')
    A('s_waitcnt vmcnt(0)')
    if P['ega']: ga_issue()
    if P['egchk']: gchk_issue()
    if P['rawc']:
        for k in range(15): A(f'v_mov_b32 {v(RAW+k)}, {v(CB+50+k)}')
    for ins in coef_build(): A(ins)
    attn_addr()
    stamp(1)
    if not P['ega']: ga_issue()
    A('s_waitcnt vmcnt(0)')
    if P['egchk']: gchk_test('L_ga_w')
    A('s_branch L_ga_w')

    anchor('aat')
    A('L_attn:')
    A(f's_mov_b32 {s(sQC)}, {s(sQAld)}\ns_mov_b32 {s(sKD)}, 1\ns_mov_b32 {s(sPOL)}, -1')
    A(f's_cmp_lg_u32 {s(sFAST)}, 0\ns_cbranch_scc1 L_ga0\ns_add_u32 {s(sQC)}, {s(sQC)}, {QAB}')
    A('L_ga0:')
    attn_addr()
    A('L_ga:')
    ga_issue()
    A('s_waitcnt vmcnt(0)')
    A('L_ga_w:')
    for k in range(4): A(f'v_xor_b32 {v(ga+k)}, {s(sTG12)}, {v(ga+k)}')
    A(f'v_or3_b32 {v(T+4)}, {v(ga)}, {v(ga+1)}, {v(ga+2)}\nv_or_b32 {v(T+4)}, {v(T+4)}, {v(ga+3)}\nv_and_b32 {v(T+4)}, 0xfff, {v(T+4)}')
    A(f'v_add_f32 {v(T)}, {v(ga)}, {v(ga+1)}\nv_add_f32 {v(T+2)}, {v(ga+2)}, {v(ga+3)}')
    A(f'v_cmp_ne_u32 vcc, 0, {v(T+4)}\nv_add_f32 {v(T)}, {v(T)}, {v(T+2)}\ns_cbranch_vccnz L_ga_f')
    A(f'v_cvt_pk_bf16_f32 {v(T)}, {v(T)}, {v(T)}\nds_write_b16 {v(qw)}, {v(T)}\ns_waitcnt lgkmcnt(0)')
    stamp(3)
    A(f's_cmp_lg_u32 {s(sLAY)}, 0\ns_cbranch_scc1 L_qbar')
    signal(F_Q)
    A(f's_cmp_lg_u32 {s(sKD)}, 0\ns_cbranch_scc1 L_kdone')
    wait_flag(F_K)
    A(f's_mov_b32 {s(sKD)}, 2')
    A('L_kread:')
    kt = T + 8
    A(f'v_bfe_u32 {v(kt)}, {v(vL4)}, 2, 4\nv_lshrrev_b32 {v(kt+1)}, 6, {v(vL4)}\ns_lshl_b32 s6, {s(sW)}, 14')
    A(f'v_lshl_add_u32 {v(kt+2)}, {v(kt)}, 8, s6')
    for ks in range(4):
        A(f'v_add_u32 {v(kt+3)}, {4*ks}, {v(kt+1)}\nv_xor_b32 {v(kt+3)}, {v(kt+3)}, {v(kt)}\nv_lshl_add_u32 {v(kt+4+ks)}, {v(kt+3)}, 4, {v(kt+2)}')
        for tt in range(4):
            A(f'ds_read_b128 {a(aK+16*tt+4*ks,4)}, {v(kt+4+ks)} offset:{KB+4096*tt}')
    A('s_waitcnt lgkmcnt(0)')
    signal(F_KR)
    A(f's_cmp_eq_u32 {s(sKD)}, 1\ns_cbranch_scc1 L_ga')
    A('L_kdone:')
    amp(6)
    A(f's_mov_b32 {s(sPOL)}, 48\nv_mov_b32 {v(FT+5)}, {SM+FLAGS}\nL_fq:')
    flag_test(F_Q)
    A('s_cbranch_vccnz L_qk')
    tmo_check()
    A(f's_sub_u32 {s(sPOL)}, {s(sPOL)}, 1\ns_cmp_lg_u32 {s(sPOL)}, 0\ns_cbranch_scc1 L_fq')
    q_copy()
    A('s_branch L_fq')
    A('L_ga_f:')
    tmo_check(0)
    A(f's_sub_u32 {s(sPOL)}, {s(sPOL)}, 1\ns_cmp_lg_u32 {s(sPOL)}, 0\ns_cbranch_scc1 L_ga_f2\ns_add_u32 {s(sQC)}, {s(sQC)}, {QAB}')
    q_copy()
    A(f'L_ga_f2:\ns_cmp_lg_u32 {s(sKD)}, 0\ns_cbranch_scc1 L_ga')
    A(f'v_mov_b32 {v(FT+5)}, {SM+FLAGS}')
    flag_test(F_K)
    A(f's_cbranch_vccz L_ga\ns_mov_b32 {s(sKD)}, 1\ns_branch L_kread')
    anchor('aqb')
    A('L_qbar:\ns_barrier')
    A('L_qk:')
    qf, DS = T, T+16
    for ks in range(4):
        A(f'ds_read_b128 {v(qf+4*ks,4)}, {v(vQF)} offset:{QB+64*ks}')
    for ks in range(4):
        A(f's_waitcnt lgkmcnt({3-ks})')
        for tt in range(4):
            A(f'v_mfma_f32_16x16x32_bf16 {v(DS+4*tt,4)}, {v(qf+4*ks,4)}, {a(aK+16*tt+4*ks,4)}, {v(DS+4*tt,4) if ks else 0}')
    sa, sb, mx, t0 = T+32, T+33, T+34, T+35
    A(f's_lshl_b32 s6, {s(sW)}, 3\nv_add_u32 {v(T)}, s6, {v(vMLR)}')
    nop(4)
    A(f'v_cndmask_b32 {v(sa)}, {v(DS)}, {v(DS+4)}, {s(sMHI,2)}')
    nop(2)
    A(f'v_cndmask_b32 {v(sb)}, {v(DS+8)}, {v(DS+12)}, {s(sMHI,2)}')
    A(f'v_max_f32 {v(mx)}, {v(sa)}, {v(sb)}')
    for k in (8, 4, 2, 1):
        nop(2); dpp('v_max_f32', mx, mx, mx, f'row_ror:{k}')
    A(f'v_mov_b32 {v(t0)}, {v(mx)}')
    nop(2)
    A(f'v_permlane32_swap_b32 {v(mx)}, {v(t0)}\nv_max_f32 {v(mx)}, {v(mx)}, {v(t0)}')
    A(f'v_sub_f32 {v(sa)}, {v(sa)}, {v(mx)}\nv_sub_f32 {v(sb)}, {v(sb)}, {v(mx)}\nv_exp_f32 {v(sa)}, {v(sa)}\nv_exp_f32 {v(sb)}, {v(sb)}')
    nop(1)
    A(f'v_cvt_pk_bf16_f32 {v(sa)}, {v(sa)}, {v(sb)}')
    A(f'v_lshlrev_b32 {v(sb)}, 16, {v(sa)}\nv_and_b32 {v(t0)}, 0xffff0000, {v(sa)}\nv_add_f32 {v(t0)}, {v(t0)}, {v(sb)}')
    A(f'ds_write_b16 {v(vPW)}, {v(sa)}\nds_write_b16_d16_hi {v(vPW)}, {v(sa)} offset:64')
    for k in (8, 4, 2, 1):
        dpp('v_add_f32', t0, t0, t0, f'row_ror:{k}')
        if k > 1: nop(2)
    A(f'v_mov_b32 {v(sb)}, {v(t0)}')
    nop(2)
    A(f'v_permlane32_swap_b32 {v(t0)}, {v(sb)}\nv_add_f32 {v(t0)}, {v(t0)}, {v(sb)}')
    A(f'ds_write_b64 {v(T)}, {v(mx,2)}\ns_waitcnt lgkmcnt(0)')
    stamp(4)
    A(f's_cmp_lg_u32 {s(sLAY)}, 0\ns_cbranch_scc1 L_pbar')
    signal(F_P)
    A(f's_cmp_lg_u32 {s(sGOK)}, 0\ns_cbranch_scc1 L_gchk_n')
    A('L_gchk:')
    gchk_issue()
    A('L_gchk_n:')
    for tt in range(2):
        A(f's_lshl_b32 s6, {s(sW)}, 1\ns_add_u32 s6, s6, {tt}')
        tr_addr(T+4+tt, 6, 3, 0, VB, T)
    vt = T + 4
    def v_reads(ks):
        return [f'ds_read_b64_tr_b16 {a(aV+32*tt+4*ks+2*hh,2)}, {v(vt+tt)} offset:{ks*8192+hh*1024}' for tt in range(2) for hh in range(2)]
    pf, DO, ml = T, T+20, T+28
    NB = 5
    M_, L_ = T+40, T+41
    def ml_chain():
        chain = [f'v_max3_f32 {v(M_)}, {v(ml)}, {v(ml+2)}, {v(ml+4)}', f'v_max_f32 {v(M_)}, {v(M_)}, {v(ml+6)}']
        chain += [f'v_sub_f32 {v(ml+2*k)}, {v(ml+2*k)}, {v(M_)}' for k in range(4)]
        chain += [f'v_exp_f32 {v(ml+2*k)}, {v(ml+2*k)}' for k in range(4)]
        chain += [f'v_mul_f32 {v(L_)}, {v(ml)}, {v(ml+1)}'] + [f'v_fmac_f32 {v(L_)}, {v(ml+2*k)}, {v(ml+2*k+1)}' for k in range(1, 4)]
        return chain + [f'v_rcp_f32 {v(ml+1)}, {v(L_)}', f'v_log_f32 {v(L_)}, {v(L_)}']
    def pv_mfma(ks, r, tt):
        D = DO + 4*tt
        A(f'v_mfma_f32_16x16x32_bf16 {v(D,4)}, {v(r,4)}, {a(aV+32*tt+4*ks,4)}, {v(D,4) if ks else 0}')
    if not P['vs1']:
        wait_flag(F_V)
        if P['ls']: stamp(2)
        for ks in range(8):
            for ins in v_reads(ks): A(ins)
    A(f's_cmp_lg_u32 {s(sGOK)}, 0\ns_cbranch_scc1 L_gchk_d\ns_waitcnt vmcnt(0)')
    gchk_test('L_gchk_f')
    A('L_gchk_d:')
    A(f's_cmp_lg_u32 {s(sFAST)}, 0\ns_cbranch_scc1 L_nocopy')
    q_copy()
    A('L_nocopy:')
    if P['touch0']:
        A(f'v_lshlrev_b32 {v(T+16)}, 4, {v(vL4)}\nv_and_b32 {v(T+16)}, 0x7c0, {v(T+16)}\nv_mov_b32 {v(T+17)}, 0')
        A(f'buffer_load_dword {v(T+16)}, {v(T+16)}, {s(rWS,4)}, {s(sOBld)} offen sc1\nbuffer_load_dword {v(T+17)}, {v(T+17)}, {s(rWS,4)}, {s(sLSEld)} offen sc1')
    if P['ls'] and P['d2'] != 3: stamp(7)
    wait_flag(F_P, sleep=0)
    if P['ls'] and P['d2'] != 3: stamp(8)
    if not P['vs1']:
        A('s_branch L_pv')
    elif P['upv']:
        assert P['vbar']
        n1 = P['vs1'] // 2
        wait_flag(F_V1)
        vt = T + 42
        A(f'v_mov_b32 {v(vt)}, {v(T+4)}\nv_mov_b32 {v(vt+1)}, {v(T+5)}')
        for ks in range(n1):
            for ins in v_reads(ks): A(ins)
        A('s_branch L_pv\nL_pv0:\ns_barrier')
        if P['ls']: stamp(2)
        for ks in range(n1, 8):
            for ins in v_reads(ks): A(ins)
        A('s_waitcnt lgkmcnt(0)\ns_branch L_pv1')
    else:
        n1 = P['vs1'] // 2
        A(f'v_mov_b32 {v(T+18)}, {v(T+4)}\nv_mov_b32 {v(T+19)}, {v(T+5)}')
        vt = T + 18
        wait_flag(F_V1)
        NB0 = 4
        q = []
        def rd(ins, key): A(ins); q.append(key)
        def need(keys):
            last = max(i_ for i_, k_ in enumerate(q) if k_ in keys)
            A(f's_waitcnt lgkmcnt({min(14, len(q) - 1 - last)})')
        def p_read(ks): rd(f'ds_read_b128 {v(pf+4*(ks % NB0),4)}, {v(pa+(ks >> 1))} offset:{64*(ks & 1)}', ('P', ks))
        rd(f'ds_read_b128 {v(ml,4)}, {v(vMLR)}', 'ml'); rd(f'ds_read_b128 {v(ml+4,4)}, {v(vMLR)} offset:16', 'ml')
        for ks in range(n1):
            if ks < NB0: p_read(ks)
            for ins in v_reads(ks): rd(ins, ('V', ks))
        for ks in range(n1):
            need([('P', ks), ('V', ks)])
            for tt in range(2): pv_mfma(ks, pf+4*(ks % NB0), tt)
            if ks + NB0 < 8: p_read(ks + NB0)
        if P['vbar']: A('s_waitcnt lgkmcnt(0)')
        chain = ml_chain()
        if P['vbar']:
            for ins in chain: A(ins)
            chain = []
            A('s_barrier')
        else:
            wait_flag(F_V, sleep=P['vsl'])
        if P['ls']: stamp(2)
        q = []
        for ks in range(n1, 8):
            for ins in v_reads(ks): rd(ins, ('V', ks))
        for ins in chain: A(ins)
        for ks in range(n1, 8):
            need([('V', ks)])
            for tt in range(2): pv_mfma(ks, pf+4*(ks % NB0), tt)
        A('s_branch L_pvt')
    A('L_gchk_f:')
    tmo_check()
    A('s_branch L_gchk')
    anchor('apb')
    A('L_pbar:\ns_barrier')
    A('L_pv:')
    A(f'ds_read_b128 {v(ml,4)}, {v(vMLR)}\nds_read_b128 {v(ml+4,4)}, {v(vMLR)} offset:16')
    for ks in range(NB):
        A(f'ds_read_b128 {v(pf+4*ks,4)}, {v(pa+(ks >> 1))} offset:{64*(ks & 1)}')
    chain = ml_chain()
    for ks in range(8):
        r = pf + 4*(ks % NB)
        if P['vs1'] and P['upv'] and ks == P['vs1'] // 2:
            A(f's_cmp_eq_u32 {s(sLAY)}, 0\ns_cbranch_scc1 L_pv0\nL_pv1:')
        A(f's_waitcnt lgkmcnt({min(NB-1, 7-ks)})')
        for tt in range(2):
            D = DO + 4*tt
            A(f'v_mfma_f32_16x16x32_bf16 {v(D,4)}, {v(r,4)}, {a(aV+32*tt+4*ks,4)}, {v(D,4) if ks else 0}')
            A(chain.pop(0))
        if ks + NB < 8:
            A(f'ds_read_b128 {v(r,4)}, {v(pa+((ks+NB) >> 1))} offset:{64*((ks+NB) & 1)}')
    assert not chain
    A('L_pvt:')
    A(f'v_lshrrev_b32 {v(T)}, 1, {v(vL4)}\nv_add_f32 {v(L_)}, {v(L_)}, {v(M_)}')
    nop(5)
    for k in range(4): A(f'v_cndmask_b32 {v(DO+k)}, {v(DO+k)}, {v(DO+4+k)}, {s(sMHI,2)}')
    A(f'v_mul_f32 {v(DO)}, {v(DO)}, {v(ml)}')
    for k in range(1, 4): A(f'v_fmac_f32 {v(DO)}, {v(DO+k)}, {v(ml+2*k)}')
    A(f'v_mul_f32 {v(DO)}, {v(DO)}, {v(ml+1)}')
    nop(2)
    A(f'v_mov_b32_dpp {v(DO+1)}, {v(DO)} quad_perm:[1,0,3,2] row_mask:0xf bank_mask:0xf')
    A(f's_mov_b32 exec_lo, 0x55555555\ns_mov_b32 exec_hi, 0x55555555')
    A(f'v_cvt_pk_bf16_f32 {v(DO)}, {v(DO)}, {v(DO+1)}')
    def o_st(m):
        A(f'buffer_store_dword {v(DO)}, {v(vOBS)}, {s(rWS,4)}, {s(sOBst)} offen{m}')
        l = A.label('nolse')
        A(f's_cmp_lg_u32 {s(sW)}, 0\ns_cbranch_scc1 {l}\ns_mov_b64 exec, 0x10001')
        A(f'buffer_store_dword {v(L_)}, {v(T)}, {s(rWS,4)}, {s(sLSEst)} offen{m}')
        A(f'{l}:\ns_mov_b64 exec, -1')
    A(f's_cmp_eq_u32 {s(sFAST)}, 0\ns_cbranch_scc1 L_o_slow')
    o_st('')
    A('L_o_done:')
    stamp(5)
    A(f'v_and_b32 {v(T+9)}, 28, {v(vL4)}\nv_add_u32 {v(T+13)}, {s(sSM)}, {v(vT4)}')
    if P['bpace'] == 1: A('s_waitcnt vmcnt(0)')
    if P['bpace'] == 2: A(f's_cmp_eq_u32 {s(sLAY)}, 0\ns_cbranch_scc1 L_gb\ns_waitcnt vmcnt(0)')
    A('L_gb:')
    for k in range(8):
        A(f'buffer_load_dword {v(T+k)}, {v(vL4)}, {s(rWS,4)}, {s(sOBld)} offen offset:{256*k} sc1')
    A(f'buffer_load_dword {v(T+8)}, {v(T+9)}, {s(rWS,4)}, {s(sLSEld)} offen sc1')
    if P['hold']: A(f's_cmp_lg_u32 {s(sGOK)}, 1\ns_cbranch_scc1 L_gb_w\ns_mov_b32 {s(sGOK)}, 2\ns_barrier\nL_gb_w:')
    A('s_waitcnt vmcnt(0)')
    mm, ff = T+10, T+8
    check_sentinel(range(T, T+9), T+11, 'L_gb_f')
    dpp('v_max_f32', mm, ff, ff, 'row_ror:4')
    unp = [f'v_lshlrev_b32 {v(T+16+k)}, 16, {v(T+k)}\nv_and_b32 {v(T+k)}, 0xffff0000, {v(T+k)}' for k in range(8)]
    A(unp[0]); dpp('v_max_f32', mm, mm, mm, 'row_ror:2')
    A(unp[1]); dpp('v_max_f32', mm, mm, mm, 'row_ror:1')
    A(f'v_sub_f32 {v(ff)}, {v(ff)}, {v(mm)}\nv_exp_f32 {v(ff)}, {v(ff)}')
    A(unp[2]); dpp('v_add_f32', mm, ff, ff, 'row_ror:4')
    A(unp[3]); dpp('v_add_f32', mm, mm, mm, 'row_ror:2')
    A(unp[4]); dpp('v_add_f32', mm, mm, mm, 'row_ror:1')
    A(f'v_rcp_f32 {v(mm)}, {v(mm)}')
    A(unp[5])
    A(f'v_mul_f32 {v(ff)}, {v(ff)}, {v(mm)}')
    A(unp[6]); A(unp[7])
    lo, hi = T+11, T+12
    for k in range(8):
        op = 'v_mul_f32' if k == 0 else 'v_fmac_f32'
        dpp(op, lo, ff, T+16+k, f'row_newbcast:{k}')
        dpp(op, hi, ff, T+k, f'row_newbcast:{k}')
    A(f'v_cvt_pk_bf16_f32 {v(lo)}, {v(lo)}, {v(hi)}\nds_write_b32 {v(T+13)}, {v(lo)} offset:{OL}')
    A('s_waitcnt lgkmcnt(0)\ns_barrier')
    stamp(6)
    if P['amp'] == 3: A(f's_cmp_lg_u32 {s(sLAY)}, 0\ns_cbranch_scc1 L_amp3'); amp(3); A('L_amp3:')
    A(f's_or_b32 s6, s2, {s(sW)}\ns_or_b32 s6, s6, {s(sLAY)}\ns_cmp_lg_u32 s6, 0\ns_cbranch_scc1 L_cbar')
    A(f'v_mov_b32 {v(T)}, {s(sTAG)}\nv_mov_b32 {v(T+1)}, {EPO}\ns_mov_b64 exec, 1')
    A(f'buffer_store_dword {v(T)}, {v(T+1)}, {s(rWS,4)}, 0 offen sc1\ns_mov_b64 exec, -1\ns_branch L_cbar')
    A('L_o_slow:')
    o_st(' sc1')
    A('s_waitcnt vmcnt(0)\ns_branch L_o_done')
    A('L_gb_f:')
    tmo_check(1)
    A('s_branch L_gb')
    A('L_last:\ns_endpgm')
    hdr = open('cdna_kernels/' + NAME + '.s.ref').read().split('; Override launch')[0].rstrip('\n').split('\n')
    return wrap(A.text(), hdr, 256, 512, LDS_BYTES, 256, 128)


def emit_stamps(A, layer):
    A(f's_lshl_b32 s6, s2, 3\ns_add_u32 s6, s6, {s(sW)}\ns_lshl_b32 s6, s6, 7\ns_add_u32 s6, s6, {STAMP + 64*layer}')
    A(f'v_mov_b32 {v(T)}, s6')
    for i in range(10):
        A(f'v_mov_b32 {v(T+1)}, {s(sSTP+2*i)}\nglobal_store_dword {v(T)}, {v(T+1)}, {s(pWS,2)} offset:{4*i}')
    A(f'v_mov_b32 {v(T+1)}, {s(sCNT)}\nglobal_store_dword {v(T)}, {v(T+1)}, {s(pWS,2)} offset:40\ns_mov_b32 {s(sCNT)}, 0')


if __name__ == '__main__':
    out = sys.argv[1]
    kw = {}
    for x in sys.argv[2:]:
        k, val = x.split('='); kw[k] = val if k == 'order' else int(val, 0)
    open(out, 'w').write(gen(**kw))
```
